```python
import torch

def _softmax(x, axis=-1):
    return torch.softmax(x, dim=axis)
def _gelu(x):
    return torch.nn.functional.gelu(x, approximate="tanh")
def _silu(x):
    return torch.nn.functional.silu(x)
def _sigmoid(x):
    return torch.sigmoid(x)
def _layernorm(x, axis=-1, eps=1e-5):
    m = x.mean(dim=axis, keepdim=True)
    v = x.var(dim=axis, keepdim=True, unbiased=False)
    return (x - m) / torch.sqrt(v + eps)
def _scatter_add(tgt, idx, src, axis=0):
    return tgt.clone().index_add_(axis, idx, src)
def _segment_sum(src, seg, n):
    out = torch.zeros((n,) + src.shape[1:], dtype=src.dtype)
    return out.index_add_(0, seg, src)
def _pad(x, pw):
    flat = tuple(v for pair in reversed(pw) for v in pair)
    return torch.nn.functional.pad(x, flat)

kernel_name = 'gated_mix__ssm_conv_s4d__spectral_gfnet__prompt'

def setup_inputs():

    _w = (lambda a: (lambda t: t.to(torch.bfloat16) if t.is_floating_point() else t)(torch.as_tensor(a)))
    def _A_setup():
        Bsz, L, D, N = 1, 2048, 512, 128
        return {
            "u": _w((lambda *s: torch.randn(*s, dtype=torch.bfloat16) * 0.05)(Bsz, L, D)),
            "log_A_real": _w((lambda *s: torch.randn(*s, dtype=torch.bfloat16) * 3.2)(D, N) * 0.5),
            "A_imag": _w((lambda *s: torch.randn(*s, dtype=torch.bfloat16) * 0.05)(D, N) * 3.14),
            "C_real": _w((lambda *s: torch.randn(*s, dtype=torch.bfloat16) * 0.1)(D, N) / N ** 0.5),
            "C_imag": _w((lambda *s: torch.randn(*s, dtype=torch.bfloat16) * 0.1)(D, N) / N ** 0.5),
            "log_dt": _w((lambda *s: torch.randn(*s, dtype=torch.bfloat16) * 0.05)(D) * 0.5 - 4.0),
            "D_skip": _w((lambda *s: torch.randn(*s, dtype=torch.bfloat16) * 0.05)(D)),
        }
    _A_in = _A_setup()

    def _B_setup():
        B, S, D = 1, 2048, 512
        Df = D // 2 + 1
        return {
            "x": _w((lambda *s: torch.randn(*s, dtype=torch.bfloat16) * 0.05)(B, S, D)),
            "w_r": _w((lambda *s: torch.randn(*s, dtype=torch.bfloat16) * 1.6)(S, Df) * 0.02),
            "w_i": _w((lambda *s: torch.randn(*s, dtype=torch.bfloat16) * 1.6)(S, Df) * 0.02),
        }
    _B_in = _B_setup()

    return {
        "A_u": _A_in["u"],
        "A_log_A_real": _A_in["log_A_real"],
        "A_A_imag": _A_in["A_imag"],
        "A_C_real": _A_in["C_real"],
        "A_C_imag": _A_in["C_imag"],
        "A_log_dt": _A_in["log_dt"],
        "A_D_skip": _A_in["D_skip"],
        "B_x": _B_in["x"],
        "B_w_r": _B_in["w_r"],
        "B_w_i": _B_in["w_i"],
        "gate_w": _w((lambda *s: torch.randn(*s, dtype=torch.bfloat16) * 0.05)(512) * 16.0),
    }

def reference(A_u, A_log_A_real, A_A_imag, A_C_real, A_C_imag, A_log_dt, A_D_skip, B_x, B_w_r, B_w_i, gate_w):
    def _A_ref(u, log_A_real, A_imag, C_real, C_imag, log_dt, D_skip):
        L = u.shape[1]
        dt = torch.exp(log_dt)
        A = -torch.exp(log_A_real) + 1j * A_imag
        C = (C_real + 1j * C_imag) * dt[:, None]
        pos = (lambda x, dt: x.to(dt))(torch.arange(L), log_dt.dtype)
        P = torch.exp((A * dt[:, None])[:, :, None] * pos[None, None, :])
        K = 2.0 * torch.einsum("dn,dnl->dl", C, P).real
        L2 = 2 * L
        u_t = (lambda x, *d: x.permute(*d))(u, 0, 2, 1)
        Kf = (lambda x, *a, **k: torch.fft.rfft(x.float(), *a, **k))(K, L2)
        Uf = (lambda x, *a, **k: torch.fft.rfft(x.float(), *a, **k))(u_t, L2)
        y = (lambda x, *a, **k: torch.fft.irfft(x, *a, **k).to(torch.bfloat16))(Uf * Kf[None, :, :], L2)[:, :, :L]
        y = (lambda x, *d: x.permute(*d))(y, 0, 2, 1)
        return y + u * D_skip[None, None, :]

    def _B_ref(x, w_r, w_i):
        B, S, D = x.shape
        X = (lambda x, axes=(-2,-1): torch.fft.rfft2(x.float(), dim=axes))(x, axes=(-2, -1))
        W = w_r + 1j * w_i
        X = X * W
        y = (lambda x, s, axes=(-2,-1): torch.fft.irfft2(x, s=s, dim=axes).to(torch.bfloat16))(X, (S, D), axes=(-2, -1))
        return y

    x = A_u
    g = _sigmoid((x * gate_w).sum(-1, keepdims=True))
    a = _A_ref(x, A_log_A_real, A_A_imag, A_C_real, A_C_imag, A_log_dt, A_D_skip)
    b = _B_ref(x, B_w_r, B_w_i)
    return g * a + (1 - g) * b
```

```python
import re
class AsmError(Exception): pass

def regs_of(tok):
    tok = tok.strip()
    neg = False
    t = tok
    if t.startswith('-'): t = t[1:]
    if t.startswith('abs(') and t.endswith(')'): t = t[4:-1]
    if t.startswith('|') and t.endswith('|'): t = t[1:-1]
    m = re.fullmatch(r'([vsa])(\d+)', t)
    if m: return [(m.group(1), int(m.group(2)))]
    m = re.fullmatch(r'([vsa])\[(\d+):(\d+)\]', t)
    if m: return [(m.group(1), i) for i in range(int(m.group(2)), int(m.group(3)) + 1)]
    if t == 'vcc': return [('s', 106), ('s', 107)]
    if t == 'vcc_lo': return [('s', 106)]
    if t == 'vcc_hi': return [('s', 107)]
    if t == 'exec': return [('s', 126), ('s', 127)]
    if t == 'm0': return [('s', 124)]
    return []

TRANS = ('v_exp_f32', 'v_log_f32', 'v_rcp_f32', 'v_rsq_f32', 'v_sqrt_f32', 'v_sin_f32', 'v_cos_f32')

class Ins:
    def __init__(self, text):
        self.text = text
        code = text.split(';')[0].strip()
        parts = code.split(None, 1)
        self.op = parts[0]
        rest = parts[1] if len(parts) > 1 else ''
        ops, cur, depth = [], '', 0
        for ch in rest:
            if ch in '[(': depth += 1
            if ch in '])': depth -= 1
            if ch == ',' and depth == 0:
                ops.append(cur.strip()); cur = ''
            else: cur += ch
        if cur.strip(): ops.append(cur.strip())
        mods = ''
        if ops:
            sp = ops[-1].split(None, 1)
            ops[-1] = sp[0]
            mods = sp[1] if len(sp) > 1 else ''
        self.ops, self.mods = ops, mods
        op = self.op
        self.w, self.r = [], []
        self.kind = 'other'
        R = lambda i: regs_of(ops[i]) if i < len(ops) else []
        allr = lambda a: [x for i in range(a, len(ops)) for x in R(i)]
        if op.startswith('v_mfma'):
            self.kind = 'mfma'; self.w = R(0); self.r = allr(1)
            self.A, self.B, self.C = R(1), R(2), R(3)
            self.passes = 8 if '32x32' in op else 4
        elif op.startswith('v_'):
            self.kind = 'trans' if op.replace('_e32','').replace('_e64','') in TRANS else 'valu'
            if op.startswith('v_swap') or 'permlane16_swap' in op or 'permlane32_swap' in op:
                self.w = R(0) + R(1); self.r = R(0) + R(1)
            elif '_co_' in op:
                self.w = R(0) + R(1); self.r = allr(2)
            else:
                self.w = R(0); self.r = allr(1)
                if op.startswith(('v_fmac', 'v_dot2c', 'v_pk_fmac', 'v_writelane')): self.r += R(0)
                if '_dpp' in op: self.r += R(0)
                if op.startswith('v_cmpx'): self.w += [('s',126),('s',127)]
        elif op.startswith('ds_'):
            self.kind = 'ds'
            if op.startswith(('ds_read', 'ds_bpermute', 'ds_permute', 'ds_swizzle')) or '_rtn' in op:
                self.w = R(0); self.r = allr(1)
            else: self.r = allr(0)
        elif op.startswith(('buffer_', 'global_')):
            self.kind = 'vmem'
            self.lds = ' lds' in (' ' + mods) or '_lds_' in op
            if 'load' in op and not self.lds:
                self.w = R(0); self.r = allr(1)
            elif 'atomic' in op and 'sc0' in mods:
                self.w = R(0); self.r = allr(0)
            else: self.r = allr(0)
            if self.lds: self.r += [('s', 124)]
            self.store = 'store' in op
            self.wide = self.store and ('x3' in op or 'x4' in op)
            if self.store:
                self.data = R(0) if op.startswith('buffer_') else R(1)
        elif op.startswith(('s_load', 's_buffer_load', 's_memtime', 's_memrealtime')):
            self.kind = 'smem'; self.w = R(0); self.r = allr(1)
        elif op.startswith('s_'):
            self.kind = 'salu'
            if op.startswith(('s_cmp', 's_bitcmp', 's_cbranch', 's_branch', 's_waitcnt', 's_nop', 's_barrier', 's_endpgm', 's_sleep', 's_setprio')):
                self.r = allr(0)
            else:
                self.w = R(0); self.r = allr(1)
                if 'saveexec' in op: self.w += [('s',126),('s',127)]
    def states(self):
        if self.op == 's_nop': return int(self.ops[0], 0) + 1
        return 1

class Asm:
    def __init__(self):
        self.out = []
        self.reset()
        self.maxv = 0; self.maxs = 0
        self.ninst = 0
    def reset(self):
        self.hist = []
        self.vm = []
        self.lg = []
    def raw(self, text): self.out.append(text)
    def comment(self, t): self.out.append('    ; ' + t)
    def label(self, name, keep=False):
        self.out.append(name + ':')
        if not keep: self.reset()
    def _emit(self, ins):
        self.out.append('    ' + ins.text)
        self.hist.append(ins)
        if len(self.hist) > 40: self.hist.pop(0)
        self.ninst += 1
        for k, i in ins.w + ins.r:
            if k == 'v': self.maxv = max(self.maxv, i)
            if k == 's' and i < 102: self.maxs = max(self.maxs, i)
    def _need(self, ins):
        need = 0
        dist = 0
        rs, ws = set(ins.r), set(ins.w)
        for p in reversed(self.hist):
            req = 0
            pw = set(p.w)
            if p.kind in ('valu', 'trans'):
                pv = {x for x in pw if x[0] != 's'}; ps = {x for x in pw if x[0] == 's'}
                if ins.kind == 'mfma' and pv & rs: req = max(req, 2)
                if ins.kind == 'mfma' and (('s',126) in ps): req = max(req, 4)
                if p.kind == 'trans' and ins.kind in ('valu', 'mfma') and pv & rs: req = max(req, 1)
                if p.kind == 'trans' and ins.kind in ('ds', 'vmem') and pv & rs: req = max(req, 1)
                if ins.kind in ('valu', 'trans'):
                    if ('_dpp' in ins.op or 'permlane' in ins.op) and pv & rs: req = max(req, 2)
                    if ('readlane' in ins.op or 'readfirstlane' in ins.op) and pv & rs: req = max(req, 1)
                    if ps & rs: req = max(req, 4 if ('readlane' in ins.op or 'writelane' in ins.op) else 2)
                    if '_dpp' in ins.op and ('s',126) in ps: req = max(req, 5)
                    if ('op_sel' in p.mods and not p.op.startswith('v_pk')) and pv & (rs | ws): req = max(req, 1)
                if ins.kind == 'vmem' and ps & rs: req = max(req, 5)
                if ins.kind == 'salu' and ps & rs: req = max(req, 1)
            if p.kind == 'mfma':
                D = pw
                big = 12 if p.passes == 8 else 8
                if ins.kind == 'mfma':
                    if D & (set(ins.A) | set(ins.B)): req = max(req, big)
                    if D & set(ins.C):
                        if not (p.w == ins.C and p.passes == ins.passes): req = max(req, 10 if p.passes == 8 else 6)
                    elif D & ws and not (p.w == ins.w): req = max(req, big)
                elif ins.kind in ('valu', 'trans', 'ds', 'vmem'):
                    if D & (rs | ws): req = max(req, big)
                if ins.kind in ('valu', 'trans') and set(p.C) & ws: req = max(req, 7 if p.passes == 8 else 3)
            if p.kind == 'vmem' and getattr(p, 'wide', False) and set(p.data) & ws:
                req = max(req, 2)
            if p.kind == 'salu' and ('s',124) in pw and ins.kind == 'vmem' and ins.lds: req = max(req, 1)
            if p.op.startswith('v_dot') and ins.kind in ('valu','trans','mfma','ds','vmem') and pw & (rs | ws):
                if not (ins.op == p.op and not (pw & set(x for o in ins.ops[1:3] for x in regs_of(o)))): req = max(req, 3)
            need = max(need, req - dist)
            dist += p.states()
            if dist > 24: break
        return need
    def I(self, text):
        for line in text.strip().split('\n'):
            line = line.strip()
            if not line: continue
            if line.startswith(';'): self.comment(line[1:].strip()); continue
            self._I(line)
    def _I(self, text):
        ins = Ins(text)
        touched = set(ins.r) | set(ins.w)
        if ins.op == 's_waitcnt':
            m = re.search(r'vmcnt\((\d+)\)', text)
            if m:
                n = int(m.group(1)); self.vm = self.vm[len(self.vm) - n:] if n < len(self.vm) else self.vm
                if n == 0: self.vm = []
            m = re.search(r'lgkmcnt\((\d+)\)', text)
            if m:
                n = int(m.group(1)); self.lg = self.lg[len(self.lg) - n:] if n < len(self.lg) else self.lg
                if n == 0: self.lg = []
            self._emit(ins); return
        wv = wl = None
        for idx, regs in enumerate(self.vm):
            if regs & touched: wv = len(self.vm) - 1 - idx
        for idx, (kind, regs) in enumerate(self.lg):
            if regs & touched: wl = len(self.lg) - 1 - idx
        if wl is not None and any(k == 'smem' for k, _ in self.lg): wl = 0
        if wv is not None or wl is not None:
            s = 's_waitcnt'
            if wv is not None: s += f' vmcnt({min(wv, 63)})'
            if wl is not None: s += f' lgkmcnt({min(wl, 15)})'
            self._I(s)
        n = self._need(ins)
        while n > 0:
            k = min(n, 16)
            self._emit(Ins(f's_nop {k - 1}')); n -= k
        self._emit(ins)
        if ins.kind == 'vmem': self.vm.append(set(ins.w))
        if ins.kind == 'ds': self.lg.append(('ds', set(ins.w)))
        if ins.kind == 'smem': self.lg.append(('smem', set(ins.w)))
    def text(self): return '\n'.join(self.out) + '\n'

class VAlloc:
    def __init__(self, start=1, limit=256):
        self.free = set(range(start, limit)); self.limit = limit
    def get(self, n=1, align=None):
        if align is None: align = 2 if n > 1 else 1
        for b in range(0, self.limit, align):
            if all((b + i) in self.free for i in range(n)):
                for i in range(n): self.free.discard(b + i)
                return b
        raise AsmError('out of vgprs')
    def put(self, b, n=1):
        for i in range(n):
            assert (b + i) not in self.free
            self.free.add(b + i)
def v(b, n=1): return f'v{b}' if n == 1 else f'v[{b}:{b + n - 1}]'
def s(b, n=1): return f's{b}' if n == 1 else f's[{b}:{b + n - 1}]'
import struct
def f32(x): return '0x%08x' % struct.unpack('<I', struct.pack('<f', x))[0]
```

```python
import sys, math
from asmlib import *

YW_S = 16896
YW_OFF = 0
UT_OFF = 0x480000
KI_OFF = 0x680000
G_OFF  = 0xAA0000
V_OFF  = 0xB00000
V_S = 8192 + 128
AW_OFF = 0xD40000
AW_S = 8192 + 128
WS_BYTES = 0x1000000
LOG2E = 1.4426950408889634

def srd(a, d, b, nbytes):
    a.I(f's_mov_b32 s{d}, s{b}\n s_mov_b32 s{d+1}, s{b+1}\n s_mov_b32 s{d+2}, {nbytes}\n s_mov_b32 s{d+3}, 0x00020000')

def task_of(a, dst, tmp):
    a.I(f's_and_b32 s{dst}, s2, 7\n s_lshl_b32 s{dst}, s{dst}, 5\n s_bfe_u32 s{tmp}, s2, 0x50003\n s_or_b32 s{dst}, s{dst}, s{tmp}')

def lanes(a, V):
    n, q = V.get(), V.get()
    a.I(f'v_lshrrev_b32 {v(q)}, 6, v0')
    a.I(f'v_and_b32 {v(n)}, 15, v0')
    a.I(f'v_readfirstlane_b32 s3, {v(q)}')
    a.I(f'v_bfe_u32 {v(q)}, v0, 4, 2')
    return n, q

def cmul_tw(a, re, im, c, s_, t1, t2, sign):
    a.I(f'v_pk_mul_f32 {v(t1,2)}, {v(im,2)}, {v(s_,2)}')
    a.I(f'v_pk_mul_f32 {v(t2,2)}, {v(re,2)}, {v(s_,2)}')
    neg = ' neg_lo:[0,0,1] neg_hi:[0,0,1]'
    a.I(f'v_pk_fma_f32 {v(re,2)}, {v(re,2)}, {v(c,2)}, {v(t1,2)}' + (neg if sign > 0 else ''))
    a.I(f'v_pk_fma_f32 {v(im,2)}, {v(im,2)}, {v(c,2)}, {v(t2,2)}' + (neg if sign < 0 else ''))

def mfma(a, d, A, B, c):
    a.I(f'v_mfma_f32_16x16x32_bf16 {v(d,4)}, {v(A,4)}, {v(B,4)}, {c if isinstance(c,str) else v(c,4)}')

def cvt(a, d, x, y, nx=False, ny=False):
    a.I(f'v_cvt_pk_bf16_f32 {v(d)}, {"-" if nx else ""}{v(x)}, {"-" if ny else ""}{v(y)}')

def k1_b(a):
    V = VAlloc(1, 256)
    a.I('s_load_dwordx2 s[4:5], s[0:1], 0\n s_load_dwordx4 s[8:11], s[0:1], 64\n s_load_dwordx2 s[6:7], s[0:1], 80\n s_load_dwordx2 s[12:13], s[0:1], 104')
    task_of(a, 14, 15)
    n, q = lanes(a, V)
    ln = V.get(); a.I(f'v_and_b32 {v(ln)}, 63, v0')
    vdma = V.get(); a.I(f'v_lshlrev_b32 {v(vdma)}, 4, {v(ln)}')
    vut = V.get(); t0 = V.get(); t1 = V.get()
    a.I(f'v_and_b32 {v(t0)}, 3, v0\n v_lshlrev_b32 {v(vut)}, 13, {v(t0)}')
    a.I(f'v_and_b32 {v(t1)}, 0xfc, v0\n v_add_u32 {v(vut)}, {v(vut)}, {v(t1)}')
    vuts = V.get()
    a.I(f'v_lshlrev_b32 {v(vuts)}, 11, {v(t1)}\n v_lshl_add_u32 {v(vuts)}, {v(t0)}, 4, {v(vuts)}')
    vw = V.get(); vws = V.get(); kl = V.get()
    a.I(f'v_lshrrev_b32 {v(t0)}, 5, v0\n v_and_b32 {v(kl)}, 31, v0')
    a.I(f'v_mul_u32_u24 {v(vw)}, 514, {v(t0)}\n v_lshl_add_u32 {v(vw)}, {v(kl)}, 4, {v(vw)}')
    a.I(f'v_mul_u32_u24 {v(vws)}, {33*64}, {v(t0)}\n v_lshl_add_u32 {v(vws)}, {v(kl)}, 6, {v(vws)}')
    vgw = V.get(); a.I(f'v_lshlrev_b32 {v(vgw)}, 5, {v(kl)}')
    vgx = V.get(); a.I(f'v_mul_u32_u24 {v(vgx)}, 1056, {v(t0)}\n v_add_u32 {v(vgx)}, {v(vgx)}, {v(vgw)}')
    vgs = V.get(); a.I(f'v_lshlrev_b32 {v(vgs)}, 2, {v(t0)}')
    a.I(f's_lshl_b32 s16, s3, 9\n s_add_u32 s16, s16, s14\n s_lshl_b32 s16, s16, 10')
    a.I(f's_add_u32 s17, s16, {256*1024}')
    a.I(f's_mul_i32 s18, s3, 2112')
    a.I(f's_lshr_b32 s19, s14, 2\n s_and_b32 s20, s14, 3')
    a.I(f's_lshl_b32 s21, s19, 15\n s_lshl_b32 s22, s20, 8\n s_add_u32 s21, s21, s22')
    a.I(f's_lshl_b32 s22, s20, 19\n s_lshl_b32 s23, s19, 6\n s_add_u32 s22, s22, s23\n s_add_u32 s22, s22, {UT_OFF}')
    a.I(f's_mul_i32 s23, s14, 4112')
    a.I(f's_mul_i32 s24, s14, {YW_S}')
    a.I(f's_lshl_b32 s25, s14, 5\n s_add_u32 s25, s25, {G_OFF}')
    a.I('s_waitcnt lgkmcnt(0)')
    srd(a, 28, 4, 2097152);
    a.I('s_mov_b32 m0, s18')
    a.I(f'buffer_load_dwordx4 {v(vdma)}, s[28:31], s16 offen lds')
    a.I('s_add_u32 m0, s18, 1056')
    a.I(f'buffer_load_dwordx4 {v(vdma)}, s[28:31], s17 offen lds')
    srd(a, 32, 8, 1052672); srd(a, 36, 10, 1052672); srd(a, 40, 6, 1024); srd(a, 44, 12, WS_BYTES)
    UTL = V.get(8)
    for e in range(8):
        if e < 4: a.I(f'buffer_load_dword {v(UTL+e)}, {v(vut)}, s[28:31], s21 offen offset:{e*1024}')
        else:
            if e == 4: a.I('s_add_u32 s21, s21, 4096')
            a.I(f'buffer_load_dword {v(UTL+e)}, {v(vut)}, s[28:31], s21 offen offset:{(e-4)*1024}')
    WR = V.get(4, 4); WI = V.get(4, 4); WRN = V.get(); WIN = V.get()
    a.I(f'buffer_load_dwordx4 {v(WR,4)}, {v(vw)}, s[32:35], s23 offen')
    a.I(f'buffer_load_dwordx4 {v(WI,4)}, {v(vw)}, s[36:39], s23 offen')
    a.I(f'buffer_load_short_d16_hi {v(WRN)}, {v(vw)}, s[32:35], s23 offen offset:16')
    a.I(f'buffer_load_short_d16_hi {v(WIN)}, {v(vw)}, s[36:39], s23 offen offset:16')
    GW = V.get(8, 4)
    a.I(f'buffer_load_dwordx4 {v(GW,4)}, {v(vgw)}, s[40:43], 0 offen')
    a.I(f'buffer_load_dwordx4 {v(GW+4,4)}, {v(vgw)}, s[40:43], 0 offen offset:16')
    NLOADS_AFTER_DMA = 14
    f1 = V.get(); kH = V.get(); fF = V.get(); fK = V.get(); base = V.get()
    a.I(f'v_lshrrev_b32 {v(f1)}, 3, {v(n)}\n s_lshl_b32 s26, s3, 1\n v_add_u32 {v(f1)}, s26, {v(f1)}\n v_and_b32 {v(kH)}, 7, {v(n)}')
    a.I(f'v_cvt_f32_u32 {v(fF)}, {v(f1)}\n v_cvt_f32_u32 {v(fK)}, {v(kH)}')
    a.I(f'v_and_b32 {v(t0)}, 1, {v(q)}\n v_lshlrev_b32 {v(t0)}, 2, {v(t0)}\n v_mul_u32_u24 {v(t0)}, {v(t0)}, {v(f1)}')
    a.I(f'v_and_b32 {v(t1)}, 2, {v(q)}\n v_mad_u32_u24 {v(t0)}, {v(t1)}, {v(kH)}, {v(t0)}')
    a.I(f'v_cvt_f32_u32 {v(base)}, {v(t0)}\n v_mul_f32 {v(base)}, 0.125, {v(base)}')
    C1 = V.get(16, 4)
    T = V.get(16)
    sgn = V.get()
    a.I(f'v_and_b32 {v(sgn)}, 1, {v(kH)}\n v_mul_u32_u24 {v(sgn)}, 0x8000, {v(sgn)}\n v_lshl_or_b32 {v(sgn)}, {v(sgn)}, 16, {v(sgn)}')
    for h in range(2):
        if h == 1: a.I(f'v_fmamk_f32 {v(base)}, {v(fK)}, {f32(0.125)}, {v(base)}')
        for r in range(4):
            if r == 0: ang = base
            else:
                ang = T + 8 + r
                a.I(f'v_fmamk_f32 {v(ang)}, {v(fF)}, {f32(0.125*r)}, {v(base)}')
            a.I(f'v_cos_f32 {v(T+r)}, {v(ang)}\n v_sin_f32 {v(T+4+r)}, {v(ang)}')
        cvt(a, C1+2*h, T, T+1); cvt(a, C1+2*h+1, T+2, T+3)
        cvt(a, C1+8+2*h, T+4, T+5, True, True); cvt(a, C1+8+2*h+1, T+6, T+7, True, True)
    for i in range(4):
        a.I(f'v_xor_b32 {v(C1+4+i)}, {v(sgn)}, {v(C1+i)}\n v_xor_b32 {v(C1+12+i)}, {v(sgn)}, {v(C1+8+i)}')
    TC = V.get(16); TS = V.get(16)
    a.I(f'v_mul_u32_u24 {v(t0)}, {v(kH)}, {v(q)}\n v_lshlrev_b32 {v(t0)}, 4, {v(t0)}\n v_mad_u32_u24 {v(t0)}, {v(f1)}, s14, {v(t0)}')
    a.I(f'v_cvt_f32_u32 {v(base)}, {v(t0)}\n v_mul_f32 {v(base)}, {f32(1/2048)}, {v(base)}')
    for t in range(4):
        for i in range(4):
            k = 16*t + i
            if k == 0: ang = base
            else:
                ang = T + (k % 4)
                a.I(f'v_fmamk_f32 {v(ang)}, {v(fK)}, {f32(k/512)}, {v(base)}')
            a.I(f'v_cos_f32 {v(TC+4*t+i)}, {v(ang)}\n v_sin_f32 {v(TS+4*t+i)}, {v(ang)}')
    C2 = V.get(48)
    fN = V.get()
    a.I(f'v_cvt_f32_u32 {v(fN)}, {v(n)}\n v_mul_u32_u24 {v(t0)}, {v(n)}, {v(q)}\n v_cvt_f32_u32 {v(base)}, {v(t0)}\n v_mul_f32 {v(base)}, {f32(1/16)}, {v(base)}')
    for t in range(4):
        for i in range(4):
            k = 16*t + i
            if k == 0: ang = base
            else:
                ang = T + 8 + i
                a.I(f'v_fmamk_f32 {v(ang)}, {v(fN)}, {f32(k/64)}, {v(base)}')
            a.I(f'v_cos_f32 {v(T+i)}, {v(ang)}\n v_sin_f32 {v(T+4+i)}, {v(ang)}')
        c = [T+i for i in range(4)]; s_ = [T+4+i for i in range(4)]
        b0 = C2 + 6*t; b1 = C2 + 24 + 6*t
        cvt(a, b0+0, s_[0], s_[1], True, True); cvt(a, b0+1, s_[2], s_[3], True, True)
        cvt(a, b0+2, c[0], c[1]); cvt(a, b0+3, c[2], c[3])
        cvt(a, b0+4, s_[0], s_[1]); cvt(a, b0+5, s_[2], s_[3])
        cvt(a, b1+0, s_[0], c[1], True, True); cvt(a, b1+1, s_[2], c[3])
        cvt(a, b1+2, c[0], s_[1], False, True); cvt(a, b1+3, c[2], s_[3], True, False)
        cvt(a, b1+4, s_[0], c[1]); cvt(a, b1+5, s_[2], c[3], True, True)
    CN = V.get(4, 2)
    a.I(f'v_mov_b32 {v(t0)}, 0xbf803f80')
    a.I(f'v_cmp_eq_u32 vcc, 0, {v(n)}\n v_cndmask_b32 {v(CN)}, 0, {v(t0)}, vcc\n v_cndmask_b32 {v(CN+1)}, 0, {v(t0)}, vcc')
    a.I(f'v_cmp_eq_u32 vcc, 1, {v(n)}\n v_cndmask_b32 {v(CN+2)}, 0, {v(t0)}, vcc\n v_cndmask_b32 {v(CN+3)}, 0, {v(t0)}, vcc')
    vtr = V.get()
    a.I(f'v_bfe_u32 {v(t0)}, v0, 2, 3\n v_mul_u32_u24 {v(vtr)}, 1056, {v(t0)}')
    a.I(f'v_bfe_u32 {v(t0)}, v0, 5, 1\n v_lshl_add_u32 {v(vtr)}, {v(t0)}, 8, {v(vtr)}')
    a.I(f'v_and_b32 {v(t0)}, 3, v0\n v_lshl_add_u32 {v(vtr)}, {v(t0)}, 3, {v(vtr)}')
    vys = V.get(); vyn = V.get()
    a.I(f'v_lshrrev_b32 {v(t0)}, 5, v0\n v_mul_u32_u24 {v(vyn)}, {33*64}, {v(t0)}\n v_lshl_add_u32 {v(vys)}, {v(n)}, 6, {v(vyn)}')
    a.I(f'v_and_b32 {v(t0)}, 16, v0\n v_add_u32 {v(vys)}, {v(vys)}, {v(t0)}')
    a.I(f'v_lshl_add_u32 {v(vyn)}, {v(n)}, 1, {v(vyn)}')
    a.I(f's_waitcnt vmcnt({NLOADS_AFTER_DMA})\n s_barrier')
    XA = V.get(32, 4)
    for t in range(4):
        for g in range(2):
            for h in range(2):
                a.I(f'ds_read_b64_tr_b16 {v(XA+8*t+4*g+2*h,2)}, {v(vtr)} offset:{512*g+128*h+32*t}')
    ACC = V.get(32, 4)
    for t in range(4):
        for p in range(2): mfma(a, ACC+8*t+4*p, XA+8*t, C1+8*p, '0')
        for p in range(2): mfma(a, ACC+8*t+4*p, XA+8*t+4, C1+8*p+4, ACC+8*t+4*p)
    A2 = V.get(20, 4)
    for t in range(4):
        re, im = ACC+8*t, ACC+8*t+4
        cmul_tw(a, re, im, TC+4*t, TS+4*t, T, T+2, -1)
        cmul_tw(a, re+2, im+2, TC+4*t+2, TS+4*t+2, T+4, T+6, -1)
        F = XA + 8*t
        cvt(a, F, re, re+1); cvt(a, F+2, im, im+1); cvt(a, F+1, re+2, re+3); cvt(a, F+3, im+2, im+3)
        for ct in range(2):
            b = C2 + 24*ct + 6*t
            mfma(a, A2+8*ct, F, b+2, '0' if t == 0 else A2+8*ct)
            mfma(a, A2+8*ct+4, F, b, '0' if t == 0 else A2+8*ct+4)
        mfma(a, A2+16, F, CN, '0' if t == 0 else A2+16)
    U0 = ACC; U1 = ACC + 4
    a.I('s_mov_b32 s26, 0x05040100\n s_mov_b32 s27, 0x07060302')
    for i in range(4):
        a.I(f'v_perm_b32 {v(U0+i)}, {v(UTL+2*i+1)}, {v(UTL+2*i)}, s26')
        a.I(f'v_perm_b32 {v(U1+i)}, {v(UTL+2*i+1)}, {v(UTL+2*i)}, s27')
    for ct in range(2):
        O = XA + 4*ct
        for i in range(4): cvt(a, O+i, A2+8*ct+i, A2+8*ct+4+i)
        a.I(f'buffer_store_dwordx4 {v(O,4)}, {v(vys)}, s[44:47], s24 offen offset:{1024*ct}')
    a.I(f'buffer_store_dwordx4 {v(U0,4)}, {v(vuts)}, s[44:47], s22 offen')
    a.I('s_add_u32 s22, s22, 4096')
    a.I(f'buffer_store_dwordx4 {v(U1,4)}, {v(vuts)}, s[44:47], s22 offen')
    cvt(a, T, A2+16, A2+16)
    a.I('s_mov_b32 exec_lo, 0xf\n s_mov_b32 exec_hi, 0xf')
    a.I(f'buffer_store_short {v(T)}, {v(vyn)}, s[44:47], s24 offen offset:2048')
    a.I('s_mov_b64 exec, -1')
    GX = XA + 8
    a.I(f'ds_read_b128 {v(GX,4)}, {v(vgx)}\n ds_read_b128 {v(GX+4,4)}, {v(vgx)} offset:16')
    WO = ACC + 8
    for p in range(4):
        a.I(f'v_perm_b32 {v(WO+2*p)}, {v(WI+p)}, {v(WR+p)}, s26')
        a.I(f'v_perm_b32 {v(WO+2*p+1)}, {v(WI+p)}, {v(WR+p)}, s27')
    a.I(f'v_cmp_eq_u32 vcc, 0, {v(kl)}\n v_cndmask_b32 {v(t0)}, 1.0, 0.5, vcc')
    a.I(f'v_lshlrev_b32 {v(T+2)}, 16, {v(WO)}\n v_and_b32 {v(T+3)}, 0xffff0000, {v(WO)}')
    a.I(f'v_mul_f32 {v(T+2)}, {v(t0)}, {v(T+2)}\n v_mul_f32 {v(T+3)}, {v(t0)}, {v(T+3)}')
    cvt(a, WO, T+2, T+3)
    a.I(f'v_mul_f32 {v(WRN)}, 0.5, {v(WRN)}\n v_mul_f32 {v(WIN)}, 0.5, {v(WIN)}')
    cvt(a, T+4, WRN, WIN); a.I(f'v_mov_b32 {v(T+5)}, 0')
    a.I(f'buffer_store_dwordx4 {v(WO,4)}, {v(vws)}, s[44:47], s24 offen offset:32')
    a.I(f'buffer_store_dwordx4 {v(WO+4,4)}, {v(vws)}, s[44:47], s24 offen offset:48')
    a.I('s_mov_b32 exec_lo, 0x80000000\n s_mov_b32 exec_hi, 0x80000000')
    a.I(f'buffer_store_dwordx2 {v(T+4,2)}, {v(vws)}, s[44:47], s24 offen offset:96')
    a.I('s_mov_b64 exec, -1')
    acc = T + 8; acc2 = T + 9
    a.I(f'v_mov_b32 {v(acc)}, 0\n v_mov_b32 {v(acc2)}, 0')
    for i in range(8): a.I(f'v_dot2c_f32_bf16 {v(acc if i % 2 == 0 else acc2)}, {v(GX+i)}, {v(GW+i)}')
    a.I(f'v_add_f32 {v(acc)}, {v(acc)}, {v(acc2)}')
    for m in ('quad_perm:[1,0,3,2]', 'quad_perm:[2,3,0,1]', 'row_half_mirror', 'row_mirror'):
        a.I(f'v_add_f32_dpp {v(acc)}, {v(acc)}, {v(acc)} {m} row_mask:0xf bank_mask:0xf')
    a.I(f'v_add_f32_dpp {v(acc)}, {v(acc)}, {v(acc)} row_bcast:15 row_mask:0xa bank_mask:0xf')
    a.I(f'v_mul_f32 {v(acc)}, {f32(-LOG2E)}, {v(acc)}\n v_exp_f32 {v(acc)}, {v(acc)}\n v_add_f32 {v(acc)}, 1.0, {v(acc)}\n v_rcp_f32 {v(acc)}, {v(acc)}')
    a.I('s_mov_b32 exec_lo, 0x80000000\n s_mov_b32 exec_hi, 0x80000000')
    a.I(f'buffer_store_dword {v(acc)}, {v(vgs)}, s[44:47], s25 offen')
    a.I('s_endpgm')

RS = 544
TB_CH = 53 * RS
KF_OFF = 2 * TB_CH + 64
KF_CH = 6144 + 64
K1_LDS = KF_OFF + 2 * KF_CH

def cmul(a, d, x, y, t):
    a.I(f'v_pk_mul_f32 {v(t,2)}, {v(x,2)}, {v(y,2)} op_sel_hi:[0,1]')
    a.I(f'v_pk_fma_f32 {v(d,2)}, {v(x,2)}, {v(y,2)}, {v(t,2)} op_sel:[1,1,0] op_sel_hi:[1,0,1] neg_lo:[1,0,0]')

def k1_a(a):
    V = VAlloc(1, 256)
    a.I('s_load_dwordx8 s[4:11], s[0:1], 8\n s_load_dwordx4 s[12:15], s[0:1], 40\n s_load_dwordx2 s[16:17], s[0:1], 104')
    task_of(a, 18, 19)
    n, q = lanes(a, V)
    t0 = V.get(); t1 = V.get()
    vp = V.get(); a.I(f'v_lshlrev_b32 {v(vp)}, 1, v0')
    vch = V.get(); a.I(f'v_lshrrev_b32 {v(vch)}, 7, v0')
    vd = V.get(); a.I(f'v_lshlrev_b32 {v(vd)}, 1, {v(vch)}')
    vd2 = V.get(); a.I(f'v_bfe_u32 {v(vd2)}, v0, 6, 1\n v_lshlrev_b32 {v(vd2)}, 1, {v(vd2)}')
    a.I('s_lshl_b32 s19, s18, 9\n s_lshl_b32 s20, s18, 2')
    a.I(f's_lshl_b32 s21, s18, 14\n s_add_u32 s21, s21, {KI_OFF}')
    a.I('s_waitcnt lgkmcnt(0)')
    LA, AI, CR, CI, LD, DS = (V.get() for _ in range(6))
    srd(a, 24, 12, 1024)
    a.I(f'buffer_load_short_d16_hi {v(LD)}, {v(vd)}, s[24:27], s20 offen')
    for k, r in enumerate((LA, AI, CR, CI)):
        srd(a, 28 + 4*k, 4 + 2*k, 131072)
        a.I(f'buffer_load_short_d16_hi {v(r)}, {v(vp)}, s[{28+4*k}:{31+4*k}], s19 offen')
    srd(a, 44, 14, 1024); srd(a, 48, 16, WS_BYTES)
    a.I(f'buffer_load_short_d16_hi {v(DS)}, {v(vd2)}, s[44:47], s20 offen')
    vtw = V.get()
    a.I(f'v_and_b32 {v(t0)}, 127, v0\n v_mul_u32_u24 {v(vtw)}, {TB_CH}, {v(vch)}\n v_lshl_add_u32 {v(vtw)}, {v(t0)}, 2, {v(vtw)}')
    J0 = V.get(); sh = V.get(); JM = V.get(); cst = V.get(); GA = V.get(17)
    a.I(f'v_lshlrev_b32 {v(J0)}, 4, {v(t0)}\n v_sub_u32 {v(J0)}, 2032, {v(J0)}')
    a.I(f'v_or_b32 {v(sh)}, 1, {v(J0)}\n v_ffbh_u32 {v(sh)}, {v(sh)}\n v_sub_u32 {v(sh)}, 24, {v(sh)}\n v_max_i32 {v(sh)}, 0, {v(sh)}')
    a.I(f'v_add_u32 {v(JM)}, 150, {v(sh)}\n v_lshlrev_b32 {v(JM)}, 23, {v(JM)}')
    kfb = V.get()
    a.I(f'v_mul_u32_u24 {v(kfb)}, {KF_CH}, {v(vch)}\n v_add_u32 {v(kfb)}, {KF_OFF}, {v(kfb)}')
    a.I(f'v_lshrrev_b32 {v(t1)}, {v(sh)}, {v(J0)}\n v_add_u32 {v(sh)}, 1, {v(sh)}')
    a.I(f'v_lshlrev_b32 {v(cst)}, {v(sh)}, {v(JM)}\n v_sub_u32 {v(cst)}, {v(kfb)}, {v(cst)}\n v_add_u32 {v(JM)}, {v(JM)}, {v(t1)}')
    for e in range(16):
        if e == 0: a.I(f'v_lshl_add_u32 {v(GA+1)}, {v(JM)}, {v(sh)}, {v(cst)}')
        else:
            a.I(f'v_add_f32 {v(GA+1+e)}, {f32(float(e))}, {v(JM)}')
            a.I(f'v_lshl_add_u32 {v(GA+1+e)}, {v(GA+1+e)}, {v(sh)}, {v(cst)}')
    a.I(f'v_cmp_ge_u32 vcc, 256, {v(J0)}\n v_cndmask_b32 {v(t1)}, 0, 2, vcc\n v_sub_u32 {v(GA)}, {v(GA+1)}, {v(t1)}')
    a.I(f'v_mov_b32 {v(t1)}, 0\n v_add_u32 {v(kfb)}, -4, {v(kfb)}\n ds_write_b32 {v(kfb)}, {v(t1)}')
    vks = V.get()
    a.I(f'v_lshlrev_b32 {v(vks)}, 13, {v(vch)}\n v_lshl_add_u32 {v(vks)}, {v(t0)}, 5, {v(vks)}')
    vra = V.get(); vrb = V.get()
    a.I(f's_and_b32 s22, s3, 1\n s_mul_i32 s22, s22, {TB_CH}\n s_lshr_b32 s23, s3, 1\n s_mul_i32 s52, s23, {16*RS}\n s_add_u32 s52, s52, {21*RS}')
    a.I(f'v_mul_u32_u24 {v(vra)}, {RS}, {v(n)}\n v_lshl_add_u32 {v(vra)}, {v(q)}, 4, {v(vra)}\n v_add_u32 {v(vra)}, s22, {v(vra)}\n v_add_u32 {v(vrb)}, s52, {v(vra)}')
    KW = V.get(4); kw1 = V.get()
    a.I(f's_and_b32 s53, s3, 1\n s_mul_i32 s53, s53, {KF_CH}\n s_lshl_b32 s54, s23, 8\n s_add_u32 s53, s53, s54\n s_add_u32 s53, s53, {KF_OFF}')
    a.I(f'v_lshlrev_b32 {v(kw1)}, 4, {v(n)}\n v_add_u32 {v(kw1)}, s53, {v(kw1)}')
    POS = [[i for i in range(4)], [4+i for i in range(4)], [256+2*i for i in range(4)], [512+256*(i>>1)+4*(i&1) for i in range(4)]]
    for i in range(4):
        a.I(f'v_mov_b32 {v(KW+i)}, {2*POS[0][i]}')
    for qq in range(1, 4):
        a.I(f'v_cmp_eq_u32 vcc, {qq}, {v(q)}')
        for i in range(4):
            a.I(f'v_mov_b32 {v(t1)}, {2*POS[qq][i]}\n v_cndmask_b32 {v(KW+i)}, {v(KW+i)}, {v(t1)}, vcc')
    for i in range(4): a.I(f'v_add_u32 {v(KW+i)}, {v(KW+i)}, {v(kw1)}')
    a.I(f'v_lshl_add_u32 {v(kw1)}, {v(q)}, 11, {v(kw1)}')
    a.I(f'v_mov_b32 {v(t1)}, 0x3f80\n ds_write_b32 {v(vtw)}, {v(t1)} offset:{21*RS}')
    dt = V.get(); ar = V.get(); rev = V.get()
    a.I(f'v_mul_f32 {v(dt)}, {f32(LOG2E)}, {v(LD)}\n v_exp_f32 {v(dt)}, {v(dt)}')
    a.I(f'v_mul_f32 {v(ar)}, {f32(LOG2E)}, {v(LA)}\n v_exp_f32 {v(ar)}, {v(ar)}')
    cvt(a, t0, dt, ar)
    a.I(f'v_lshlrev_b32 {v(dt)}, 16, {v(t0)}\n v_and_b32 {v(ar)}, 0xffff0000, {v(t0)}')
    a.I(f'v_mul_f32 {v(ar)}, {v(ar)}, {v(dt)}\n v_mul_f32 {v(ar)}, {f32(-LOG2E)}, {v(ar)}')
    a.I(f'v_mul_f32 {v(rev)}, {v(AI)}, {v(dt)}\n v_mul_f32 {v(rev)}, 0.15915494, {v(rev)}')
    Z = {}
    mag = V.get(4); ang = V.get(4)
    for k, p in enumerate((8, 1, 128, 256)):
        Z[p] = V.get(2)
        a.I(f'v_mul_f32 {v(mag+k)}, {f32(float(p))}, {v(ar)}\n v_mul_f32 {v(ang+k)}, {f32(float(p))}, {v(rev)}')
        a.I(f'v_fract_f32 {v(ang+k)}, {v(ang+k)}\n v_exp_f32 {v(mag+k)}, {v(mag+k)}')
        a.I(f'v_cos_f32 {v(Z[p])}, {v(ang+k)}\n v_sin_f32 {v(Z[p]+1)}, {v(ang+k)}')
    E = V.get(16)
    a.I(f'v_add_f32 {v(dt)}, {v(dt)}, {v(dt)}\n v_mul_f32 {v(E)}, {v(CR)}, {v(dt)}\n v_mul_f32 {v(E+1)}, {v(CI)}, {v(dt)}')
    for k, p in enumerate((8, 1, 128, 256)):
        a.I(f'v_mul_f32 {v(Z[p])}, {v(mag+k)}, {v(Z[p])}\n v_mul_f32 {v(Z[p]+1)}, {v(mag+k)}, {v(Z[p]+1)}')
    TT = V.get(8); PK = V.get(4)
    cnt = [0]
    def put(row, x, base):
        r = PK + cnt[0] % 4; cnt[0] += 1
        cvt(a, r, x, x+1, False, base)
        a.I(f'ds_write_b32 {v(vtw)}, {v(r)} offset:{row*RS}')
    O = V.get(4); H = V.get(2)
    offs_ops = []
    cur = Z[8]
    offs_ops.append(lambda: (put(21+1, Z[8], False), put(21+16, Z[128], False)))
    offs_ops.append(lambda: (cmul(a, H, Z[8], Z[128], TT+2), put(21+17, H, False)))
    for i in range(2, 16):
        nxt = O + 2*(i % 2)
        def f(i=i, cur=cur, nxt=nxt):
            cmul(a, nxt, cur, Z[8], TT); cmul(a, H, nxt, Z[128], TT+2)
            put(21+i, nxt, False); put(21+16+i, H, False)
        offs_ops.append(f); cur = nxt
    base_ops = []
    base_ops.append(lambda: put(0, E, True))
    for e in range(1, 8):
        base_ops.append(lambda e=e: (cmul(a, E+2*e, E+2*e-2, Z[1], TT+4), put(e, E+2*e, True)))
    for k, e in enumerate((0, 2, 4, 6)):
        base_ops.append(lambda k=k, e=e: (cmul(a, E+2*e, E+2*e, Z[256], TT+4), put(8+k, E+2*e, True)))
    for i in range(2):
        for k, e in enumerate((0, 4)):
            base_ops.append(lambda i=i, k=k, e=e: (cmul(a, E+2*e, E+2*e, Z[256], TT+4), put(12+2*i+k, E+2*e, True)))
    for i in range(5):
        base_ops.append(lambda i=i: (cmul(a, E, E, Z[256], TT+4), put(16+i, E, True)))
    while offs_ops or base_ops:
        if offs_ops: offs_ops.pop(0)()
        if base_ops: base_ops.pop(0)()
    ACC = V.get(8, 4)
    a.I(f'v_and_b32 {v(t0)}, 0xbf, v0\n v_cmp_eq_u32 vcc, 0, {v(t0)}\n v_cndmask_b32 {v(ACC)}, 0, {v(DS)}, vcc')
    a.I(f'v_mov_b32 {v(ACC+1)}, 0\n v_mov_b32 {v(ACC+2)}, 0\n v_mov_b32 {v(ACC+3)}, 0')
    a.I('s_waitcnt lgkmcnt(0)\n s_barrier')
    FR = V.get(96, 4)
    for k in range(8):
        a.I(f'ds_read_b128 {v(FR+12*k,4)}, {v(vrb)} offset:{64*k}')
        a.I(f'ds_read_b128 {v(FR+12*k+4,4)}, {v(vra)} offset:{64*k}')
        a.I(f'ds_read_b128 {v(FR+12*k+8,4)}, {v(vra)} offset:{64*k+16*RS}')
    for k in range(8):
        mfma(a, ACC, FR+12*k+4, FR+12*k, ACC)
        mfma(a, ACC+4, FR+12*k+8, FR+12*k, '0' if k == 0 else ACC+4)
    cvt(a, PK, ACC, ACC+1); cvt(a, PK+1, ACC+2, ACC+3)
    a.I(f'ds_write_b16 {v(KW)}, {v(PK)}\n ds_write_b16_d16_hi {v(KW+1)}, {v(PK)}\n ds_write_b16 {v(KW+2)}, {v(PK+1)}\n ds_write_b16_d16_hi {v(KW+3)}, {v(PK+1)}')
    cvt(a, PK+2, ACC+4, ACC+5); cvt(a, PK+3, ACC+6, ACC+7)
    a.I('s_mov_b32 exec_hi, 0')
    a.I(f'ds_write_b16 {v(kw1)}, {v(PK+2)} offset:2048\n ds_write_b16_d16_hi {v(kw1)}, {v(PK+2)} offset:2560')
    a.I(f'ds_write_b16 {v(kw1)}, {v(PK+3)} offset:3072\n ds_write_b16_d16_hi {v(kw1)}, {v(PK+3)} offset:3584')
    a.I('s_mov_b64 exec, -1')
    a.I('s_waitcnt lgkmcnt(0)\n s_barrier')
    G = FR
    for e in range(16, -1, -1): a.I(f'ds_read_u16 {v(G+e)}, {v(GA+e)}')
    EO = FR + 20
    for b in range(8):
        a.I(f'v_lshl_or_b32 {v(EO+b)}, {v(G+1+14-2*b)}, 16, {v(G+1+15-2*b)}')
        a.I(f'v_lshl_or_b32 {v(EO+8+b)}, {v(G+1+13-2*b)}, 16, {v(G+1+14-2*b)}')
    a.I(f'buffer_store_dwordx4 {v(EO,4)}, {v(vks)}, s[48:51], s21 offen')
    a.I(f'buffer_store_dwordx4 {v(EO+4,4)}, {v(vks)}, s[48:51], s21 offen offset:16')
    a.I('s_add_u32 s21, s21, 4096')
    a.I(f'buffer_store_dwordx4 {v(EO+8,4)}, {v(vks)}, s[48:51], s21 offen')
    a.I(f'buffer_store_dwordx4 {v(EO+12,4)}, {v(vks)}, s[48:51], s21 offen offset:16')
    a.I('s_endpgm')

U_CH = 4608
K2_KB = 2 * U_CH
K2_RED = K2_KB + 4 * 4160
K2_LDS = K2_RED + 16384

def k2_a(a):
    V = VAlloc(1, 168)
    a.I('s_load_dwordx2 s[4:5], s[0:1], 104')
    task_of(a, 18, 19)
    ACC = V.get(32, 4)
    S = [V.get(64, 4), V.get(64, 4)]
    n, q, t0, t1, vdma = (S[1] + i for i in range(5))
    a.I(f'v_lshrrev_b32 {v(q)}, 6, v0\n v_and_b32 {v(n)}, 15, v0\n v_readfirstlane_b32 s3, {v(q)}\n v_bfe_u32 {v(q)}, v0, 4, 2')
    a.I(f'v_and_b32 {v(vdma)}, 63, v0\n v_lshlrev_b32 {v(vdma)}, 4, {v(vdma)}')
    a.I(f's_lshl_b32 s20, s18, 14\n s_lshl_b32 s21, s3, 12\n s_add_u32 s20, s20, s21\n s_add_u32 s20, s20, {KI_OFF}')
    a.I(f's_mul_i32 s21, s3, 4160\n s_add_u32 s21, s21, {K2_KB}')
    a.I(f's_lshl_b32 s22, s18, 13\n s_lshl_b32 s23, s3, 11\n s_add_u32 s22, s22, s23\n s_add_u32 s22, s22, {UT_OFF}')
    a.I(f's_lshr_b32 s24, s3, 1\n s_lshl_b32 s24, s24, 9\n s_add_u32 s23, s23, s24\n s_add_u32 s23, s23, 512')
    a.I('s_waitcnt lgkmcnt(0)')
    srd(a, 8, 4, WS_BYTES)
    a.I('s_mov_b32 m0, s23')
    for k in range(2): a.I(f'buffer_load_dwordx4 {v(vdma)}, s[8:11], s22 offen offset:{1024*k} lds')
    a.I('s_mov_b32 m0, s21')
    for k in range(4): a.I(f'buffer_load_dwordx4 {v(vdma)}, s[8:11], s20 offen offset:{1024*k} lds')
    a.I(f'v_lshrrev_b32 {v(t0)}, 7, v0\n v_mul_u32_u24 {v(t0)}, {U_CH - 512}, {v(t0)}\n v_lshl_add_u32 {v(t0)}, v0, 2, {v(t0)}')
    a.I(f'v_mov_b32 {v(t1)}, 0\n ds_write_b32 {v(t0)}, {v(t1)}')
    a.I(f'v_lshlrev_b32 {v(t0)}, 2, {v(n)}\n v_add_u32 {v(t0)}, s21, {v(t0)}\n ds_write_b32 {v(t0)}, {v(t1)} offset:4096')
    va = V.get(); vb = V.get(4); vst = V.get()
    a.I(f's_and_b32 s24, s3, 1\n s_lshr_b32 s25, s3, 1')
    a.I(f's_mul_i32 s26, s24, {U_CH}\n s_lshl_b32 s27, s25, 8\n s_sub_u32 s26, s26, s27\n s_add_u32 s26, s26, {512 - 32 - 192}')
    a.I(f'v_lshlrev_b32 {v(va)}, 5, {v(n)}\n v_lshl_add_u32 {v(va)}, {v(q)}, 4, {v(va)}\n v_add_u32 {v(va)}, s26, {v(va)}')
    a.I(f's_mul_i32 s26, s24, 8320\n s_sub_u32 s26, s26, s27\n s_add_u32 s26, s26, {K2_KB - 192 - 512}')
    a.I(f'v_lshlrev_b32 {v(t0)}, 3, {v(q)}\n v_sub_u32 {v(t0)}, {v(t0)}, {v(n)}\n v_add_u32 {v(t0)}, 2031, {v(t0)}')
    a.I(f'v_and_b32 {v(t1)}, 1, {v(t0)}\n v_mul_u32_u24 {v(t1)}, 4160, {v(t1)}\n v_lshrrev_b32 {v(t0)}, 1, {v(t0)}')
    a.I(f'v_lshl_add_u32 {v(vb)}, {v(t0)}, 2, {v(t1)}\n v_add_u32 {v(vb)}, s26, {v(vb)}')
    for p in range(1, 4): a.I(f'v_add_u32 {v(vb+p)}, {-1024*p}, {v(vb)}')
    a.I(f'v_lshlrev_b32 {v(vst)}, 11, {v(q)}\n v_lshl_add_u32 {v(vst)}, {v(n)}, 5, {v(vst)}')
    a.I(f's_mul_i32 s28, s18, {AW_S}\n s_lshl_b32 s29, s25, 10\n s_add_u32 s28, s28, s29\n s_lshl_b32 s29, s24, 4\n s_add_u32 s28, s28, s29\n s_add_u32 s28, s28, {AW_OFF}')
    a.I('s_waitcnt vmcnt(0) lgkmcnt(0)\n s_barrier')
    def loadA(rl, i): return f'ds_read_b128 {v(S[rl%2]+4*i,4)}, {v(va)} offset:{64*(3-rl)+512*i}'
    def loadB(rl, g):
        o = 16*(3-rl) + (128 if g % 2 == 0 else 0)
        r = S[rl%2] + 32 + 4*g
        return [f'ds_read2_b32 {v(r,2)}, {v(vb+g//2)} offset0:{o} offset1:{o+1}', f'ds_read2_b32 {v(r+2,2)}, {v(vb+g//2)} offset0:{o+2} offset1:{o+3}']
    def loads(rl):
        L = []
        for k in range(8):
            L += loadB(rl, k); L.append(loadA(rl, k))
        return L
    for x in loads(0): a.I(x)
    for rl in range(4):
        nxt = loads(rl+1) if rl < 3 else []
        pairs = sorted([(i, g) for i in range(8) for g in range(8) if i + g <= 7], key=lambda p: (max(p), p[0]+p[1]))
        seen = set()
        for k, (i, g) in enumerate(pairs):
            d = ACC + 4*(i+g)
            first = (rl == 0 and (i+g) not in seen); seen.add(i+g)
            mfma(a, d, S[rl%2]+4*i, S[rl%2]+32+4*g, '0' if first else d)
            if k >= 8 and nxt: a.I(nxt.pop(0))
        for x in nxt: a.I(x)
    vrw, vrr = S[0], S[0] + 1
    a.I(f'v_lshlrev_b32 {v(vrw)}, 3, v0\n v_add_u32 {v(vrw)}, {K2_RED}, {v(vrw)}')
    a.I(f'v_xor_b32 {v(vrr)}, 128, v0\n v_lshlrev_b32 {v(vrr)}, 3, {v(vrr)}\n v_add_u32 {v(vrr)}, {K2_RED}, {v(vrr)}')
    a.I('s_nop 7')
    a.I('s_cmp_eq_u32 s25, 0\n s_cbranch_scc1 L_k2a_lo')
    for half, lab in ((1, None), (0, 'L_k2a_lo')):
        if lab: a.label(lab)
        give = 2*(1-half); keep = 2*half
        for i in range(8): a.I(f'ds_write_b64 {v(vrw)}, {v(ACC+4*i+give,2)} offset:{2048*i}')
        a.I('s_waitcnt lgkmcnt(0)\n s_barrier')
        R = S[1]
        for i in range(8): a.I(f'ds_read_b64 {v(R+2*i,2)}, {v(vrr)} offset:{2048*i}')
        for i in range(8): a.I(f'v_pk_add_f32 {v(R+2*i,2)}, {v(R+2*i,2)}, {v(ACC+4*i+keep,2)}')
        O = S[1] + 16
        for jj in range(2):
            for i in range(4): cvt(a, O+4*jj+i, R+4*i+jj, R+4*i+2+jj)
            a.I(f'buffer_store_dwordx4 {v(O+4*jj,4)}, {v(vst)}, s[8:11], s28 offen offset:{512*jj}')
        a.I('s_endpgm')

def k2_b(a):
    V = VAlloc(1, 168)
    a.I('s_load_dwordx2 s[4:5], s[0:1], 104')
    a.I('s_and_b32 s18, s2, 7\n s_lshr_b32 s19, s2, 3\n s_sub_u32 s19, s19, 32\n s_mul_i32 s18, s18, 33\n s_add_u32 s18, s18, s19')
    n, q = lanes(a, V)
    t0 = V.get(); t1 = V.get(); vdma = V.get()
    a.I(f'v_bfe_u32 {v(t0)}, v0, 2, 4\n v_mul_u32_u24 {v(vdma)}, {YW_S}, {v(t0)}')
    a.I(f'v_and_b32 {v(t0)}, 3, v0\n v_xor_b32 {v(t0)}, {v(t0)}, {v(q)}\n v_lshl_add_u32 {v(vdma)}, {v(t0)}, 4, {v(vdma)}')
    a.I(f's_mul_i32 s20, s3, {64*YW_S}\n s_lshl_b32 s21, s18, 6\n s_add_u32 s20, s20, s21\n s_lshl_b32 s21, s3, 12')
    a.I('s_waitcnt lgkmcnt(0)')
    srd(a, 8, 4, WS_BYTES)
    for k in range(4):
        a.I(f's_add_u32 m0, s21, {1024*k}')
        a.I(f'buffer_load_dwordx4 {v(vdma)}, s[8:11], s20 offen lds')
        if k < 3: a.I(f's_add_u32 s20, s20, {16*YW_S}')
    FR_ = V.get(4, 4); FI_ = V.get(4, 4); TC = V.get(4); TS = V.get(4); T = V.get(8)
    fN = V.get(); base = V.get()
    a.I(f'v_cvt_f32_u32 {v(fN)}, {v(n)}\n v_mul_u32_u24 {v(t0)}, {v(n)}, {v(q)}\n v_cvt_f32_u32 {v(base)}, {v(t0)}\n v_mul_f32 {v(base)}, {f32(1/64)}, {v(base)}')
    for i in range(4):
        ang = T + 2
        if i == 0: ang = base
        else: a.I(f'v_fmamk_f32 {v(ang)}, {v(fN)}, {f32(i/256)}, {v(base)}')
        a.I(f'v_cos_f32 {v(TC+i)}, {v(ang)}\n v_sin_f32 {v(TS+i)}, {v(ang)}')
        a.I(f'v_mul_f32 {v(T+3)}, {f32(16.0)}, {v(ang)}')
        a.I(f'v_cos_f32 {v(T)}, {v(T+3)}\n v_sin_f32 {v(T+1)}, {v(T+3)}')
        cvt(a, FR_+i, T, T+1); cvt(a, FI_+i, T+1, T, True, False)
    vy = V.get(); vw = V.get(); vst = V.get()
    a.I(f's_lshr_b32 s22, s3, 1\n s_and_b32 s23, s3, 1\n s_lshl_b32 s23, s23, 3')
    a.I(f'v_lshrrev_b32 {v(t0)}, 2, {v(n)}\n v_xor_b32 {v(t0)}, s22, {v(t0)}\n v_lshlrev_b32 {v(vy)}, 12, {v(q)}\n v_lshl_add_u32 {v(vy)}, {v(n)}, 6, {v(vy)}')
    a.I(f'v_lshl_add_u32 {v(vy)}, {v(t0)}, 4, {v(vy)}\n v_add_u32 {v(vy)}, s23, {v(vy)}\n v_xor_b32 {v(vw)}, 32, {v(vy)}')
    a.I(f'v_lshlrev_b32 {v(vst)}, 11, {v(q)}\n v_lshl_add_u32 {v(vst)}, {v(n)}, 5, {v(vst)}')
    a.I(f's_mul_i32 s24, s18, {V_S}\n s_lshl_b32 s25, s3, 3\n s_add_u32 s24, s24, s25\n s_add_u32 s24, s24, {V_OFF}')
    a.I('s_waitcnt vmcnt(0)\n s_barrier')
    a.I('s_cmp_lt_u32 s2, 512\n s_cbranch_scc1 L_k2b_go\n s_cmp_eq_u32 s3, 0\n s_cbranch_scc1 L_k2b_go\n s_endpgm')
    a.label('L_k2b_go')
    Y = V.get(8, 4); X = V.get(8, 4); W = V.get(8)
    for i in range(4): a.I(f'ds_read_b64 {v(Y+2*i,2)}, {v(vy)} offset:{1024*i}')
    for i in range(4): a.I(f'ds_read_b64 {v(W+2*i,2)}, {v(vw)} offset:{1024*i}')
    for c in range(2):
        for p in range(2):
            a.I(f'v_pk_mov_b32 {v(X+4*c+2*p,2)}, {v(Y+4*p,2)}, {v(Y+4*p+2,2)} op_sel:[{c},{c}]')
    D = V.get(16, 4)
    WF = V.get(16)
    T2 = V.get(8)
    for c in range(2):
        mfma(a, D+8*c, X+4*c, FR_, '0'); mfma(a, D+8*c+4, X+4*c, FI_, '0')
    for c in range(2):
        for i in range(4):
            a.I(f'v_lshlrev_b32 {v(WF+8*c+i)}, 16, {v(W+2*i+c)}\n v_and_b32 {v(WF+8*c+4+i)}, 0xffff0000, {v(W+2*i+c)}')
    def stage(TCr, TSr, sign, swap, percol):
        for c in range(2):
            re, im = D+8*c, D+8*c+4
            tt = T if c == 0 else T2
            o = 8*c if percol else 0
            cmul_tw(a, re, im, TCr+o, TSr+o, tt, tt+2, sign)
            cmul_tw(a, re+2, im+2, TCr+o+2, TSr+o+2, tt+4, tt+6, sign)
            for i in range(4):
                if swap: cvt(a, X+4*c+i, im+i, re+i)
                else: cvt(a, X+4*c+i, re+i, im+i)
            yield c
    for c in stage(TC, TS, -1, False, False):
        mfma(a, D+8*c, FR_, X+4*c, '0'); mfma(a, D+8*c+4, FI_, X+4*c, '0')
    for c in stage(WF, WF+4, +1, True, True):
        mfma(a, D+8*c+4, X+4*c, FR_, '0'); mfma(a, D+8*c, X+4*c, FI_, '0')
    for c in stage(TC, TS, +1, True, False):
        mfma(a, D+8*c+4, FR_, X+4*c, '0'); mfma(a, D+8*c, FI_, X+4*c, '0')
    for i in range(4):
        cvt(a, Y+2*i, D+i, D+4+i)
    for i in range(4):
        cvt(a, Y+2*i+1, D+8+i, D+12+i)
        a.I(f'buffer_store_dwordx2 {v(Y+2*i,2)}, {v(vst)}, s[8:11], s24 offen offset:{512*i}')
    a.I('s_endpgm')

K3_LDS = 16384
def k3(a):
    V = VAlloc(1, 256)
    a.I('s_load_dwordx2 s[4:5], s[0:1], 104\n s_load_dwordx2 s[6:7], s[0:1], 88')
    task_of(a, 14, 15)
    n, q = lanes(a, V)
    t0 = V.get(); t1 = V.get(); vdv = V.get(); vda = V.get(); vn = V.get(); vg = V.get()
    a.I(f'v_lshrrev_b32 {v(t0)}, 1, {v(n)}\n v_mul_u32_u24 {v(t0)}, 33, {v(t0)}\n v_add_u32 {v(t0)}, {v(t0)}, {v(q)}\n v_mul_u32_u24 {v(vdv)}, {V_S}, {v(t0)}')
    a.I(f'v_and_b32 {v(t1)}, 1, v0\n v_lshl_add_u32 {v(vdv)}, {v(t1)}, 4, {v(vdv)}')
    a.I(f'v_bfe_u32 {v(t0)}, v0, 1, 5\n v_mul_u32_u24 {v(vda)}, {AW_S}, {v(t0)}\n v_lshl_add_u32 {v(vda)}, {v(t1)}, 4, {v(vda)}')
    a.I(f'v_mul_u32_u24 {v(vn)}, {66*V_S}, {v(q)}')
    a.I(f'v_and_b32 {v(vg)}, 7, v0\n v_lshlrev_b32 {v(vg)}, 2, {v(vg)}')
    a.I(f's_lshl_b32 s16, s14, 5')
    a.I(f's_mul_i32 s17, s3, {8*V_S}\n s_add_u32 s17, s17, s16\n s_add_u32 s17, s17, {V_OFF}')
    a.I(f's_mul_i32 s18, s3, {64*AW_S}\n s_add_u32 s18, s18, s16\n s_add_u32 s18, s18, {AW_OFF}')
    a.I(f's_add_u32 s19, s16, {V_OFF + 32*V_S}\n s_add_u32 s20, s16, {V_OFF + 65*V_S}\n s_add_u32 s21, s16, {G_OFF}')
    a.I('s_lshl_b32 s22, s3, 11')
    a.I('s_waitcnt lgkmcnt(0)')
    srd(a, 8, 4, WS_BYTES)
    a.I('s_mov_b32 m0, s22')
    a.I(f'buffer_load_dwordx4 {v(vdv)}, s[8:11], s17 offen lds')
    a.I(f's_add_u32 m0, s22, 1024\n s_add_u32 s17, s17, {4*V_S}')
    a.I(f'buffer_load_dwordx4 {v(vdv)}, s[8:11], s17 offen lds')
    NQ = V.get(2); G = V.get()
    a.I(f'buffer_load_dword {v(NQ)}, {v(vn)}, s[8:11], s19 offen')
    a.I(f'buffer_load_dword {v(NQ+1)}, {v(vn)}, s[8:11], s20 offen')
    a.I(f's_add_u32 m0, s22, 8192')
    a.I(f'buffer_load_dwordx4 {v(vda)}, s[8:11], s18 offen lds')
    a.I(f's_add_u32 m0, s22, {8192+1024}\n s_add_u32 s18, s18, {32*AW_S}')
    a.I(f'buffer_load_dwordx4 {v(vda)}, s[8:11], s18 offen lds')
    a.I(f'buffer_load_dword {v(G)}, {v(vg)}, s[8:11], s21 offen')
    srd(a, 24, 6, 2097152)
    T = V.get(16); base = V.get(); dL = V.get(); fD = V.get()
    a.I(f's_lshl_b32 s23, s3, 4\n v_add_u32 {v(dL)}, s23, {v(n)}\n v_cvt_f32_u32 {v(fD)}, {v(dL)}')
    C1 = V.get(16, 4)
    a.I(f'v_mul_u32_u24 {v(t0)}, {v(dL)}, {v(q)}\n v_cvt_f32_u32 {v(base)}, {v(t0)}\n v_mul_f32 {v(base)}, {f32(1/16)}, {v(base)}')
    for g in range(2):
        for i in range(4):
            k = 16*g + i
            ang = T + 2
            if k == 0: ang = base
            else: a.I(f'v_fmamk_f32 {v(ang)}, {v(fD)}, {f32(k/64)}, {v(base)}')
            a.I(f'v_cos_f32 {v(T)}, {v(ang)}\n v_sin_f32 {v(T+1)}, {v(ang)}')
            cvt(a, C1+8*g+i, T, T+1, False, True); cvt(a, C1+8*g+4+i, T+1, T)
    TC = V.get(16); TS = V.get(16); b2 = V.get()
    a.I(f'v_mul_u32_u24 {v(t0)}, s14, {v(q)}\n v_cvt_f32_u32 {v(base)}, {v(t0)}\n v_mul_f32 {v(base)}, {f32(1/1024)}, {v(base)}')
    a.I(f'v_cvt_f32_u32 {v(b2)}, s14\n v_fmamk_f32 {v(b2)}, {v(b2)}, {f32(1/2048)}, {v(base)}')
    SC = 2.0**-19
    for t in range(4):
        for i in range(4):
            kH = 4*(i & 1) + t
            bb = base if i < 2 else b2
            ang = T + i
            if kH == 0: ang = bb
            else: a.I(f'v_fmamk_f32 {v(ang)}, {v(fD)}, {f32(kH/512)}, {v(bb)}')
            a.I(f'v_cos_f32 {v(TC+4*t+i)}, {v(ang)}\n v_sin_f32 {v(TS+4*t+i)}, {v(ang)}')
    C2 = V.get(40)
    fJ = V.get(); fB = V.get()
    a.I(f'v_and_b32 {v(t0)}, 7, {v(n)}\n v_cvt_f32_u32 {v(fJ)}, {v(t0)}\n v_mul_u32_u24 {v(t0)}, {v(t0)}, {v(q)}\n v_cvt_f32_u32 {v(base)}, {v(t0)}\n v_mul_f32 {v(base)}, {f32(0.25)}, {v(base)}')
    a.I(f'v_fmamk_f32 {v(b2)}, {v(fJ)}, {f32(0.125)}, {v(base)}')
    a.I(f'v_lshrrev_b32 {v(t0)}, 3, {v(n)}\n v_cvt_f32_u32 {v(fB)}, {v(t0)}')
    a.I(f's_mov_b32 s28, {f32(SC)}')
    for t in range(4):
        for i in range(4):
            kH = 4*(i & 1) + t
            bb = base if i < 2 else b2
            ang = T + 8 + i
            if kH == 0: ang = bb
            else: a.I(f'v_fmamk_f32 {v(ang)}, {v(fB)}, {f32(kH/8)}, {v(bb)}')
            a.I(f'v_cos_f32 {v(T+i)}, {v(ang)}\n v_sin_f32 {v(T+4+i)}, {v(ang)}')
        for i in range(8): a.I(f'v_mul_f32 {v(T+i)}, s28, {v(T+i)}')
        b = C2 + 10*t
        cvt(a, b, T, T+1); cvt(a, b+1, T+2, T+3)
        cvt(a, b+2, T+4, T+5, True, True); cvt(a, b+3, T+6, T+7, True, True)
        if t > 0:
            cvt(a, b+4, T, T+1, True, True); cvt(a, b+5, T+2, T+3, True, True)
            cvt(a, b+6, T+4, T+5); cvt(a, b+7, T+6, T+7)
        if t in (1, 3):
            cvt(a, b+8, T, T+1); cvt(a, b+9, T+2, T+3)
    vr = V.get(); vta = V.get(); vst = V.get(); sgn = V.get()
    a.I(f'v_lshlrev_b32 {v(vr)}, 10, {v(q)}\n v_lshl_add_u32 {v(vr)}, {v(n)}, 4, {v(vr)}')
    a.I(f'v_lshrrev_b32 {v(t0)}, 2, v0\n v_lshlrev_b32 {v(vta)}, 4, {v(t0)}\n v_bfe_u32 {v(t0)}, v0, 1, 1\n v_lshl_add_u32 {v(vta)}, {v(t0)}, 10, {v(vta)}')
    a.I(f'v_lshl_add_u32 {v(vta)}, {v(t1)}, 3, {v(vta)}')
    a.I(f'v_and_b32 {v(t0)}, 7, {v(n)}\n v_lshlrev_b32 {v(vst)}, 18, {v(t0)}\n v_lshrrev_b32 {v(t0)}, 3, {v(n)}\n v_lshl_add_u32 {v(vst)}, {v(t0)}, 7, {v(vst)}')
    a.I(f'v_lshrrev_b32 {v(t0)}, 4, v0\n v_lshl_add_u32 {v(vst)}, {v(t0)}, 3, {v(vst)}\n s_lshl_b32 s29, s14, 10')
    a.I(f'v_lshlrev_b32 {v(sgn)}, 31, v0')
    ACC = V.get(32, 4)
    a.I(f'v_mov_b32 {v(ACC+1)}, 0\n v_mov_b32 {v(ACC+3)}, 0\n v_mov_b32 {v(ACC+5)}, 0\n v_mov_b32 {v(ACC+7)}, 0')
    for k in range(2):
        a.I(f'v_lshlrev_b32 {v(ACC+2*k)}, 16, {v(NQ+k)}\n v_and_b32 {v(ACC+4+2*k)}, 0xffff0000, {v(NQ+k)}')
        a.I(f'v_xor_b32 {v(ACC+2*k)}, {v(sgn)}, {v(ACC+2*k)}\n v_xor_b32 {v(ACC+4+2*k)}, {v(sgn)}, {v(ACC+4+2*k)}')
    a.I('s_waitcnt vmcnt(0)\n s_barrier')
    R = V.get(32, 4); X = V.get(32, 4)
    for g in range(2):
        for i in range(4): a.I(f'ds_read_b128 {v(R+16*g+4*i,4)}, {v(vr)} offset:{4096*g+256*i}')
    AA = V.get(8)
    for ot in range(4): a.I(f'ds_read_b64_tr_b16 {v(AA+2*ot,2)}, {v(vta)} offset:{8192+2048*ot}')
    for g in range(2):
        for t in range(4):
            for p in range(2):
                s0 = R+16*g+8*p+(t & 2); s1 = s0 + 4
                a.I(f'v_pk_mov_b32 {v(X+16*g+4*t+2*p,2)}, {v(s0,2)}, {v(s1,2)} op_sel:[{t&1},{t&1}]')
        for t in range(4):
            for p in range(2):
                d = ACC+8*t+4*p
                mfma(a, d, X+16*g+4*t, C1+8*g+4*p, d if (g == 1 or t == 0) else '0')
    A2 = R
    for t in range(4):
        re, im = ACC+8*t, ACC+8*t+4
        cmul_tw(a, re, im, TC+4*t, TS+4*t, T, T+2, +1)
        cmul_tw(a, re+2, im+2, TC+4*t+2, TS+4*t+2, T+4, T+6, +1)
        F = X + 4*t
        cvt(a, F, re, re+1); cvt(a, F+2, im, im+1); cvt(a, F+1, re+2, re+3); cvt(a, F+3, im+2, im+3)
        for ot in range(4):
            rot = (t*ot) % 4
            mfma(a, A2+4*ot, F, C2+10*t+2*rot, '0' if t == 0 else A2+4*ot)
    AF = ACC
    for ot in range(4):
        for p in range(2):
            a.I(f'v_lshlrev_b32 {v(AF+4*ot+2*p)}, 16, {v(AA+2*ot+p)}\n v_and_b32 {v(AF+4*ot+2*p+1)}, 0xffff0000, {v(AA+2*ot+p)}')
    G2 = V.get(2)
    a.I(f'v_mov_b32 {v(G2)}, {v(G)}\n v_mov_b32 {v(G2+1)}, {v(G)}')
    for ot in range(4):
        for p in range(2):
            x = AF+4*ot+2*p; b = A2+4*ot+2*p
            a.I(f'v_pk_add_f32 {v(x,2)}, {v(x,2)}, {v(b,2)} neg_lo:[0,1] neg_hi:[0,1]')
            a.I(f'v_pk_fma_f32 {v(x,2)}, {v(x,2)}, {v(G2,2)}, {v(b,2)}')
            cvt(a, X+2*ot+p, x, x+1)
        a.I(f'buffer_store_dwordx2 {v(X+2*ot,2)}, {v(vst)}, s[24:27], s29 offen offset:{256*ot}')
    a.I('s_endpgm')

def kernel(name, body):
    a = Asm()
    a.raw(f'.globl {name}\n.p2align 8\n.type {name},@function\n{name}:')
    body(a)
    nv = (a.maxv + 1 + 3) // 4 * 4
    kd = f'''.p2align 6
.amdhsa_kernel {name}
  .amdhsa_next_free_vgpr {nv}
  .amdhsa_next_free_sgpr {a.maxs + 1}
  .amdhsa_accum_offset {nv}
  .amdhsa_group_segment_fixed_size 0
  .amdhsa_kernarg_size 112
  .amdhsa_user_sgpr_count 2
  .amdhsa_user_sgpr_kernarg_segment_ptr 1
  .amdhsa_system_sgpr_workgroup_id_x 1
.end_amdhsa_kernel
'''
    print(name, 'vgpr', a.maxv + 1, 'sgpr', a.maxs + 1, 'ninst', a.ninst, file=sys.stderr)
    return a.text(), kd

def K1(a):
    a.I('s_cmp_lt_u32 s2, 256\n s_cbranch_scc1 L_k1_a\n s_cmp_lt_u32 s2, 512\n s_cbranch_scc1 L_k1_b\n s_endpgm')
    a.label('L_k1_b'); k1_b(a)
    a.label('L_k1_a'); k1_a(a)
def K2(a):
    a.I('s_cmp_lt_u32 s2, 256\n s_cbranch_scc1 L_k2_a\n s_cmp_lt_u32 s2, 520\n s_cbranch_scc1 L_k2_b\n s_endpgm')
    a.label('L_k2_b'); k2_b(a)
    a.label('L_k2_a'); k2_a(a)
def K3(a):
    a.I('s_cmp_lt_u32 s2, 256\n s_cbranch_scc1 L_k3\n s_endpgm')
    a.label('L_k3'); k3(a)

if __name__ == '__main__':
    out = sys.argv[1]
    ks = [kernel('ph1_kernel', K1), kernel('ph2_kernel', K2), kernel('ph3_kernel', K3)]
    hdr = f'''; gated_mix( S4D conv , GFNet spectral filter ) -- generated by gen/gen1.py
; @launch kernel=ph1_kernel grid=(512,1,1) block=(256,1,1) lds={K1_LDS}
; @launch kernel=ph2_kernel grid=(520,1,1) block=(256,1,1) lds={K2_LDS}
; @launch kernel=ph3_kernel grid=(256,1,1) block=(256,1,1) lds={K3_LDS}
.amdgcn_target "amdgcn-amd-amdhsa--gfx950"
.text
'''
    open(out, 'w').write(hdr + ''.join(k[0] for k in ks) + '.section .rodata,"a"\n' + ''.join(k[1] for k in ks))
```

```python
import sys, math, os
from asmlib import *
E = lambda k, d: int(os.environ.get(k, str(d)))
BS = 12288 + E('BSPAD', 192)
Y_OFF  = 0x000000
V_OFF  = 0x310000
AW_OFF = 0x620000
UT_OFF = 0x930000
EP_OFF = 0xC40000
WS_BYTES = 0x1000000
LOG2E = 1.4426950408889634
TOKC = 0x9E3779B9
SPIN = 30000
PROF = E('PROF', 0); PREFETCH = E('PREFETCH', 1); BPRIO = E('BPRIO', 2); WPOS = E('WPOS', 1); BACKOFF = E('BACKOFF', 4)
AFIRST = E('AFIRST', 1); WPF = E('WPF', 1)
NAME = 'gated_mix__ssm_conv_s4d__spectral_gfnet__prompt_kernel'
DBG_OFF = 0xFC0000
NST = 15
def stamp(a, i, wait=True):
    if PROF:
        if wait: a.I(f's_memrealtime s[{64+2*i}:{65+2*i}]\n s_waitcnt lgkmcnt(0)')
        else: a.I(f's_memrealtime s[{64+2*i}:{65+2*i}]')
def endpgm(a, srdb, last, role):
    if PROF:
        stamp(a, last)
        a.I('s_waitcnt vmcnt(0)')
        stamp(a, last + 1)
        a.I('s_mov_b64 exec, 1')
        for i in range(16): a.I(f'v_mov_b32 v{4+i}, s{64+2*i}' if i < NST else f'v_mov_b32 v{4+i}, s60')
        a.I(f's_and_b32 s61, s2, 255\n s_lshl_b32 s61, s61, 2\n s_add_u32 s61, s61, s3\n s_lshl_b32 s61, s61, 6\n s_add_u32 s61, s61, {DBG_OFF + role*65536}')
        a.I('v_mov_b32 v1, 0')
        for k in range(4): a.I(f'buffer_store_dwordx4 v[{4+4*k}:{7+4*k}], v1, s[{srdb}:{srdb+3}], s61 offen offset:{16*k}')
    a.I('s_endpgm')
def srd(a, d, b, nbytes):
    a.I(f's_mov_b32 s{d}, s{b}\n s_mov_b32 s{d+1}, s{b+1}\n s_mov_b32 s{d+2}, {nbytes}\n s_mov_b32 s{d+3}, 0x00020000')
def task_of(a, dst, tmp):
    a.I(f's_and_b32 s{dst}, s2, 7\n s_lshl_b32 s{dst}, s{dst}, 5\n s_bfe_u32 s{tmp}, s2, 0x50003\n s_or_b32 s{dst}, s{dst}, s{tmp}')
def lanes(a, V):
    n, q = V.get(), V.get()
    a.I(f'v_lshrrev_b32 {v(q)}, 6, v0')
    a.I(f'v_and_b32 {v(n)}, 15, v0')
    a.I(f'v_readfirstlane_b32 s3, {v(q)}')
    a.I(f'v_bfe_u32 {v(q)}, v0, 4, 2')
    return n, q
def cmul_tw(a, re, im, c, s_, t1, t2, sign):
    a.I(f'v_pk_mul_f32 {v(t1,2)}, {v(im,2)}, {v(s_,2)}')
    a.I(f'v_pk_mul_f32 {v(t2,2)}, {v(re,2)}, {v(s_,2)}')
    neg = ' neg_lo:[0,0,1] neg_hi:[0,0,1]'
    a.I(f'v_pk_fma_f32 {v(re,2)}, {v(re,2)}, {v(c,2)}, {v(t1,2)}' + (neg if sign > 0 else ''))
    a.I(f'v_pk_fma_f32 {v(im,2)}, {v(im,2)}, {v(c,2)}, {v(t2,2)}' + (neg if sign < 0 else ''))
def mfma(a, d, A, B, c):
    a.I(f'v_mfma_f32_16x16x32_bf16 {v(d,4)}, {v(A,4)}, {v(B,4)}, {c if isinstance(c,str) else v(c,4)}')
def cvt(a, d, x, y, nx=False, ny=False):
    a.I(f'v_cvt_pk_bf16_f32 {v(d)}, {"-" if nx else ""}{v(x)}, {"-" if ny else ""}{v(y)}')
def chk(a, g, tok):
    a.I(f'v_add3_u32 {v(g+3)}, {v(g)}, {v(g+1)}, {v(g+2)}\n v_add_u32 {v(g+3)}, s{tok}, {v(g+3)}')
_lab = [0]
def poll_check(a, loads, R, tmp, tok, backoff=None):
    _lab[0] += 1
    L = f'L_poll{_lab[0]}'
    bo = BACKOFF if backoff is None else backoff
    a.I(f's_mov_b32 s59, {SPIN}')
    a.label(L, keep=True)
    for k in range(3):
        g = R + 4*k
        a.I(f's_waitcnt vmcnt({2-k})')
        a.I(f'v_add3_u32 {v(tmp+k)}, {v(g)}, {v(g+1)}, {v(g+2)}\n v_sub_u32 {v(tmp+k)}, {v(g+3)}, {v(tmp+k)}\n v_xor_b32 {v(tmp+k)}, s{tok}, {v(tmp+k)}')
    a.I(f'v_or3_b32 {v(tmp)}, {v(tmp)}, {v(tmp+1)}, {v(tmp+2)}')
    a.I(f'v_cmp_ne_u32 vcc, 0, {v(tmp)}\n s_cbranch_vccz {L}_out\n s_sub_u32 s59, s59, 1\n s_cbranch_scc1 {L}_out\n s_mov_b64 exec, vcc')
    if bo: a.I(f's_sleep {bo}')
    for x in loads: a.I(x)
    if PROF: a.I('s_add_u32 s60, s60, 1')
    a.I(f's_branch {L}')
    a.label(L + '_out', keep=True)
    a.vm = []
    a.I('s_mov_b64 exec, -1')
def slotmap(a, V, t0, t1):
    CL = V.get(3); G16 = V.get(3); A64 = V.get(3); A32 = V.get(3)
    a.I(f's_mul_i32 s56, s3, 3072\n v_and_b32 {v(t0)}, 63, v0')
    for k in range(3):
        if k: a.I(f'v_add_u32 {v(t0)}, 64, {v(t0)}')
        a.I(f'v_mul_u32_u24 {v(CL+k)}, 21846, {v(t0)}\n v_lshrrev_b32 {v(CL+k)}, 16, {v(CL+k)}')
        a.I(f'v_mul_u32_u24 {v(t1)}, 3, {v(CL+k)}\n v_sub_u32 {v(t1)}, {v(t0)}, {v(t1)}\n v_lshlrev_b32 {v(G16+k)}, 4, {v(t1)}')
        a.I(f'v_mul_u32_u24 {v(A32+k)}, 48, {v(CL+k)}\n v_add_u32 {v(A32+k)}, s56, {v(A32+k)}')
        a.I(f'v_lshl_add_u32 {v(A64+k)}, {v(t1)}, 3, {v(A32+k)}\n v_lshl_add_u32 {v(A32+k)}, {v(t1)}, 2, {v(A32+k)}')
    return CL, G16, A64, A32
def publish(a, img, R, A64, A32, vl16, srdb, soff, tok):
    for k in range(3):
        a.I(f'ds_read_b64 {v(R+4*k,2)}, {v(A64+k)} offset:{img}\n ds_read_b32 {v(R+4*k+2)}, {v(A32+k)} offset:{img+24}')
    for k in range(3):
        chk(a, R+4*k, tok)
        a.I(f'buffer_store_dwordx4 {v(R+4*k,4)}, {v(vl16)}, s[{srdb}:{srdb+3}], s{soff} offen offset:{1024*k} sc1')
def unpack(a, img, R, A64, A32):
    for k in range(3):
        a.I(f'ds_write_b64 {v(A64+k)}, {v(R+4*k,2)} offset:{img}\n ds_write_b32 {v(A32+k)}, {v(R+4*k+2)} offset:{img+24}')

LX = 0; LI0 = 8704; LI1 = LI0 + 12288; LW = LI1 + 12288; LWN = LW + 12288; LG = LWN + 2048; LI2 = LG + 64
def role_b(a, pre, body):
    V = VAlloc(1, 255)
    a.label('L_b_pre')
    a.I('s_load_dwordx2 s[4:5], s[0:1], 0\n s_load_dwordx4 s[8:11], s[0:1], 64\n s_load_dwordx4 s[48:51], s[0:1], 80\n s_load_dwordx2 s[12:13], s[0:1], 104')
    if BPRIO: a.I(f's_setprio {BPRIO}')
    task_of(a, 14, 15)
    n, q = lanes(a, V)
    t0 = V.get(); t1 = V.get(); TM = V.get(3)
    vl16 = V.get(); a.I(f'v_and_b32 {v(vl16)}, 63, v0\n v_lshlrev_b32 {v(vl16)}, 4, {v(vl16)}')
    a.I(f's_lshl_b32 s16, s3, 9\n s_add_u32 s16, s16, s14\n s_lshl_b32 s16, s16, 10\n s_add_u32 s17, s16, {256*1024}')
    a.I(f's_mul_i32 s18, s3, 2112')
    a.I('s_waitcnt lgkmcnt(0)'); stamp(a, 1)
    srd(a, 28, 4, 2097152)
    a.I('s_mov_b32 m0, s18')
    a.I(f'buffer_load_dwordx4 {v(vl16)}, s[28:31], s16 offen lds')
    a.I('s_add_u32 m0, s18, 1056')
    a.I(f'buffer_load_dwordx4 {v(vl16)}, s[28:31], s17 offen lds')
    srd(a, 44, 12, WS_BYTES)
    a.I(f's_add_u32 s12, s12, {EP_OFF}\n s_addc_u32 s13, s13, 0\n s_load_dword s57, s[12:13], 0')
    pre()
    srd(a, 32, 8, 1052672); srd(a, 36, 10, 1052672); srd(a, 40, 48, 1024); srd(a, 52, 50, 2097152)
    vw = V.get(); vgw = V.get(); vgx = V.get(); vj4 = V.get()
    a.I(f'v_mul_u32_u24 {v(vw)}, 4112, v0')
    a.I(f'v_lshrrev_b32 {v(t0)}, 5, v0\n v_and_b32 {v(vgw)}, 31, v0\n v_lshlrev_b32 {v(vgw)}, 5, {v(vgw)}')
    a.I(f'v_mul_u32_u24 {v(vgx)}, 1056, {v(t0)}\n v_add_u32 {v(vgx)}, {v(vgx)}, {v(vgw)}\n v_lshlrev_b32 {v(vj4)}, 2, {v(t0)}')
    a.I(f's_and_b32 s19, s2, 7\n s_mul_i32 s20, s19, 514\n s_lshl_b32 s21, s15, 4\n s_add_u32 s21, s21, s20')
    a.I(f's_mul_i32 s24, s14, {BS}\n s_mul_i32 s25, s3, 3072\n s_add_u32 s24, s24, s25\n s_add_u32 s26, s24, {V_OFF}')
    WR = V.get(4, 4); WI = V.get(4, 4); WNR = V.get(2); GW = V.get(8, 4)
    XA = V.get(32, 4); ACC = V.get(32, 4); T = V.get(16)
    base = V.get(); fN = V.get()
    a.I(f'buffer_load_dwordx4 {v(GW,4)}, {v(vgw)}, s[40:43], 0 offen')
    a.I(f'buffer_load_dwordx4 {v(GW+4,4)}, {v(vgw)}, s[40:43], 0 offen offset:16')
    a.I(f'v_mov_b32 {v(WNR)}, 0\n v_mov_b32 {v(WNR+1)}, 0')
    if WPF:
        a.I(f'v_lshrrev_b32 {v(t0)}, 5, v0\n v_mul_u32_u24 {v(t0)}, 4112, {v(t0)}\n v_and_b32 {v(t1)}, 7, v0\n v_min_u32 {v(t1)}, 4, {v(t1)}\n v_lshl_add_u32 {v(t0)}, {v(t1)}, 7, {v(t0)}')
        a.I(f's_mul_i32 s56, s15, {8*4112}\n s_add_u32 s56, s56, s20\n s_and_b32 s56, s56, -4')
        a.I('s_mov_b32 exec_lo, 0x1f\n s_mov_b32 exec_hi, 0x1f')
        a.I(f'buffer_load_dword {v(WR)}, {v(t0)}, s[32:35], s56 offen')
        a.I(f'buffer_load_dword {v(WI)}, {v(t0)}, s[36:39], s56 offen')
        a.I('s_mov_b64 exec, -1')
    CL, G16, A64, A32 = slotmap(a, V, t0, t1)
    POOL = V.get(120, 4)
    C1 = POOL; TC = POOL + 16; TS = POOL + 32; C2 = POOL + 48; CN = POOL + 96; A2 = POOL + 100
    f1, kH, fF, fK, sgn = (ACC + i for i in range(5))
    a.I(f'v_lshrrev_b32 {v(f1)}, 3, {v(n)}\n s_lshl_b32 s56, s3, 1\n v_add_u32 {v(f1)}, s56, {v(f1)}\n v_and_b32 {v(kH)}, 7, {v(n)}')
    a.I(f'v_cvt_f32_u32 {v(fF)}, {v(f1)}\n v_cvt_f32_u32 {v(fK)}, {v(kH)}')
    a.I(f'v_and_b32 {v(t0)}, 1, {v(q)}\n v_lshlrev_b32 {v(t0)}, 2, {v(t0)}\n v_mul_u32_u24 {v(t0)}, {v(t0)}, {v(f1)}')
    a.I(f'v_and_b32 {v(t1)}, 2, {v(q)}\n v_mad_u32_u24 {v(t0)}, {v(t1)}, {v(kH)}, {v(t0)}')
    a.I(f'v_cvt_f32_u32 {v(base)}, {v(t0)}\n v_mul_f32 {v(base)}, 0.125, {v(base)}')
    a.I(f'v_and_b32 {v(sgn)}, 1, {v(kH)}\n v_mul_u32_u24 {v(sgn)}, 0x8000, {v(sgn)}\n v_lshl_or_b32 {v(sgn)}, {v(sgn)}, 16, {v(sgn)}')
    for h in range(2):
        if h == 1: a.I(f'v_fmamk_f32 {v(base)}, {v(fK)}, {f32(0.125)}, {v(base)}')
        for r in range(1, 4): a.I(f'v_fmamk_f32 {v(T+8+r)}, {v(fF)}, {f32(0.125*r)}, {v(base)}')
        for r in range(4):
            ang = base if r == 0 else T + 8 + r
            a.I(f'v_cos_f32 {v(T+r)}, {v(ang)}\n v_sin_f32 {v(T+4+r)}, {v(ang)}')
        cvt(a, C1+2*h, T, T+1); cvt(a, C1+2*h+1, T+2, T+3)
        cvt(a, C1+8+2*h, T+4, T+5, True, True); cvt(a, C1+8+2*h+1, T+6, T+7, True, True)
    for i in range(4):
        a.I(f'v_xor_b32 {v(C1+4+i)}, {v(sgn)}, {v(C1+i)}\n v_xor_b32 {v(C1+12+i)}, {v(sgn)}, {v(C1+8+i)}')
    a.I(f'v_mul_u32_u24 {v(t0)}, {v(kH)}, {v(q)}\n v_lshlrev_b32 {v(t0)}, 4, {v(t0)}\n v_mad_u32_u24 {v(t0)}, {v(f1)}, s14, {v(t0)}')
    a.I(f'v_cvt_f32_u32 {v(base)}, {v(t0)}\n v_mul_f32 {v(base)}, {f32(1/2048)}, {v(base)}')
    for t in range(4):
        for i in range(4):
            k = 16*t + i
            if k == 0: ang = base
            else:
                ang = T + (k % 4)
                a.I(f'v_fmamk_f32 {v(ang)}, {v(fK)}, {f32(k/512)}, {v(base)}')
            a.I(f'v_cos_f32 {v(TC+4*t+i)}, {v(ang)}\n v_sin_f32 {v(TS+4*t+i)}, {v(ang)}')
    a.I(f'v_cvt_f32_u32 {v(fN)}, {v(n)}\n v_mul_u32_u24 {v(t0)}, {v(n)}, {v(q)}\n v_cvt_f32_u32 {v(base)}, {v(t0)}\n v_mul_f32 {v(base)}, {f32(1/16)}, {v(base)}')
    for t in range(4):
        for i in range(4):
            k = 16*t + i
            if k == 0: ang = base
            else:
                ang = T + 8 + i
                a.I(f'v_fmamk_f32 {v(ang)}, {v(fN)}, {f32(k/64)}, {v(base)}')
            a.I(f'v_cos_f32 {v(T+i)}, {v(ang)}\n v_sin_f32 {v(T+4+i)}, {v(ang)}')
        c = [T+i for i in range(4)]; s_ = [T+4+i for i in range(4)]
        b0 = C2 + 6*t; b1 = C2 + 24 + 6*t
        cvt(a, b0+0, s_[0], s_[1], True, True); cvt(a, b0+2, c[0], c[1]); cvt(a, b0+4, s_[0], s_[1])
        cvt(a, b1+0, s_[0], c[1], True, True); cvt(a, b1+2, c[0], s_[1], False, True); cvt(a, b1+4, s_[0], c[1])
        cvt(a, b0+3, c[2], c[3]); cvt(a, b1+1, s_[2], c[3]); cvt(a, b1+5, s_[2], c[3], True, True)
        cvt(a, b0+1, s_[2], s_[3], True, True); cvt(a, b0+5, s_[2], s_[3]); cvt(a, b1+3, c[2], s_[3], True, False)
    a.I(f'v_mov_b32 {v(t0)}, 0xbf803f80')
    a.I(f'v_cmp_eq_u32 vcc, 0, {v(n)}\n v_cndmask_b32 {v(CN)}, 0, {v(t0)}, vcc\n v_cndmask_b32 {v(CN+1)}, 0, {v(t0)}, vcc')
    a.I(f'v_cmp_eq_u32 vcc, 1, {v(n)}\n v_cndmask_b32 {v(CN+2)}, 0, {v(t0)}, vcc\n v_cndmask_b32 {v(CN+3)}, 0, {v(t0)}, vcc')
    vtr = V.get(); vys = V.get(); vyn = V.get()
    a.I(f'v_bfe_u32 {v(t0)}, v0, 2, 3\n v_mul_u32_u24 {v(vtr)}, 1056, {v(t0)}')
    a.I(f'v_bfe_u32 {v(t0)}, v0, 5, 1\n v_lshl_add_u32 {v(vtr)}, {v(t0)}, 8, {v(vtr)}')
    a.I(f'v_and_b32 {v(t0)}, 3, v0\n v_lshl_add_u32 {v(vtr)}, {v(t0)}, 3, {v(vtr)}')
    a.I(f'v_mul_u32_u24 {v(vyn)}, 384, {v(vj4)}\n v_mad_u32_u24 {v(vys)}, {v(n)}, 48, {v(vyn)}\n v_and_b32 {v(t0)}, 16, v0\n v_add_u32 {v(vys)}, {v(vys)}, {v(t0)}')
    a.I(f'v_lshl_add_u32 {v(vyn)}, {v(n)}, 1, {v(vyn)}')
    a.I(f's_add_u32 s57, s57, {TOKC}')
    stamp(a, 2)
    a.I(f's_waitcnt vmcnt({4 if WPF else 2})')
    a.I('s_barrier'); stamp(a, 3)
    for t in range(4):
        for g in range(2):
            for h in range(2):
                a.I(f'ds_read_b64_tr_b16 {v(XA+8*t+4*g+2*h,2)}, {v(vtr)} offset:{LX+512*g+128*h+32*t}')
    for t in range(4):
        for p in range(2): mfma(a, ACC+8*t+4*p, XA+8*t, C1+8*p, '0')
        for p in range(2): mfma(a, ACC+8*t+4*p, XA+8*t+4, C1+8*p+4, ACC+8*t+4*p)
    for t in range(4):
        re, im = ACC+8*t, ACC+8*t+4
        cmul_tw(a, re, im, TC+4*t, TS+4*t, T, T+2, -1)
        cmul_tw(a, re+2, im+2, TC+4*t+2, TS+4*t+2, T+4, T+6, -1)
        F = XA + 8*t
        cvt(a, F, re, re+1); cvt(a, F+2, im, im+1); cvt(a, F+1, re+2, re+3); cvt(a, F+3, im+2, im+3)
        mfma(a, A2+16, F, CN, '0' if t == 0 else A2+16)
        for ct in range(2):
            b = C2 + 24*ct + 6*t
            mfma(a, A2+8*ct, F, b+2, '0' if t == 0 else A2+8*ct)
            mfma(a, A2+8*ct+4, F, b, '0' if t == 0 else A2+8*ct+4)
    cvt(a, T, A2+16, A2+16)
    a.I('s_mov_b32 exec_lo, 3\n s_mov_b32 exec_hi, 3')
    a.I(f'ds_write_b16 {v(vyn)}, {v(T)} offset:{LI0+31*48+32}')
    a.I('s_mov_b64 exec, -1')
    for ct in range(2):
        O = XA + 4*ct
        for i in range(4): cvt(a, O+i, A2+8*ct+i, A2+8*ct+4+i)
        a.I(f'ds_write_b128 {v(vys)}, {v(O,4)} offset:{LI0+768*ct}')
    R = XA + 8
    a.I('s_waitcnt vmcnt(0)')
    publish(a, LI0, R, A64, A32, vl16, 44, 24, 57)
    stamp(a, 4)
    V.put(vtr); V.put(vys); V.put(vyn)
    WR2 = POOL + 100; WI2 = POOL + 104
    a.I(f'buffer_load_dwordx4 {v(WR2,4)}, {v(vw)}, s[32:35], s21 offen')
    a.I(f'buffer_load_dwordx4 {v(WI2,4)}, {v(vw)}, s[36:39], s21 offen')
    a.I(f's_cmp_lg_u32 s15, 31\n s_cbranch_scc1 L_b_nn0')
    a.I(f'buffer_load_short_d16_hi {v(WNR)}, {v(vw)}, s[32:35], s21 offen offset:16')
    a.I(f'buffer_load_short_d16_hi {v(WNR+1)}, {v(vw)}, s[36:39], s21 offen offset:16')
    a.label('L_b_nn0', keep=True)
    GX = XA + 20
    a.I(f'ds_read_b128 {v(GX,4)}, {v(vgx)} offset:{LX}\n ds_read_b128 {v(GX+4,4)}, {v(vgx)} offset:{LX+16}')
    acc = T + 8; acc2 = T + 9
    a.I(f'v_mov_b32 {v(acc)}, 0\n v_mov_b32 {v(acc2)}, 0')
    for i in range(8): a.I(f'v_dot2c_f32_bf16 {v(acc if i % 2 == 0 else acc2)}, {v(GX+i)}, {v(GW+i)}')
    a.I(f'v_add_f32 {v(acc)}, {v(acc)}, {v(acc2)}')
    for m in ('quad_perm:[1,0,3,2]', 'quad_perm:[2,3,0,1]', 'row_half_mirror', 'row_mirror'):
        a.I(f'v_add_f32_dpp {v(acc)}, {v(acc)}, {v(acc)} {m} row_mask:0xf bank_mask:0xf')
    a.I(f'v_add_f32_dpp {v(acc)}, {v(acc)}, {v(acc)} row_bcast:15 row_mask:0xa bank_mask:0xf')
    a.I(f'v_mul_f32 {v(acc)}, {f32(-LOG2E)}, {v(acc)}\n v_exp_f32 {v(acc)}, {v(acc)}\n v_add_f32 {v(acc)}, 1.0, {v(acc)}\n v_rcp_f32 {v(acc)}, {v(acc)}')
    a.I('s_mov_b32 exec_lo, 0x80000000\n s_mov_b32 exec_hi, 0x80000000')
    a.I(f'ds_write_b32 {v(vj4)}, {v(acc)} offset:{LG}')
    a.I('s_mov_b64 exec, -1')
    V.put(vgx); V.put(vgw); V.put(vj4)
    FR_, FI_, TC2, TS2 = WR, WI, GW, GW + 4
    a.I(f'v_mul_f32 {v(base)}, {f32(1/4)}, {v(base)}')
    for i in range(4):
        ang = T + 2
        if i == 0: ang = base
        else: a.I(f'v_fmamk_f32 {v(ang)}, {v(fN)}, {f32(i/256)}, {v(base)}')
        a.I(f'v_mul_f32 {v(T+3)}, {f32(16.0)}, {v(ang)}')
        a.I(f'v_cos_f32 {v(T)}, {v(T+3)}\n v_sin_f32 {v(T+1)}, {v(T+3)}')
        a.I(f'v_cos_f32 {v(TC2+i)}, {v(ang)}\n v_sin_f32 {v(TS2+i)}, {v(ang)}')
        cvt(a, FR_+i, T, T+1); cvt(a, FI_+i, T+1, T, True, False)
    GA = V.get(3); vy = V.get(); vnn = V.get(); vnw = V.get()
    for k in range(3): a.I(f'v_mul_u32_u24 {v(GA+k)}, {BS}, {v(CL+k)}\n v_add_u32 {v(GA+k)}, {v(GA+k)}, {v(G16+k)}')
    a.I(f'v_lshlrev_b32 {v(t0)}, 6, {v(q)}\n v_add_u32 {v(t0)}, {v(t0)}, {v(n)}\n v_mul_u32_u24 {v(vnn)}, 48, {v(t0)}\n v_lshlrev_b32 {v(vnw)}, 3, {v(t0)}\n v_add_u32 {v(vnw)}, {LWN}, {v(vnw)}')
    a.I(f's_lshl_b32 s56, s3, 3\n v_add_u32 {v(vy)}, s56, {v(vnn)}')
    a.I(f's_mul_i32 s16, s14, 48\n s_mul_i32 s17, s3, {64*BS}\n s_add_u32 s17, s17, s16')
    stamp(a, 5)
    R = XA
    loads = [f'buffer_load_dwordx4 {v(R+4*k,4)}, {v(GA+k)}, s[44:47], s17 offen sc1' for k in range(3)]
    for x in loads: a.I(x)
    P1, PTC, PTS, P2 = POOL, POOL + 16, POOL + 32, POOL + 48
    fD = V.get(); b2 = V.get()
    def p3c_a():
        a.I(f's_lshl_b32 s56, s3, 4\n v_add_u32 {v(t1)}, s56, {v(n)}\n v_cvt_f32_u32 {v(fD)}, {v(t1)}')
        a.I(f'v_mul_u32_u24 {v(t1)}, {v(t1)}, {v(q)}\n v_cvt_f32_u32 {v(base)}, {v(t1)}\n v_mul_f32 {v(base)}, {f32(1/16)}, {v(base)}')
        for g in range(2):
            for i in range(4):
                k = 16*g + i
                if k: a.I(f'v_fmamk_f32 {v(T+8+i)}, {v(fD)}, {f32(k/64)}, {v(base)}')
            for i in range(4):
                ang = base if 16*g + i == 0 else T + 8 + i
                a.I(f'v_cos_f32 {v(T+i)}, {v(ang)}\n v_sin_f32 {v(T+4+i)}, {v(ang)}')
            for i in range(4):
                cvt(a, P1+8*g+i, T+i, T+4+i, False, True); cvt(a, P1+8*g+4+i, T+4+i, T+i)
        a.I(f'v_mul_u32_u24 {v(t1)}, s14, {v(q)}\n v_cvt_f32_u32 {v(base)}, {v(t1)}\n v_mul_f32 {v(base)}, {f32(1/1024)}, {v(base)}')
        a.I(f'v_cvt_f32_u32 {v(b2)}, s14\n v_fmamk_f32 {v(b2)}, {v(b2)}, {f32(1/2048)}, {v(base)}')
        for t in range(4):
            for i in range(4):
                kH_ = 4*(i & 1) + t
                bb = base if i < 2 else b2
                ang = T + i
                if kH_ == 0: ang = bb
                else: a.I(f'v_fmamk_f32 {v(ang)}, {v(fD)}, {f32(kH_/512)}, {v(bb)}')
                a.I(f'v_cos_f32 {v(PTC+4*t+i)}, {v(ang)}\n v_sin_f32 {v(PTS+4*t+i)}, {v(ang)}')
    def p3c_b():
        fB = fD
        a.I(f'v_and_b32 {v(t0)}, 7, {v(n)}\n v_cvt_f32_u32 {v(b2)}, {v(t0)}\n v_mul_u32_u24 {v(t0)}, {v(t0)}, {v(q)}\n v_cvt_f32_u32 {v(base)}, {v(t0)}\n v_mul_f32 {v(base)}, {f32(0.25)}, {v(base)}')
        a.I(f'v_fmamk_f32 {v(b2)}, {v(b2)}, {f32(0.125)}, {v(base)}')
        a.I(f'v_lshrrev_b32 {v(t0)}, 3, {v(n)}\n v_cvt_f32_u32 {v(fB)}, {v(t0)}')
        SC = 2.0**-19
        a.I(f's_mov_b32 s6, {f32(SC)}\n s_mov_b32 s7, {f32(SC)}')
        for t in range(4):
            for i in range(4):
                kH_ = 4*(i & 1) + t
                bb = base if i < 2 else b2
                ang = T + 8 + i
                if kH_ == 0: ang = bb
                else: a.I(f'v_fmamk_f32 {v(ang)}, {v(fB)}, {f32(kH_/8)}, {v(bb)}')
                a.I(f'v_cos_f32 {v(T+i)}, {v(ang)}\n v_sin_f32 {v(T+4+i)}, {v(ang)}')
            for i in range(4): a.I(f'v_pk_mul_f32 {v(T+2*i,2)}, {v(T+2*i,2)}, s[6:7]')
            b = P2 + 10*t
            cvt(a, b, T, T+1); cvt(a, b+1, T+2, T+3)
            cvt(a, b+2, T+4, T+5, True, True); cvt(a, b+3, T+6, T+7, True, True)
            if t > 0:
                cvt(a, b+4, T, T+1, True, True); cvt(a, b+5, T+2, T+3, True, True)
                cvt(a, b+6, T+4, T+5); cvt(a, b+7, T+6, T+7)
            if t in (1, 3):
                cvt(a, b+8, T, T+1); cvt(a, b+9, T+2, T+3)
    a.I('s_waitcnt vmcnt(3)')
    WO = ACC
    a.I('s_mov_b32 s6, 0x05040100\n s_mov_b32 s7, 0x07060302')
    for p in range(4):
        a.I(f'v_perm_b32 {v(WO+2*p)}, {v(WI2+p)}, {v(WR2+p)}, s6')
        a.I(f'v_perm_b32 {v(WO+2*p+1)}, {v(WI2+p)}, {v(WR2+p)}, s7')
    a.I(f's_cmp_eq_u32 s15, 0\n s_cselect_b32 s56, 0.5, 1.0')
    a.I(f'v_lshlrev_b32 {v(T+2)}, 16, {v(WO)}\n v_and_b32 {v(T+3)}, 0xffff0000, {v(WO)}')
    a.I(f'v_mul_f32 {v(T+2)}, s56, {v(T+2)}\n v_mul_f32 {v(T+3)}, s56, {v(T+3)}')
    cvt(a, WO, T+2, T+3)
    a.I(f'v_mul_u32_u24 {v(t1)}, 48, v0')
    a.I(f'ds_write_b128 {v(t1)}, {v(WO,4)} offset:{LW}\n ds_write_b128 {v(t1)}, {v(WO+4,4)} offset:{LW+16}')
    a.I(f'v_pk_mul_f32 {v(WNR,2)}, {v(WNR,2)}, 0.5 op_sel_hi:[1,0]\n v_lshlrev_b32 {v(t0)}, 3, v0\n ds_write_b64 {v(t0)}, {v(WNR,2)} offset:{LWN}')
    p3c_a()
    poll_check(a, loads, R, TM, 57)
    stamp(a, 6)
    unpack(a, LI1, R, A64, A32)
    a.I('s_waitcnt lgkmcnt(0)\n s_barrier'); stamp(a, 7)
    Y = XA; X = XA + 8; W = XA + 20
    D = ACC; WF = POOL + 48; T2 = POOL + 72; T3 = POOL + 80
    for i in range(4): a.I(f'ds_read_b64 {v(Y+2*i,2)}, {v(vy)} offset:{LI1+768*i}')
    for i in range(4): a.I(f'ds_read_b32 {v(X+8+i)}, {v(vnn)} offset:{LI1+32+768*i}')
    for i in range(4): a.I(f'ds_read_b64 {v(W+2*i,2)}, {v(vy)} offset:{LW+768*i}')
    for p in range(2):
        for i in range(2): a.I(f'ds_read2_b32 {v(WF+16+4*p+2*i,2)}, {v(vnw)} offset0:{64*i+p} offset1:{64*i+32+p}')
    for c in range(2):
        for p in range(2):
            a.I(f'v_pk_mov_b32 {v(X+4*c+2*p,2)}, {v(Y+4*p,2)}, {v(Y+4*p+2,2)} op_sel:[{c},{c}]')
    nc = 3
    for c in range(nc):
        mfma(a, D+8*c, X+4*c, FR_, '0'); mfma(a, D+8*c+4, X+4*c, FI_, '0')
    for c in range(2):
        for i in range(4):
            a.I(f'v_lshlrev_b32 {v(WF+8*c+i)}, 16, {v(W+2*i+c)}\n v_and_b32 {v(WF+8*c+4+i)}, 0xffff0000, {v(W+2*i+c)}')
    def stage(tw, sign, swap):
        for c in range(nc):
            re, im = D+8*c, D+8*c+4
            tt = (T, T2, T3)[c]
            tc, ts = tw(c)
            cmul_tw(a, re, im, tc, ts, tt, tt+2, sign)
            cmul_tw(a, re+2, im+2, tc+2, ts+2, tt+4, tt+6, sign)
            for i in range(4):
                if swap: cvt(a, X+4*c+i, im+i, re+i)
                else: cvt(a, X+4*c+i, re+i, im+i)
            yield c
    for c in stage(lambda c: (TC2, TS2), -1, False):
        mfma(a, D+8*c, FR_, X+4*c, '0'); mfma(a, D+8*c+4, FI_, X+4*c, '0')
    for c in stage(lambda c: (WF+8*c, WF+8*c+4), +1, True):
        mfma(a, D+8*c+4, X+4*c, FR_, '0'); mfma(a, D+8*c, X+4*c, FI_, '0')
    for c in stage(lambda c: (TC2, TS2), +1, True):
        mfma(a, D+8*c+4, FR_, X+4*c, '0'); mfma(a, D+8*c, FI_, X+4*c, '0')
    for i in range(4): cvt(a, Y+2*i, D+i, D+4+i)
    for i in range(4):
        cvt(a, Y+2*i+1, D+8+i, D+12+i)
        a.I(f'ds_write_b64 {v(vy)}, {v(Y+2*i,2)} offset:{LI0+768*i}')
    for i in range(4):
        cvt(a, X+i, D+16+i, D+20+i)
        a.I(f'ds_write_b32 {v(vnn)}, {v(X+i)} offset:{LI0+32+768*i}')
    a.I('s_waitcnt lgkmcnt(0)\n s_barrier')
    publish(a, LI0, XA + 12, A64, A32, vl16, 44, 26, 57)
    stamp(a, 8)
    for r in (vy, vnn, vnw, vw): V.put(r)
    V.put(WNR, 2)
    p3c_b()
    vr = V.get(); vta = V.get(); vst = V.get(); sgn = V.get(); vn = V.get(); G2 = V.get(2)
    AA_ = WR
    for k in range(3):
        a.I(f'v_and_b32 {v(t0)}, 7, {v(CL+k)}\n v_lshrrev_b32 {v(t1)}, 3, {v(CL+k)}')
        a.I(f'v_lshl_add_u32 {v(GA+k)}, {v(t0)}, 5, {v(t1)}\n v_mul_u32_u24 {v(GA+k)}, {BS}, {v(GA+k)}\n v_add_u32 {v(GA+k)}, {v(GA+k)}, {v(G16+k)}')
        a.I(f'v_lshl_add_u32 {v(AA_+k)}, {v(t1)}, 5, {v(t0)}\n v_mul_u32_u24 {v(AA_+k)}, {BS}, {v(AA_+k)}\n v_add_u32 {v(AA_+k)}, {v(AA_+k)}, {v(G16+k)}')
    a.I(f's_mul_i32 s17, s3, {8*BS}\n s_add_u32 s17, s17, s16\n s_add_u32 s20, s17, {AW_OFF}\n s_add_u32 s17, s17, {V_OFF}')
    stamp(a, 9)
    for x in loads: a.I(x)
    a.I(f'v_lshrrev_b32 {v(t0)}, 1, {v(n)}\n v_lshl_add_u32 {v(t0)}, {v(q)}, 5, {v(t0)}\n v_mul_u32_u24 {v(vr)}, 48, {v(t0)}\n v_and_b32 {v(t1)}, 1, v0\n v_lshl_add_u32 {v(vr)}, {v(t1)}, 4, {v(vr)}')
    a.I(f'v_bfe_u32 {v(t0)}, v0, 1, 1\n v_bfe_u32 {v(vta)}, v0, 3, 3\n v_lshl_add_u32 {v(t0)}, {v(t0)}, 3, {v(vta)}\n v_mul_u32_u24 {v(vta)}, 48, {v(t0)}')
    a.I(f'v_bfe_u32 {v(t0)}, v0, 2, 1\n v_lshl_add_u32 {v(vta)}, {v(t0)}, 4, {v(vta)}\n v_lshl_add_u32 {v(vta)}, {v(t1)}, 3, {v(vta)}\n v_add_u32 {v(vta)}, s25, {v(vta)}')
    a.I(f'v_and_b32 {v(t0)}, 7, {v(n)}\n v_lshlrev_b32 {v(vst)}, 18, {v(t0)}\n v_lshlrev_b32 {v(t1)}, 2, {v(t0)}\n v_lshrrev_b32 {v(t0)}, 3, {v(n)}\n v_lshl_add_u32 {v(vst)}, {v(t0)}, 7, {v(vst)}')
    a.I(f'ds_read_b32 {v(G2)}, {v(t1)} offset:{LG}\n ds_read_b32 {v(G2+1)}, {v(t1)} offset:{LG}')
    a.I(f'v_lshrrev_b32 {v(t0)}, 4, v0\n v_lshl_add_u32 {v(vst)}, {v(t0)}, 3, {v(vst)}\n s_lshl_b32 s9, s14, 10')
    a.I(f'v_lshlrev_b32 {v(sgn)}, 31, v0\n v_mul_u32_u24 {v(vn)}, 96, {v(q)}\n v_add_u32 {v(vn)}, {LI1 + 248*48 + 32}, {v(vn)}')
    a.I(f'v_mov_b32 {v(ACC+1)}, 0\n v_mov_b32 {v(ACC+3)}, 0\n v_mov_b32 {v(ACC+5)}, 0\n v_mov_b32 {v(ACC+7)}, 0')
    poll_check(a, loads, R, TM, 57)
    unpack(a, LI1, R, A64, A32)
    AL = R + 16; NQ = GW
    aloads = [f'buffer_load_dwordx4 {v(AL+4*k,4)}, {v(AA_+k)}, s[44:47], s20 offen sc1' for k in range(3)]
    a.I('s_waitcnt lgkmcnt(0)\n s_barrier'); stamp(a, 10)
    X = POOL + 88
    a.I(f'ds_read2_b32 {v(NQ,2)}, {v(vn)} offset0:0 offset1:12')
    for g in range(2):
        for i in range(4): a.I(f'ds_read_b128 {v(R+16*g+4*i,4)}, {v(vr)} offset:{LI1+6144*g+384*i}')
    for k in range(2):
        a.I(f'v_lshlrev_b32 {v(ACC+2*k)}, 16, {v(NQ+k)}\n v_and_b32 {v(ACC+4+2*k)}, 0xffff0000, {v(NQ+k)}')
        a.I(f'v_xor_b32 {v(ACC+2*k)}, {v(sgn)}, {v(ACC+2*k)}\n v_xor_b32 {v(ACC+4+2*k)}, {v(sgn)}, {v(ACC+4+2*k)}')
    for g in range(2):
        for t in range(4):
            for p in range(2):
                s0 = R+16*g+8*p+(t & 2); s1 = s0 + 4
                a.I(f'v_pk_mov_b32 {v(X+16*g+4*t+2*p,2)}, {v(s0,2)}, {v(s1,2)} op_sel:[{t&1},{t&1}]')
        if g == 1:
            for x in aloads: a.I(x)
        for t in range(4):
            for p in range(2):
                d = ACC+8*t+4*p
                mfma(a, d, X+16*g+4*t, P1+8*g+4*p, d if (g == 1 or t == 0) else '0')
    A2 = R
    for t in range(4):
        re, im = ACC+8*t, ACC+8*t+4
        cmul_tw(a, re, im, PTC+4*t, PTS+4*t, T, T+2, +1)
        cmul_tw(a, re+2, im+2, PTC+4*t+2, PTS+4*t+2, T+4, T+6, +1)
        F = X + 4*t
        cvt(a, F, re, re+1); cvt(a, F+2, im, im+1); cvt(a, F+1, re+2, re+3); cvt(a, F+3, im+2, im+3)
        for ot in range(4):
            rot = (t*ot) % 4
            mfma(a, A2+4*ot, F, P2+10*t+2*rot, '0' if t == 0 else A2+4*ot)
    stamp(a, 11)
    poll_check(a, aloads, AL, TM, 57, E('ABACKOFF', 8))
    stamp(a, 12)
    unpack(a, LI0, AL, A64, A32)
    a.I('s_waitcnt lgkmcnt(0)')
    AA = X + 16
    for ot in range(4): a.I(f'ds_read_b64_tr_b16 {v(AA+2*ot,2)}, {v(vta)} offset:{LI0+768*ot}')
    AF = ACC
    for ot in range(4):
        for p in range(2):
            a.I(f'v_lshlrev_b32 {v(AF+4*ot+2*p)}, 16, {v(AA+2*ot+p)}\n v_and_b32 {v(AF+4*ot+2*p+1)}, 0xffff0000, {v(AA+2*ot+p)}')
        for p in range(2):
            x = AF+4*ot+2*p; b = A2+4*ot+2*p
            a.I(f'v_pk_add_f32 {v(x,2)}, {v(x,2)}, {v(b,2)} neg_lo:[0,1] neg_hi:[0,1]')
            a.I(f'v_pk_fma_f32 {v(x,2)}, {v(x,2)}, {v(G2,2)}, {v(b,2)}')
            cvt(a, X+2*ot+p, x, x+1)
        a.I(f'buffer_store_dwordx2 {v(X+2*ot,2)}, {v(vst)}, s[52:55], s9 offen offset:{256*ot}')
    a.I('s_or_b32 s56, s14, s3\n s_cmp_lg_u32 s56, 0\n s_cbranch_scc1 L_b_end')
    a.I(f's_mov_b64 exec, 1\n v_mov_b32 {v(t0)}, s57\n v_mov_b32 {v(t1)}, {EP_OFF}')
    a.I(f'buffer_store_dword {v(t0)}, {v(t1)}, s[44:47], 0 offen')
    a.label('L_b_end', keep=True)
    endpgm(a, 44, 13, 0)

RS = 544
TB_CH = 53 * RS
KF_OFF = 2 * TB_CH + 64
KF_CH = 6144 + 64
LU = KF_OFF + 2 * KF_CH
U_CH = 4608
LDS_BYTES = LU + 2 * U_CH
LK = 0
LRED = 4 * 4160
LAO = LRED + 16384
def cmul(a, d, x, y, t):
    a.I(f'v_pk_mul_f32 {v(t,2)}, {v(x,2)}, {v(y,2)} op_sel_hi:[0,1]')
    a.I(f'v_pk_fma_f32 {v(d,2)}, {v(x,2)}, {v(y,2)}, {v(t,2)} op_sel:[1,1,0] op_sel_hi:[1,0,1] neg_lo:[1,0,0]')

class RoleA:
  def pre(self, a):
    V = self.V = VAlloc(1, 128); W = self.W = VAlloc(128, 256)
    a.label('L_a_pre')
    a.I('s_load_dwordx8 s[4:11], s[0:1], 8\n s_load_dwordx4 s[12:15], s[0:1], 40\n s_load_dwordx2 s[16:17], s[0:1], 104\n s_load_dwordx2 s[56:57], s[0:1], 0')
    task_of(a, 18, 19)
    n, q = self.n, self.q = lanes(a, V)
    t0 = self.t0 = V.get(); t1 = self.t1 = V.get()
    vp = W.get(); a.I(f'v_lshlrev_b32 {v(vp)}, 1, v0')
    vch = self.vch = V.get(); a.I(f'v_lshrrev_b32 {v(vch)}, 7, v0')
    vd = W.get(); a.I(f'v_lshlrev_b32 {v(vd)}, 1, {v(vch)}')
    vd2 = W.get(); a.I(f'v_bfe_u32 {v(vd2)}, v0, 6, 1\n v_lshlrev_b32 {v(vd2)}, 1, {v(vd2)}')
    vut = W.get()
    a.I(f'v_and_b32 {v(t1)}, 0xc0, v0\n v_lshl_add_u32 {v(t1)}, {v(n)}, 2, {v(t1)}\n v_lshl_add_u32 {v(vut)}, {v(q)}, 13, {v(t1)}')
    a.I('s_lshl_b32 s19, s18, 9\n s_lshl_b32 s20, s18, 2\n s_lshr_b32 s22, s18, 2\n s_and_b32 s23, s18, 3')
    a.I(f's_lshl_b32 s21, s22, 15\n s_lshl_b32 s52, s23, 8\n s_add_u32 s21, s21, s52\n s_add_u32 s52, s21, 4096')
    a.I('s_waitcnt lgkmcnt(0)'); stamp(a, 1)
    a.I('s_mov_b32 s58, 2097152\n s_mov_b32 s59, 0x00020000')
    UTL = self.UTL = W.get(8)
    for e in range(8):
        a.I(f'buffer_load_dword {v(UTL+e)}, {v(vut)}, s[56:59], s{21 if e < 4 else 52} offen offset:{(e%4)*1024}')
    self.PR = LA, AI, CR, CI, LD, DS = tuple(V.get() for _ in range(6))
    srd(a, 24, 12, 1024)
    a.I(f'buffer_load_short_d16_hi {v(LD)}, {v(vd)}, s[24:27], s20 offen')
    for k, r in enumerate((LA, AI, CR, CI)):
        srd(a, 28 + 4*k, 4 + 2*k, 131072)
        a.I(f'buffer_load_short_d16_hi {v(r)}, {v(vp)}, s[{28+4*k}:{31+4*k}], s19 offen')
    srd(a, 44, 14, 1024); srd(a, 48, 16, WS_BYTES)
    a.I(f'buffer_load_short_d16_hi {v(DS)}, {v(vd2)}, s[44:47], s20 offen')
    a.I(f's_add_u32 s16, s16, {EP_OFF}\n s_addc_u32 s17, s17, 0\n s_load_dword s4, s[16:17], 0')
    stamp(a, 12, False)
    a.I('s_branch L_a_body')
    self.st = (list(a.vm), list(a.lg))
  def body(self, a):
    V, W, n, q, t0, t1, vch, UTL = self.V, self.W, self.n, self.q, self.t0, self.t1, self.vch, self.UTL
    LA, AI, CR, CI, LD, DS = self.PR
    TOK = 4
    a.label('L_a_body'); a.vm, a.lg = self.st
    vt16 = V.get(); a.I(f'v_lshlrev_b32 {v(vt16)}, 4, v0')
    vuts = W.get()
    a.I(f'v_mul_u32_u24 {v(vuts)}, 3072, {v(t1)}\n v_lshl_add_u32 {v(vuts)}, {v(q)}, 4, {v(vuts)}')
    a.I(f's_mul_i32 s23, s23, {64*12288}\n s_lshl_b32 s22, s22, 6\n s_add_u32 s22, s22, s23\n s_add_u32 s22, s22, {UT_OFF}\n s_add_u32 s23, s22, 4096\n s_add_u32 s55, s22, 8192')
    a.I('s_mov_b32 s28, 0x05040100\n s_mov_b32 s29, 0x07060302')
    U0 = V.get(12, 4)
    def utpub():
        for i in range(4):
            a.I(f'v_perm_b32 {v(U0+i if i < 3 else U0+8)}, {v(UTL+2*i+1)}, {v(UTL+2*i)}, s28')
            a.I(f'v_perm_b32 {v(U0+4+i if i < 3 else U0+9)}, {v(UTL+2*i+1)}, {v(UTL+2*i)}, s29')
        a.I(f'v_mov_b32 {v(U0+10)}, 0')
        a.I(f's_add_u32 s{TOK}, s{TOK}, {TOKC}')
        for k, sr in enumerate((22, 23, 55)):
            chk(a, U0+4*k, TOK)
            a.I(f'buffer_store_dwordx4 {v(U0+4*k,4)}, {v(vuts)}, s[48:51], s{sr} offen sc1')
        stamp(a, 3)
    vtw = V.get()
    a.I(f'v_and_b32 {v(t0)}, 127, v0\n v_mul_u32_u24 {v(vtw)}, {TB_CH}, {v(vch)}\n v_lshl_add_u32 {v(vtw)}, {v(t0)}, 2, {v(vtw)}')
    J0 = W.get(); sh = W.get(); JM = W.get(); cst = W.get(); GA = V.get(17); kfb = W.get()
    a.I(f'v_lshlrev_b32 {v(J0)}, 4, {v(t0)}\n v_sub_u32 {v(J0)}, 2032, {v(J0)}')
    a.I(f'v_or_b32 {v(sh)}, 1, {v(J0)}\n v_ffbh_u32 {v(sh)}, {v(sh)}\n v_sub_u32 {v(sh)}, 24, {v(sh)}\n v_max_i32 {v(sh)}, 0, {v(sh)}')
    a.I(f'v_add_u32 {v(JM)}, 150, {v(sh)}\n v_lshlrev_b32 {v(JM)}, 23, {v(JM)}')
    a.I(f'v_mul_u32_u24 {v(kfb)}, {KF_CH}, {v(vch)}\n v_add_u32 {v(kfb)}, {KF_OFF}, {v(kfb)}')
    a.I(f'v_lshrrev_b32 {v(t1)}, {v(sh)}, {v(J0)}\n v_add_u32 {v(sh)}, 1, {v(sh)}')
    a.I(f'v_lshlrev_b32 {v(cst)}, {v(sh)}, {v(JM)}\n v_sub_u32 {v(cst)}, {v(kfb)}, {v(cst)}\n v_add_u32 {v(JM)}, {v(JM)}, {v(t1)}')
    for e in range(16):
        if e == 0: a.I(f'v_lshl_add_u32 {v(GA+1)}, {v(JM)}, {v(sh)}, {v(cst)}')
        else:
            a.I(f'v_add_f32 {v(GA+1+e)}, {f32(float(e))}, {v(JM)}')
            a.I(f'v_lshl_add_u32 {v(GA+1+e)}, {v(GA+1+e)}, {v(sh)}, {v(cst)}')
    a.I(f'v_cmp_ge_u32 vcc, 256, {v(J0)}\n v_cndmask_b32 {v(t1)}, 0, 2, vcc\n v_sub_u32 {v(GA)}, {v(GA+1)}, {v(t1)}')
    zero = V.get()
    a.I(f'v_mov_b32 {v(zero)}, 0\n v_add_u32 {v(kfb)}, -4, {v(kfb)}')
    vks = V.get()
    a.I(f'v_mul_u32_u24 {v(vks)}, 8320, {v(vch)}\n v_lshl_add_u32 {v(vks)}, {v(t0)}, 5, {v(vks)}')
    stamp(a, 2)
    utpub()
    a.I(f'ds_write_b32 {v(kfb)}, {v(zero)}')
    a.I(f'v_mul_u32_u24 {v(t1)}, {U_CH - 512}, {v(vch)}\n v_lshl_add_u32 {v(t1)}, v0, 2, {v(t1)}\n v_add_u32 {v(t1)}, {LU}, {v(t1)}\n ds_write_b32 {v(t1)}, {v(zero)}')
    a.I(f'v_mov_b32 {v(t1)}, 0x3f80\n ds_write_b32 {v(vtw)}, {v(t1)} offset:{21*RS}')
    dt = W.get(); ar = W.get(); rev = W.get()
    a.I(f'v_mul_f32 {v(dt)}, {f32(LOG2E)}, {v(LD)}\n v_mul_f32 {v(ar)}, {f32(LOG2E)}, {v(LA)}\n v_exp_f32 {v(dt)}, {v(dt)}\n v_exp_f32 {v(ar)}, {v(ar)}')
    cvt(a, t0, dt, ar)
    a.I(f'v_lshlrev_b32 {v(dt)}, 16, {v(t0)}\n v_and_b32 {v(ar)}, 0xffff0000, {v(t0)}')
    a.I(f'v_mul_f32 {v(ar)}, {v(ar)}, {v(dt)}\n v_mul_f32 {v(ar)}, {f32(-LOG2E)}, {v(ar)}')
    a.I(f'v_mul_f32 {v(rev)}, {v(AI)}, {v(dt)}\n v_mul_f32 {v(rev)}, 0.15915494, {v(rev)}')
    Z = {}
    mag = W.get(4); ang = W.get(4)
    for k, p in enumerate((8, 1, 128, 256)):
        Z[p] = W.get(2)
        a.I(f'v_mul_f32 {v(mag+k)}, {f32(float(p))}, {v(ar)}\n v_mul_f32 {v(ang+k)}, {f32(float(p))}, {v(rev)}')
        a.I(f'v_fract_f32 {v(ang+k)}, {v(ang+k)}\n v_exp_f32 {v(mag+k)}, {v(mag+k)}')
        a.I(f'v_cos_f32 {v(Z[p])}, {v(ang+k)}\n v_sin_f32 {v(Z[p]+1)}, {v(ang+k)}')
    Ee = W.get(16)
    a.I(f'v_add_f32 {v(dt)}, {v(dt)}, {v(dt)}\n v_mul_f32 {v(Ee)}, {v(CR)}, {v(dt)}\n v_mul_f32 {v(Ee+1)}, {v(CI)}, {v(dt)}')
    for k, p in enumerate((8, 1, 128, 256)):
        a.I(f'v_mul_f32 {v(Z[p])}, {v(mag+k)}, {v(Z[p])}\n v_mul_f32 {v(Z[p]+1)}, {v(mag+k)}, {v(Z[p]+1)}')
    stamp(a, 4)
    TT = W.get(8); PK = V.get(4)
    cnt = [0]
    def put(row, x, base):
        r = PK + cnt[0] % 4; cnt[0] += 1
        cvt(a, r, x, x+1, False, base)
        a.I(f'ds_write_b32 {v(vtw)}, {v(r)} offset:{row*RS}')
    O = W.get(4); H = W.get(2)
    offs_ops = []
    cur = Z[8]
    offs_ops.append(lambda: (put(21+1, Z[8], False), put(21+16, Z[128], False)))
    offs_ops.append(lambda: (cmul(a, H, Z[8], Z[128], TT+2), put(21+17, H, False)))
    for i in range(2, 16):
        nxt = O + 2*(i % 2)
        def f(i=i, cur=cur, nxt=nxt):
            cmul(a, nxt, cur, Z[8], TT); cmul(a, H, nxt, Z[128], TT+2)
            put(21+i, nxt, False); put(21+16+i, H, False)
        offs_ops.append(f); cur = nxt
    base_ops = []
    base_ops.append(lambda: put(0, Ee, True))
    for e in range(1, 8):
        base_ops.append(lambda e=e: (cmul(a, Ee+2*e, Ee+2*e-2, Z[1], TT+4), put(e, Ee+2*e, True)))
    for k, e in enumerate((0, 2, 4, 6)):
        base_ops.append(lambda k=k, e=e: (cmul(a, Ee+2*e, Ee+2*e, Z[256], TT+4), put(8+k, Ee+2*e, True)))
    for i in range(2):
        for k, e in enumerate((0, 4)):
            base_ops.append(lambda i=i, k=k, e=e: (cmul(a, Ee+2*e, Ee+2*e, Z[256], TT+4), put(12+2*i+k, Ee+2*e, True)))
    for i in range(5):
        base_ops.append(lambda i=i: (cmul(a, Ee, Ee, Z[256], TT+4), put(16+i, Ee, True)))
    while offs_ops or base_ops:
        if offs_ops: offs_ops.pop(0)()
        if base_ops: base_ops.pop(0)()
    vra = V.get(); vrb = V.get()
    a.I(f's_and_b32 s24, s3, 1\n s_lshr_b32 s25, s3, 1\n s_mul_i32 s26, s24, {TB_CH}\n s_mul_i32 s52, s25, {16*RS}\n s_add_u32 s52, s52, {21*RS}')
    a.I(f'v_mul_u32_u24 {v(vra)}, {RS}, {v(n)}\n v_lshl_add_u32 {v(vra)}, {v(q)}, 4, {v(vra)}\n v_add_u32 {v(vra)}, s26, {v(vra)}\n v_add_u32 {v(vrb)}, s52, {v(vra)}')
    ACCK = V.get(8, 4)
    a.I(f'v_and_b32 {v(t0)}, 0xbf, v0\n v_cmp_eq_u32 vcc, 0, {v(t0)}\n v_cndmask_b32 {v(ACCK)}, 0, {v(DS)}, vcc')
    a.I(f'v_mov_b32 {v(ACCK+1)}, 0\n v_mov_b32 {v(ACCK+2)}, 0\n v_mov_b32 {v(ACCK+3)}, 0')
    TM = V.get(3)
    a.I(f's_mul_i32 s52, s18, 12288\n s_add_u32 s52, s52, {UT_OFF}\n s_add_u32 s53, s52, 4096\n s_add_u32 s54, s52, 8192')
    a.I('s_waitcnt lgkmcnt(0)\n s_barrier'); stamp(a, 5)
    S = [128, 192]
    FR = S[0]
    for k in range(8):
        a.I(f'ds_read_b128 {v(FR+12*k,4)}, {v(vrb)} offset:{64*k}')
        a.I(f'ds_read_b128 {v(FR+12*k+4,4)}, {v(vra)} offset:{64*k}')
        a.I(f'ds_read_b128 {v(FR+12*k+8,4)}, {v(vra)} offset:{64*k+16*RS}')
    uloads = [f'buffer_load_dwordx4 {v(U0+4*k,4)}, {v(vt16)}, s[48:51], s{52+k} offen sc1' for k in range(3)]
    for x in uloads: a.I(x)
    KW = V.get(4); kw1 = V.get()
    a.I(f's_mul_i32 s26, s24, {KF_CH}\n s_lshl_b32 s27, s25, 8\n s_add_u32 s26, s26, s27\n s_add_u32 s26, s26, {KF_OFF}')
    a.I(f'v_lshlrev_b32 {v(kw1)}, 4, {v(n)}\n v_add_u32 {v(kw1)}, s26, {v(kw1)}')
    a.I(f'v_lshlrev_b32 {v(t0)}, 3, {v(q)}\n s_mov_b32 s30, 0x80400100\n s_mov_b32 s31, 0x08040202')
    a.I(f'v_bfe_u32 {v(KW)}, s30, {v(t0)}, 8\n v_lshl_add_u32 {v(KW)}, {v(KW)}, 3, {v(kw1)}')
    a.I(f'v_bfe_u32 {v(t1)}, s31, {v(t0)}, 8\n v_add_u32 {v(KW+1)}, {v(KW)}, {v(t1)}')
    a.I(f's_mov_b32 s30, 0x80020101\n v_bfe_u32 {v(KW+2)}, s30, {v(t0)}, 8\n v_lshl_add_u32 {v(KW+2)}, {v(KW+2)}, 2, {v(KW)}\n v_add_u32 {v(KW+3)}, {v(KW+2)}, {v(t1)}')
    a.I(f'v_lshl_add_u32 {v(kw1)}, {v(q)}, 11, {v(kw1)}')
    for k in range(8):
        mfma(a, ACCK, FR+12*k+4, FR+12*k, ACCK)
        mfma(a, ACCK+4, FR+12*k+8, FR+12*k, '0' if k == 0 else ACCK+4)
    va = V.get(); vb = V.get(4)
    a.I(f's_mul_i32 s26, s24, {U_CH}\n s_sub_u32 s26, s26, s27\n s_add_u32 s26, s26, {LU + 512 - 32 - 192}')
    a.I(f'v_lshlrev_b32 {v(va)}, 5, {v(n)}\n v_lshl_add_u32 {v(va)}, {v(q)}, 4, {v(va)}\n v_add_u32 {v(va)}, s26, {v(va)}')
    cvt(a, PK, ACCK, ACCK+1); cvt(a, PK+1, ACCK+2, ACCK+3)
    a.I(f'ds_write_b16 {v(KW)}, {v(PK)}\n ds_write_b16_d16_hi {v(KW+1)}, {v(PK)}\n ds_write_b16 {v(KW+2)}, {v(PK+1)}\n ds_write_b16_d16_hi {v(KW+3)}, {v(PK+1)}')
    cvt(a, PK+2, ACCK+4, ACCK+5); cvt(a, PK+3, ACCK+6, ACCK+7)
    a.I('s_mov_b32 exec_hi, 0')
    a.I(f'ds_write_b16 {v(kw1)}, {v(PK+2)} offset:2048\n ds_write_b16_d16_hi {v(kw1)}, {v(PK+2)} offset:2560')
    a.I(f'ds_write_b16 {v(kw1)}, {v(PK+3)} offset:3072\n ds_write_b16_d16_hi {v(kw1)}, {v(PK+3)} offset:3584')
    a.I('s_mov_b64 exec, -1')
    a.I('s_waitcnt lgkmcnt(0)\n s_barrier'); stamp(a, 6)
    G = FR
    for e in range(16, -1, -1): a.I(f'ds_read_u16 {v(G+e)}, {v(GA+e)}')
    a.I(f's_mul_i32 s26, s24, 8320\n s_sub_u32 s26, s26, s27\n s_add_u32 s26, s26, {LK - 192 - 512}')
    a.I(f'v_sub_u32 {v(t0)}, {v(t0)}, {v(n)}\n v_add_u32 {v(t0)}, 2031, {v(t0)}')
    a.I(f'v_and_b32 {v(t1)}, 1, {v(t0)}\n v_mul_u32_u24 {v(t1)}, 4160, {v(t1)}\n v_lshrrev_b32 {v(t0)}, 1, {v(t0)}')
    a.I(f'v_lshl_add_u32 {v(vb)}, {v(t0)}, 2, {v(t1)}\n v_add_u32 {v(vb)}, s26, {v(vb)}')
    for p in range(1, 4): a.I(f'v_add_u32 {v(vb+p)}, {-1024*p}, {v(vb)}')
    EO = FR + 20
    for hb in range(2):
        for b in range(4*hb, 4*hb+4):
            a.I(f'v_lshl_or_b32 {v(EO+b)}, {v(G+1+14-2*b)}, 16, {v(G+1+15-2*b)}')
            a.I(f'v_lshl_or_b32 {v(EO+8+b)}, {v(G+1+13-2*b)}, 16, {v(G+1+14-2*b)}')
        a.I(f'ds_write_b128 {v(vks)}, {v(EO+4*hb,4)} offset:{LK+16*hb}\n ds_write_b128 {v(vks)}, {v(EO+8+4*hb,4)} offset:{LK+4160+16*hb}')
    a.I(f's_mul_i32 s26, s3, 4160\n v_lshlrev_b32 {v(t0)}, 2, {v(n)}\n v_add_u32 {v(t0)}, s26, {v(t0)}\n ds_write_b32 {v(t0)}, {v(zero)} offset:{LK+4096}')
    stamp(a, 7)
    poll_check(a, uloads, U0, TM, TOK)
    a.I(f'v_mov_b32 {v(U0+3)}, {v(U0+8)}\n v_mov_b32 {v(U0+7)}, {v(U0+9)}')
    a.I(f'v_add_u32 {v(t1)}, {LU + 512}, {v(vt16)}')
    a.I(f'ds_write_b128 {v(t1)}, {v(U0,4)}\n ds_write_b128 {v(t1)}, {v(U0+4,4)} offset:{U_CH}')
    a.I('s_waitcnt lgkmcnt(0)\n s_barrier'); stamp(a, 8)
    V.put(GA, 17); V.put(ACCK, 8); V.put(KW, 4); V.put(PK, 4); V.put(U0, 12)
    ACC = V.get(32, 4)
    def loadA(rl, i): return f'ds_read_b128 {v(S[rl%2]+4*i,4)}, {v(va)} offset:{64*(3-rl)+512*i}'
    def loadB(rl, g):
        o = 16*(3-rl) + (128 if g % 2 == 0 else 0)
        r = S[rl%2] + 32 + 4*g
        return [f'ds_read2_b32 {v(r,2)}, {v(vb+g//2)} offset0:{o} offset1:{o+1}', f'ds_read2_b32 {v(r+2,2)}, {v(vb+g//2)} offset0:{o+2} offset1:{o+3}']
    def loads(rl):
        L = []
        for k in range(8):
            L += loadB(rl, k); L.append(loadA(rl, k))
        return L
    for x in loads(0): a.I(x)
    b = Asm()
    CL, G16, A64, A32 = slotmap(b, V, t0, t1)
    vrw = V.get(); vrr = V.get(); vao = V.get(); vl16 = V.get()
    b.I(f'v_lshlrev_b32 {v(vrw)}, 3, v0\n v_xor_b32 {v(vrr)}, 1024, {v(vrw)}')
    b.I(f'v_lshlrev_b32 {v(vao)}, 6, {v(q)}\n v_add_u32 {v(vao)}, {v(vao)}, {v(n)}\n v_mul_u32_u24 {v(vao)}, 48, {v(vao)}\n s_mul_i32 s26, s25, {32*48}\n s_lshl_b32 s27, s24, 4\n s_add_u32 s26, s26, s27\n v_add_u32 {v(vao)}, s26, {v(vao)}')
    b.I(f'v_and_b32 {v(vl16)}, 1023, {v(vt16)}\n s_mul_i32 s62, s18, {BS}\n s_add_u32 s62, s62, s56\n s_add_u32 s62, s62, {AW_OFF}')
    b.I(f's_cmp_eq_u32 s25, 0\n s_cselect_b64 s[30:31], -1, 0')
    filler = [x.strip() for x in b.out]
    for rl in range(4):
        nxt = loads(rl+1) if rl < 3 else filler
        pairs = sorted([(i, g) for i in range(8) for g in range(8) if i + g <= 7], key=lambda p: (max(p), p[0]+p[1]))
        seen = set()
        for k, (i, g) in enumerate(pairs):
            d = ACC + 4*(i+g)
            first = (rl == 0 and (i+g) not in seen); seen.add(i+g)
            mfma(a, d, S[rl%2]+4*i, S[rl%2]+32+4*g, '0' if first else d)
            if rl < 3:
                if k >= 8 and nxt: a.I(nxt.pop(0))
            else:
                for _ in range(2):
                    if nxt: a.I(nxt.pop(0))
        for x in nxt: a.I(x)
    stamp(a, 9)
    Gv = S[0]; R = S[0] + 16; Kp = S[0] + 32
    order = [0, 1, 2, 3, 4, 5, 6, 7]
    for i in order:
        for j in range(2):
            a.I(f'v_cndmask_b32 {v(Gv+2*i+j)}, {v(ACC+4*i+j)}, {v(ACC+4*i+2+j)}, s[30:31]')
        a.I(f'ds_write_b64 {v(vrw)}, {v(Gv+2*i,2)} offset:{LRED+2048*i}')
    for i in order:
        for j in range(2):
            a.I(f'v_cndmask_b32 {v(Kp+2*i+j)}, {v(ACC+4*i+2+j)}, {v(ACC+4*i+j)}, s[30:31]')
    a.I('s_waitcnt lgkmcnt(0)\n s_barrier')
    for i in range(8): a.I(f'ds_read_b64 {v(R+2*i,2)}, {v(vrr)} offset:{LRED+2048*i}')
    for i in range(8): a.I(f'v_pk_add_f32 {v(R+2*i,2)}, {v(R+2*i,2)}, {v(Kp+2*i,2)}')
    Oo = S[1]
    for jj in range(2):
        for i in range(4): cvt(a, Oo+4*jj+i, R+4*i+jj, R+4*i+2+jj)
        a.I(f'ds_write_b128 {v(vao)}, {v(Oo+4*jj,4)} offset:{LAO+768*jj}')
    a.I('s_waitcnt lgkmcnt(0)\n s_barrier')
    publish(a, LAO, S[1] + 8, A64, A32, vl16, 48, 62, TOK)
    endpgm(a, 48, 10, 1)

if __name__ == '__main__':
    out = sys.argv[1]
    a = Asm()
    a.raw(f'.globl {NAME}\n.p2align 8\n.type {NAME},@function\n{NAME}:')
    if PROF:
        for i in range(NST): a.I(f's_mov_b32 s{64+2*i}, 0')
        a.I('s_mov_b32 s60, 0')
    stamp(a, 0)
    if PREFETCH:
        a.I(f's_cmp_ge_u32 s2, {8*PREFETCH}\n s_cbranch_scc1 L_nopf')
        a.I('s_getpc_b64 s[62:63]')
        a.label('L_pc', keep=True)
        a.I(f'v_lshlrev_b32 v1, 7, v0\n v_cmp_gt_u32 vcc, L_code_end-L_pc, v1\n s_and_saveexec_b64 s[4:5], vcc\n s_cbranch_execz L_pf2')
        a.I(f'global_load_dword v255, v1, s[62:63]')
        a.label('L_pf2', keep=True)
        a.I('s_mov_b64 exec, -1')
        a.label('L_nopf')
    lo, hi = ('L_a_pre', 'L_b_pre') if AFIRST else ('L_b_pre', 'L_a_pre')
    a.I(f's_cmp_ge_u32 s2, 512\n s_cbranch_scc1 L_exit\n s_cmp_lt_u32 s2, 256')
    a.I('s_cbranch_scc0 L_b_pre' if AFIRST else 's_cbranch_scc1 L_b_pre')
    A = RoleA()
    A.pre(a)
    a.label('L_exit'); a.I('s_endpgm')
    role_b(a, lambda: None, None)
    nb = a.ninst
    A.body(a)
    a.raw('L_code_end:')
    nv = (a.maxv + 1 + 3) // 4 * 4
    print('vgpr', a.maxv + 1, 'sgpr', a.maxs + 1, 'ninst', nb, a.ninst - nb, 'lds', LDS_BYTES, file=sys.stderr)
    launch = f'; @launch kernel={NAME} grid=(512,1,1) block=(256,1,1) lds={LDS_BYTES}' if os.environ.get('LIST') else f'; @launch grid=(512,1,1) block=(256,1,1) lds={LDS_BYTES}'
    hdr = f'''; gated_mix( S4D conv , GFNet spectral filter ) -- generated by gen/gen4.py
{launch}
.amdgcn_target "amdgcn-amd-amdhsa--gfx950"
.text
'''
    kd = f'''.section .rodata,"a"
.p2align 6
.amdhsa_kernel {NAME}
  .amdhsa_next_free_vgpr {nv}
  .amdhsa_next_free_sgpr {a.maxs + 1}
  .amdhsa_accum_offset {nv}
  .amdhsa_group_segment_fixed_size 0
  .amdhsa_kernarg_size 112
  .amdhsa_user_sgpr_count 2
  .amdhsa_user_sgpr_kernarg_segment_ptr 1
  .amdhsa_system_sgpr_workgroup_id_x 1
.end_amdhsa_kernel
'''
    open(out, 'w').write(hdr + a.text() + kd)
```

```python
import re
class AsmError(Exception): pass

def regs_of(tok):
    tok = tok.strip()
    neg = False
    t = tok
    if t.startswith('-'): t = t[1:]
    if t.startswith('abs(') and t.endswith(')'): t = t[4:-1]
    if t.startswith('|') and t.endswith('|'): t = t[1:-1]
    m = re.fullmatch(r'([vsa])(\d+)', t)
    if m: return [(m.group(1), int(m.group(2)))]
    m = re.fullmatch(r'([vsa])\[(\d+):(\d+)\]', t)
    if m: return [(m.group(1), i) for i in range(int(m.group(2)), int(m.group(3)) + 1)]
    if t == 'vcc': return [('s', 106), ('s', 107)]
    if t == 'vcc_lo': return [('s', 106)]
    if t == 'vcc_hi': return [('s', 107)]
    if t == 'exec': return [('s', 126), ('s', 127)]
    if t == 'm0': return [('s', 124)]
    return []

TRANS = ('v_exp_f32', 'v_log_f32', 'v_rcp_f32', 'v_rsq_f32', 'v_sqrt_f32', 'v_sin_f32', 'v_cos_f32')

class Ins:
    def __init__(self, text):
        self.text = text
        code = text.split(';')[0].strip()
        parts = code.split(None, 1)
        self.op = parts[0]
        rest = parts[1] if len(parts) > 1 else ''
        ops, cur, depth = [], '', 0
        for ch in rest:
            if ch in '[(': depth += 1
            if ch in '])': depth -= 1
            if ch == ',' and depth == 0:
                ops.append(cur.strip()); cur = ''
            else: cur += ch
        if cur.strip(): ops.append(cur.strip())
        mods = ''
        if ops:
            sp = ops[-1].split(None, 1)
            ops[-1] = sp[0]
            mods = sp[1] if len(sp) > 1 else ''
        self.ops, self.mods = ops, mods
        op = self.op
        self.w, self.r = [], []
        self.kind = 'other'
        R = lambda i: regs_of(ops[i]) if i < len(ops) else []
        allr = lambda a: [x for i in range(a, len(ops)) for x in R(i)]
        if op.startswith('v_mfma'):
            self.kind = 'mfma'; self.w = R(0); self.r = allr(1)
            self.A, self.B, self.C = R(1), R(2), R(3)
            self.passes = 8 if '32x32' in op else 4
        elif op.startswith('v_'):
            self.kind = 'trans' if op.replace('_e32','').replace('_e64','') in TRANS else 'valu'
            if op.startswith('v_swap') or 'permlane16_swap' in op or 'permlane32_swap' in op:
                self.w = R(0) + R(1); self.r = R(0) + R(1)
            elif '_co_' in op:
                self.w = R(0) + R(1); self.r = allr(2)
            else:
                self.w = R(0); self.r = allr(1)
                if op.startswith(('v_fmac', 'v_dot2c', 'v_pk_fmac', 'v_writelane')): self.r += R(0)
                if '_dpp' in op: self.r += R(0)
                if op.startswith('v_cmpx'): self.w += [('s',126),('s',127)]
        elif op.startswith('ds_'):
            self.kind = 'ds'
            if op.startswith(('ds_read', 'ds_bpermute', 'ds_permute', 'ds_swizzle')) or '_rtn' in op:
                self.w = R(0); self.r = allr(1)
            else: self.r = allr(0)
        elif op.startswith(('buffer_', 'global_')):
            self.kind = 'vmem'
            self.lds = ' lds' in (' ' + mods) or '_lds_' in op
            if 'load' in op and not self.lds:
                self.w = R(0); self.r = allr(1)
            elif 'atomic' in op and 'sc0' in mods:
                self.w = R(0); self.r = allr(0)
            else: self.r = allr(0)
            if self.lds: self.r += [('s', 124)]
            self.store = 'store' in op
            self.wide = self.store and ('x3' in op or 'x4' in op)
            if self.store:
                self.data = R(0) if op.startswith('buffer_') else R(1)
        elif op.startswith(('s_load', 's_buffer_load', 's_memtime', 's_memrealtime')):
            self.kind = 'smem'; self.w = R(0); self.r = allr(1)
        elif op.startswith('s_'):
            self.kind = 'salu'
            if op.startswith(('s_cmp', 's_bitcmp', 's_cbranch', 's_branch', 's_waitcnt', 's_nop', 's_barrier', 's_endpgm', 's_sleep', 's_setprio')):
                self.r = allr(0)
            else:
                self.w = R(0); self.r = allr(1)
                if 'saveexec' in op: self.w += [('s',126),('s',127)]
    def states(self):
        if self.op == 's_nop': return int(self.ops[0], 0) + 1
        return 1

class Asm:
    def __init__(self):
        self.out = []
        self.reset()
        self.maxv = 0; self.maxs = 0
        self.ninst = 0
    def reset(self):
        self.hist = []
        self.vm = []
        self.lg = []
    def raw(self, text): self.out.append(text)
    def comment(self, t): self.out.append('    ; ' + t)
    def label(self, name, keep=False):
        self.out.append(name + ':')
        if not keep: self.reset()
    def _emit(self, ins):
        self.out.append('    ' + ins.text)
        self.hist.append(ins)
        if len(self.hist) > 40: self.hist.pop(0)
        self.ninst += 1
        for k, i in ins.w + ins.r:
            if k == 'v': self.maxv = max(self.maxv, i)
            if k == 's' and i < 102: self.maxs = max(self.maxs, i)
    def _need(self, ins):
        need = 0
        dist = 0
        rs, ws = set(ins.r), set(ins.w)
        for p in reversed(self.hist):
            req = 0
            pw = set(p.w)
            if p.kind in ('valu', 'trans'):
                pv = {x for x in pw if x[0] != 's'}; ps = {x for x in pw if x[0] == 's'}
                if ins.kind == 'mfma' and pv & rs: req = max(req, 2)
                if ins.kind == 'mfma' and (('s',126) in ps): req = max(req, 4)
                if p.kind == 'trans' and ins.kind in ('valu', 'mfma') and pv & rs: req = max(req, 1)
                if p.kind == 'trans' and ins.kind in ('ds', 'vmem') and pv & rs: req = max(req, 1)
                if ins.kind in ('valu', 'trans'):
                    if ('_dpp' in ins.op or 'permlane' in ins.op) and pv & rs: req = max(req, 2)
                    if ('readlane' in ins.op or 'readfirstlane' in ins.op) and pv & rs: req = max(req, 1)
                    if ps & rs: req = max(req, 4 if ('readlane' in ins.op or 'writelane' in ins.op) else 2)
                    if '_dpp' in ins.op and ('s',126) in ps: req = max(req, 5)
                    if ('op_sel' in p.mods and not p.op.startswith('v_pk')) and pv & (rs | ws): req = max(req, 1)
                if ins.kind == 'vmem' and ps & rs: req = max(req, 5)
                if ins.kind == 'salu' and ps & rs: req = max(req, 1)
            if p.kind == 'mfma':
                D = pw
                big = 12 if p.passes == 8 else 8
                if ins.kind == 'mfma':
                    if D & (set(ins.A) | set(ins.B)): req = max(req, big)
                    if D & set(ins.C):
                        if not (p.w == ins.C and p.passes == ins.passes): req = max(req, 10 if p.passes == 8 else 6)
                    elif D & ws and not (p.w == ins.w): req = max(req, big)
                elif ins.kind in ('valu', 'trans', 'ds', 'vmem'):
                    if D & (rs | ws): req = max(req, big)
                if ins.kind in ('valu', 'trans') and set(p.C) & ws: req = max(req, 7 if p.passes == 8 else 3)
            if p.kind == 'vmem' and getattr(p, 'wide', False) and set(p.data) & ws:
                req = max(req, 2)
            if p.kind == 'salu' and ('s',124) in pw and ins.kind == 'vmem' and ins.lds: req = max(req, 1)
            if p.op.startswith('v_dot') and ins.kind in ('valu','trans','mfma','ds','vmem') and pw & (rs | ws):
                if not (ins.op == p.op and not (pw & set(x for o in ins.ops[1:3] for x in regs_of(o)))): req = max(req, 3)
            need = max(need, req - dist)
            dist += p.states()
            if dist > 24: break
        return need
    def I(self, text):
        for line in text.strip().split('\n'):
            line = line.strip()
            if not line: continue
            if line.startswith(';'): self.comment(line[1:].strip()); continue
            self._I(line)
    def _I(self, text):
        ins = Ins(text)
        touched = set(ins.r) | set(ins.w)
        if ins.op == 's_waitcnt':
            m = re.search(r'vmcnt\((\d+)\)', text)
            if m:
                n = int(m.group(1)); self.vm = self.vm[len(self.vm) - n:] if n < len(self.vm) else self.vm
                if n == 0: self.vm = []
            m = re.search(r'lgkmcnt\((\d+)\)', text)
            if m:
                n = int(m.group(1)); self.lg = self.lg[len(self.lg) - n:] if n < len(self.lg) else self.lg
                if n == 0: self.lg = []
            self._emit(ins); return
        wv = wl = None
        for idx, regs in enumerate(self.vm):
            if regs & touched: wv = len(self.vm) - 1 - idx
        for idx, (kind, regs) in enumerate(self.lg):
            if regs & touched: wl = len(self.lg) - 1 - idx
        if wl is not None and any(k == 'smem' for k, _ in self.lg): wl = 0
        if wv is not None or wl is not None:
            s = 's_waitcnt'
            if wv is not None: s += f' vmcnt({min(wv, 63)})'
            if wl is not None: s += f' lgkmcnt({min(wl, 15)})'
            self._I(s)
        n = self._need(ins)
        while n > 0:
            k = min(n, 16)
            self._emit(Ins(f's_nop {k - 1}')); n -= k
        self._emit(ins)
        if ins.kind == 'vmem': self.vm.append(set(ins.w))
        if ins.kind == 'ds': self.lg.append(('ds', set(ins.w)))
        if ins.kind == 'smem': self.lg.append(('smem', set(ins.w)))
    def text(self): return '\n'.join(self.out) + '\n'

class VAlloc:
    def __init__(self, start=1, limit=256):
        self.free = set(range(start, limit)); self.limit = limit
    def get(self, n=1, align=None):
        if align is None: align = 2 if n > 1 else 1
        for b in range(0, self.limit, align):
            if all((b + i) in self.free for i in range(n)):
                for i in range(n): self.free.discard(b + i)
                return b
        raise AsmError('out of vgprs')
    def put(self, b, n=1):
        for i in range(n):
            assert (b + i) not in self.free
            self.free.add(b + i)
def v(b, n=1): return f'v{b}' if n == 1 else f'v[{b}:{b + n - 1}]'
def s(b, n=1): return f's{b}' if n == 1 else f's[{b}:{b + n - 1}]'
import struct
def f32(x): return '0x%08x' % struct.unpack('<I', struct.pack('<f', x))[0]

def _lat(p, c, kind):
    if kind == 'raw':
        if p.kind == 'mfma':
            if c.kind == 'mfma' and p.w == c.C and not (set(p.w) & (set(c.A) | set(c.B))): return 16
            return 44
        if p.kind == 'ds': return 120
        if p.kind == 'vmem': return 600
        if p.kind == 'trans': return 16 if c.kind != 'mfma' else 20
        if p.kind == 'valu':
            if c.kind == 'mfma' or 'dpp' in c.op or 'permlane' in c.op: return 12
            if any(x[0] == 's' for x in p.w): return 12
            return 4
        return 4
    if kind == 'war':
        if p.kind == 'mfma' and set(p.C) & set(c.w) and c.kind != 'mfma': return 16
        return 4
    if kind == 'waw':
        if p.kind == 'mfma': return 44 if c.kind != 'mfma' else 16
        return 4
    return 4
def _issue(i):
    if i.kind == 'trans' or i.op.startswith('v_swap'): return 8
    if i.kind == 'mfma': return 8
    return 4
def schedule(lines):
    ins = [Ins(l) for l in lines]
    n = len(ins)
    for i in ins:
        if i.kind == 'salu': i.r = i.r + [('c', 0)]; i.w = i.w + [('c', 0)]
        if i.kind == 'ds': i.r = i.r + [('m', 0)]; i.w = i.w + [('m', 0)]
        if i.kind == 'vmem': i.r = i.r + [('m', 1)]; i.w = i.w + [('m', 1)]
        if i.op.startswith('v_cndmask') and len(i.ops) == 3: i.r = i.r + [('s', 106), ('s', 107)]
    preds = [[] for _ in range(n)]; succs = [[] for _ in range(n)]
    lastw = {}; readers = {}
    for k, i in enumerate(ins):
        dep = {}
        for x in i.r:
            if x in lastw:
                l = 4 if x[0] in 'cm' else _lat(ins[lastw[x]], i, 'raw')
                dep[lastw[x]] = max(dep.get(lastw[x], 0), l)
        for x in i.w:
            if x in lastw and x[0] not in 'cm': dep[lastw[x]] = max(dep.get(lastw[x], 0), _lat(ins[lastw[x]], i, 'waw'))
            for r in readers.get(x, []):
                if r != k: dep[r] = max(dep.get(r, 0), _lat(ins[r], i, 'war'))
        for p, l in dep.items(): preds[k].append((p, l)); succs[p].append((k, l))
        for x in i.r: readers.setdefault(x, []).append(k)
        for x in i.w: lastw[x] = k; readers[x] = []
    prio = [0] * n
    for k in range(n - 1, -1, -1):
        prio[k] = _issue(ins[k]) + max([l + prio[s] for s, l in succs[k]], default=0)
    done = [None] * n; npred = [len(p) for p in preds]
    ready = [k for k in range(n) if npred[k] == 0]
    t = 0; mf_free = 0; order = []
    while ready:
        def est(k):
            e = max([done[p] + l for p, l in preds[k]], default=0)
            if ins[k].kind == 'mfma': e = max(e, mf_free)
            return e
        avail = [k for k in ready if est(k) <= t]
        if avail: k = max(avail, key=lambda k: (prio[k], -k))
        else:
            k = min(ready, key=lambda k: (est(k), -prio[k])); t = est(k)
        done[k] = t; order.append(k); ready.remove(k)
        if ins[k].kind == 'mfma': mf_free = t + 4 * ins[k].passes
        t += _issue(ins[k])
        for s_, l in succs[k]:
            npred[s_] -= 1
            if npred[s_] == 0: ready.append(s_)
    return [lines[k] for k in order], t

class Block:
    def __init__(self, a, name=''): self.a = a; self.l = []; self.name = name
    def I(self, text):
        for line in text.strip().split('\n'):
            line = line.strip()
            if line and not line.startswith(';'):
                assert not line.startswith(('s_waitcnt', 's_barrier', 's_cbranch', 's_branch')) and 'exec' not in line, line
                self.l.append(line)
    def emit(self, verbose=False):
        out, t = schedule(self.l)
        if verbose:
            import sys; print(f'block {self.name}: {len(out)} instrs, est {t} cycles', file=sys.stderr)
        for x in out: self.a.I(x)
        self.l = []
```

```python
import sys, math, os
from asmlib import *
E = lambda k, d: int(os.environ.get(k, str(d)))
BS = 12288 + E('BSPAD', 192)
Y_OFF  = 0x000000
V_OFF  = 0x310000
AW_OFF = 0x620000
UT_OFF = 0x930000
EP_OFF = 0xC40000
WS_BYTES = 0x1000000
LOG2E = 1.4426950408889634
TOKC = 0x9E3779B9
SPIN = 30000
PROF = E('PROF', 0); PREFETCH = E('PREFETCH', 1); BPRIO = E('BPRIO', 2); WPOS = E('WPOS', 1); BACKOFF = E('BACKOFF', 4)
AFIRST = E('AFIRST', 1); WPF = E('WPF', 2)
NAME = 'gated_mix__ssm_conv_s4d__spectral_gfnet__prompt_kernel'
DBG_OFF = 0xFC0000
NST = 15
def stamp(a, i, wait=True):
    if PROF:
        if wait: a.I(f's_memrealtime s[{64+2*i}:{65+2*i}]\n s_waitcnt lgkmcnt(0)')
        else: a.I(f's_memrealtime s[{64+2*i}:{65+2*i}]')
def endpgm(a, srdb, last, role):
    if PROF:
        stamp(a, last)
        a.I('s_waitcnt vmcnt(0)')
        stamp(a, last + 1)
        a.I('s_mov_b64 exec, 1')
        for i in range(16): a.I(f'v_mov_b32 v{4+i}, s{64+2*i}' if i < NST else f'v_mov_b32 v{4+i}, s60')
        a.I(f's_and_b32 s61, s2, 255\n s_lshl_b32 s61, s61, 2\n s_add_u32 s61, s61, s3\n s_lshl_b32 s61, s61, 6\n s_add_u32 s61, s61, {DBG_OFF + role*65536}')
        a.I('v_mov_b32 v1, 0')
        for k in range(4): a.I(f'buffer_store_dwordx4 v[{4+4*k}:{7+4*k}], v1, s[{srdb}:{srdb+3}], s61 offen offset:{16*k}')
    a.I('s_endpgm')
def srd(a, d, b, nbytes):
    a.I(f's_mov_b32 s{d}, s{b}\n s_mov_b32 s{d+1}, s{b+1}\n s_mov_b32 s{d+2}, {nbytes}\n s_mov_b32 s{d+3}, 0x00020000')
def task_of(a, dst, tmp):
    a.I(f's_and_b32 s{dst}, s2, 7\n s_lshl_b32 s{dst}, s{dst}, 5\n s_bfe_u32 s{tmp}, s2, 0x50003\n s_or_b32 s{dst}, s{dst}, s{tmp}')
def lanes(a, V):
    n, q = V.get(), V.get()
    a.I(f'v_lshrrev_b32 {v(q)}, 6, v0')
    a.I(f'v_and_b32 {v(n)}, 15, v0')
    a.I(f'v_readfirstlane_b32 s3, {v(q)}')
    a.I(f'v_bfe_u32 {v(q)}, v0, 4, 2')
    return n, q
def cm1(a, re, im, c, s_, t1, t2, sign):
    a.I(f'v_mul_f32 {v(t1)}, {v(im)}, {v(s_)}\n v_mul_f32 {v(t2)}, {v(re)}, {v(s_)}')
    a.I(f'v_fma_f32 {v(re)}, {v(re)}, {v(c)}, {"-" if sign > 0 else ""}{v(t1)}')
    a.I(f'v_fma_f32 {v(im)}, {v(im)}, {v(c)}, {"-" if sign < 0 else ""}{v(t2)}')
def cmul_tw(a, re, im, c, s_, t1, t2, sign):
    cm1(a, re, im, c, s_, t1, t2, sign); cm1(a, re+1, im+1, c+1, s_+1, t1+1, t2+1, sign)
def mfma(a, d, A, B, c):
    a.I(f'v_mfma_f32_16x16x32_bf16 {v(d,4)}, {v(A,4)}, {v(B,4)}, {c if isinstance(c,str) else v(c,4)}')
def cvt(a, d, x, y, nx=False, ny=False):
    a.I(f'v_cvt_pk_bf16_f32 {v(d)}, {"-" if nx else ""}{v(x)}, {"-" if ny else ""}{v(y)}')
def chk(a, g, tok):
    a.I(f'v_add3_u32 {v(g+3)}, {v(g)}, {v(g+1)}, {v(g+2)}\n v_add_u32 {v(g+3)}, s{tok}, {v(g+3)}')
_lab = [0]
def poll_check(a, loads, R, tmp, tok, backoff=None):
    _lab[0] += 1
    L = f'L_poll{_lab[0]}'
    bo = BACKOFF if backoff is None else backoff
    a.I(f's_mov_b32 s59, {SPIN}')
    a.label(L, keep=True)
    for k in range(3):
        g = R + 4*k
        a.I(f's_waitcnt vmcnt({2-k})')
        a.I(f'v_add3_u32 {v(tmp+k)}, {v(g)}, {v(g+1)}, {v(g+2)}\n v_sub_u32 {v(tmp+k)}, {v(g+3)}, {v(tmp+k)}\n v_xor_b32 {v(tmp+k)}, s{tok}, {v(tmp+k)}')
    a.I(f'v_or3_b32 {v(tmp)}, {v(tmp)}, {v(tmp+1)}, {v(tmp+2)}')
    a.I(f'v_cmp_ne_u32 vcc, 0, {v(tmp)}\n s_cbranch_vccz {L}_out\n s_sub_u32 s59, s59, 1\n s_cbranch_scc1 {L}_out\n s_mov_b64 exec, vcc')
    if bo: a.I(f's_sleep {bo}')
    for x in loads: a.I(x)
    if PROF: a.I('s_add_u32 s60, s60, 1')
    a.I(f's_branch {L}')
    a.label(L + '_out', keep=True)
    a.vm = []
    a.I('s_mov_b64 exec, -1')
def slotmap(a, V, t0, t1):
    CL = V.get(3); G16 = V.get(3); A64 = V.get(3); A32 = V.get(3)
    a.I(f's_mul_i32 s56, s3, 3072\n v_and_b32 {v(t0)}, 63, v0')
    for k in range(3):
        if k: a.I(f'v_add_u32 {v(t0)}, 64, {v(t0)}')
        a.I(f'v_mul_u32_u24 {v(CL+k)}, 21846, {v(t0)}\n v_lshrrev_b32 {v(CL+k)}, 16, {v(CL+k)}')
        a.I(f'v_mul_u32_u24 {v(t1)}, 3, {v(CL+k)}\n v_sub_u32 {v(t1)}, {v(t0)}, {v(t1)}\n v_lshlrev_b32 {v(G16+k)}, 4, {v(t1)}')
        a.I(f'v_mul_u32_u24 {v(A32+k)}, 48, {v(CL+k)}\n v_add_u32 {v(A32+k)}, s56, {v(A32+k)}')
        a.I(f'v_lshl_add_u32 {v(A64+k)}, {v(t1)}, 3, {v(A32+k)}\n v_lshl_add_u32 {v(A32+k)}, {v(t1)}, 2, {v(A32+k)}')
    return CL, G16, A64, A32
def publish(a, img, R, A64, A32, vl16, srdb, soff, tok):
    for k in range(3):
        a.I(f'ds_read_b64 {v(R+4*k,2)}, {v(A64+k)} offset:{img}\n ds_read_b32 {v(R+4*k+2)}, {v(A32+k)} offset:{img+24}')
    for k in range(3):
        chk(a, R+4*k, tok)
        a.I(f'buffer_store_dwordx4 {v(R+4*k,4)}, {v(vl16)}, s[{srdb}:{srdb+3}], s{soff} offen offset:{1024*k} sc1')
def unpack(a, img, R, A64, A32):
    for k in range(3):
        a.I(f'ds_write_b64 {v(A64+k)}, {v(R+4*k,2)} offset:{img}\n ds_write_b32 {v(A32+k)}, {v(R+4*k+2)} offset:{img+24}')

LX = 0; LI0 = 8704; LI1 = LI0 + 12288; LW = LI1 + 12288; LG = LW + 256*80; LDUM = LG + 64
VERB = E('VERB', 0)
def role_b(a):
    V = VAlloc(1, 255)
    a.label('L_b_pre')
    if E('ONLYA', 0): a.I('s_endpgm')
    a.I('s_load_dwordx2 s[4:5], s[0:1], 0\n s_load_dwordx4 s[8:11], s[0:1], 64\n s_load_dwordx4 s[48:51], s[0:1], 80\n s_load_dwordx2 s[12:13], s[0:1], 104')
    def hi(): a.I('s_setprio 3')
    def lo(): a.I(f's_setprio {E("LOPRIO", 1)}')
    a.I(f's_setprio {E("B0PRIO", 1)}')
    task_of(a, 14, 15)
    n, q = lanes(a, V)
    t0 = V.get(); t1 = V.get(); TM = V.get(3)
    vl16 = V.get(); a.I(f'v_and_b32 {v(vl16)}, 63, v0\n v_lshlrev_b32 {v(vl16)}, 4, {v(vl16)}')
    a.I(f's_lshl_b32 s16, s3, 9\n s_add_u32 s16, s16, s14\n s_lshl_b32 s16, s16, 10\n s_add_u32 s17, s16, {256*1024}')
    a.I(f's_mul_i32 s18, s3, 2112\n s_mov_b32 s30, 2097152\n s_mov_b32 s31, 0x00020000')
    WR = V.get(4, 4); WI = V.get(4, 4); WNR = V.get(2); GW = V.get(8, 4)
    XA = V.get(32, 4); ACC = V.get(32, 4); T = V.get(16)
    base = V.get(); fN = V.get()
    POOL = V.get(120, 4)
    C1 = POOL; TC = POOL + 16; TS = POOL + 32; C2 = POOL + 48; CN = POOL + 96; A2 = POOL + 100
    f1, kH, fF, fK, sgn = (ACC + i for i in range(5))
    b = Block(a, 'c1')
    b.I(f'v_lshrrev_b32 {v(f1)}, 3, {v(n)}\n s_lshl_b32 s56, s3, 1\n v_add_u32 {v(f1)}, s56, {v(f1)}\n v_and_b32 {v(kH)}, 7, {v(n)}')
    b.I(f'v_cvt_f32_u32 {v(fF)}, {v(f1)}\n v_cvt_f32_u32 {v(fK)}, {v(kH)}')
    b.I(f'v_and_b32 {v(t0)}, 1, {v(q)}\n v_lshlrev_b32 {v(t0)}, 2, {v(t0)}\n v_mul_u32_u24 {v(t0)}, {v(t0)}, {v(f1)}')
    b.I(f'v_and_b32 {v(t1)}, 2, {v(q)}\n v_mad_u32_u24 {v(t0)}, {v(t1)}, {v(kH)}, {v(t0)}')
    b.I(f'v_cvt_f32_u32 {v(base)}, {v(t0)}\n v_mul_f32 {v(base)}, 0.125, {v(base)}')
    b.I(f'v_and_b32 {v(sgn)}, 1, {v(kH)}\n v_mul_u32_u24 {v(sgn)}, 0x8000, {v(sgn)}\n v_lshl_or_b32 {v(sgn)}, {v(sgn)}, 16, {v(sgn)}')
    for h in range(2):
        if h == 1: b.I(f'v_fmamk_f32 {v(base)}, {v(fK)}, {f32(0.125)}, {v(base)}')
        for r in range(1, 4): b.I(f'v_fmamk_f32 {v(T+8+r)}, {v(fF)}, {f32(0.125*r)}, {v(base)}')
        for r in range(4):
            ang = base if r == 0 else T + 8 + r
            b.I(f'v_cos_f32 {v(T+r)}, {v(ang)}\n v_sin_f32 {v(T+4+r)}, {v(ang)}')
        cvt(b, C1+2*h, T, T+1); cvt(b, C1+2*h+1, T+2, T+3)
        cvt(b, C1+8+2*h, T+4, T+5, True, True); cvt(b, C1+8+2*h+1, T+6, T+7, True, True)
    for i in range(4):
        b.I(f'v_xor_b32 {v(C1+4+i)}, {v(sgn)}, {v(C1+i)}\n v_xor_b32 {v(C1+12+i)}, {v(sgn)}, {v(C1+8+i)}')
    if E('EARLYC', 1): b.emit(VERB)
    a.I('s_waitcnt lgkmcnt(0)'); stamp(a, 1)
    a.I('s_mov_b32 s28, s4\n s_mov_b32 s29, s5\n s_mov_b32 m0, s18')
    a.I(f'buffer_load_dwordx4 {v(vl16)}, s[28:31], s16 offen lds')
    a.I('s_add_u32 m0, s18, 1056')
    a.I(f'buffer_load_dwordx4 {v(vl16)}, s[28:31], s17 offen lds')
    srd(a, 44, 12, WS_BYTES)
    a.I(f's_add_u32 s12, s12, {EP_OFF}\n s_addc_u32 s13, s13, 0\n s_load_dword s57, s[12:13], 0')
    srd(a, 32, 8, 1052672); srd(a, 36, 10, 1052672); srd(a, 40, 48, 1024); srd(a, 52, 50, 2097152)
    a.I(f's_and_b32 s19, s2, 7\n s_mul_i32 s20, s19, 514\n s_lshl_b32 s21, s15, 4\n s_add_u32 s21, s21, s20')
    a.I(f's_mul_i32 s24, s14, {BS}\n s_mul_i32 s25, s3, 3072\n s_add_u32 s24, s24, s25\n s_add_u32 s26, s24, {V_OFF}')
    a.I(f's_mul_i32 s22, s15, {8*4112}\n s_add_u32 s22, s22, s20\n s_and_b32 s22, s22, -4')
    if not E('EARLYC', 1): b.emit(VERB)
    vw = V.get(); vj4 = V.get(); vpf = V.get(); vrow = V.get()
    a.I(f's_mul_i32 s23, s15, {E("WROT", 8)}\n v_mul_u32_u24 {v(vrow)}, {E("WMUL", 1)}, v0\n v_add_u32 {v(vrow)}, s23, {v(vrow)}\n v_and_b32 {v(vrow)}, 255, {v(vrow)}\n v_mul_u32_u24 {v(vw)}, 4112, {v(vrow)}')
    a.I(f'v_mov_b32 {v(WNR)}, 0\n v_mov_b32 {v(WNR+1)}, 0\n s_cmp_eq_u32 s15, 31\n s_cselect_b64 s[6:7], -1, 0')
    ndrip = [0]
    def drip(k):
        if E('WST', 1) != 3: return
        lo_, hi_ = ((0xffff, 0), (0xffff0000, 0), (0, 0xffff), (0, 0xffff0000))[k]
        a.I(f's_mov_b32 exec_lo, {lo_}\n s_mov_b32 exec_hi, {hi_}')
        for r, rn, sr in ((WR, WNR, 32), (WI, WNR+1, 36)):
            a.raw(f'    buffer_load_dwordx4 {v(r,4)}, {v(vw)}, s[{sr}:{sr+3}], s21 offen'); a.vm.append(set())
        a.I(f's_and_b64 exec, exec, s[6:7]\n s_cbranch_execz L_drip{k}')
        for r, rn, sr in ((WR, WNR, 32), (WI, WNR+1, 36)):
            a.raw(f'    buffer_load_short_d16_hi {v(rn)}, {v(vw)}, s[{sr}:{sr+3}], s21 offen offset:16')
        a.label(f'L_drip{k}', keep=True)
        a.I('s_mov_b64 exec, -1')
        ndrip[0] += 2
    DR = [int(x) for x in os.environ.get('DRIP', '0123')]
    def slot(i):
        for k, x in enumerate(DR):
            if x == i: drip(k)
    slot(0)
    b.I(f'v_mul_u32_u24 {v(t0)}, {v(kH)}, {v(q)}\n v_lshlrev_b32 {v(t0)}, 4, {v(t0)}\n v_mad_u32_u24 {v(t0)}, {v(f1)}, s14, {v(t0)}')
    b.I(f'v_cvt_f32_u32 {v(base)}, {v(t0)}\n v_mul_f32 {v(base)}, {f32(1/2048)}, {v(base)}')
    for t in range(4):
        for i in range(4):
            k = 16*t + i
            if k == 0: ang = base
            else:
                ang = T + 4*t + i
                b.I(f'v_fmamk_f32 {v(ang)}, {v(fK)}, {f32(k/512)}, {v(base)}')
            b.I(f'v_cos_f32 {v(TC+4*t+i)}, {v(ang)}\n v_sin_f32 {v(TS+4*t+i)}, {v(ang)}')
    b.I(f'v_lshrrev_b32 {v(vj4)}, 5, v0\n v_mul_u32_u24 {v(vpf)}, 4112, {v(vj4)}\n v_and_b32 {v(t1)}, 7, v0\n v_lshl_add_u32 {v(vpf)}, {v(t1)}, 7, {v(vpf)}\n v_lshlrev_b32 {v(vj4)}, 2, {v(vj4)}')
    b.emit(VERB)
    WST = E('WST', 1)
    def wstorm():
        a.I(f'v_mov_b32 {v(WNR)}, 0\n v_mov_b32 {v(WNR+1)}, 0\n s_cmp_eq_u32 s15, 31\n s_cselect_b64 s[6:7], -1, 1')
        if not E('NOW', 0):
            a.I(f'buffer_load_dwordx4 {v(WR,4)}, {v(vw)}, s[32:35], s21 offen')
            a.I('s_mov_b64 exec, s[6:7]')
            a.I(f'buffer_load_short_d16_hi {v(WNR)}, {v(vw)}, s[32:35], s21 offen offset:16')
            a.I('s_mov_b64 exec, -1')
            a.I(f'buffer_load_dwordx4 {v(WI,4)}, {v(vw)}, s[36:39], s21 offen')
            a.I('s_mov_b64 exec, s[6:7]')
            a.I(f'buffer_load_short_d16_hi {v(WNR+1)}, {v(vw)}, s[36:39], s21 offen offset:16')
            a.I('s_mov_b64 exec, -1')
    def wpf():
        a.I('s_mov_b32 exec_lo, 0x1f\n s_mov_b32 exec_hi, 0x1f')
        a.I(f'buffer_load_dword {v(TM)}, {v(vpf)}, s[32:35], s22 offen')
        a.I(f'buffer_load_dword {v(TM+1)}, {v(vpf)}, s[36:39], s22 offen')
        a.I('s_mov_b64 exec, -1')
    if WPF == 1: wpf()
    slot(1)
    b.I(f'v_cvt_f32_u32 {v(fN)}, {v(n)}\n v_mul_u32_u24 {v(t0)}, {v(n)}, {v(q)}\n v_cvt_f32_u32 {v(base)}, {v(t0)}\n v_mul_f32 {v(base)}, {f32(1/16)}, {v(base)}')
    for t in range(2):
        TT = XA + 12*t
        for i in range(4):
            k = 16*t + i
            if k == 0: ang = base
            else:
                ang = TT + 8 + i
                b.I(f'v_fmamk_f32 {v(ang)}, {v(fN)}, {f32(k/64)}, {v(base)}')
            b.I(f'v_cos_f32 {v(TT+i)}, {v(ang)}\n v_sin_f32 {v(TT+4+i)}, {v(ang)}')
        c = [TT+i for i in range(4)]; s_ = [TT+4+i for i in range(4)]
        b0 = C2 + 6*t; b1 = C2 + 24 + 6*t
        cvt(b, b0+0, s_[0], s_[1], True, True); cvt(b, b0+2, c[0], c[1]); cvt(b, b0+4, s_[0], s_[1])
        cvt(b, b1+0, s_[0], c[1], True, True); cvt(b, b1+2, c[0], s_[1], False, True); cvt(b, b1+4, s_[0], c[1])
        cvt(b, b0+3, c[2], c[3]); cvt(b, b1+1, s_[2], c[3]); cvt(b, b1+5, s_[2], c[3], True, True)
        cvt(b, b0+1, s_[2], s_[3], True, True); cvt(b, b0+5, s_[2], s_[3]); cvt(b, b1+3, c[2], s_[3], True, False)
        for ct in range(2):
            for i in range(6): b.I(f'v_xor_b32 {v(C2+24*ct+6*t+12+i)}, {v(sgn)}, {v(C2+24*ct+6*t+i)}')
    b.I(f'v_mov_b32 {v(T)}, 0xbf803f80')
    b.I(f'v_cmp_eq_u32 vcc, 0, {v(n)}\n v_cndmask_b32 {v(CN)}, 0, {v(T)}, vcc\n v_cndmask_b32 {v(CN+1)}, 0, {v(T)}, vcc')
    b.I(f'v_cmp_eq_u32 vcc, 1, {v(n)}\n v_cndmask_b32 {v(CN+2)}, 0, {v(T)}, vcc\n v_cndmask_b32 {v(CN+3)}, 0, {v(T)}, vcc')
    vtr = V.get(); vys = V.get(); vyn = V.get()
    b.I(f'v_bfe_u32 {v(T+1)}, v0, 2, 3\n v_mul_u32_u24 {v(vtr)}, 1056, {v(T+1)}')
    b.I(f'v_bfe_u32 {v(T+2)}, v0, 5, 1\n v_lshl_add_u32 {v(vtr)}, {v(T+2)}, 8, {v(vtr)}')
    b.I(f'v_and_b32 {v(T+3)}, 3, v0\n v_lshl_add_u32 {v(vtr)}, {v(T+3)}, 3, {v(vtr)}')
    b.emit(VERB)
    if WPF == 2: wpf()
    slot(2)
    V.put(vpf)
    stamp(a, 2)
    if WST == 2: wstorm()
    a.I(f's_waitcnt vmcnt({(2 if WPF else 0) + (4 if WST == 2 and not E("NOW", 0) else 0) + ndrip[0]})')
    hi()
    a.I('s_barrier'); stamp(a, 3)
    if WST == 0: wstorm()
    slot(3)
    a.I(f's_add_u32 s57, s57, {TOKC}')
    b = Block(a, 'phase1')
    for t in range(4):
        for g in range(2):
            for h in range(2):
                b.I(f'ds_read_b64_tr_b16 {v(XA+8*t+4*g+2*h,2)}, {v(vtr)} offset:{LX+512*g+128*h+32*t}')
    CL, G16, A64, A32 = slotmap(b, V, t0, t1)
    b.I(f'v_mul_u32_u24 {v(vyn)}, 384, {v(vj4)}\n v_mad_u32_u24 {v(vys)}, {v(n)}, 48, {v(vyn)}\n v_and_b32 {v(t0)}, 16, v0\n v_add_u32 {v(vys)}, {v(vys)}, {v(t0)}')
    b.I(f'v_lshl_add_u32 {v(vyn)}, {v(n)}, 1, {v(vyn)}\n v_and_b32 {v(t0)}, 30, v0\n v_cmp_eq_u32 vcc, 0, {v(t0)}\n v_mov_b32 {v(t1)}, {LDUM - (LI0+31*48+32)}\n v_cndmask_b32 {v(vyn)}, {v(t1)}, {v(vyn)}, vcc')
    for t in range(4):
        for p in range(2): mfma(b, ACC+8*t+4*p, XA+8*t, C1+8*p, '0')
        for p in range(2): mfma(b, ACC+8*t+4*p, XA+8*t+4, C1+8*p+4, ACC+8*t+4*p)
    for t in range(4):
        re, im = ACC+8*t, ACC+8*t+4
        for i in range(4): cm1(b, re+i, im+i, TC+4*t+i, TS+4*t+i, T+8*(t&1)+2*i, T+8*(t&1)+2*i+1, -1)
        F = XA + 8*t
        cvt(b, F, re, re+1); cvt(b, F+2, im, im+1); cvt(b, F+1, re+2, re+3); cvt(b, F+3, im+2, im+3)
        mfma(b, A2+16, F, CN, '0' if t == 0 else A2+16)
        for ct in range(2):
            bb = C2 + 24*ct + 6*t
            mfma(b, A2+8*ct, F, bb+2, '0' if t == 0 else A2+8*ct)
            mfma(b, A2+8*ct+4, F, bb, '0' if t == 0 else A2+8*ct+4)
    cvt(b, T, A2+16, A2+16)
    b.I(f'ds_write_b16 {v(vyn)}, {v(T)} offset:{LI0+31*48+32}')
    for ct in range(2):
        O = XA + 4 + 8*ct
        for i in range(4): cvt(b, O+i, A2+8*ct+i, A2+8*ct+4+i)
        b.I(f'ds_write_b128 {v(vys)}, {v(O,4)} offset:{LI0+768*ct}')
    publish(b, LI0, ACC, A64, A32, vl16, 44, 24, 57)
    b.emit(VERB)
    stamp(a, 4)
    V.put(vtr); V.put(vys); V.put(vyn)
    if WST == 1: wstorm()
    slot(4)
    FR_, FI_, TC2, TS2 = POOL + 88, POOL + 92, GW, GW + 4
    b = Block(a, 'w1a')
    b.I(f'v_mul_f32 {v(base)}, {f32(1/4)}, {v(base)}')
    for i in range(4):
        ang = T + 4*i + 2
        if i == 0: ang = base
        else: b.I(f'v_fmamk_f32 {v(ang)}, {v(fN)}, {f32(i/256)}, {v(base)}')
        b.I(f'v_mul_f32 {v(T+4*i+3)}, {f32(16.0)}, {v(ang)}')
        b.I(f'v_cos_f32 {v(T+4*i)}, {v(T+4*i+3)}\n v_sin_f32 {v(T+4*i+1)}, {v(T+4*i+3)}')
        b.I(f'v_cos_f32 {v(TC2+i)}, {v(ang)}\n v_sin_f32 {v(TS2+i)}, {v(ang)}')
        cvt(b, FR_+i, T+4*i, T+4*i+1); cvt(b, FI_+i, T+4*i+1, T+4*i, True, False)
    GA = V.get(3); vy = V.get(); vnn = V.get(); vnw = V.get(); vy1 = V.get(); vww = V.get()
    for k in range(3): b.I(f'v_mul_u32_u24 {v(GA+k)}, {BS}, {v(CL+k)}\n v_add_u32 {v(GA+k)}, {v(GA+k)}, {v(G16+k)}')
    b.I(f'v_lshlrev_b32 {v(t0)}, 6, {v(q)}\n v_add_u32 {v(t0)}, {v(t0)}, {v(n)}\n v_mul_u32_u24 {v(vnn)}, 48, {v(t0)}\n v_mul_u32_u24 {v(vnw)}, 80, {v(t0)}')
    b.I(f's_lshl_b32 s56, s3, 3\n v_add_u32 {v(vy)}, s56, {v(vnn)}\n v_add_u32 {v(vy1)}, 4, {v(vy)}\n v_add_u32 {v(vnn)}, 32, {v(vnn)}\n s_lshl_b32 s23, s3, 4\n v_add_u32 {v(vww)}, s23, {v(vnw)}')
    b.I(f's_mul_i32 s16, s14, 48\n s_mul_i32 s17, s3, {64*BS}\n s_add_u32 s17, s17, s16')
    P1, PTC, PTS, P2 = POOL, POOL + 16, POOL + 32, POOL + 48
    fD = fN; b2 = V.get()
    def p3c_1(b):
        b.I(f'v_add_u32 {v(t1)}, s23, {v(n)}\n v_cvt_f32_u32 {v(fD)}, {v(t1)}')
        b.I(f'v_mul_u32_u24 {v(t1)}, {v(t1)}, {v(q)}\n v_cvt_f32_u32 {v(base)}, {v(t1)}\n v_mul_f32 {v(base)}, {f32(1/16)}, {v(base)}')
        for g in range(2):
            for i in range(4):
                k = 16*g + i
                if k: b.I(f'v_fmamk_f32 {v(T+8+i)}, {v(fD)}, {f32(k/64)}, {v(base)}')
            for i in range(4):
                ang = base if 16*g + i == 0 else T + 8 + i
                b.I(f'v_cos_f32 {v(T+i)}, {v(ang)}\n v_sin_f32 {v(T+4+i)}, {v(ang)}')
            for i in range(4):
                cvt(b, P1+8*g+i, T+i, T+4+i, False, True); cvt(b, P1+8*g+4+i, T+4+i, T+i)
    def p3c_2(b):
        b.I(f'v_mul_u32_u24 {v(t1)}, s14, {v(q)}\n v_cvt_f32_u32 {v(base)}, {v(t1)}\n v_mul_f32 {v(base)}, {f32(1/1024)}, {v(base)}')
        b.I(f'v_cvt_f32_u32 {v(b2)}, s14\n v_fmamk_f32 {v(b2)}, {v(b2)}, {f32(1/2048)}, {v(base)}')
        for t in range(4):
            for i in range(4):
                kH_ = 4*(i & 1) + t
                bb = base if i < 2 else b2
                ang = T + 4*t + i
                if kH_ == 0: ang = bb
                else: b.I(f'v_fmamk_f32 {v(ang)}, {v(fD)}, {f32(kH_/512)}, {v(bb)}')
                b.I(f'v_cos_f32 {v(PTC+4*t+i)}, {v(ang)}\n v_sin_f32 {v(PTS+4*t+i)}, {v(ang)}')
    def p3c_3(b):
        fB = fD
        b.I(f'v_and_b32 {v(t0)}, 7, {v(n)}\n v_cvt_f32_u32 {v(b2)}, {v(t0)}\n v_mul_u32_u24 {v(t0)}, {v(t0)}, {v(q)}\n v_cvt_f32_u32 {v(base)}, {v(t0)}\n v_mul_f32 {v(base)}, {f32(0.25)}, {v(base)}')
        b.I(f'v_fmamk_f32 {v(b2)}, {v(b2)}, {f32(0.125)}, {v(base)}')
        b.I(f'v_lshrrev_b32 {v(t0)}, 3, {v(n)}\n v_cvt_f32_u32 {v(fB)}, {v(t0)}')
        for t in range(4):
            TT = ACC + 8 + 12*(t & 1)
            for i in range(4):
                kH_ = 4*(i & 1) + t
                bb = base if i < 2 else b2
                ang = TT + 8 + i
                if kH_ == 0: ang = bb
                else: b.I(f'v_fmamk_f32 {v(ang)}, {v(fB)}, {f32(kH_/8)}, {v(bb)}')
                b.I(f'v_cos_f32 {v(TT+i)}, {v(ang)}\n v_sin_f32 {v(TT+4+i)}, {v(ang)}')
            d = P2 + 10*t
            cvt(b, d, TT, TT+1); cvt(b, d+1, TT+2, TT+3)
            cvt(b, d+2, TT+4, TT+5, True, True); cvt(b, d+3, TT+6, TT+7, True, True)
            if t > 0:
                cvt(b, d+4, TT, TT+1, True, True); cvt(b, d+5, TT+2, TT+3, True, True)
                cvt(b, d+6, TT+4, TT+5); cvt(b, d+7, TT+6, TT+7)
            if t in (1, 3):
                cvt(b, d+8, TT, TT+1); cvt(b, d+9, TT+2, TT+3)
    D1 = E('D1', 0)
    if D1 >= 1: p3c_1(b)
    b.emit(VERB)
    if E('D1S', 0): a.I(f's_sleep {E("D1S", 0)}')
    stamp(a, 5)
    R = XA
    loads = [f'buffer_load_dwordx4 {v(R+4*k,4)}, {v(GA+k)}, s[44:47], s17 offen sc1' for k in range(3)]
    for x in loads: a.I(x)
    a.I('s_waitcnt vmcnt(3)')
    WO = ACC + 12
    for p in range(4):
        b.I(f'v_lshlrev_b32 {v(WO+4*p)}, 16, {v(WR+p)}\n v_lshlrev_b32 {v(WO+4*p+1)}, 16, {v(WI+p)}')
        b.I(f'v_and_b32 {v(WO+4*p+2)}, 0xffff0000, {v(WR+p)}\n v_and_b32 {v(WO+4*p+3)}, 0xffff0000, {v(WI+p)}')
    b.I(f's_cmp_eq_u32 s15, 0\n s_cselect_b32 s56, 0.5, 1.0')
    b.I(f'v_mul_f32 {v(WO)}, s56, {v(WO)}\n v_mul_f32 {v(WO+1)}, s56, {v(WO+1)}')
    b.I(f'v_mul_f32 {v(WNR)}, 0.5, {v(WNR)}\n v_mul_f32 {v(WNR+1)}, 0.5, {v(WNR+1)}')
    b.I(f'v_mul_u32_u24 {v(t1)}, 80, {v(vrow)}')
    for p in range(4): b.I(f'ds_write_b128 {v(t1)}, {v(WO+4*p,4)} offset:{LW+16*p}')
    b.I(f'ds_write_b64 {v(t1)}, {v(WNR,2)} offset:{LW+64}')
    b.emit(VERB)
    V.put(vrow)
    stamp(a, 12)
    poll_check(a, loads, R, TM, 57)
    stamp(a, 6)
    unpack(a, LI1, R, A64, A32)
    a.I('s_waitcnt lgkmcnt(0)\n s_barrier'); stamp(a, 7)
    Y = XA; X = XA + 8
    D = ACC; WF = POOL + 48; T2 = POOL + 72; T3 = POOL + 80
    o = LI1 // 256
    b = Block(a, 'phase2')
    for c, ad in enumerate((vy, vy1, vnn)):
        for p in range(2): b.I(f'ds_read2st64_b32 {v(X+4*c+2*p,2)}, {v(ad)} offset0:{o+6*p} offset1:{o+6*p+3}')
    for i in range(4): b.I(f'ds_read_b128 {v(WF+4*i,4)}, {v(vww)} offset:{LW+1280*i}')
    for i in range(4): b.I(f'ds_read_b64 {v(WF+16+2*i,2)}, {v(vnw)} offset:{LW+64+1280*i}')
    nc = 3
    for c in range(nc):
        mfma(b, D+8*c, X+4*c, FR_, '0'); mfma(b, D+8*c+4, X+4*c, FI_, '0')
    def stage(tw, sign, swap):
        for c in range(nc):
            re, im = D+8*c, D+8*c+4
            tt = (T, T2, T3)[c]
            for i in range(4):
                tc, ts = tw(c, i)
                cm1(b, re+i, im+i, tc, ts, tt+2*i, tt+2*i+1, sign)
            for i in range(4):
                if swap: cvt(b, X+4*c+i, im+i, re+i)
                else: cvt(b, X+4*c+i, re+i, im+i)
            yield c
    for c in stage(lambda c, i: (TC2+i, TS2+i), -1, False):
        mfma(b, D+8*c, FR_, X+4*c, '0'); mfma(b, D+8*c+4, FI_, X+4*c, '0')
    for c in stage(lambda c, i: (WF+4*i+2*c, WF+4*i+2*c+1) if c < 2 else (WF+16+2*i, WF+17+2*i), +1, True):
        mfma(b, D+8*c+4, X+4*c, FR_, '0'); mfma(b, D+8*c, X+4*c, FI_, '0')
    for c in stage(lambda c, i: (TC2+i, TS2+i), +1, True):
        mfma(b, D+8*c+4, FR_, X+4*c, '0'); mfma(b, D+8*c, FI_, X+4*c, '0')
    for i in range(4):
        cvt(b, Y+2*i, D+i, D+4+i); cvt(b, Y+2*i+1, D+8+i, D+12+i)
        b.I(f'ds_write_b64 {v(vy)}, {v(Y+2*i,2)} offset:{LI0+768*i}')
    for i in range(4):
        cvt(b, XA+20+i, D+16+i, D+20+i)
        b.I(f'ds_write_b32 {v(vnn)}, {v(XA+20+i)} offset:{LI0+768*i}')
    b.emit(VERB)
    a.I('s_waitcnt lgkmcnt(0)\n s_barrier')
    publish(a, LI0, XA + 12, A64, A32, vl16, 44, 26, 57)
    stamp(a, 8)
    lo()
    for r in (vy, vnn, vnw, vw, vy1, vww): V.put(r)
    V.put(WNR, 2)
    vgw = V.get()
    GWL = POOL + 104; GX = POOL + 112
    a.I(f'v_and_b32 {v(vgw)}, 31, v0\n v_lshlrev_b32 {v(vgw)}, 5, {v(vgw)}')
    a.I(f'buffer_load_dwordx4 {v(GWL,4)}, {v(vgw)}, s[40:43], 0 offen')
    a.I(f'buffer_load_dwordx4 {v(GWL+4,4)}, {v(vgw)}, s[40:43], 0 offen offset:16')
    b = Block(a, 'w2a')
    if D1 < 1: p3c_1(b)
    p3c_2(b)
    G2 = V.get(2); vr = V.get(); vta = V.get(); vst = V.get(); sgn = V.get(); vn = V.get()
    AA_ = WR
    for k in range(3):
        x0, x1 = T + 2*k, T + 2*k + 1
        b.I(f'v_and_b32 {v(x0)}, 7, {v(CL+k)}\n v_lshrrev_b32 {v(x1)}, 3, {v(CL+k)}')
        b.I(f'v_lshl_add_u32 {v(GA+k)}, {v(x0)}, 5, {v(x1)}\n v_mul_u32_u24 {v(GA+k)}, {BS}, {v(GA+k)}\n v_add_u32 {v(GA+k)}, {v(GA+k)}, {v(G16+k)}')
        b.I(f'v_lshl_add_u32 {v(AA_+k)}, {v(x1)}, 5, {v(x0)}\n v_mul_u32_u24 {v(AA_+k)}, {BS}, {v(AA_+k)}\n v_add_u32 {v(AA_+k)}, {v(AA_+k)}, {v(G16+k)}')
    b.I(f's_mul_i32 s17, s3, {8*BS}\n s_add_u32 s17, s17, s16\n s_add_u32 s20, s17, {AW_OFF}\n s_add_u32 s17, s17, {V_OFF}')
    b.I(f'v_lshrrev_b32 {v(t0)}, 1, {v(n)}\n v_lshl_add_u32 {v(t0)}, {v(q)}, 5, {v(t0)}\n v_mul_u32_u24 {v(vr)}, 48, {v(t0)}\n v_and_b32 {v(t1)}, 1, v0\n v_lshl_add_u32 {v(vr)}, {v(t1)}, 4, {v(vr)}')
    b.I(f'v_bfe_u32 {v(t0)}, v0, 1, 1\n v_bfe_u32 {v(vta)}, v0, 3, 3\n v_lshl_add_u32 {v(t0)}, {v(t0)}, 3, {v(vta)}\n v_mul_u32_u24 {v(vta)}, 48, {v(t0)}')
    b.I(f'v_bfe_u32 {v(t0)}, v0, 2, 1\n v_lshl_add_u32 {v(vta)}, {v(t0)}, 4, {v(vta)}\n v_lshl_add_u32 {v(vta)}, {v(t1)}, 3, {v(vta)}\n v_add_u32 {v(vta)}, s25, {v(vta)}')
    b.I(f'v_and_b32 {v(t0)}, 7, {v(n)}\n v_lshlrev_b32 {v(vst)}, 18, {v(t0)}\n v_lshlrev_b32 {v(t1)}, 2, {v(t0)}\n v_lshrrev_b32 {v(t0)}, 3, {v(n)}\n v_lshl_add_u32 {v(vst)}, {v(t0)}, 7, {v(vst)}')
    vgr = V.get(); b.I(f'v_mov_b32 {v(vgr)}, {v(t1)}')
    b.I(f'v_lshrrev_b32 {v(t0)}, 4, v0\n v_lshl_add_u32 {v(vst)}, {v(t0)}, 3, {v(vst)}\n s_lshl_b32 s9, s14, 10')
    b.I(f'v_lshlrev_b32 {v(sgn)}, 31, v0\n v_mul_u32_u24 {v(vn)}, 96, {v(q)}\n v_add_u32 {v(vn)}, {LI1 + 248*48 + 32}, {v(vn)}')
    b.I(f'v_mov_b32 {v(ACC+1)}, 0\n v_mov_b32 {v(ACC+3)}, 0\n v_mov_b32 {v(ACC+5)}, 0\n v_mov_b32 {v(ACC+7)}, 0')
    b.emit(VERB)
    if E('D2', 0): a.I(f's_sleep {E("D2", 0)}')
    stamp(a, 9)
    for x in loads: a.I(x)
    p3c_3(b)
    b.emit(VERB)
    a.I('s_waitcnt vmcnt(3)')
    b.I(f'v_mul_u32_u24 {v(t0)}, 264, {v(vj4)}\n v_add_u32 {v(t0)}, {v(t0)}, {v(vgw)}')
    b.I(f'ds_read_b128 {v(GX,4)}, {v(t0)} offset:{LX}\n ds_read_b128 {v(GX+4,4)}, {v(t0)} offset:{LX+16}')
    acc = T + 8; acc2 = T + 9
    for i in range(8):
        x, y = T + 2*(i % 4), T + 2*(i % 4) + 1
        b.I(f'v_lshlrev_b32 {v(x)}, 16, {v(GX+i)}\n v_lshlrev_b32 {v(y)}, 16, {v(GWL+i)}')
        b.I(f'v_mul_f32 {v(acc)}, {v(x)}, {v(y)}' if i == 0 else f'v_fmac_f32 {v(acc)}, {v(x)}, {v(y)}')
        b.I(f'v_and_b32 {v(GX+i)}, 0xffff0000, {v(GX+i)}\n v_and_b32 {v(GWL+i)}, 0xffff0000, {v(GWL+i)}')
        b.I(f'v_mul_f32 {v(acc2)}, {v(GX+i)}, {v(GWL+i)}' if i == 0 else f'v_fmac_f32 {v(acc2)}, {v(GX+i)}, {v(GWL+i)}')
    b.I(f'v_add_f32 {v(acc)}, {v(acc)}, {v(acc2)}')
    for m in ('quad_perm:[1,0,3,2]', 'quad_perm:[2,3,0,1]', 'row_half_mirror', 'row_mirror'):
        b.I(f'v_add_f32_dpp {v(acc)}, {v(acc)}, {v(acc)} {m} row_mask:0xf bank_mask:0xf')
    b.I(f'v_add_f32_dpp {v(acc)}, {v(acc)}, {v(acc)} row_bcast:15 row_mask:0xa bank_mask:0xf')
    b.I(f'v_mul_f32 {v(acc)}, {f32(-LOG2E)}, {v(acc)}\n v_exp_f32 {v(acc)}, {v(acc)}\n v_add_f32 {v(acc)}, 1.0, {v(acc)}\n v_rcp_f32 {v(acc)}, {v(acc)}')
    b.emit(VERB)
    a.I('s_mov_b32 exec_lo, 0x80000000\n s_mov_b32 exec_hi, 0x80000000')
    a.I(f'ds_write_b32 {v(vj4)}, {v(acc)} offset:{LG}')
    a.I('s_mov_b64 exec, -1')
    hi()
    poll_check(a, loads, R, TM, 57)
    unpack(a, LI1, R, A64, A32)
    AL = POOL + 104; NQ = GW
    aloads = [f'buffer_load_dwordx4 {v(AL+4*k,4)}, {v(AA_+k)}, s[44:47], s20 offen sc1' for k in range(3)]
    a.I('s_waitcnt lgkmcnt(0)\n s_barrier'); stamp(a, 10)
    X = POOL + 88
    b = Block(a, 'phase3')
    for g in range(2):
        for i in range(4): b.I(f'ds_read_b128 {v(R+16*g+4*i,4)}, {v(vr)} offset:{LI1+6144*g+384*i}')
        if g == 0: b.I(f'ds_read2_b32 {v(NQ,2)}, {v(vn)} offset0:0 offset1:12')
    for x in aloads: b.I(x)
    b.I(f'ds_read_b32 {v(G2)}, {v(vgr)} offset:{LG}')
    b.I(f'v_sub_f32 {v(G2+1)}, 1.0, {v(G2)}\n v_mul_f32 {v(G2+1)}, {f32(2.0**-19)}, {v(G2+1)}')
    for g in range(2):
        for i in range(4):
            for t in range(i+1, 4): b.I(f'v_swap_b32 {v(R+16*g+4*i+t)}, {v(R+16*g+4*t+i)}')
        if g == 0:
            for k in range(2):
                b.I(f'v_lshlrev_b32 {v(ACC+2*k)}, 16, {v(NQ+k)}\n v_and_b32 {v(ACC+4+2*k)}, 0xffff0000, {v(NQ+k)}')
                b.I(f'v_xor_b32 {v(ACC+2*k)}, {v(sgn)}, {v(ACC+2*k)}\n v_xor_b32 {v(ACC+4+2*k)}, {v(sgn)}, {v(ACC+4+2*k)}')
        for t in range(4):
            for p in range(2):
                d = ACC+8*t+4*p
                mfma(b, d, R+16*g+4*t, P1+8*g+4*p, d if (g == 1 or t == 0) else '0')
    A2 = R
    for t in range(4):
        re, im = ACC+8*t, ACC+8*t+4
        for i in range(4): cm1(b, re+i, im+i, PTC+4*t+i, PTS+4*t+i, T+8*(t&1)+2*i, T+8*(t&1)+2*i+1, +1)
        F = X + 4*t
        cvt(b, F, re, re+1); cvt(b, F+2, im, im+1); cvt(b, F+1, re+2, re+3); cvt(b, F+3, im+2, im+3)
        for ot in range(4):
            rot = (t*ot) % 4
            mfma(b, A2+4*ot, F, P2+10*t+2*rot, '0' if t == 0 else A2+4*ot)
    b.emit(VERB)
    stamp(a, 11)
    if E('ONLYB', 0): a.I('s_waitcnt vmcnt(0)')
    else: poll_check(a, aloads, AL, TM, 57, E('ABACKOFF', 8))
    b = Block(a, 'final')
    unpack(b, LI0, AL, A64, A32)
    AA = R + 16
    for ot in range(4): b.I(f'ds_read_b64_tr_b16 {v(AA+2*ot,2)}, {v(vta)} offset:{LI0+768*ot}')
    for i in range(16): b.I(f'v_mul_f32 {v(A2+i)}, {v(G2+1)}, {v(A2+i)}')
    AF = ACC
    for ot in range(4):
        for p in range(2):
            b.I(f'v_lshlrev_b32 {v(AF+4*ot+2*p)}, 16, {v(AA+2*ot+p)}\n v_and_b32 {v(AF+4*ot+2*p+1)}, 0xffff0000, {v(AA+2*ot+p)}')
        for p in range(2):
            x = AF+4*ot+2*p; bb = A2+4*ot+2*p
            b.I(f'v_fmac_f32 {v(bb)}, {v(x)}, {v(G2)}\n v_fmac_f32 {v(bb+1)}, {v(x+1)}, {v(G2)}')
            cvt(b, X+2*ot+p, bb, bb+1)
        b.I(f'buffer_store_dwordx2 {v(X+2*ot,2)}, {v(vst)}, s[52:55], s9 offen offset:{256*ot}')
    b.emit(VERB)
    a.I('s_or_b32 s56, s14, s3\n s_cmp_lg_u32 s56, 0\n s_cbranch_scc1 L_b_end')
    a.I(f's_mov_b64 exec, 1\n v_mov_b32 {v(t0)}, s57\n v_mov_b32 {v(t1)}, {EP_OFF}')
    a.I(f'buffer_store_dword {v(t0)}, {v(t1)}, s[44:47], 0 offen')
    a.label('L_b_end', keep=True)
    endpgm(a, 44, 13, 0)

RS = 544
TB_CH = 53 * RS
KF_OFF = 2 * TB_CH + 64
KF_CH = 5184 + 64
LU = KF_OFF + 2 * KF_CH
U_CH = 4608
LDS_BYTES = LU + 2 * U_CH
LK = 0
LRED = 4 * 4160
LAO = LRED + 16384
def cmul(a, d, x, y, t):
    if E('PKCHAIN', 1):
        a.I(f'v_pk_mul_f32 {v(t,2)}, {v(x,2)}, {v(y,2)} op_sel_hi:[0,1]')
        a.I(f'v_pk_fma_f32 {v(d,2)}, {v(x,2)}, {v(y,2)}, {v(t,2)} op_sel:[1,1,0] op_sel_hi:[1,0,1] neg_lo:[1,0,0]')
    else:
        a.I(f'v_mul_f32 {v(t)}, {v(x)}, {v(y)}\n v_mul_f32 {v(t+1)}, {v(x)}, {v(y+1)}')
        a.I(f'v_fma_f32 {v(d)}, -{v(x+1)}, {v(y+1)}, {v(t)}\n v_fma_f32 {v(d+1)}, {v(x+1)}, {v(y)}, {v(t+1)}')

class RoleA:
  def pre(self, a):
    V = self.V = VAlloc(1, 128); W = self.W = VAlloc(128, 256)
    a.label('L_a_pre')
    if E('ONLYB', 0): a.I('s_endpgm')
    a.I('s_load_dwordx8 s[4:11], s[0:1], 8\n s_load_dwordx4 s[12:15], s[0:1], 40\n s_load_dwordx2 s[16:17], s[0:1], 104\n s_load_dwordx2 s[56:57], s[0:1], 0')
    a.I(f's_setprio {E("APRIO", 2)}')
    task_of(a, 18, 19)
    n, q = self.n, self.q = lanes(a, V)
    t0 = self.t0 = V.get(); t1 = self.t1 = V.get()
    vp = W.get(); a.I(f'v_lshlrev_b32 {v(vp)}, 1, v0')
    vch = self.vch = V.get(); a.I(f'v_lshrrev_b32 {v(vch)}, 7, v0')
    vd = W.get(); a.I(f'v_lshlrev_b32 {v(vd)}, 1, {v(vch)}')
    vd2 = W.get(); a.I(f'v_bfe_u32 {v(vd2)}, v0, 6, 1\n v_lshlrev_b32 {v(vd2)}, 1, {v(vd2)}')
    vut = W.get()
    a.I(f'v_and_b32 {v(t1)}, 0xc0, v0\n v_lshl_add_u32 {v(t1)}, {v(n)}, 2, {v(t1)}\n v_lshl_add_u32 {v(vut)}, {v(q)}, 13, {v(t1)}')
    a.I('s_lshl_b32 s19, s18, 9\n s_lshl_b32 s20, s18, 2\n s_lshr_b32 s22, s18, 2\n s_and_b32 s23, s18, 3')
    a.I(f's_lshl_b32 s21, s22, 15\n s_lshl_b32 s52, s23, 8\n s_add_u32 s21, s21, s52\n s_add_u32 s52, s21, 4096')
    a.I('s_waitcnt lgkmcnt(0)'); stamp(a, 1)
    self.PR = LA, AI, CR, CI, LD, DS = tuple(V.get() for _ in range(6))
    srd(a, 24, 12, 1024)
    a.I(f'buffer_load_short_d16_hi {v(LD)}, {v(vd)}, s[24:27], s20 offen')
    for k, r in enumerate((LA, AI, CR, CI)):
        srd(a, 28 + 4*k, 4 + 2*k, 131072)
        a.I(f'buffer_load_short_d16_hi {v(r)}, {v(vp)}, s[{28+4*k}:{31+4*k}], s19 offen')
    srd(a, 44, 14, 1024); srd(a, 48, 16, WS_BYTES)
    a.I(f'buffer_load_short_d16_hi {v(DS)}, {v(vd2)}, s[44:47], s20 offen')
    a.I('s_mov_b32 s58, 2097152\n s_mov_b32 s59, 0x00020000')
    UTL = self.UTL = W.get(8)
    for e in range(8):
        a.I(f'buffer_load_dword {v(UTL+e)}, {v(vut)}, s[56:59], s{21 if e < 4 else 52} offen offset:{(e%4)*1024}')
    a.I(f's_add_u32 s16, s16, {EP_OFF}\n s_addc_u32 s17, s17, 0\n s_load_dword s4, s[16:17], 0')
    stamp(a, 12, False)
    a.I('s_branch L_a_body')
    self.st = (list(a.vm), list(a.lg))
  def body(self, a):
    V, W, n, q, t0, t1, vch, UTL = self.V, self.W, self.n, self.q, self.t0, self.t1, self.vch, self.UTL
    LA, AI, CR, CI, LD, DS = self.PR
    TOK = 4
    a.label('L_a_body'); a.vm, a.lg = self.st
    vt16 = V.get(); a.I(f'v_lshlrev_b32 {v(vt16)}, 4, v0')
    vuts = W.get()
    a.I(f'v_mul_u32_u24 {v(vuts)}, 3072, {v(t1)}\n v_lshl_add_u32 {v(vuts)}, {v(q)}, 4, {v(vuts)}')
    a.I(f's_mul_i32 s23, s23, {64*12288}\n s_lshl_b32 s22, s22, 6\n s_add_u32 s22, s22, s23\n s_add_u32 s22, s22, {UT_OFF}\n s_add_u32 s23, s22, 4096\n s_add_u32 s55, s22, 8192')
    a.I('s_mov_b32 s28, 0x05040100\n s_mov_b32 s29, 0x07060302')
    U0 = V.get(12, 4)
    def utpub():
        for i in range(4):
            a.I(f'v_perm_b32 {v(U0+i if i < 3 else U0+8)}, {v(UTL+2*i+1)}, {v(UTL+2*i)}, s28')
            a.I(f'v_perm_b32 {v(U0+4+i if i < 3 else U0+9)}, {v(UTL+2*i+1)}, {v(UTL+2*i)}, s29')
        a.I(f'v_mov_b32 {v(U0+10)}, 0')
        a.I(f's_add_u32 s{TOK}, s{TOK}, {TOKC}')
        for k, sr in enumerate((22, 23, 55)):
            chk(a, U0+4*k, TOK)
            a.I(f'buffer_store_dwordx4 {v(U0+4*k,4)}, {v(vuts)}, s[48:51], s{sr} offen sc1')
        stamp(a, 3)
    vtw = V.get()
    a.I(f'v_and_b32 {v(t0)}, 127, v0\n v_mul_u32_u24 {v(vtw)}, {TB_CH}, {v(vch)}\n v_lshl_add_u32 {v(vtw)}, {v(t0)}, 2, {v(vtw)}')
    J0 = W.get(); sh = W.get(); JM = W.get(); cst = W.get(); GA = V.get(17); kfb = W.get()
    a.I(f'v_lshlrev_b32 {v(J0)}, 4, {v(t0)}\n v_sub_u32 {v(J0)}, 2032, {v(J0)}')
    a.I(f'v_or_b32 {v(sh)}, 1, {v(J0)}\n v_ffbh_u32 {v(sh)}, {v(sh)}\n v_sub_u32 {v(sh)}, 24, {v(sh)}\n v_max_i32 {v(sh)}, 0, {v(sh)}')
    a.I(f'v_add_u32 {v(JM)}, 150, {v(sh)}\n v_lshlrev_b32 {v(JM)}, 23, {v(JM)}')
    a.I(f'v_mul_u32_u24 {v(kfb)}, {KF_CH}, {v(vch)}\n v_add_u32 {v(kfb)}, {KF_OFF}, {v(kfb)}')
    a.I(f'v_lshrrev_b32 {v(t1)}, {v(sh)}, {v(J0)}\n v_add_u32 {v(sh)}, 1, {v(sh)}')
    a.I(f'v_add_u32 {v(JM)}, {v(JM)}, {v(t1)}\n v_lshlrev_b32 {v(cst)}, {v(sh)}, {v(JM)}')
    a.I(f'v_mul_u32_u24 {v(t1)}, 9, {v(J0)}\n v_lshrrev_b32 {v(t1)}, 2, {v(t1)}\n v_add_u32 {v(GA+1)}, {v(kfb)}, {v(t1)}\n v_sub_u32 {v(cst)}, {v(GA+1)}, {v(cst)}')
    a.I(f'v_add_u32 {v(t1)}, 32, {v(GA+1)}')
    for e in range(1, 16):
        a.I(f'v_add_f32 {v(GA+1+e)}, {f32(float(e))}, {v(JM)}')
        a.I(f'v_lshl_add_u32 {v(GA+1+e)}, {v(GA+1+e)}, {v(sh)}, {v(cst)}')
        if e >= 12:
            a.I(f'v_cmp_eq_u32 vcc, {v(GA+1+e)}, {v(t1)}\n v_addc_co_u32 {v(GA+1+e)}, vcc, {v(GA+1+e)}, {v(zero4)}, vcc' if False else
                f'v_cmp_eq_u32 vcc, {v(GA+1+e)}, {v(t1)}\n v_cndmask_b32 {v(GA)}, 0, 4, vcc\n v_add_u32 {v(GA+1+e)}, {v(GA+1+e)}, {v(GA)}')
    a.I(f'v_cmp_ge_u32 vcc, 256, {v(J0)}\n v_cndmask_b32 {v(t1)}, 0, 6, vcc\n v_sub_u32 {v(GA)}, {v(GA+1)}, {v(t1)}')
    zero = V.get()
    a.I(f'v_mov_b32 {v(zero)}, 0\n v_add_u32 {v(kfb)}, -8, {v(kfb)}')
    vks = V.get()
    a.I(f'v_mul_u32_u24 {v(vks)}, 8320, {v(vch)}\n v_lshl_add_u32 {v(vks)}, {v(t0)}, 5, {v(vks)}')
    stamp(a, 2)
    a.I(f'ds_write_b32 {v(kfb)}, {v(zero)}')
    a.I(f'v_mul_u32_u24 {v(t1)}, {U_CH - 512}, {v(vch)}\n v_lshl_add_u32 {v(t1)}, v0, 2, {v(t1)}\n v_add_u32 {v(t1)}, {LU}, {v(t1)}\n ds_write_b32 {v(t1)}, {v(zero)}')
    a.I(f'v_mov_b32 {v(t1)}, 0x3f80\n ds_write_b32 {v(vtw)}, {v(t1)} offset:{21*RS}')
    a.I(f's_lshr_b32 s26, s3, 1\n s_mul_i32 s26, s26, {TB_CH}\n s_and_b32 s27, s3, 1\n s_lshl_b32 s27, s27, 8\n s_add_u32 m0, s26, s27')
    dt = W.get(); ar = W.get(); rev = W.get()
    a.I(f'v_mul_f32 {v(dt)}, {f32(LOG2E)}, {v(LD)}\n v_mul_f32 {v(ar)}, {f32(LOG2E)}, {v(LA)}\n v_exp_f32 {v(dt)}, {v(dt)}\n v_exp_f32 {v(ar)}, {v(ar)}')
    cvt(a, t0, dt, ar)
    a.I(f'v_lshlrev_b32 {v(dt)}, 16, {v(t0)}\n v_and_b32 {v(ar)}, 0xffff0000, {v(t0)}')
    a.I(f'v_mul_f32 {v(ar)}, {v(ar)}, {v(dt)}\n v_mul_f32 {v(ar)}, {f32(-LOG2E)}, {v(ar)}')
    a.I(f'v_mul_f32 {v(rev)}, {v(AI)}, {v(dt)}\n v_mul_f32 {v(rev)}, 0.15915494, {v(rev)}')
    Z = {}
    mag = W.get(4); ang = W.get(4)
    for k, p in enumerate((8, 1, 128, 256)):
        Z[p] = W.get(2)
        a.I(f'v_mul_f32 {v(mag+k)}, {f32(float(p))}, {v(ar)}\n v_mul_f32 {v(ang+k)}, {f32(float(p))}, {v(rev)}')
        a.I(f'v_fract_f32 {v(ang+k)}, {v(ang+k)}\n v_exp_f32 {v(mag+k)}, {v(mag+k)}')
        a.I(f'v_cos_f32 {v(Z[p])}, {v(ang+k)}\n v_sin_f32 {v(Z[p]+1)}, {v(ang+k)}')
    Ee = W.get(16)
    a.I(f'v_add_f32 {v(dt)}, {v(dt)}, {v(dt)}\n v_mul_f32 {v(Ee)}, {v(CR)}, {v(dt)}\n v_mul_f32 {v(Ee+1)}, {v(CI)}, {v(dt)}')
    for k, p in enumerate((8, 1, 128, 256)):
        a.I(f'v_mul_f32 {v(Z[p])}, {v(mag+k)}, {v(Z[p])}\n v_mul_f32 {v(Z[p]+1)}, {v(mag+k)}, {v(Z[p]+1)}')
    stamp(a, 4)
    TT = W.get(8); PK = V.get(4)
    cnt = [0]
    def put(row, x, base):
        r = PK + cnt[0] % 4; cnt[0] += 1
        cvt(a, r, x, x+1, False, base)
        a.I(f'ds_write_addtid_b32 {v(r)} offset:{row*RS}' if E('ADDTID', 1) else f'ds_write_b32 {v(vtw)}, {v(r)} offset:{row*RS}')
    O = W.get(4); H = W.get(2)
    offs_ops = []
    cur = Z[8]
    offs_ops.append(lambda: (put(21+1, Z[8], False), put(21+16, Z[128], False)))
    offs_ops.append(lambda: (cmul(a, H, Z[8], Z[128], TT+2), put(21+17, H, False)))
    for i in range(2, 16):
        nxt = O + 2*(i % 2)
        def f(i=i, cur=cur, nxt=nxt):
            cmul(a, nxt, cur, Z[8], TT); cmul(a, H, nxt, Z[128], TT+2)
            put(21+i, nxt, False); put(21+16+i, H, False)
        offs_ops.append(f); cur = nxt
    base_ops = []
    base_ops.append(lambda: put(0, Ee, True))
    for e in range(1, 8):
        base_ops.append(lambda e=e: (cmul(a, Ee+2*e, Ee+2*e-2, Z[1], TT+4), put(e, Ee+2*e, True)))
    for k, e in enumerate((0, 2, 4, 6)):
        base_ops.append(lambda k=k, e=e: (cmul(a, Ee+2*e, Ee+2*e, Z[256], TT+4), put(8+k, Ee+2*e, True)))
    for i in range(2):
        for k, e in enumerate((0, 4)):
            base_ops.append(lambda i=i, k=k, e=e: (cmul(a, Ee+2*e, Ee+2*e, Z[256], TT+4), put(12+2*i+k, Ee+2*e, True)))
    for i in range(5):
        base_ops.append(lambda i=i: (cmul(a, Ee, Ee, Z[256], TT+4), put(16+i, Ee, True)))
    it = 0
    while offs_ops or base_ops:
        if it == E('UTPOS', 0): utpub()
        it += 1
        if offs_ops: offs_ops.pop(0)()
        if base_ops: base_ops.pop(0)()
    vra = V.get(); vrb = V.get()
    a.I(f's_and_b32 s24, s3, 1\n s_lshr_b32 s25, s3, 1\n s_mul_i32 s26, s24, {TB_CH}\n s_mul_i32 s52, s25, {16*RS}\n s_add_u32 s52, s52, {21*RS}')
    a.I(f'v_mul_u32_u24 {v(vra)}, {RS}, {v(n)}\n v_lshl_add_u32 {v(vra)}, {v(q)}, 4, {v(vra)}\n v_add_u32 {v(vra)}, s26, {v(vra)}\n v_add_u32 {v(vrb)}, s52, {v(vra)}')
    ACCK = V.get(8, 4)
    a.I(f'v_and_b32 {v(t0)}, 0xbf, v0\n v_cmp_eq_u32 vcc, 0, {v(t0)}\n v_cndmask_b32 {v(ACCK)}, 0, {v(DS)}, vcc')
    a.I(f'v_mov_b32 {v(ACCK+1)}, 0\n v_mov_b32 {v(ACCK+2)}, 0\n v_mov_b32 {v(ACCK+3)}, 0')
    TM = V.get(3)
    a.I(f's_mul_i32 s52, s18, 12288\n s_add_u32 s52, s52, {UT_OFF}\n s_add_u32 s53, s52, 4096\n s_add_u32 s54, s52, 8192')
    a.I('s_waitcnt lgkmcnt(0)\n s_barrier'); stamp(a, 5)
    S = [128, 192]
    FR = S[0]
    for k in range(8):
        a.I(f'ds_read_b128 {v(FR+12*k,4)}, {v(vrb)} offset:{64*k}')
        a.I(f'ds_read_b128 {v(FR+12*k+4,4)}, {v(vra)} offset:{64*k}')
        a.I(f'ds_read_b128 {v(FR+12*k+8,4)}, {v(vra)} offset:{64*k+16*RS}')
    uloads = [f'buffer_load_dwordx4 {v(U0+4*k,4)}, {v(vt16)}, s[48:51], s{52+k} offen sc1' for k in range(3)]
    if E('UPOS', 1) == 0:
        for x in uloads: a.I(x)
    KW = V.get(4); kw1 = V.get()
    a.I(f's_mul_i32 s26, s24, {KF_CH}\n s_mul_i32 s27, s25, 288\n s_add_u32 s26, s26, s27\n s_add_u32 s26, s26, {KF_OFF}\n s_lshl_b32 s27, s25, 8')
    a.I(f'v_lshlrev_b32 {v(kw1)}, 4, {v(n)}\n v_lshrrev_b32 {v(t0)}, 1, {v(n)}\n v_lshl_add_u32 {v(kw1)}, {v(t0)}, 2, {v(kw1)}\n v_add_u32 {v(kw1)}, s26, {v(kw1)}')
    a.I(f'v_lshlrev_b32 {v(t0)}, 3, {v(q)}\n s_mov_b32 s32, 2304\n s_mov_b32 s30, 0x90480100\n s_mov_b32 s31, 0x08040202')
    a.I(f'v_bfe_u32 {v(KW)}, s30, {v(t0)}, 8\n v_lshl_add_u32 {v(KW)}, {v(KW)}, 3, {v(kw1)}')
    a.I(f'v_bfe_u32 {v(t1)}, s31, {v(t0)}, 8\n v_add_u32 {v(KW+1)}, {v(KW)}, {v(t1)}')
    a.I(f's_mov_b32 s30, 0x90020101\n v_bfe_u32 {v(KW+2)}, s30, {v(t0)}, 8\n v_lshl_add_u32 {v(KW+2)}, {v(KW+2)}, 2, {v(KW)}\n v_add_u32 {v(KW+3)}, {v(KW+2)}, {v(t1)}')
    a.I(f'v_mad_u32_u24 {v(kw1)}, {v(q)}, s32, {v(kw1)}')
    for k in range(8):
        mfma(a, ACCK, FR+12*k+4, FR+12*k, ACCK)
        mfma(a, ACCK+4, FR+12*k+8, FR+12*k, '0' if k == 0 else ACCK+4)
    va = V.get(); vb = V.get(4)
    a.I(f's_mul_i32 s26, s24, {U_CH}\n s_sub_u32 s26, s26, s27\n s_add_u32 s26, s26, {LU + 512 - 32 - 192}')
    a.I(f'v_lshlrev_b32 {v(va)}, 5, {v(n)}\n v_lshl_add_u32 {v(va)}, {v(q)}, 4, {v(va)}\n v_add_u32 {v(va)}, s26, {v(va)}')
    cvt(a, PK, ACCK, ACCK+1); cvt(a, PK+1, ACCK+2, ACCK+3)
    a.I(f'ds_write_b16 {v(KW)}, {v(PK)}\n ds_write_b16_d16_hi {v(KW+1)}, {v(PK)}\n ds_write_b16 {v(KW+2)}, {v(PK+1)}\n ds_write_b16_d16_hi {v(KW+3)}, {v(PK+1)}')
    cvt(a, PK+2, ACCK+4, ACCK+5); cvt(a, PK+3, ACCK+6, ACCK+7)
    a.I('s_mov_b32 exec_hi, 0')
    a.I(f'ds_write_b16 {v(kw1)}, {v(PK+2)} offset:2304')
    a.I('s_mov_b32 exec_lo, 0xffff')
    a.I(f'ds_write_b16_d16_hi {v(kw1)}, {v(PK+2)} offset:{2304+576}')
    a.I(f'ds_write_b16 {v(kw1)}, {v(PK+3)} offset:{2304+1152}\n ds_write_b16_d16_hi {v(kw1)}, {v(PK+3)} offset:{2304+1728}')
    a.I('s_mov_b64 exec, -1')
    a.I('s_waitcnt lgkmcnt(0)\n s_barrier'); stamp(a, 6)
    if E('UPOS', 1) == 1:
        for x in uloads: a.I(x)
    G = FR
    for e in range(16, -1, -1): a.I(f'ds_read_u16 {v(G+e)}, {v(GA+e)}')
    a.I(f's_mul_i32 s26, s24, 8320\n s_sub_u32 s26, s26, s27\n s_add_u32 s26, s26, {LK - 192 - 512}')
    a.I(f'v_sub_u32 {v(t0)}, {v(t0)}, {v(n)}\n v_add_u32 {v(t0)}, 2031, {v(t0)}')
    a.I(f'v_and_b32 {v(t1)}, 1, {v(t0)}\n v_mul_u32_u24 {v(t1)}, 4160, {v(t1)}\n v_lshrrev_b32 {v(t0)}, 1, {v(t0)}')
    a.I(f'v_lshl_add_u32 {v(vb)}, {v(t0)}, 2, {v(t1)}\n v_add_u32 {v(vb)}, s26, {v(vb)}')
    for p in range(1, 4): a.I(f'v_add_u32 {v(vb+p)}, {-1024*p}, {v(vb)}')
    EO = FR + 20
    for hb in range(2):
        for b in range(4*hb, 4*hb+4):
            a.I(f'v_lshl_or_b32 {v(EO+b)}, {v(G+1+14-2*b)}, 16, {v(G+1+15-2*b)}')
            a.I(f'v_lshl_or_b32 {v(EO+8+b)}, {v(G+1+13-2*b)}, 16, {v(G+1+14-2*b)}')
        a.I(f'ds_write_b128 {v(vks)}, {v(EO+4*hb,4)} offset:{LK+16*hb}\n ds_write_b128 {v(vks)}, {v(EO+8+4*hb,4)} offset:{LK+4160+16*hb}')
    a.I(f's_mul_i32 s26, s3, 4160\n v_lshlrev_b32 {v(t0)}, 2, {v(n)}\n v_add_u32 {v(t0)}, s26, {v(t0)}\n ds_write_b32 {v(t0)}, {v(zero)} offset:{LK+4096}')
    stamp(a, 7)
    poll_check(a, uloads, U0, TM, TOK)
    a.I(f'v_mov_b32 {v(U0+3)}, {v(U0+8)}\n v_mov_b32 {v(U0+7)}, {v(U0+9)}')
    a.I(f'v_add_u32 {v(t1)}, {LU + 512}, {v(vt16)}')
    a.I(f'ds_write_b128 {v(t1)}, {v(U0,4)}\n ds_write_b128 {v(t1)}, {v(U0+4,4)} offset:{U_CH}')
    a.I('s_waitcnt lgkmcnt(0)\n s_barrier'); stamp(a, 8)
    V.put(GA, 17); V.put(ACCK, 8); V.put(KW, 4); V.put(PK, 4); V.put(U0, 12)
    ACC = V.get(32, 4)
    def loadA(rl, i): return f'ds_read_b128 {v(S[rl%2]+4*i,4)}, {v(va)} offset:{64*(3-rl)+512*i}'
    def loadB(rl, g):
        o = 16*(3-rl) + (128 if g % 2 == 0 else 0)
        r = S[rl%2] + 32 + 4*g
        return [f'ds_read2_b32 {v(r,2)}, {v(vb+g//2)} offset0:{o} offset1:{o+1}', f'ds_read2_b32 {v(r+2,2)}, {v(vb+g//2)} offset0:{o+2} offset1:{o+3}']
    def loads(rl):
        L = []
        for k in range(8):
            L += loadB(rl, k); L.append(loadA(rl, k))
        return L
    for x in loads(0): a.I(x)
    b = Asm()
    CL, G16, A64, A32 = slotmap(b, V, t0, t1)
    vrw = V.get(); vrr = V.get(); vao = V.get(); vl16 = V.get()
    b.I(f'v_lshlrev_b32 {v(vrw)}, 3, v0\n v_xor_b32 {v(vrr)}, 1024, {v(vrw)}')
    b.I(f'v_lshlrev_b32 {v(vao)}, 6, {v(q)}\n v_add_u32 {v(vao)}, {v(vao)}, {v(n)}\n v_mul_u32_u24 {v(vao)}, 48, {v(vao)}\n s_mul_i32 s26, s25, {32*48}\n s_lshl_b32 s27, s24, 4\n s_add_u32 s26, s26, s27\n v_add_u32 {v(vao)}, s26, {v(vao)}')
    b.I(f'v_and_b32 {v(vl16)}, 1023, {v(vt16)}\n s_mul_i32 s62, s18, {BS}\n s_add_u32 s62, s62, s56\n s_add_u32 s62, s62, {AW_OFF}')
    b.I(f's_cmp_eq_u32 s25, 0\n s_cselect_b64 s[30:31], -1, 0')
    filler = [x.strip() for x in b.out]
    for rl in range(4):
        nxt = loads(rl+1) if rl < 3 else filler
        pairs = sorted([(i, g) for i in range(8) for g in range(8) if i + g <= 7], key=lambda p: (max(p), p[0]+p[1]))
        seen = set()
        for k, (i, g) in enumerate(pairs):
            d = ACC + 4*(i+g)
            first = (rl == 0 and (i+g) not in seen); seen.add(i+g)
            mfma(a, d, S[rl%2]+4*i, S[rl%2]+32+4*g, '0' if first else d)
            if rl < 3:
                if k >= 8 and nxt: a.I(nxt.pop(0))
            else:
                for _ in range(2):
                    if nxt: a.I(nxt.pop(0))
        for x in nxt: a.I(x)
    stamp(a, 9)
    Gv = S[0]; R = S[0] + 16; Kp = S[0] + 32
    order = [0, 1, 2, 3, 4, 5, 6, 7]
    for i in order:
        for j in range(2):
            a.I(f'v_cndmask_b32 {v(Gv+2*i+j)}, {v(ACC+4*i+j)}, {v(ACC+4*i+2+j)}, s[30:31]')
        a.I(f'ds_write_b64 {v(vrw)}, {v(Gv+2*i,2)} offset:{LRED+2048*i}')
    for i in order:
        for j in range(2):
            a.I(f'v_cndmask_b32 {v(Kp+2*i+j)}, {v(ACC+4*i+2+j)}, {v(ACC+4*i+j)}, s[30:31]')
    a.I('s_waitcnt lgkmcnt(0)\n s_barrier')
    for i in range(8): a.I(f'ds_read_b64 {v(R+2*i,2)}, {v(vrr)} offset:{LRED+2048*i}')
    for i in range(16): a.I(f'v_add_f32 {v(R+i)}, {v(R+i)}, {v(Kp+i)}')
    Oo = S[1]
    for jj in range(2):
        for i in range(4): cvt(a, Oo+4*jj+i, R+4*i+jj, R+4*i+2+jj)
        a.I(f'ds_write_b128 {v(vao)}, {v(Oo+4*jj,4)} offset:{LAO+768*jj}')
    a.I('s_waitcnt lgkmcnt(0)\n s_barrier')
    publish(a, LAO, S[1] + 8, A64, A32, vl16, 48, 62, TOK)
    endpgm(a, 48, 10, 1)

if __name__ == '__main__':
    out = sys.argv[1]
    a = Asm()
    a.raw(f'.globl {NAME}\n.p2align 8\n.type {NAME},@function\n{NAME}:')
    if PROF:
        for i in range(NST): a.I(f's_mov_b32 s{64+2*i}, 0')
        a.I('s_mov_b32 s60, 0')
    stamp(a, 0)
    if PREFETCH:
        a.I(f's_cmp_ge_u32 s2, {8*PREFETCH}\n s_cbranch_scc1 L_nopf')
        a.I('s_getpc_b64 s[62:63]')
        a.label('L_pc', keep=True)
        a.I(f'v_lshlrev_b32 v1, 7, v0\n v_cmp_gt_u32 vcc, L_code_end-L_pc, v1\n s_and_saveexec_b64 s[4:5], vcc\n s_cbranch_execz L_pf2')
        a.I(f'global_load_dword v255, v1, s[62:63]')
        a.label('L_pf2', keep=True)
        a.I('s_mov_b64 exec, -1')
        a.label('L_nopf')
    lo, hi = ('L_a_pre', 'L_b_pre') if AFIRST else ('L_b_pre', 'L_a_pre')
    a.I(f's_cmp_ge_u32 s2, 512\n s_cbranch_scc1 L_exit')
    if E('SEP', 0):
        a.I('s_bfe_u32 s4, s2, 0x10003\n s_bfe_u32 s5, s2, 0x10008\n s_and_b32 s2, s2, 0xf7\n s_lshl_b32 s4, s4, 8\n s_lshl_b32 s5, s5, 3\n s_or_b32 s2, s2, s4\n s_or_b32 s2, s2, s5')
    a.I('s_cmp_lt_u32 s2, 256')
    a.I('s_cbranch_scc0 L_b_pre' if AFIRST else 's_cbranch_scc1 L_b_pre')
    A = RoleA()
    A.pre(a)
    a.label('L_exit'); a.I('s_endpgm')
    role_b(a)
    nb = a.ninst
    A.body(a)
    a.raw('L_code_end:')
    nv = (a.maxv + 1 + 3) // 4 * 4
    print('vgpr', a.maxv + 1, 'sgpr', a.maxs + 1, 'ninst', nb, a.ninst - nb, 'lds', LDS_BYTES, file=sys.stderr)
    launch = f'; @launch kernel={NAME} grid=(512,1,1) block=(256,1,1) lds={LDS_BYTES}' if os.environ.get('LIST') else f'; @launch grid=(512,1,1) block=(256,1,1) lds={LDS_BYTES}'
    hdr = f'''; gated_mix( S4D conv , GFNet spectral filter ) -- generated by gen/gen7.py
{launch}
.amdgcn_target "amdgcn-amd-amdhsa--gfx950"
.text
'''
    kd = f'''.section .rodata,"a"
.p2align 6
.amdhsa_kernel {NAME}
  .amdhsa_next_free_vgpr {nv}
  .amdhsa_next_free_sgpr {a.maxs + 1}
  .amdhsa_accum_offset {nv}
  .amdhsa_group_segment_fixed_size 0
  .amdhsa_kernarg_size 112
  .amdhsa_user_sgpr_count 2
  .amdhsa_user_sgpr_kernarg_segment_ptr 1
  .amdhsa_system_sgpr_workgroup_id_x 1
.end_amdhsa_kernel
'''
    open(out, 'w').write(hdr + a.text() + kd)
```

```python
import re
class AsmError(Exception): pass

def regs_of(tok):
    tok = tok.strip()
    neg = False
    t = tok
    if t.startswith('-'): t = t[1:]
    if t.startswith('abs(') and t.endswith(')'): t = t[4:-1]
    if t.startswith('|') and t.endswith('|'): t = t[1:-1]
    m = re.fullmatch(r'([vsa])(\d+)', t)
    if m: return [(m.group(1), int(m.group(2)))]
    m = re.fullmatch(r'([vsa])\[(\d+):(\d+)\]', t)
    if m: return [(m.group(1), i) for i in range(int(m.group(2)), int(m.group(3)) + 1)]
    if t == 'vcc': return [('s', 106), ('s', 107)]
    if t == 'vcc_lo': return [('s', 106)]
    if t == 'vcc_hi': return [('s', 107)]
    if t == 'exec': return [('s', 126), ('s', 127)]
    if t == 'm0': return [('s', 124)]
    return []

TRANS = ('v_exp_f32', 'v_log_f32', 'v_rcp_f32', 'v_rsq_f32', 'v_sqrt_f32', 'v_sin_f32', 'v_cos_f32')

class Ins:
    def __init__(self, text):
        self.text = text
        code = text.split(';')[0].strip()
        parts = code.split(None, 1)
        self.op = parts[0]
        rest = parts[1] if len(parts) > 1 else ''
        ops, cur, depth = [], '', 0
        for ch in rest:
            if ch in '[(': depth += 1
            if ch in '])': depth -= 1
            if ch == ',' and depth == 0:
                ops.append(cur.strip()); cur = ''
            else: cur += ch
        if cur.strip(): ops.append(cur.strip())
        mods = ''
        if ops:
            sp = ops[-1].split(None, 1)
            ops[-1] = sp[0]
            mods = sp[1] if len(sp) > 1 else ''
        self.ops, self.mods = ops, mods
        op = self.op
        self.w, self.r = [], []
        self.kind = 'other'
        R = lambda i: regs_of(ops[i]) if i < len(ops) else []
        allr = lambda a: [x for i in range(a, len(ops)) for x in R(i)]
        if op.startswith('v_mfma'):
            self.kind = 'mfma'; self.w = R(0); self.r = allr(1)
            self.A, self.B, self.C = R(1), R(2), R(3)
            self.passes = 8 if '32x32' in op else 4
        elif op.startswith('v_'):
            self.kind = 'trans' if op.replace('_e32','').replace('_e64','') in TRANS else 'valu'
            if op.startswith('v_swap') or 'permlane16_swap' in op or 'permlane32_swap' in op:
                self.w = R(0) + R(1); self.r = R(0) + R(1)
            elif '_co_' in op:
                self.w = R(0) + R(1); self.r = allr(2)
            else:
                self.w = R(0); self.r = allr(1)
                if op.startswith(('v_fmac', 'v_dot2c', 'v_pk_fmac', 'v_writelane')): self.r += R(0)
                if '_dpp' in op: self.r += R(0)
                if op.startswith('v_cmpx'): self.w += [('s',126),('s',127)]
        elif op.startswith('ds_'):
            self.kind = 'ds'
            if op.startswith(('ds_read', 'ds_bpermute', 'ds_permute', 'ds_swizzle')) or '_rtn' in op:
                self.w = R(0); self.r = allr(1)
            else: self.r = allr(0)
        elif op.startswith(('buffer_', 'global_')):
            self.kind = 'vmem'
            self.lds = ' lds' in (' ' + mods) or '_lds_' in op
            if 'load' in op and not self.lds:
                self.w = R(0); self.r = allr(1)
            elif 'atomic' in op and 'sc0' in mods:
                self.w = R(0); self.r = allr(0)
            else: self.r = allr(0)
            if self.lds: self.r += [('s', 124)]
            self.store = 'store' in op
            self.wide = self.store and ('x3' in op or 'x4' in op)
            if self.store:
                self.data = R(0) if op.startswith('buffer_') else R(1)
        elif op.startswith(('s_load', 's_buffer_load', 's_memtime', 's_memrealtime')):
            self.kind = 'smem'; self.w = R(0); self.r = allr(1)
        elif op.startswith('s_'):
            self.kind = 'salu'
            if op.startswith(('s_cmp', 's_bitcmp', 's_cbranch', 's_branch', 's_waitcnt', 's_nop', 's_barrier', 's_endpgm', 's_sleep', 's_setprio')):
                self.r = allr(0)
            else:
                self.w = R(0); self.r = allr(1)
                if 'saveexec' in op: self.w += [('s',126),('s',127)]
    def states(self):
        if self.op == 's_nop': return int(self.ops[0], 0) + 1
        return 1

class Asm:
    def __init__(self):
        self.out = []
        self.reset()
        self.maxv = 0; self.maxs = 0; self.maxa = -1
        self.ninst = 0
    def reset(self):
        self.hist = []
        self.vm = []
        self.lg = []
    def raw(self, text): self.out.append(text)
    def comment(self, t): self.out.append('    ; ' + t)
    def label(self, name, keep=False):
        self.out.append(name + ':')
        if not keep: self.reset()
    def _emit(self, ins):
        self.out.append('    ' + ins.text)
        self.hist.append(ins)
        if len(self.hist) > 40: self.hist.pop(0)
        self.ninst += 1
        for k, i in ins.w + ins.r:
            if k == 'v': self.maxv = max(self.maxv, i)
            if k == 'a': self.maxa = max(self.maxa, i)
            if k == 's' and i < 102: self.maxs = max(self.maxs, i)
    def _need(self, ins):
        need = 0
        dist = 0
        rs, ws = set(ins.r), set(ins.w)
        for p in reversed(self.hist):
            req = 0
            pw = set(p.w)
            if p.kind in ('valu', 'trans'):
                pv = {x for x in pw if x[0] != 's'}; ps = {x for x in pw if x[0] == 's'}
                if ins.kind == 'mfma' and pv & rs: req = max(req, 2)
                if ins.kind == 'mfma' and (('s',126) in ps): req = max(req, 4)
                if p.kind == 'trans' and ins.kind in ('valu', 'mfma') and pv & rs: req = max(req, 1)
                if p.kind == 'trans' and ins.kind in ('ds', 'vmem') and pv & rs: req = max(req, 1)
                if ins.kind in ('valu', 'trans'):
                    if ('_dpp' in ins.op or 'permlane' in ins.op) and pv & rs: req = max(req, 2)
                    if ('readlane' in ins.op or 'readfirstlane' in ins.op) and pv & rs: req = max(req, 1)
                    if ps & rs: req = max(req, 4 if ('readlane' in ins.op or 'writelane' in ins.op) else 2)
                    if '_dpp' in ins.op and ('s',126) in ps: req = max(req, 5)
                    if ('op_sel' in p.mods and not p.op.startswith('v_pk')) and pv & (rs | ws): req = max(req, 1)
                if ins.kind == 'vmem' and ps & rs: req = max(req, 5)
                if ins.kind == 'salu' and ps & rs: req = max(req, 1)
            if p.kind == 'mfma':
                D = pw
                big = 12 if p.passes == 8 else 8
                if ins.kind == 'mfma':
                    if D & (set(ins.A) | set(ins.B)): req = max(req, big)
                    if D & set(ins.C):
                        if not (p.w == ins.C and p.passes == ins.passes): req = max(req, 10 if p.passes == 8 else 6)
                    elif D & ws and not (p.w == ins.w): req = max(req, big)
                elif ins.kind in ('valu', 'trans', 'ds', 'vmem'):
                    if D & (rs | ws): req = max(req, big)
                if ins.kind in ('valu', 'trans') and set(p.C) & ws: req = max(req, 7 if p.passes == 8 else 3)
            if p.kind == 'vmem' and getattr(p, 'wide', False) and set(p.data) & ws:
                req = max(req, 2)
            if p.kind == 'salu' and ('s',124) in pw and ((ins.kind == 'vmem' and ins.lds) or 'addtid' in ins.op): req = max(req, 1)
            if p.op.startswith('v_dot') and ins.kind in ('valu','trans','mfma','ds','vmem') and pw & (rs | ws):
                if not (ins.op == p.op and not (pw & set(x for o in ins.ops[1:3] for x in regs_of(o)))): req = max(req, 3)
            need = max(need, req - dist)
            dist += p.states()
            if dist > 24: break
        return need
    def I(self, text):
        for line in text.strip().split('\n'):
            line = line.strip()
            if not line: continue
            if line.startswith(';'): self.comment(line[1:].strip()); continue
            self._I(line)
    def _I(self, text):
        ins = Ins(text)
        touched = set(ins.r) | set(ins.w)
        if ins.op == 's_waitcnt':
            m = re.search(r'vmcnt\((\d+)\)', text)
            if m:
                n = int(m.group(1)); self.vm = self.vm[len(self.vm) - n:] if n < len(self.vm) else self.vm
                if n == 0: self.vm = []
            m = re.search(r'lgkmcnt\((\d+)\)', text)
            if m:
                n = int(m.group(1)); self.lg = self.lg[len(self.lg) - n:] if n < len(self.lg) else self.lg
                if n == 0: self.lg = []
            self._emit(ins); return
        wv = wl = None
        for idx, regs in enumerate(self.vm):
            if regs & touched: wv = len(self.vm) - 1 - idx
        for idx, (kind, regs) in enumerate(self.lg):
            if regs & touched: wl = len(self.lg) - 1 - idx
        if wl is not None and any(k == 'smem' for k, _ in self.lg): wl = 0
        if wv is not None or wl is not None:
            s = 's_waitcnt'
            if wv is not None: s += f' vmcnt({min(wv, 63)})'
            if wl is not None: s += f' lgkmcnt({min(wl, 15)})'
            self._I(s)
        n = self._need(ins)
        while n > 0:
            k = min(n, 16)
            self._emit(Ins(f's_nop {k - 1}')); n -= k
        self._emit(ins)
        if ins.kind == 'vmem': self.vm.append(set(ins.w))
        if ins.kind == 'ds': self.lg.append(('ds', set(ins.w)))
        if ins.kind == 'smem': self.lg.append(('smem', set(ins.w)))
    def text(self): return '\n'.join(self.out) + '\n'

class VAlloc:
    def __init__(self, start=1, limit=256):
        self.free = set(range(start, limit)); self.limit = limit
    def get(self, n=1, align=None):
        if align is None: align = 2 if n > 1 else 1
        for b in range(0, self.limit, align):
            if all((b + i) in self.free for i in range(n)):
                for i in range(n): self.free.discard(b + i)
                return b
        raise AsmError('out of vgprs')
    def put(self, b, n=1):
        for i in range(n):
            assert (b + i) not in self.free
            self.free.add(b + i)
def v(b, n=1): return f'v{b}' if n == 1 else f'v[{b}:{b + n - 1}]'
def ar(b, n=1): return f'a{b}' if n == 1 else f'a[{b}:{b + n - 1}]'
def s(b, n=1): return f's{b}' if n == 1 else f's[{b}:{b + n - 1}]'
import struct
def f32(x): return '0x%08x' % struct.unpack('<I', struct.pack('<f', x))[0]

def _lat(p, c, kind):
    if kind == 'raw':
        if p.kind == 'mfma':
            if c.kind == 'mfma' and p.w == c.C and not (set(p.w) & (set(c.A) | set(c.B))): return 16
            return 44
        if p.kind == 'ds': return 120
        if p.kind == 'vmem': return 600
        if p.kind == 'trans': return 16 if c.kind != 'mfma' else 20
        if p.kind == 'valu':
            if c.kind == 'mfma' or 'dpp' in c.op or 'permlane' in c.op: return 12
            if any(x[0] == 's' for x in p.w): return 12
            return 4
        return 4
    if kind == 'war':
        if p.kind == 'mfma' and set(p.C) & set(c.w) and c.kind != 'mfma': return 16
        return 4
    if kind == 'waw':
        if p.kind == 'mfma': return 44 if c.kind != 'mfma' else 16
        return 4
    return 4
def _issue(i):
    if i.kind == 'trans' or i.op.startswith('v_swap'): return 8
    if i.kind == 'mfma': return 8
    return 4
def schedule(lines):
    ins = [Ins(l) for l in lines]
    n = len(ins)
    for i in ins:
        if i.kind == 'salu': i.r = i.r + [('c', 0)]; i.w = i.w + [('c', 0)]
        if i.kind == 'ds':
            mt = re.search(r';@(\w+)', i.text)
            if mt:
                tag = ('m', mt.group(1))
                if i.op.startswith('ds_read'): i.r = i.r + [tag]
                else: i.r = i.r + [tag]; i.w = i.w + [tag]
            else: i.r = i.r + [('m', 0)]; i.w = i.w + [('m', 0)]
            if 'addtid' in i.op: i.r = i.r + [('s', 124)]
        if i.kind == 'vmem': i.r = i.r + [('m', 1)]; i.w = i.w + [('m', 1)]
        if i.op.startswith('v_cndmask') and len(i.ops) == 3: i.r = i.r + [('s', 106), ('s', 107)]
    preds = [[] for _ in range(n)]; succs = [[] for _ in range(n)]
    lastw = {}; readers = {}
    for k, i in enumerate(ins):
        dep = {}
        for x in i.r:
            if x in lastw:
                l = 4 if x[0] in 'cm' else _lat(ins[lastw[x]], i, 'raw')
                dep[lastw[x]] = max(dep.get(lastw[x], 0), l)
        for x in i.w:
            if x in lastw and x[0] not in 'cm': dep[lastw[x]] = max(dep.get(lastw[x], 0), _lat(ins[lastw[x]], i, 'waw'))
            for r in readers.get(x, []):
                if r != k: dep[r] = max(dep.get(r, 0), _lat(ins[r], i, 'war'))
        for p, l in dep.items(): preds[k].append((p, l)); succs[p].append((k, l))
        for x in i.r: readers.setdefault(x, []).append(k)
        for x in i.w: lastw[x] = k; readers[x] = []
    prio = [0] * n
    for k in range(n - 1, -1, -1):
        mt = re.search(r';!(\d+)', ins[k].text)
        prio[k] = _issue(ins[k]) + max([l + prio[s] for s, l in succs[k]] + [int(mt.group(1)) if mt else 0])
    done = [None] * n; npred = [len(p) for p in preds]
    ready = [k for k in range(n) if npred[k] == 0]
    t = 0; mf_free = 0; ds_free = 0; order = []
    while ready:
        def est(k):
            e = max([done[p] + l for p, l in preds[k]], default=0)
            if ins[k].kind == 'mfma' or ins[k].op.startswith('v_pk'): e = max(e, mf_free)
            if ins[k].kind == 'ds': e = max(e, ds_free)
            return e
        avail = [k for k in ready if est(k) <= t]
        if avail: k = max(avail, key=lambda k: (prio[k], -k))
        else:
            k = min(ready, key=lambda k: (est(k), -prio[k])); t = est(k)
        done[k] = t; order.append(k); ready.remove(k)
        if ins[k].kind == 'mfma': mf_free = t + 4 * ins[k].passes
        if ins[k].kind == 'ds': ds_free = t + (16 if ('b128' in ins[k].op or 'read2' in ins[k].op) else 8)
        t += _issue(ins[k])
        for s_, l in succs[k]:
            npred[s_] -= 1
            if npred[s_] == 0: ready.append(s_)
    return [lines[k] for k in order], t

class Block:
    def __init__(self, a, name=''): self.a = a; self.l = []; self.name = name
    def I(self, text):
        for line in text.strip().split('\n'):
            line = line.strip()
            if line and not line.startswith(';'):
                assert not line.startswith(('s_waitcnt', 's_barrier', 's_cbranch', 's_branch')) and 'exec' not in line, line
                self.l.append(line)
    def emit(self, verbose=False):
        out, t = schedule(self.l)
        if verbose:
            import sys; print(f'block {self.name}: {len(out)} instrs, est {t} cycles', file=sys.stderr)
        for x in out: self.a.I(x)
        self.l = []
```

```python
import sys, math, os
from asmlib import *
E = lambda k, d: int(os.environ.get(k, str(d)))
BS = 12288 + E('BSPAD', 192)
Y_OFF  = 0x000000
V_OFF  = 0x310000
AW_OFF = 0x620000
UT_OFF = 0x930000
EP_OFF = 0xC40000
WS_BYTES = 0x1000000
LOG2E = 1.4426950408889634
TOKC = 0x9E3779B9
SPIN = 30000
PROF = E('PROF', 0); PREFETCH = E('PREFETCH', 1); BPRIO = E('BPRIO', 2); WPOS = E('WPOS', 1); BACKOFF = E('BACKOFF', 4)
AFIRST = E('AFIRST', 1); WPF = E('WPF', 2)
NAME = 'gated_mix__ssm_conv_s4d__spectral_gfnet__prompt_kernel'
DBG_OFF = 0xFC0000
NST = 15
def stamp(a, i, wait=True):
    if PROF:
        if wait: a.I(f's_memrealtime s[{64+2*i}:{65+2*i}]\n s_waitcnt lgkmcnt(0)')
        else: a.I(f's_memrealtime s[{64+2*i}:{65+2*i}]')
def endpgm(a, srdb, last, role):
    if PROF:
        stamp(a, last)
        a.I('s_waitcnt vmcnt(0)')
        stamp(a, last + 1)
        a.I('s_mov_b64 exec, 1')
        for i in range(16): a.I(f'v_mov_b32 v{4+i}, s{64+2*i}' if i < NST else f'v_mov_b32 v{4+i}, s60')
        a.I(f's_and_b32 s61, s2, 255\n s_lshl_b32 s61, s61, 2\n s_add_u32 s61, s61, s3\n s_lshl_b32 s61, s61, 6\n s_add_u32 s61, s61, {DBG_OFF + role*65536}')
        a.I('v_mov_b32 v1, 0')
        for k in range(4): a.I(f'buffer_store_dwordx4 v[{4+4*k}:{7+4*k}], v1, s[{srdb}:{srdb+3}], s61 offen offset:{16*k}')
    a.I('s_endpgm')
def srd(a, d, b, nbytes):
    a.I(f's_mov_b32 s{d}, s{b}\n s_mov_b32 s{d+1}, s{b+1}\n s_mov_b32 s{d+2}, {nbytes}\n s_mov_b32 s{d+3}, 0x00020000')
def task_of(a, dst, tmp):
    a.I(f's_and_b32 s{dst}, s2, 7\n s_lshl_b32 s{dst}, s{dst}, 5\n s_bfe_u32 s{tmp}, s2, 0x50003\n s_or_b32 s{dst}, s{dst}, s{tmp}')
def lanes(a, V):
    n, q = V.get(), V.get()
    a.I(f'v_lshrrev_b32 {v(q)}, 6, v0')
    a.I(f'v_and_b32 {v(n)}, 15, v0')
    a.I(f'v_readfirstlane_b32 s3, {v(q)}')
    a.I(f'v_bfe_u32 {v(q)}, v0, 4, 2')
    return n, q
def cm1(a, re, im, c, s_, t1, t2, sign):
    a.I(f'v_mul_f32 {v(t1)}, {v(im)}, {v(s_)}\n v_mul_f32 {v(t2)}, {v(re)}, {v(s_)}')
    a.I(f'v_fma_f32 {v(re)}, {v(re)}, {v(c)}, {"-" if sign > 0 else ""}{v(t1)}')
    a.I(f'v_fma_f32 {v(im)}, {v(im)}, {v(c)}, {"-" if sign < 0 else ""}{v(t2)}')
def cmul_tw(a, re, im, c, s_, t1, t2, sign):
    cm1(a, re, im, c, s_, t1, t2, sign); cm1(a, re+1, im+1, c+1, s_+1, t1+1, t2+1, sign)
def mfma(a, d, A, B, c):
    a.I(f'v_mfma_f32_16x16x32_bf16 {v(d,4)}, {v(A,4)}, {v(B,4)}, {c if isinstance(c,str) else v(c,4)}')
def cvt(a, d, x, y, nx=False, ny=False):
    a.I(f'v_cvt_pk_bf16_f32 {v(d)}, {"-" if nx else ""}{v(x)}, {"-" if ny else ""}{v(y)}')
def chk(a, g, tok):
    a.I(f'v_add3_u32 {v(g+3)}, {v(g)}, {v(g+1)}, {v(g+2)}\n v_add_u32 {v(g+3)}, s{tok}, {v(g+3)}')
_lab = [0]
def poll_check(a, loads, R, tmp, tok, backoff=None):
    _lab[0] += 1
    L = f'L_poll{_lab[0]}'
    bo = BACKOFF if backoff is None else backoff
    a.I(f's_mov_b32 s59, {SPIN}')
    a.label(L, keep=True)
    for k in range(3):
        g = R + 4*k
        a.I(f's_waitcnt vmcnt({2-k})')
        a.I(f'v_add3_u32 {v(tmp+k)}, {v(g)}, {v(g+1)}, {v(g+2)}\n v_sub_u32 {v(tmp+k)}, {v(g+3)}, {v(tmp+k)}\n v_xor_b32 {v(tmp+k)}, s{tok}, {v(tmp+k)}')
    a.I(f'v_or3_b32 {v(tmp)}, {v(tmp)}, {v(tmp+1)}, {v(tmp+2)}')
    a.I(f'v_cmp_ne_u32 vcc, 0, {v(tmp)}\n s_cbranch_vccz {L}_out\n s_sub_u32 s59, s59, 1\n s_cbranch_scc1 {L}_out\n s_mov_b64 exec, vcc')
    if bo: a.I(f's_sleep {bo}')
    for x in loads: a.I(x)
    if PROF: a.I('s_add_u32 s60, s60, 1')
    a.I(f's_branch {L}')
    a.label(L + '_out', keep=True)
    a.vm = []
    a.I('s_mov_b64 exec, -1')
def slotmap(a, V, t0, t1):
    CL = V.get(3); G16 = V.get(3); A64 = V.get(3); A32 = V.get(3)
    a.I(f's_mul_i32 s56, s3, 3072\n v_and_b32 {v(t0)}, 63, v0')
    for k in range(3):
        if k: a.I(f'v_add_u32 {v(t0)}, 64, {v(t0)}')
        a.I(f'v_mul_u32_u24 {v(CL+k)}, 21846, {v(t0)}\n v_lshrrev_b32 {v(CL+k)}, 16, {v(CL+k)}')
        a.I(f'v_mul_u32_u24 {v(t1)}, 3, {v(CL+k)}\n v_sub_u32 {v(t1)}, {v(t0)}, {v(t1)}\n v_lshlrev_b32 {v(G16+k)}, 4, {v(t1)}')
        a.I(f'v_mul_u32_u24 {v(A32+k)}, 48, {v(CL+k)}\n v_add_u32 {v(A32+k)}, s56, {v(A32+k)}')
        a.I(f'v_lshl_add_u32 {v(A64+k)}, {v(t1)}, 3, {v(A32+k)}\n v_lshl_add_u32 {v(A32+k)}, {v(t1)}, 2, {v(A32+k)}')
    return CL, G16, A64, A32
def publish(a, img, R, A64, A32, vl16, srdb, soff, tok):
    for k in range(3):
        a.I(f'ds_read_b64 {v(R+4*k,2)}, {v(A64+k)} offset:{img}\n ds_read_b32 {v(R+4*k+2)}, {v(A32+k)} offset:{img+24}')
    for k in range(3):
        chk(a, R+4*k, tok)
        a.I(f'buffer_store_dwordx4 {v(R+4*k,4)}, {v(vl16)}, s[{srdb}:{srdb+3}], s{soff} offen offset:{1024*k} sc1')
def unpack(a, img, R, A64, A32):
    for k in range(3):
        a.I(f'ds_write_b64 {v(A64+k)}, {v(R+4*k,2)} offset:{img}\n ds_write_b32 {v(A32+k)}, {v(R+4*k+2)} offset:{img+24}')

LX = 0; LI0 = 8704; LI1 = LI0 + 12288; LW = LI1 + 12288; LG = LW + 256*80; LDUM = LG + 64
VERB = E('VERB', 0)
def role_b(a):
    V = VAlloc(1, 255)
    a.label('L_b_pre'); a.lg = [('smem', {('s', i) for i in list(range(4, 22)) + list(range(48, 56))})]
    if E('ONLYA', 0): a.I('s_endpgm')
    def hi(p=3): a.I(f's_setprio {p}')
    def lo(): a.I(f's_setprio {E("LOPRIO", 1)}')
    a.I(f's_setprio {E("B0PRIO", 1)}')
    task_of(a, 22, 23)
    n, q = lanes(a, V)
    t0 = V.get(); t1 = V.get(); TM = V.get(3)
    vl16 = V.get(); a.I(f'v_and_b32 {v(vl16)}, 63, v0\n v_lshlrev_b32 {v(vl16)}, 4, {v(vl16)}')
    a.I(f's_lshl_b32 s24, s3, 9\n s_add_u32 s24, s24, s22\n s_lshl_b32 s24, s24, 10\n s_add_u32 s25, s24, {256*1024}')
    a.I(f's_mul_i32 s26, s3, 2112\n s_mov_b32 s30, 2097152\n s_mov_b32 s31, 0x00020000')
    WR = V.get(4, 4); WI = V.get(4, 4); WNR = V.get(2); GW = V.get(8, 4)
    XA = V.get(32, 4); ACC = V.get(32, 4); T = V.get(16)
    base = V.get(); fN = V.get()
    POOL = V.get(120, 4)
    C1 = POOL; TC = POOL + 16; TS = POOL + 32; C2 = POOL + 48; CN = POOL + 96; A2 = POOL + 100
    f1, kH, fF, fK, sgn = (ACC + i for i in range(5))
    b = Block(a, 'c1')
    b.I(f'v_lshrrev_b32 {v(f1)}, 3, {v(n)}\n s_lshl_b32 s56, s3, 1\n v_add_u32 {v(f1)}, s56, {v(f1)}\n v_and_b32 {v(kH)}, 7, {v(n)}')
    b.I(f'v_cvt_f32_u32 {v(fF)}, {v(f1)}\n v_cvt_f32_u32 {v(fK)}, {v(kH)}')
    b.I(f'v_and_b32 {v(t0)}, 1, {v(q)}\n v_lshlrev_b32 {v(t0)}, 2, {v(t0)}\n v_mul_u32_u24 {v(t0)}, {v(t0)}, {v(f1)}')
    b.I(f'v_and_b32 {v(t1)}, 2, {v(q)}\n v_mad_u32_u24 {v(t0)}, {v(t1)}, {v(kH)}, {v(t0)}')
    b.I(f'v_cvt_f32_u32 {v(base)}, {v(t0)}\n v_mul_f32 {v(base)}, 0.125, {v(base)}')
    b.I(f'v_and_b32 {v(sgn)}, 1, {v(kH)}\n v_mul_u32_u24 {v(sgn)}, 0x8000, {v(sgn)}\n v_lshl_or_b32 {v(sgn)}, {v(sgn)}, 16, {v(sgn)}')
    for h in range(2):
        if h == 1: b.I(f'v_fmamk_f32 {v(base)}, {v(fK)}, {f32(0.125)}, {v(base)}')
        for r in range(1, 4): b.I(f'v_fmamk_f32 {v(T+8+r)}, {v(fF)}, {f32(0.125*r)}, {v(base)}')
        for r in range(4):
            ang = base if r == 0 else T + 8 + r
            b.I(f'v_cos_f32 {v(T+r)}, {v(ang)}\n v_sin_f32 {v(T+4+r)}, {v(ang)}')
        cvt(b, C1+2*h, T, T+1); cvt(b, C1+2*h+1, T+2, T+3)
        cvt(b, C1+8+2*h, T+4, T+5, True, True); cvt(b, C1+8+2*h+1, T+6, T+7, True, True)
    for i in range(4):
        b.I(f'v_xor_b32 {v(C1+4+i)}, {v(sgn)}, {v(C1+i)}\n v_xor_b32 {v(C1+12+i)}, {v(sgn)}, {v(C1+8+i)}')
    if E('EARLYC', 1): b.emit(VERB)
    a.I('s_waitcnt lgkmcnt(0)'); stamp(a, 1)
    a.I('s_mov_b32 s28, s4\n s_mov_b32 s29, s5\n s_mov_b32 m0, s26')
    a.I(f'buffer_load_dwordx4 {v(vl16)}, s[28:31], s24 offen lds')
    a.I('s_add_u32 m0, s26, 1056')
    a.I(f'buffer_load_dwordx4 {v(vl16)}, s[28:31], s25 offen lds')
    srd(a, 44, 20, WS_BYTES)
    a.I(f's_add_u32 s20, s20, {EP_OFF}\n s_addc_u32 s21, s21, 0\n s_load_dword s57, s[20:21], 0')
    srd(a, 32, 48, 1052672); srd(a, 36, 50, 1052672); srd(a, 40, 52, 1024); srd(a, 12, 54, 2097152)
    a.I(f's_and_b32 s27, s2, 7\n s_mul_i32 s61, s27, 514\n s_lshl_b32 s62, s23, 4\n s_add_u32 s62, s62, s61')
    a.I(f's_mul_i32 s6, s22, {BS}\n s_mul_i32 s7, s3, 3072\n s_add_u32 s6, s6, s7\n s_add_u32 s8, s6, {V_OFF}')
    a.I(f's_mul_i32 s63, s23, {8*4112}\n s_add_u32 s63, s63, s61\n s_and_b32 s63, s63, -4')
    if not E('EARLYC', 1): b.emit(VERB)
    vw = V.get(); vj4 = V.get(); vpf = V.get(); vrow = V.get()
    a.I(f's_mul_i32 s58, s23, {E("WROT", 8)}\n v_mul_u32_u24 {v(vrow)}, {E("WMUL", 1)}, v0\n v_add_u32 {v(vrow)}, s58, {v(vrow)}\n v_and_b32 {v(vrow)}, 255, {v(vrow)}\n v_mul_u32_u24 {v(vw)}, 4112, {v(vrow)}')
    a.I(f'v_mov_b32 {v(WNR)}, 0\n v_mov_b32 {v(WNR+1)}, 0\n s_cmp_eq_u32 s23, 31\n s_cselect_b64 s[10:11], -1, 0')
    ndrip = [0]
    def drip(k):
        if E('WST', 1) != 3: return
        lo_, hi_ = ((0xffff, 0), (0xffff0000, 0), (0, 0xffff), (0, 0xffff0000))[k]
        a.I(f's_mov_b32 exec_lo, {lo_}\n s_mov_b32 exec_hi, {hi_}')
        for r, rn, sr in ((WR, WNR, 32), (WI, WNR+1, 36)):
            a.raw(f'    buffer_load_dwordx4 {v(r,4)}, {v(vw)}, s[{sr}:{sr+3}], s62 offen'); a.vm.append(set())
        a.I(f's_and_b64 exec, exec, s[10:11]\n s_cbranch_execz L_drip{k}')
        for r, rn, sr in ((WR, WNR, 32), (WI, WNR+1, 36)):
            a.raw(f'    buffer_load_short_d16_hi {v(rn)}, {v(vw)}, s[{sr}:{sr+3}], s62 offen offset:16')
        a.label(f'L_drip{k}', keep=True)
        a.I('s_mov_b64 exec, -1')
        ndrip[0] += 2
    DR = [int(x) for x in os.environ.get('DRIP', '0123')]
    def slot(i):
        for k, x in enumerate(DR):
            if x == i: drip(k)
    slot(0)
    b.I(f'v_mul_u32_u24 {v(t0)}, {v(kH)}, {v(q)}\n v_lshlrev_b32 {v(t0)}, 4, {v(t0)}\n v_mad_u32_u24 {v(t0)}, {v(f1)}, s22, {v(t0)}')
    b.I(f'v_cvt_f32_u32 {v(base)}, {v(t0)}\n v_mul_f32 {v(base)}, {f32(1/2048)}, {v(base)}')
    for t in range(4):
        for i in range(4):
            k = 16*t + i
            if k == 0: ang = base
            else:
                ang = T + 4*t + i
                b.I(f'v_fmamk_f32 {v(ang)}, {v(fK)}, {f32(k/512)}, {v(base)}')
            b.I(f'v_cos_f32 {v(TC+4*t+i)}, {v(ang)}\n v_sin_f32 {v(TS+4*t+i)}, {v(ang)}')
    b.I(f'v_lshrrev_b32 {v(vj4)}, 5, v0\n v_mul_u32_u24 {v(vpf)}, 4112, {v(vj4)}\n v_and_b32 {v(t1)}, 7, v0\n v_lshl_add_u32 {v(vpf)}, {v(t1)}, 7, {v(vpf)}\n v_lshlrev_b32 {v(vj4)}, 2, {v(vj4)}')
    b.emit(VERB)
    WST = E('WST', 1)
    def wstorm():
        a.I(f'v_mov_b32 {v(WNR)}, 0\n v_mov_b32 {v(WNR+1)}, 0\n s_cmp_eq_u32 s23, 31\n s_cselect_b64 s[10:11], -1, 1')
        if not E('NOW', 0):
            a.I(f'buffer_load_dwordx4 {v(WR,4)}, {v(vw)}, s[32:35], s62 offen')
            a.I('s_mov_b64 exec, s[10:11]')
            a.I(f'buffer_load_short_d16_hi {v(WNR)}, {v(vw)}, s[32:35], s62 offen offset:16')
            a.I('s_mov_b64 exec, -1')
            a.I(f'buffer_load_dwordx4 {v(WI,4)}, {v(vw)}, s[36:39], s62 offen')
            a.I('s_mov_b64 exec, s[10:11]')
            a.I(f'buffer_load_short_d16_hi {v(WNR+1)}, {v(vw)}, s[36:39], s62 offen offset:16')
            a.I('s_mov_b64 exec, -1')
    def wpf():
        a.I('s_mov_b32 exec_lo, 0x1f\n s_mov_b32 exec_hi, 0x1f')
        a.I(f'buffer_load_dword {v(TM)}, {v(vpf)}, s[32:35], s63 offen')
        a.I(f'buffer_load_dword {v(TM+1)}, {v(vpf)}, s[36:39], s63 offen')
        a.I('s_mov_b64 exec, -1')
    if WPF == 1: wpf()
    slot(1)
    b.I(f'v_cvt_f32_u32 {v(fN)}, {v(n)}\n v_mul_u32_u24 {v(t0)}, {v(n)}, {v(q)}\n v_cvt_f32_u32 {v(base)}, {v(t0)}\n v_mul_f32 {v(base)}, {f32(1/16)}, {v(base)}')
    for t in range(2):
        TT = XA + 12*t
        for i in range(4):
            k = 16*t + i
            if k == 0: ang = base
            else:
                ang = TT + 8 + i
                b.I(f'v_fmamk_f32 {v(ang)}, {v(fN)}, {f32(k/64)}, {v(base)}')
            b.I(f'v_cos_f32 {v(TT+i)}, {v(ang)}\n v_sin_f32 {v(TT+4+i)}, {v(ang)}')
        c = [TT+i for i in range(4)]; s_ = [TT+4+i for i in range(4)]
        b0 = C2 + 6*t; b1 = C2 + 24 + 6*t
        cvt(b, b0+0, s_[0], s_[1], True, True); cvt(b, b0+2, c[0], c[1]); cvt(b, b0+4, s_[0], s_[1])
        cvt(b, b1+0, s_[0], c[1], True, True); cvt(b, b1+2, c[0], s_[1], False, True); cvt(b, b1+4, s_[0], c[1])
        cvt(b, b0+3, c[2], c[3]); cvt(b, b1+1, s_[2], c[3]); cvt(b, b1+5, s_[2], c[3], True, True)
        cvt(b, b0+1, s_[2], s_[3], True, True); cvt(b, b0+5, s_[2], s_[3]); cvt(b, b1+3, c[2], s_[3], True, False)
        for ct in range(2):
            for i in range(6): b.I(f'v_xor_b32 {v(C2+24*ct+6*t+12+i)}, {v(sgn)}, {v(C2+24*ct+6*t+i)}')
    b.I(f'v_mov_b32 {v(T)}, 0xbf803f80')
    b.I(f'v_cmp_eq_u32 vcc, 0, {v(n)}\n v_cndmask_b32 {v(CN)}, 0, {v(T)}, vcc\n v_cndmask_b32 {v(CN+1)}, 0, {v(T)}, vcc')
    b.I(f'v_cmp_eq_u32 vcc, 1, {v(n)}\n v_cndmask_b32 {v(CN+2)}, 0, {v(T)}, vcc\n v_cndmask_b32 {v(CN+3)}, 0, {v(T)}, vcc')
    vtr = V.get(); vys = V.get(); vyn = V.get()
    b.I(f'v_bfe_u32 {v(T+1)}, v0, 2, 3\n v_mul_u32_u24 {v(vtr)}, 1056, {v(T+1)}')
    b.I(f'v_bfe_u32 {v(T+2)}, v0, 5, 1\n v_lshl_add_u32 {v(vtr)}, {v(T+2)}, 8, {v(vtr)}')
    b.I(f'v_and_b32 {v(T+3)}, 3, v0\n v_lshl_add_u32 {v(vtr)}, {v(T+3)}, 3, {v(vtr)}')
    b.emit(VERB)
    if WPF == 2: wpf()
    slot(2)
    V.put(vpf)
    stamp(a, 2)
    if WST == 2: wstorm()
    a.I(f's_waitcnt vmcnt({(2 if WPF else 0) + (4 if WST == 2 and not E("NOW", 0) else 0) + ndrip[0]})')
    hi(E('P1PRIO', 3))
    a.I('s_barrier'); stamp(a, 3)
    if WST == 0: wstorm()
    slot(3)
    a.I(f's_add_u32 s57, s57, {TOKC}')
    b = Block(a, 'phase1')
    for t in range(4):
        for g in range(2):
            for h in range(2):
                b.I(f'ds_read_b64_tr_b16 {v(XA+8*t+4*g+2*h,2)}, {v(vtr)} offset:{LX+512*g+128*h+32*t}')
    CL, G16, A64, A32 = slotmap(b, V, t0, t1)
    b.I(f'v_mul_u32_u24 {v(vyn)}, 384, {v(vj4)}\n v_mad_u32_u24 {v(vys)}, {v(n)}, 48, {v(vyn)}\n v_and_b32 {v(t0)}, 16, v0\n v_add_u32 {v(vys)}, {v(vys)}, {v(t0)}')
    b.I(f'v_lshl_add_u32 {v(vyn)}, {v(n)}, 1, {v(vyn)}\n v_and_b32 {v(t0)}, 30, v0\n v_cmp_eq_u32 vcc, 0, {v(t0)}\n v_mov_b32 {v(t1)}, {LDUM - (LI0+31*48+32)}\n v_cndmask_b32 {v(vyn)}, {v(t1)}, {v(vyn)}, vcc')
    for t in range(4):
        for p in range(2): mfma(b, ACC+8*t+4*p, XA+8*t, C1+8*p, '0')
        for p in range(2): mfma(b, ACC+8*t+4*p, XA+8*t+4, C1+8*p+4, ACC+8*t+4*p)
    for t in range(4):
        re, im = ACC+8*t, ACC+8*t+4
        for i in range(4): cm1(b, re+i, im+i, TC+4*t+i, TS+4*t+i, T+8*(t&1)+2*i, T+8*(t&1)+2*i+1, -1)
        F = XA + 8*t
        cvt(b, F, re, re+1); cvt(b, F+2, im, im+1); cvt(b, F+1, re+2, re+3); cvt(b, F+3, im+2, im+3)
        mfma(b, A2+16, F, CN, '0' if t == 0 else A2+16)
        for ct in range(2):
            bb = C2 + 24*ct + 6*t
            mfma(b, A2+8*ct, F, bb+2, '0' if t == 0 else A2+8*ct)
            mfma(b, A2+8*ct+4, F, bb, '0' if t == 0 else A2+8*ct+4)
    cvt(b, T, A2+16, A2+16)
    b.I(f'ds_write_b16 {v(vyn)}, {v(T)} offset:{LI0+31*48+32}')
    for ct in range(2):
        O = XA + 4 + 8*ct
        for i in range(4): cvt(b, O+i, A2+8*ct+i, A2+8*ct+4+i)
        b.I(f'ds_write_b128 {v(vys)}, {v(O,4)} offset:{LI0+768*ct}')
    publish(b, LI0, ACC, A64, A32, vl16, 44, 6, 57)
    b.emit(VERB)
    stamp(a, 4)
    V.put(vtr); V.put(vys); V.put(vyn)
    if WST == 1: wstorm()
    slot(4)
    FR_, FI_, TC2, TS2 = POOL + 88, POOL + 92, GW, GW + 4
    b = Block(a, 'w1a')
    b.I(f'v_mul_f32 {v(base)}, {f32(1/4)}, {v(base)}')
    for i in range(4):
        ang = T + 4*i + 2
        if i == 0: ang = base
        else: b.I(f'v_fmamk_f32 {v(ang)}, {v(fN)}, {f32(i/256)}, {v(base)}')
        b.I(f'v_mul_f32 {v(T+4*i+3)}, {f32(16.0)}, {v(ang)}')
        b.I(f'v_cos_f32 {v(T+4*i)}, {v(T+4*i+3)}\n v_sin_f32 {v(T+4*i+1)}, {v(T+4*i+3)}')
        b.I(f'v_cos_f32 {v(TC2+i)}, {v(ang)}\n v_sin_f32 {v(TS2+i)}, {v(ang)}')
        cvt(b, FR_+i, T+4*i, T+4*i+1); cvt(b, FI_+i, T+4*i+1, T+4*i, True, False)
    GA = V.get(3); vy = V.get(); vnn = V.get(); vnw = V.get(); vy1 = V.get(); vww = V.get()
    for k in range(3): b.I(f'v_mul_u32_u24 {v(GA+k)}, {BS}, {v(CL+k)}\n v_add_u32 {v(GA+k)}, {v(GA+k)}, {v(G16+k)}')
    b.I(f'v_lshlrev_b32 {v(t0)}, 6, {v(q)}\n v_add_u32 {v(t0)}, {v(t0)}, {v(n)}\n v_mul_u32_u24 {v(vnn)}, 48, {v(t0)}\n v_mul_u32_u24 {v(vnw)}, 80, {v(t0)}')
    b.I(f's_lshl_b32 s56, s3, 3\n v_add_u32 {v(vy)}, s56, {v(vnn)}\n v_add_u32 {v(vy1)}, 4, {v(vy)}\n v_add_u32 {v(vnn)}, 32, {v(vnn)}\n s_lshl_b32 s58, s3, 4\n v_add_u32 {v(vww)}, s58, {v(vnw)}')
    b.I(f's_mul_i32 s24, s22, 48\n s_mul_i32 s25, s3, {64*BS}\n s_add_u32 s25, s25, s24')
    P1, PTC, PTS, P2 = POOL, POOL + 16, POOL + 32, POOL + 48
    fD = fN; b2 = V.get()
    def p3c_1(b):
        b.I(f'v_add_u32 {v(t1)}, s58, {v(n)}\n v_cvt_f32_u32 {v(fD)}, {v(t1)}')
        b.I(f'v_mul_u32_u24 {v(t1)}, {v(t1)}, {v(q)}\n v_cvt_f32_u32 {v(base)}, {v(t1)}\n v_mul_f32 {v(base)}, {f32(1/16)}, {v(base)}')
        for g in range(2):
            for i in range(4):
                k = 16*g + i
                if k: b.I(f'v_fmamk_f32 {v(T+8+i)}, {v(fD)}, {f32(k/64)}, {v(base)}')
            for i in range(4):
                ang = base if 16*g + i == 0 else T + 8 + i
                b.I(f'v_cos_f32 {v(T+i)}, {v(ang)}\n v_sin_f32 {v(T+4+i)}, {v(ang)}')
            for i in range(4):
                cvt(b, P1+8*g+i, T+i, T+4+i, False, True); cvt(b, P1+8*g+4+i, T+4+i, T+i)
    def p3c_2(b):
        b.I(f'v_mul_u32_u24 {v(t1)}, s22, {v(q)}\n v_cvt_f32_u32 {v(base)}, {v(t1)}\n v_mul_f32 {v(base)}, {f32(1/1024)}, {v(base)}')
        b.I(f'v_cvt_f32_u32 {v(b2)}, s22\n v_fmamk_f32 {v(b2)}, {v(b2)}, {f32(1/2048)}, {v(base)}')
        for t in range(4):
            for i in range(4):
                kH_ = 4*(i & 1) + t
                bb = base if i < 2 else b2
                ang = T + 4*t + i
                if kH_ == 0: ang = bb
                else: b.I(f'v_fmamk_f32 {v(ang)}, {v(fD)}, {f32(kH_/512)}, {v(bb)}')
                b.I(f'v_cos_f32 {v(PTC+4*t+i)}, {v(ang)}\n v_sin_f32 {v(PTS+4*t+i)}, {v(ang)}')
    def p3c_3(b):
        fB = fD
        b.I(f'v_and_b32 {v(t0)}, 7, {v(n)}\n v_cvt_f32_u32 {v(b2)}, {v(t0)}\n v_mul_u32_u24 {v(t0)}, {v(t0)}, {v(q)}\n v_cvt_f32_u32 {v(base)}, {v(t0)}\n v_mul_f32 {v(base)}, {f32(0.25)}, {v(base)}')
        b.I(f'v_fmamk_f32 {v(b2)}, {v(b2)}, {f32(0.125)}, {v(base)}')
        b.I(f'v_lshrrev_b32 {v(t0)}, 3, {v(n)}\n v_cvt_f32_u32 {v(fB)}, {v(t0)}')
        for t in range(4):
            TT = ACC + 8 + 12*(t & 1)
            for i in range(4):
                kH_ = 4*(i & 1) + t
                bb = base if i < 2 else b2
                ang = TT + 8 + i
                if kH_ == 0: ang = bb
                else: b.I(f'v_fmamk_f32 {v(ang)}, {v(fB)}, {f32(kH_/8)}, {v(bb)}')
                b.I(f'v_cos_f32 {v(TT+i)}, {v(ang)}\n v_sin_f32 {v(TT+4+i)}, {v(ang)}')
            d = P2 + 10*t
            cvt(b, d, TT, TT+1); cvt(b, d+1, TT+2, TT+3)
            cvt(b, d+2, TT+4, TT+5, True, True); cvt(b, d+3, TT+6, TT+7, True, True)
            if t > 0:
                cvt(b, d+4, TT, TT+1, True, True); cvt(b, d+5, TT+2, TT+3, True, True)
                cvt(b, d+6, TT+4, TT+5); cvt(b, d+7, TT+6, TT+7)
            if t in (1, 3):
                cvt(b, d+8, TT, TT+1); cvt(b, d+9, TT+2, TT+3)
    D1 = E('D1', 0)
    if D1 >= 1: p3c_1(b)
    b.emit(VERB)
    if E('D1S', 0): a.I(f's_sleep {E("D1S", 0)}')
    stamp(a, 5)
    R = XA
    loads = [f'buffer_load_dwordx4 {v(R+4*k,4)}, {v(GA+k)}, s[44:47], s25 offen sc1' for k in range(3)]
    for x in loads: a.I(x)
    if WST == 4: wstorm()
    a.I('s_waitcnt vmcnt(3)' if WST != 4 else 's_waitcnt vmcnt(0)')
    WO = ACC + 12
    for p in range(4):
        b.I(f'v_lshlrev_b32 {v(WO+4*p)}, 16, {v(WR+p)}\n v_lshlrev_b32 {v(WO+4*p+1)}, 16, {v(WI+p)}')
        b.I(f'v_and_b32 {v(WO+4*p+2)}, 0xffff0000, {v(WR+p)}\n v_and_b32 {v(WO+4*p+3)}, 0xffff0000, {v(WI+p)}')
    b.I(f's_cmp_eq_u32 s23, 0\n s_cselect_b32 s56, 0.5, 1.0')
    b.I(f'v_mul_f32 {v(WO)}, s56, {v(WO)}\n v_mul_f32 {v(WO+1)}, s56, {v(WO+1)}')
    b.I(f'v_mul_f32 {v(WNR)}, 0.5, {v(WNR)}\n v_mul_f32 {v(WNR+1)}, 0.5, {v(WNR+1)}')
    b.I(f'v_mul_u32_u24 {v(t1)}, 80, {v(vrow)}')
    for p in range(4): b.I(f'ds_write_b128 {v(t1)}, {v(WO+4*p,4)} offset:{LW+16*p}')
    b.I(f'ds_write_b64 {v(t1)}, {v(WNR,2)} offset:{LW+64}')
    b.emit(VERB)
    V.put(vrow)
    stamp(a, 12)
    hi()
    poll_check(a, loads, R, TM, 57)
    stamp(a, 6)
    unpack(a, LI1, R, A64, A32)
    a.I('s_waitcnt lgkmcnt(0)\n s_barrier'); stamp(a, 7)
    Y = XA; X = XA + 8
    D = ACC; WF = POOL + 48; T2 = POOL + 72; T3 = POOL + 80
    o = LI1 // 256
    b = Block(a, 'phase2')
    for c, ad in enumerate((vy, vy1, vnn)):
        for p in range(2): b.I(f'ds_read2st64_b32 {v(X+4*c+2*p,2)}, {v(ad)} offset0:{o+6*p} offset1:{o+6*p+3}')
    for i in range(4): b.I(f'ds_read_b128 {v(WF+4*i,4)}, {v(vww)} offset:{LW+1280*i}')
    for i in range(4): b.I(f'ds_read_b64 {v(WF+16+2*i,2)}, {v(vnw)} offset:{LW+64+1280*i}')
    nc = 3
    for c in range(nc):
        mfma(b, D+8*c, X+4*c, FR_, '0'); mfma(b, D+8*c+4, X+4*c, FI_, '0')
    def stage(tw, sign, swap):
        for c in range(nc):
            re, im = D+8*c, D+8*c+4
            tt = (T, T2, T3)[c]
            for i in range(4):
                tc, ts = tw(c, i)
                cm1(b, re+i, im+i, tc, ts, tt+2*i, tt+2*i+1, sign)
            for i in range(4):
                if swap: cvt(b, X+4*c+i, im+i, re+i)
                else: cvt(b, X+4*c+i, re+i, im+i)
            yield c
    for c in stage(lambda c, i: (TC2+i, TS2+i), -1, False):
        mfma(b, D+8*c, FR_, X+4*c, '0'); mfma(b, D+8*c+4, FI_, X+4*c, '0')
    for c in stage(lambda c, i: (WF+4*i+2*c, WF+4*i+2*c+1) if c < 2 else (WF+16+2*i, WF+17+2*i), +1, True):
        mfma(b, D+8*c+4, X+4*c, FR_, '0'); mfma(b, D+8*c, X+4*c, FI_, '0')
    for c in stage(lambda c, i: (TC2+i, TS2+i), +1, True):
        mfma(b, D+8*c+4, FR_, X+4*c, '0'); mfma(b, D+8*c, FI_, X+4*c, '0')
    for i in range(4):
        cvt(b, Y+2*i, D+i, D+4+i); cvt(b, Y+2*i+1, D+8+i, D+12+i)
        b.I(f'ds_write_b64 {v(vy)}, {v(Y+2*i,2)} offset:{LI0+768*i}')
    for i in range(4):
        cvt(b, XA+20+i, D+16+i, D+20+i)
        b.I(f'ds_write_b32 {v(vnn)}, {v(XA+20+i)} offset:{LI0+768*i}')
    b.emit(VERB)
    a.I('s_waitcnt lgkmcnt(0)\n s_barrier')
    publish(a, LI0, XA + 12, A64, A32, vl16, 44, 8, 57)
    stamp(a, 8)
    lo()
    for r in (vy, vnn, vnw, vw, vy1, vww): V.put(r)
    V.put(WNR, 2)
    vgw = V.get()
    GWL = POOL + 104; GX = POOL + 112
    a.I(f'v_and_b32 {v(vgw)}, 31, v0\n v_lshlrev_b32 {v(vgw)}, 5, {v(vgw)}')
    a.I(f'buffer_load_dwordx4 {v(GWL,4)}, {v(vgw)}, s[40:43], 0 offen')
    a.I(f'buffer_load_dwordx4 {v(GWL+4,4)}, {v(vgw)}, s[40:43], 0 offen offset:16')
    b = Block(a, 'w2a')
    if D1 < 1: p3c_1(b)
    p3c_2(b)
    G2 = V.get(2); vr = V.get(); vta = V.get(); vst = V.get(); sgn = V.get(); vn = V.get()
    AA_ = WR
    for k in range(3):
        x0, x1 = T + 2*k, T + 2*k + 1
        b.I(f'v_and_b32 {v(x0)}, 7, {v(CL+k)}\n v_lshrrev_b32 {v(x1)}, 3, {v(CL+k)}')
        b.I(f'v_lshl_add_u32 {v(GA+k)}, {v(x0)}, 5, {v(x1)}\n v_mul_u32_u24 {v(GA+k)}, {BS}, {v(GA+k)}\n v_add_u32 {v(GA+k)}, {v(GA+k)}, {v(G16+k)}')
        b.I(f'v_lshl_add_u32 {v(AA_+k)}, {v(x1)}, 5, {v(x0)}\n v_mul_u32_u24 {v(AA_+k)}, {BS}, {v(AA_+k)}\n v_add_u32 {v(AA_+k)}, {v(AA_+k)}, {v(G16+k)}')
    b.I(f's_mul_i32 s25, s3, {8*BS}\n s_add_u32 s25, s25, s24\n s_add_u32 s61, s25, {AW_OFF}\n s_add_u32 s25, s25, {V_OFF}')
    b.I(f'v_lshrrev_b32 {v(t0)}, 1, {v(n)}\n v_lshl_add_u32 {v(t0)}, {v(q)}, 5, {v(t0)}\n v_mul_u32_u24 {v(vr)}, 48, {v(t0)}\n v_and_b32 {v(t1)}, 1, v0\n v_lshl_add_u32 {v(vr)}, {v(t1)}, 4, {v(vr)}')
    b.I(f'v_bfe_u32 {v(t0)}, v0, 1, 1\n v_bfe_u32 {v(vta)}, v0, 3, 3\n v_lshl_add_u32 {v(t0)}, {v(t0)}, 3, {v(vta)}\n v_mul_u32_u24 {v(vta)}, 48, {v(t0)}')
    b.I(f'v_bfe_u32 {v(t0)}, v0, 2, 1\n v_lshl_add_u32 {v(vta)}, {v(t0)}, 4, {v(vta)}\n v_lshl_add_u32 {v(vta)}, {v(t1)}, 3, {v(vta)}\n v_add_u32 {v(vta)}, s7, {v(vta)}')
    b.I(f'v_and_b32 {v(t0)}, 7, {v(n)}\n v_lshlrev_b32 {v(vst)}, 18, {v(t0)}\n v_lshlrev_b32 {v(t1)}, 2, {v(t0)}\n v_lshrrev_b32 {v(t0)}, 3, {v(n)}\n v_lshl_add_u32 {v(vst)}, {v(t0)}, 7, {v(vst)}')
    vgr = V.get(); b.I(f'v_mov_b32 {v(vgr)}, {v(t1)}')
    b.I(f'v_lshrrev_b32 {v(t0)}, 4, v0\n v_lshl_add_u32 {v(vst)}, {v(t0)}, 3, {v(vst)}\n s_lshl_b32 s9, s22, 10')
    b.I(f'v_lshlrev_b32 {v(sgn)}, 31, v0\n v_mul_u32_u24 {v(vn)}, 96, {v(q)}\n v_add_u32 {v(vn)}, {LI1 + 248*48 + 32}, {v(vn)}')
    b.I(f'v_mov_b32 {v(ACC+1)}, 0\n v_mov_b32 {v(ACC+3)}, 0\n v_mov_b32 {v(ACC+5)}, 0\n v_mov_b32 {v(ACC+7)}, 0')
    b.emit(VERB)
    if E('D2', 0): a.I(f's_sleep {E("D2", 0)}')
    stamp(a, 9)
    for x in loads: a.I(x)
    p3c_3(b)
    b.emit(VERB)
    a.I('s_waitcnt vmcnt(3)')
    b.I(f'v_mul_u32_u24 {v(t0)}, 264, {v(vj4)}\n v_add_u32 {v(t0)}, {v(t0)}, {v(vgw)}')
    b.I(f'ds_read_b128 {v(GX,4)}, {v(t0)} offset:{LX}\n ds_read_b128 {v(GX+4,4)}, {v(t0)} offset:{LX+16}')
    acc = T + 8; acc2 = T + 9
    for i in range(8):
        x, y = T + 2*(i % 4), T + 2*(i % 4) + 1
        b.I(f'v_lshlrev_b32 {v(x)}, 16, {v(GX+i)}\n v_lshlrev_b32 {v(y)}, 16, {v(GWL+i)}')
        b.I(f'v_mul_f32 {v(acc)}, {v(x)}, {v(y)}' if i == 0 else f'v_fmac_f32 {v(acc)}, {v(x)}, {v(y)}')
        b.I(f'v_and_b32 {v(GX+i)}, 0xffff0000, {v(GX+i)}\n v_and_b32 {v(GWL+i)}, 0xffff0000, {v(GWL+i)}')
        b.I(f'v_mul_f32 {v(acc2)}, {v(GX+i)}, {v(GWL+i)}' if i == 0 else f'v_fmac_f32 {v(acc2)}, {v(GX+i)}, {v(GWL+i)}')
    b.I(f'v_add_f32 {v(acc)}, {v(acc)}, {v(acc2)}')
    for m in ('quad_perm:[1,0,3,2]', 'quad_perm:[2,3,0,1]', 'row_half_mirror', 'row_mirror'):
        b.I(f'v_add_f32_dpp {v(acc)}, {v(acc)}, {v(acc)} {m} row_mask:0xf bank_mask:0xf')
    b.I(f'v_add_f32_dpp {v(acc)}, {v(acc)}, {v(acc)} row_bcast:15 row_mask:0xa bank_mask:0xf')
    b.I(f'v_mul_f32 {v(acc)}, {f32(-LOG2E)}, {v(acc)}\n v_exp_f32 {v(acc)}, {v(acc)}\n v_add_f32 {v(acc)}, 1.0, {v(acc)}\n v_rcp_f32 {v(acc)}, {v(acc)}')
    b.emit(VERB)
    a.I('s_mov_b32 exec_lo, 0x80000000\n s_mov_b32 exec_hi, 0x80000000')
    a.I(f'ds_write_b32 {v(vj4)}, {v(acc)} offset:{LG}')
    a.I('s_mov_b64 exec, -1')
    hi()
    poll_check(a, loads, R, TM, 57)
    unpack(a, LI1, R, A64, A32)
    AL = POOL + 104; NQ = GW
    aloads = [f'buffer_load_dwordx4 {v(AL+4*k,4)}, {v(AA_+k)}, s[44:47], s61 offen sc1' for k in range(3)]
    a.I('s_waitcnt lgkmcnt(0)\n s_barrier'); stamp(a, 10)
    X = POOL + 88
    b = Block(a, 'phase3')
    for g in range(2):
        for i in range(4): b.I(f'ds_read_b128 {v(R+16*g+4*i,4)}, {v(vr)} offset:{LI1+6144*g+384*i}')
        if g == 0: b.I(f'ds_read2_b32 {v(NQ,2)}, {v(vn)} offset0:0 offset1:12')
    for x in aloads: b.I(x)
    b.I(f'ds_read_b32 {v(G2)}, {v(vgr)} offset:{LG}')
    b.I(f'v_sub_f32 {v(G2+1)}, 1.0, {v(G2)}\n v_mul_f32 {v(G2+1)}, {f32(2.0**-19)}, {v(G2+1)}')
    for g in range(2):
        for i in range(4):
            for t in range(i+1, 4): b.I(f'v_swap_b32 {v(R+16*g+4*i+t)}, {v(R+16*g+4*t+i)}')
        if g == 0:
            for k in range(2):
                b.I(f'v_lshlrev_b32 {v(ACC+2*k)}, 16, {v(NQ+k)}\n v_and_b32 {v(ACC+4+2*k)}, 0xffff0000, {v(NQ+k)}')
                b.I(f'v_xor_b32 {v(ACC+2*k)}, {v(sgn)}, {v(ACC+2*k)}\n v_xor_b32 {v(ACC+4+2*k)}, {v(sgn)}, {v(ACC+4+2*k)}')
        for t in range(4):
            for p in range(2):
                d = ACC+8*t+4*p
                mfma(b, d, R+16*g+4*t, P1+8*g+4*p, d if (g == 1 or t == 0) else '0')
    A2 = R
    for t in range(4):
        re, im = ACC+8*t, ACC+8*t+4
        for i in range(4): cm1(b, re+i, im+i, PTC+4*t+i, PTS+4*t+i, T+8*(t&1)+2*i, T+8*(t&1)+2*i+1, +1)
        F = X + 4*t
        cvt(b, F, re, re+1); cvt(b, F+2, im, im+1); cvt(b, F+1, re+2, re+3); cvt(b, F+3, im+2, im+3)
        for ot in range(4):
            rot = (t*ot) % 4
            mfma(b, A2+4*ot, F, P2+10*t+2*rot, '0' if t == 0 else A2+4*ot)
    b.emit(VERB)
    stamp(a, 11)
    if E('ONLYB', 0) or E('NOA', 0): a.I('s_waitcnt vmcnt(0)')
    else: poll_check(a, aloads, AL, TM, 57, E('ABACKOFF', 8))
    b = Block(a, 'final')
    unpack(b, LI0, AL, A64, A32)
    AA = R + 16
    for ot in range(4): b.I(f'ds_read_b64_tr_b16 {v(AA+2*ot,2)}, {v(vta)} offset:{LI0+768*ot}')
    for i in range(16): b.I(f'v_mul_f32 {v(A2+i)}, {v(G2+1)}, {v(A2+i)}')
    AF = ACC
    for ot in range(4):
        for p in range(2):
            b.I(f'v_lshlrev_b32 {v(AF+4*ot+2*p)}, 16, {v(AA+2*ot+p)}\n v_and_b32 {v(AF+4*ot+2*p+1)}, 0xffff0000, {v(AA+2*ot+p)}')
        for p in range(2):
            x = AF+4*ot+2*p; bb = A2+4*ot+2*p
            b.I(f'v_fmac_f32 {v(bb)}, {v(x)}, {v(G2)}\n v_fmac_f32 {v(bb+1)}, {v(x+1)}, {v(G2)}')
            cvt(b, X+2*ot+p, bb, bb+1)
        b.I(f'buffer_store_dwordx2 {v(X+2*ot,2)}, {v(vst)}, s[12:15], s9 offen offset:{256*ot}')
    b.emit(VERB)
    a.I('s_or_b32 s56, s22, s3\n s_cmp_lg_u32 s56, 0\n s_cbranch_scc1 L_b_end')
    a.I(f's_mov_b64 exec, 1\n v_mov_b32 {v(t0)}, s57\n v_mov_b32 {v(t1)}, {EP_OFF}')
    a.I(f'buffer_store_dword {v(t0)}, {v(t1)}, s[44:47], 0 offen')
    a.label('L_b_end', keep=True)
    endpgm(a, 44, 13, 0)

RS = 544
TB_CH = 53 * RS
KF_OFF = 2 * TB_CH + 64
KF_CH = 2368 + 64
K8_OFF = KF_OFF + 2 * KF_CH
K8_CH = 512
LU = K8_OFF + 2 * K8_CH
U_CH = 4608
LDS_BYTES = LU + 2 * U_CH
LK = 0
KC = 2240
LRED = 4 * KC
LAO = LRED + 16384
def cmul(a, d, x, y, t):
    if E('PKCHAIN', 1):
        a.I(f'v_pk_mul_f32 {v(t,2)}, {v(x,2)}, {v(y,2)} op_sel_hi:[0,1]')
        a.I(f'v_pk_fma_f32 {v(d,2)}, {v(x,2)}, {v(y,2)}, {v(t,2)} op_sel:[1,1,0] op_sel_hi:[1,0,1] neg_lo:[1,0,0]')
    else:
        a.I(f'v_mul_f32 {v(t)}, {v(x)}, {v(y)}\n v_mul_f32 {v(t+1)}, {v(x)}, {v(y+1)}')
        a.I(f'v_fma_f32 {v(d)}, -{v(x+1)}, {v(y+1)}, {v(t)}\n v_fma_f32 {v(d+1)}, {v(x+1)}, {v(y)}, {v(t+1)}')

class RoleA:
  def pre(self, a):
    V = self.V = VAlloc(1, 128); W = self.W = VAlloc(128, 256)
    a.label('L_a_pre', keep=True)
    if E('ONLYB', 0): a.I('s_endpgm')
    a.I(f's_setprio {E("APRIO", 2)}')
    task_of(a, 22, 23)
    n, q = self.n, self.q = lanes(a, V)
    t0 = self.t0 = V.get(); t1 = self.t1 = V.get()
    vp = W.get(); a.I(f'v_lshlrev_b32 {v(vp)}, 1, v0')
    vch = self.vch = V.get(); a.I(f'v_lshrrev_b32 {v(vch)}, 7, v0')
    vd = W.get(); a.I(f'v_lshlrev_b32 {v(vd)}, 1, {v(vch)}')
    vd2 = W.get(); a.I(f'v_bfe_u32 {v(vd2)}, v0, 6, 1\n v_lshlrev_b32 {v(vd2)}, 1, {v(vd2)}')
    vut = W.get()
    a.I(f'v_and_b32 {v(t1)}, 0xc0, v0\n v_lshl_add_u32 {v(t1)}, {v(n)}, 2, {v(t1)}\n v_lshl_add_u32 {v(vut)}, {v(q)}, 13, {v(t1)}')
    a.I('s_lshl_b32 s24, s22, 9\n s_lshl_b32 s25, s22, 2\n s_lshr_b32 s26, s23, 2\n s_lshl_b32 s26, s26, 3\n s_and_b32 s27, s2, 7\n s_add_u32 s26, s26, s27\n s_and_b32 s27, s23, 3')
    a.I(f's_lshl_b32 s28, s26, 15\n s_lshl_b32 s29, s27, 8\n s_add_u32 s28, s28, s29\n s_add_u32 s29, s28, 4096')
    a.I('s_mov_b32 s34, 131072\n s_mov_b32 s35, 0x00020000\n s_mov_b32 s38, 131072\n s_mov_b32 s39, 0x00020000\n s_mov_b32 s42, 1024\n s_mov_b32 s43, 0x00020000\n s_mov_b32 s46, 2097152\n s_mov_b32 s47, 0x00020000')
    a.I('s_waitcnt lgkmcnt(0)'); stamp(a, 1)
    self.PR = LA, AI, CR, CI, LD, DS = tuple(V.get() for _ in range(6))
    a.I(f's_mov_b32 s40, s14\n s_mov_b32 s41, s15\n buffer_load_short_d16_hi {v(LD)}, {v(vd)}, s[40:43], s25 offen')
    for k, r in enumerate((LA, AI, CR, CI)):
        d = 32 + 4*(k & 1)
        a.I(f's_mov_b32 s{d}, s{6+2*k}\n s_mov_b32 s{d+1}, s{7+2*k}\n buffer_load_short_d16_hi {v(r)}, {v(vp)}, s[{d}:{d+3}], s24 offen')
    a.I('s_mov_b32 s44, s4\n s_mov_b32 s45, s5')
    UTL = self.UTL = W.get(8)
    for e in range(8):
        if not E('NOTILE', 0): a.I(f'buffer_load_dword {v(UTL+e)}, {v(vut)}, s[44:47], s{28 if e < 4 else 29} offen offset:{(e%4)*1024}')
    a.I(f's_mov_b32 s40, s16\n s_mov_b32 s41, s17\n buffer_load_short_d16_hi {v(DS)}, {v(vd2)}, s[40:43], s25 offen')
    srd(a, 48, 20, WS_BYTES)
    a.I(f's_add_u32 s20, s20, {EP_OFF}\n s_addc_u32 s21, s21, 0\n s_load_dword s4, s[20:21], 0')
    stamp(a, 12, False)
    self.st = (list(a.vm), list(a.lg))
  def body(self, a):
    V, W, n, q, t0, t1, vch, UTL = self.V, self.W, self.n, self.q, self.t0, self.t1, self.vch, self.UTL
    LA, AI, CR, CI, LD, DS = self.PR
    TOK, CH, HR = 4, 6, 7
    b = Block(a, 'a_shadow')
    vt16 = V.get(); b.I(f'v_lshlrev_b32 {v(vt16)}, 4, v0')
    vuts = W.get()
    b.I(f'v_mul_u32_u24 {v(vuts)}, 3072, {v(t1)}\n v_lshl_add_u32 {v(vuts)}, {v(q)}, 4, {v(vuts)}')
    b.I(f's_mul_i32 s27, s27, {64*12288}\n s_lshl_b32 s26, s26, 6\n s_add_u32 s26, s26, s27\n s_add_u32 s26, s26, {UT_OFF}\n s_add_u32 s27, s26, 4096\n s_add_u32 s28, s26, 8192')
    b.I('s_mov_b32 s8, 0x05040100\n s_mov_b32 s9, 0x07060302')
    b.I(f's_and_b32 s{CH}, s3, 1\n s_lshr_b32 s{HR}, s3, 1\n s_mul_i32 s10, s{HR}, {TB_CH}\n s_lshl_b32 s11, s{CH}, 8\n s_add_u32 m0, s10, s11')
    b.I(f's_mul_i32 s52, s22, 12288\n s_add_u32 s52, s52, {UT_OFF}\n s_add_u32 s53, s52, 4096\n s_add_u32 s54, s52, 8192')
    U0 = V.get(12, 4); EG = V.get(9, 1); TM = V.get(3, 1)
    J0, sh, JM, cst, kfb, yy, y1, y2, y3, y4, y5, y6 = (W.get() for _ in range(12))
    zero = V.get(); vks = V.get(); veg = V.get(); vem = V.get()
    b.I(f'v_and_b32 {v(yy)}, 127, v0\n v_lshlrev_b32 {v(J0)}, 3, {v(yy)}\n v_sub_u32 {v(J0)}, 1016, {v(J0)}')
    b.I(f'v_mul_u32_u24 {v(vks)}, {2*KC}, {v(vch)}\n v_lshl_add_u32 {v(vks)}, {v(yy)}, 4, {v(vks)}')
    b.I(f'v_or_b32 {v(sh)}, 1, {v(J0)}\n v_ffbh_u32 {v(sh)}, {v(sh)}\n v_sub_u32 {v(sh)}, 24, {v(sh)}\n v_max_i32 {v(sh)}, 0, {v(sh)}')
    b.I(f'v_add_u32 {v(JM)}, 150, {v(sh)}\n v_lshlrev_b32 {v(JM)}, 23, {v(JM)}')
    b.I(f'v_mul_u32_u24 {v(kfb)}, {KF_CH}, {v(vch)}\n v_mov_b32 {v(zero)}, 0\n ds_write_b32 {v(kfb)}, {v(zero)} offset:{KF_OFF-8}\n v_add_u32 {v(kfb)}, {KF_OFF}, {v(kfb)}')
    b.I(f'v_lshrrev_b32 {v(yy)}, {v(sh)}, {v(J0)}\n v_add_u32 {v(sh)}, 1, {v(sh)}')
    b.I(f'v_add_u32 {v(JM)}, {v(JM)}, {v(yy)}\n v_lshlrev_b32 {v(cst)}, {v(sh)}, {v(JM)}')
    b.I(f'v_lshrrev_b32 {v(yy)}, 4, {v(J0)}\n v_lshl_add_u32 {v(yy)}, {v(yy)}, 2, {v(kfb)}\n v_lshl_add_u32 {v(EG+1)}, {v(J0)}, 1, {v(yy)}\n v_sub_u32 {v(cst)}, {v(EG+1)}, {v(cst)}')
    b.I(f'v_add_u32 {v(yy)}, 16, {v(EG+1)}\n v_bfe_u32 {v(y5)}, {v(J0)}, 3, 1\n v_lshlrev_b32 {v(y5)}, 2, {v(y5)}')
    for e in range(1, 8):
        b.I(f'v_add_f32 {v(EG+1+e)}, {f32(float(e))}, {v(JM)}')
        b.I(f'v_lshl_add_u32 {v(EG+1+e)}, {v(EG+1+e)}, {v(sh)}, {v(cst)}')
        if e >= 6: b.I(f'v_cmp_eq_u32 vcc, {v(EG+1+e)}, {v(yy)}\n v_cndmask_b32 {v(EG)}, 0, {v(y5)}, vcc\n v_add_u32 {v(EG+1+e)}, {v(EG+1+e)}, {v(EG)}')
    b.I(f'v_sub_u32 {v(y5)}, 6, {v(y5)}\n v_cmp_ge_u32 vcc, 256, {v(J0)}\n v_cndmask_b32 {v(yy)}, 0, {v(y5)}, vcc\n v_sub_u32 {v(EG)}, {v(EG+1)}, {v(yy)}')
    b.I(f'v_add_u32 {v(veg)}, 2304, {v(kfb)}')
    b.I(f'v_bfe_u32 {v(y6)}, v0, 6, 1\n v_lshl_add_u32 {v(y6)}, {v(n)}, 1, {v(y6)}\n v_and_b32 {v(yy)}, 16, v0\n v_cmp_ne_u32 vcc, 0, {v(yy)}\n v_cndmask_b32 {v(y6)}, {v(y6)}, 0, vcc')
    b.I(f'v_mov_b32 {v(vem)}, 0x10000\n v_cmp_le_u32 vcc, 26, {v(y6)}\n v_cndmask_b32 {v(vem)}, 0, {v(vem)}, vcc\n v_cmp_le_u32 vcc, 27, {v(y6)}\n v_cndmask_b32 {v(y6)}, 0, 1, vcc\n v_or_b32 {v(vem)}, {v(vem)}, {v(y6)}')
    b.I(f'v_and_b32 {v(y6)}, 31, v0\n v_lshlrev_b32 {v(y6)}, 2, {v(y6)}\n v_lshl_add_u32 {v(y6)}, {v(vch)}, 9, {v(y6)}\n ds_write_b32 {v(y6)}, {v(zero)} offset:{K8_OFF}')
    b.I(f'v_mul_u32_u24 {v(y1)}, {U_CH - 512}, {v(vch)}\n v_lshl_add_u32 {v(y1)}, v0, 2, {v(y1)}\n v_add_u32 {v(y1)}, {LU}, {v(y1)}\n ds_write_b32 {v(y1)}, {v(zero)}')
    b.I(f'v_mov_b32 {v(y2)}, 0x3f80\n ds_write_addtid_b32 {v(y2)} offset:{21*RS}')
    vra = V.get(); vrb = V.get(); KW = V.get(4, 1); kw1 = V.get(); kw2 = V.get(); va = V.get(); vb = V.get(3, 1); vkz = V.get(); vuw = V.get(); vk8 = V.get(2, 1); vf = V.get(2, 1); BND = V.get(8, 4)
    b.I(f's_mul_i32 s10, s{CH}, {TB_CH}\n s_mul_i32 s11, s{HR}, {16*RS}\n s_add_u32 s11, s11, {21*RS}')
    b.I(f'v_mul_u32_u24 {v(vra)}, {RS}, {v(n)}\n v_lshl_add_u32 {v(vra)}, {v(q)}, 4, {v(vra)}\n v_add_u32 {v(vra)}, s10, {v(vra)}\n v_add_u32 {v(vrb)}, s11, {v(vra)}')
    b.I(f's_mul_i32 s12, s{CH}, {KF_CH}\n s_mul_i32 s13, s{HR}, 288\n s_add_u32 s12, s12, s13\n s_add_u32 s12, s12, {KF_OFF}')
    b.I(f'v_lshlrev_b32 {v(kw1)}, 4, {v(n)}\n v_lshrrev_b32 {v(y3)}, 1, {v(n)}\n v_lshl_add_u32 {v(kw1)}, {v(y3)}, 2, {v(kw1)}\n v_add_u32 {v(kw1)}, s12, {v(kw1)}')
    b.I(f'v_lshlrev_b32 {v(t0)}, 3, {v(q)}\n s_mov_b32 s14, 0x90480100\n s_mov_b32 s15, 0x08040202\n s_mov_b32 s16, 0x90020101')
    b.I(f'v_bfe_u32 {v(KW)}, s14, {v(t0)}, 8\n v_lshl_add_u32 {v(KW)}, {v(KW)}, 3, {v(kw1)}')
    b.I(f'v_bfe_u32 {v(y3)}, s15, {v(t0)}, 8\n v_add_u32 {v(KW+1)}, {v(KW)}, {v(y3)}')
    b.I(f'v_bfe_u32 {v(KW+2)}, s16, {v(t0)}, 8\n v_lshl_add_u32 {v(KW+2)}, {v(KW+2)}, 2, {v(KW)}\n v_add_u32 {v(KW+3)}, {v(KW+2)}, {v(y3)}')
    b.I(f's_lshl_b32 s19, s{CH}, 9\n s_add_u32 s19, s19, {K8_OFF}\n s_lshl_b32 s13, s{HR}, 5\n s_add_u32 s13, s13, s19\n s_add_u32 s13, s13, 126')
    b.I(f'v_add_u32 {v(y5)}, 2304, {v(kw1)}\n v_lshlrev_b32 {v(kw1)}, 1, {v(n)}\n v_add_u32 {v(kw1)}, s13, {v(kw1)}')
    b.I(f'v_mov_b32 {v(y4)}, {LU + 512}\n v_cmp_eq_u32 vcc, 0, {v(q)}\n v_cndmask_b32 {v(kw2)}, {v(y4)}, {v(kw1)}, vcc')
    b.I(f'v_add_u32 {v(y4)}, 256, {v(kw1)}\n v_cmp_eq_u32 vcc, 1, {v(q)}\n v_cndmask_b32 {v(kw1)}, {v(kw2)}, {v(y4)}, vcc')
    b.I(f'v_and_b32 {v(y4)}, 0xbf, v0\n v_cmp_eq_u32 vcc, 0, {v(y4)}\n v_cndmask_b32 {v(kw1)}, {v(kw1)}, {v(y5)}, vcc')
    b.I(f'v_lshlrev_b32 {v(y4)}, 2, {v(q)}\n v_sub_u32 {v(y4)}, {v(n)}, {v(y4)}\n v_lshlrev_b32 {v(y4)}, 2, {v(y4)}\n s_lshl_b32 s13, s{HR}, 6')
    b.I(f's_sub_u32 s29, s19, s13\n s_add_u32 s29, s29, {128 - 12}\n v_add_u32 {v(vk8)}, s29, {v(y4)}\n s_add_u32 s29, s19, s13\n s_sub_u32 s29, s29, {64 + 12}\n v_add_u32 {v(vk8+1)}, s29, {v(y4)}')
    for k, (w_, s0) in enumerate(((7, 5), (9, 4))):
        b.I(f'v_mov_b32 {v(y4)}, {((1 << w_) - 1) << s0}\n v_lshlrev_b32 {v(y4)}, {v(n)}, {v(y4)}\n v_lshrrev_b32 {v(y4)}, {v(t0)}, {v(y4)}')
        for i in range(4):
            d = BND + 4*k + i
            b.I(f'v_bfe_u32 {v(d)}, {v(y4)}, {2*i}, 2\n v_mul_u32_u24 {v(d)}, 0x8001, {v(d)}\n v_and_b32 {v(d)}, 0x10001, {v(d)}\n v_mul_u32_u24 {v(d)}, 0x3f80, {v(d)}')
    b.I(f's_lshl_b32 s13, s{HR}, 8\n s_mul_i32 s12, s{CH}, {U_CH}\n s_sub_u32 s12, s12, s13\n s_add_u32 s12, s12, {LU + 512 - 32 - 192}')
    b.I(f'v_lshlrev_b32 {v(va)}, 5, {v(n)}\n v_lshl_add_u32 {v(va)}, {v(q)}, 4, {v(va)}\n v_add_u32 {v(va)}, s12, {v(va)}')
    b.I(f's_mul_i32 s29, s{HR}, 768\n s_add_u32 s29, s29, {192 - 16}\n v_add_u32 {v(vf)}, s29, {v(va)}\n s_mul_i32 s29, s{HR}, -256\n s_add_u32 s29, s29, {192 - 16 + 1536}\n v_add_u32 {v(vf+1)}, s29, {v(va)}')
    b.I(f's_mul_i32 s17, s{CH}, {2*KC}\n s_sub_u32 s17, s17, s13\n s_add_u32 s17, s17, {LK - 192 - 512}')
    b.I(f'v_sub_u32 {v(t0)}, {v(t0)}, {v(n)}\n v_add_u32 {v(t0)}, 1039, {v(t0)}')
    b.I(f'v_and_b32 {v(y3)}, 1, {v(t0)}\n v_mul_u32_u24 {v(y3)}, {KC}, {v(y3)}\n v_lshrrev_b32 {v(t0)}, 1, {v(t0)}')
    b.I(f'v_lshl_add_u32 {v(vb)}, {v(t0)}, 2, {v(y3)}\n v_add_u32 {v(vb)}, s17, {v(vb)}\n v_add_u32 {v(vb+1)}, -1024, {v(vb)}')
    b.I(f'v_add_u32 {v(vb+2)}, {192 + 512 - 2048}, {v(vb)}\n v_mov_b32 {v(y3)}, {LU}\n s_cmp_eq_u32 s{HR}, 0\n s_cselect_b64 s[30:31], -1, 0\n v_cndmask_b32 {v(vb+2)}, {v(y3)}, {v(vb+2)}, s[30:31]')
    b.I(f's_mul_i32 s18, s3, {KC}\n v_and_b32 {v(y3)}, 16, v0\n v_mul_u32_u24 {v(y3)}, 132, {v(y3)}\n v_lshl_add_u32 {v(vkz)}, {v(n)}, 2, {v(y3)}\n v_add_u32 {v(vkz)}, s18, {v(vkz)}\n v_add_u32 {v(vuw)}, {LU + 512}, {v(vt16)}')
    b.emit(VERB)
    stamp(a, 2)
    def utpub():
        a.I(f's_add_u32 s{TOK}, s{TOK}, {TOKC}')
        for i in range(4):
            b.I(f'v_perm_b32 {v(U0+i if i < 3 else U0+8)}, {v(UTL+2*i+1)}, {v(UTL+2*i)}, s8')
            b.I(f'v_perm_b32 {v(U0+4+i if i < 3 else U0+9)}, {v(UTL+2*i+1)}, {v(UTL+2*i)}, s9')
        b.I(f'v_mov_b32 {v(U0+10)}, 0')
        for k, sr in enumerate((26, 27, 28)):
            chk(b, U0+4*k, TOK)
            if not E('NOUT', 0): b.I(f'buffer_store_dwordx4 {v(U0+4*k,4)}, {v(vuts)}, s[48:51], s{sr} offen sc1 ;!3000')
    dt = W.get(); ar_ = W.get(); rev = W.get()
    b = Block(a, 'a_chain')
    b.I(f'v_mul_f32 {v(dt)}, {f32(LOG2E)}, {v(LD)}\n v_mul_f32 {v(ar_)}, {f32(LOG2E)}, {v(LA)}\n v_exp_f32 {v(dt)}, {v(dt)}\n v_exp_f32 {v(ar_)}, {v(ar_)}')
    cvt(b, t0, dt, ar_)
    b.I(f'v_lshlrev_b32 {v(dt)}, 16, {v(t0)}\n v_and_b32 {v(ar_)}, 0xffff0000, {v(t0)}')
    b.I(f'v_mul_f32 {v(ar_)}, {v(ar_)}, {v(dt)}\n v_mul_f32 {v(ar_)}, {f32(-LOG2E)}, {v(ar_)}')
    b.I(f'v_mul_f32 {v(rev)}, {v(AI)}, {v(dt)}\n v_mul_f32 {v(rev)}, 0.15915494, {v(rev)}')
    Z = {}
    mag = W.get(4); ang = W.get(4)
    for k, p in enumerate((8, 1, 128, 256)):
        Z[p] = W.get(2)
        b.I(f'v_mul_f32 {v(mag+k)}, {f32(float(p))}, {v(ar_)}\n v_mul_f32 {v(ang+k)}, {f32(float(p))}, {v(rev)}')
        b.I(f'v_fract_f32 {v(ang+k)}, {v(ang+k)}\n v_exp_f32 {v(mag+k)}, {v(mag+k)}')
        b.I(f'v_cos_f32 {v(Z[p])}, {v(ang+k)}\n v_sin_f32 {v(Z[p]+1)}, {v(ang+k)}')
    Ee = W.get(16)
    b.I(f'v_add_f32 {v(dt)}, {v(dt)}, {v(dt)}\n v_mul_f32 {v(Ee)}, {v(CR)}, {v(dt)}\n v_mul_f32 {v(Ee+1)}, {v(CI)}, {v(dt)}')
    for k, p in enumerate((8, 1, 128, 256)):
        b.I(f'v_mul_f32 {v(Z[p])}, {v(mag+k)}, {v(Z[p])}\n v_mul_f32 {v(Z[p]+1)}, {v(mag+k)}, {v(Z[p]+1)}')
    TT = W.get(8); PK = W.get(8); O = W.get(4); H = W.get(4)
    cnt = [0]
    def put(row, x, neg):
        r = PK + cnt[0] % 8; cnt[0] += 1
        cvt(b, r, x, x+1, False, neg)
        b.I(f'ds_write_addtid_b32 {v(r)} offset:{row*RS} ;@T{row}')
    offs_ops = []; cur = Z[8]
    offs_ops.append(lambda: (put(21+1, Z[8], False), put(21+16, Z[128], False)))
    offs_ops.append(lambda: (cmul(b, H, Z[8], Z[128], TT+2), put(21+17, H, False)))
    for i in range(2, 16):
        nxt = O + 2*(i % 2)
        def f(i=i, cur=cur, nxt=nxt):
            cmul(b, nxt, cur, Z[8], TT); cmul(b, H + 2*(i % 2), nxt, Z[128], TT+2)
            put(21+i, nxt, False); put(21+16+i, H + 2*(i % 2), False)
        offs_ops.append(f); cur = nxt
    base_ops = [lambda: put(0, Ee, True)]
    for e in range(1, 8): base_ops.append(lambda e=e: (cmul(b, Ee+2*e, Ee+2*e-2, Z[1], TT+4), put(e, Ee+2*e, True)))
    for k, e in enumerate((0, 2, 4, 6)): base_ops.append(lambda k=k, e=e: (cmul(b, Ee+2*e, Ee+2*e, Z[256], TT+4), put(8+k, Ee+2*e, True)))
    for i in range(2):
        for k, e in enumerate((0, 4)): base_ops.append(lambda i=i, k=k, e=e: (cmul(b, Ee+2*e, Ee+2*e, Z[256], TT+4), put(12+2*i+k, Ee+2*e, True)))
    for i in range(5): base_ops.append(lambda i=i: (cmul(b, Ee, Ee, Z[256], TT+4), put(16+i, Ee, True)))
    it = 0
    while offs_ops or base_ops:
        if it == E('UTPOS', 3):
            b.emit(VERB); stamp(a, 4); utpub()
        it += 1
        if offs_ops: offs_ops.pop(0)()
        if base_ops: base_ops.pop(0)()
    uloads = [f'buffer_load_dwordx4 {v(U0+4*k,4)}, {v(vt16)}, s[48:51], s{52+k} offen sc1' for k in range(3)]
    ACCK = V.get(8, 4); PK = V.get(4)
    b.I(f'v_and_b32 {v(t0)}, 0xbf, v0\n v_cmp_eq_u32 vcc, 0, {v(t0)}\n v_cndmask_b32 {v(ACCK)}, 0, {v(DS)}, vcc')
    b.I(f'v_mov_b32 {v(ACCK+1)}, 0\n v_mov_b32 {v(ACCK+2)}, 0\n v_mov_b32 {v(ACCK+3)}, 0')
    b.emit(VERB)
    if E('UPOS', 0) == 2:
        for x in uloads: a.I(x)
    a.I('s_waitcnt lgkmcnt(0)\n s_barrier'); stamp(a, 5)
    S = [128, 192]; FR = 128
    for k in range(8):
        a.I(f'ds_read_b128 {v(FR+12*k,4)}, {v(vrb)} offset:{64*k}')
        a.I(f'ds_read_b128 {v(FR+12*k+4,4)}, {v(vra)} offset:{64*k}')
        a.I(f'ds_read_b128 {v(FR+12*k+8,4)}, {v(vra)} offset:{64*k+16*RS}')
        if k >= 4:
            kk = k - 4
            mfma(a, ACCK, FR+12*kk+4, FR+12*kk, ACCK); mfma(a, ACCK+4, FR+12*kk+8, FR+12*kk, '0' if kk == 0 else ACCK+4)
    uloads = [f'buffer_load_dwordx4 {v(U0+4*k,4)}, {v(vt16)}, s[48:51], s{52+k} offen sc1' for k in range(3)]
    if E('UPOS', 0) == 0 and not E('NOUT', 0):
        for x in uloads: a.I(x)
    for k in range(4, 8):
        mfma(a, ACCK, FR+12*k+4, FR+12*k, ACCK); mfma(a, ACCK+4, FR+12*k+8, FR+12*k, ACCK+4)
    cvt(a, PK, ACCK, ACCK+1); cvt(a, PK+1, ACCK+2, ACCK+3)
    a.I(f'ds_write_b16 {v(KW)}, {v(PK)}\n ds_write_b16_d16_hi {v(KW+1)}, {v(PK)}\n ds_write_b16 {v(KW+2)}, {v(PK+1)}\n ds_write_b16_d16_hi {v(KW+3)}, {v(PK+1)}')
    cvt(a, PK+2, ACCK+4, ACCK+5); cvt(a, PK+3, ACCK+6, ACCK+7)
    a.I(f'ds_write_b16 {v(kw1)}, {v(PK+2)}\n ds_write_b16_d16_hi {v(kw2)}, {v(PK+2)} offset:64')
    a.I(f'ds_write_b16 {v(kw2)}, {v(PK+3)} offset:128\n ds_write_b16_d16_hi {v(kw2)}, {v(PK+3)} offset:192')
    a.I('s_waitcnt lgkmcnt(0)\n s_barrier'); stamp(a, 6)
    for e in range(8, -1, -1): a.I(f'ds_read_u16 {v(EG+e)}, {v(EG+e)}')
    a.I(f'ds_read_u16 {v(veg)}, {v(veg)}')
    if E('UPOS', 0) == 1 and not E('NOUT', 0):
        for x in uloads: a.I(x)
    EO = FR
    for bb in range(4):
        a.I(f'v_lshl_or_b32 {v(EO+bb)}, {v(EG+1+6-2*bb)}, 16, {v(EG+1+7-2*bb)}')
        a.I(f'v_lshl_or_b32 {v(EO+4+bb)}, {v(EG+1+5-2*bb)}, 16, {v(EG+1+6-2*bb)}')
    a.I(f'ds_write_b128 {v(vks)}, {v(EO,4)} offset:{LK+64}\n ds_write_b128 {v(vks)}, {v(EO+4,4)} offset:{LK+KC+64}')
    a.I(f'v_mul_u32_u24 {v(veg)}, {v(veg)}, {v(vem)}\n ds_write_b32 {v(vkz)}, {v(veg)} offset:{LK}')
    stamp(a, 7)
    if not E('NOUT', 0): poll_check(a, uloads, U0, TM, TOK)
    a.I(f'v_mov_b32 {v(U0+3)}, {v(U0+8)}\n v_mov_b32 {v(U0+7)}, {v(U0+9)}')
    a.I(f'ds_write_b128 {v(vuw)}, {v(U0,4)}\n ds_write_b128 {v(vuw)}, {v(U0+4,4)} offset:{U_CH}')
    a.I(f's_setprio {E("CPRIO", 2)}')
    a.I('s_waitcnt lgkmcnt(0)\n s_barrier'); stamp(a, 8)
    V.put(EG, 9); V.put(ACCK, 8); V.put(KW, 4); V.put(PK, 4); V.put(U0, 12)
    ACC = V.get(32, 4)
    b = Block(a, 'conv')
    S = [128, 176]; X = 224
    def loads(rl):
        L = []
        for k in range(8):
            if k < 4:
                o = 16*(3-rl) + (128 if k % 2 == 0 else 0)
                r = S[rl%2] + 32 + 4*k
                L += [f'ds_read2_b32 {v(r,2)}, {v(vb+k//2)} offset0:{o} offset1:{o+1}', f'ds_read2_b32 {v(r+2,2)}, {v(vb+k//2)} offset0:{o+2} offset1:{o+3}']
            L.append(f'ds_read_b128 {v(S[rl%2]+4*k,4)}, {v(va)} offset:{64*(3-rl)+512*k}')
        return L
    def mf(d, A, B, c): return f'v_mfma_f32_16x16x32_bf16 {v(d,4)}, {v(A,4)}, {v(B,4)}, {c if isinstance(c, str) else v(c,4)}'
    SB = V.get(8, 4); SD = V.get(16, 4)
    for x in loads(0): a.I(x)
    a.I(f'ds_read2_b32 {v(X,2)}, {v(vb+2)} offset0:0 offset1:1\n ds_read2_b32 {v(X+2,2)}, {v(vb+2)} offset0:2 offset1:3')
    extra = {0: [], 1: [], 2: [], 3: []}
    for k in range(2):
        extra[0] += [f'ds_read_b128 {v(X+4+8*k,4)}, {v(vf+k)} offset:16', f'ds_read_b128 {v(X+8+8*k,4)}, {v(vf+k)}']
    def k8(r, k, T):
        o = 16*(T-4)
        return [f'ds_read2_b32 {v(r,2)}, {v(vk8+k)} offset0:{o+3} offset1:{o+2}', f'ds_read2_b32 {v(r+2,2)}, {v(vk8+k)} offset0:{o+1} offset1:{o}']
    far = [(0, 4), (0, 5), (0, 6), (0, 7), (1, 6), (1, 7)]
    for j, (k, T) in enumerate(far): extra[1] += k8(X+4*j, k, T)
    for k in range(2):
        for i in range(4): extra[1].append(f'v_cvt_pk_bf16_f32 {v(SB+4*k+i)}, {v(SD+8*k+i)}, {v(SD+8*k+4+i)}')
    for rl in range(4):
        pairs = sorted([(i, g) for i in range(8) for g in range(4) if i + g <= 7], key=lambda p: (max(p), p[0]+p[1]))
        M = []; seen = set()
        for (i, g) in pairs:
            d = ACC + 4*(i+g)
            first = (rl == 0 and (i+g) not in seen); seen.add(i+g)
            M.append(mf(d, S[rl%2]+4*i, S[rl%2]+32+4*g, '0' if first else d))
        if rl == 0:
            M += [mf(ACC+4*(i+4), S[0]+4*i, X, ACC+4*(i+4)) for i in range(4)]
            M += [mf(SD+8*k+4*h, X+4+8*k+4*h, BND+4*h, '0') for k in range(2) for h in range(2)]
        if rl == 2: M = M[:8] + [mf(ACC+4*T, X+4*j, SB+4*k, ACC+4*T) for j, (k, T) in enumerate(far)] + M[8:]
        if rl == 3:
            tailM = M; break
        nxt = (extra[rl] + loads(rl+1)) if rl == 0 else (loads(rl+1) + extra[rl])
        for k, x in enumerate(M):
            a.I(x)
            if k >= (6 if rl == 0 else 0):
                for _ in range(2 if (rl == 1 and k % 2) else 1):
                    if nxt: a.I(nxt.pop(0))
        for x in nxt: a.I(x)
    for x in tailM: b.I(x)
    CL, G16, A64, A32 = slotmap(b, V, t0, t1)
    vrw = V.get(); vrr = V.get(); vao = V.get(); vl16 = V.get()
    b.I(f'v_lshlrev_b32 {v(vrw)}, 3, v0\n v_xor_b32 {v(vrr)}, 1024, {v(vrw)}')
    b.I(f'v_lshlrev_b32 {v(vao)}, 6, {v(q)}\n v_add_u32 {v(vao)}, {v(vao)}, {v(n)}\n v_mul_u32_u24 {v(vao)}, 48, {v(vao)}\n s_mul_i32 s10, s{HR}, {32*48}\n s_lshl_b32 s11, s{CH}, 4\n s_add_u32 s10, s10, s11\n v_add_u32 {v(vao)}, s10, {v(vao)}')
    b.I(f'v_and_b32 {v(vl16)}, 1023, {v(vt16)}\n s_mul_i32 s62, s22, {BS}\n s_add_u32 s62, s62, s56\n s_add_u32 s62, s62, {AW_OFF}')
    Gv = S[0]; R = S[0] + 16; Kp = S[0] + 32
    for i in range(8):
        for j in range(2): b.I(f'v_cndmask_b32 {v(Gv+2*i+j)}, {v(ACC+4*i+j)}, {v(ACC+4*i+2+j)}, s[30:31]')
        b.I(f'ds_write_b64 {v(vrw)}, {v(Gv+2*i,2)} offset:{LRED+2048*i} ;@R{i} ;!100')
        for j in range(2): b.I(f'v_cndmask_b32 {v(Kp+2*i+j)}, {v(ACC+4*i+2+j)}, {v(ACC+4*i+j)}, s[30:31]')
    b.emit(VERB)
    stamp(a, 9)
    a.I(f's_setprio {E("EPRIO", 3)}')
    a.I('s_waitcnt lgkmcnt(0)\n s_barrier')
    for i in range(8): a.I(f'ds_read_b64 {v(R+2*i,2)}, {v(vrr)} offset:{LRED+2048*i}')
    for i in range(16): a.I(f'v_add_f32 {v(R+i)}, {v(R+i)}, {v(Kp+i)}')
    Oo = X
    for jj in range(2):
        for i in range(4): cvt(a, Oo+4*jj+i, R+4*i+jj, R+4*i+2+jj)
        a.I(f'ds_write_b128 {v(vao)}, {v(Oo+4*jj,4)} offset:{LAO+768*jj}')
    a.I('s_waitcnt lgkmcnt(0)\n s_barrier')
    if not E('NOA', 0): publish(a, LAO, X + 8, A64, A32, vl16, 48, 62, TOK)
    endpgm(a, 48, 10, 1)

if __name__ == '__main__':
    out = sys.argv[1]
    a = Asm()
    a.raw(f'.globl {NAME}\n.p2align 8\n.type {NAME},@function\n{NAME}:')
    if PROF:
        for i in range(NST): a.I(f's_mov_b32 s{64+2*i}, 0')
        a.I('s_mov_b32 s60, 0')
    stamp(a, 0)
    a.I('s_load_dwordx16 s[4:19], s[0:1], 0\n s_load_dwordx2 s[20:21], s[0:1], 104\n s_load_dwordx8 s[48:55], s[0:1], 64')
    if PREFETCH:
        a.I(f's_cmp_ge_u32 s2, {8*PREFETCH}\n s_cbranch_scc1 L_nopf')
        a.I('s_getpc_b64 s[62:63]')
        a.label('L_pc', keep=True)
        a.I(f'v_lshlrev_b32 v1, 7, v0\n v_cmp_gt_u32 vcc, L_code_end-L_pc, v1\n s_and_saveexec_b64 s[58:59], vcc\n s_cbranch_execz L_pf2')
        a.I(f'global_load_dword v255, v1, s[62:63]')
        a.label('L_pf2', keep=True)
        a.I('s_mov_b64 exec, -1')
        a.label('L_nopf', keep=True); a.vm = []
    lo, hi = ('L_a_pre', 'L_b_pre') if AFIRST else ('L_b_pre', 'L_a_pre')
    a.I(f's_cmp_ge_u32 s2, 512\n s_cbranch_scc1 L_exit')
    if E('SEP', 0):
        a.I('s_bfe_u32 s4, s2, 0x10003\n s_bfe_u32 s5, s2, 0x10008\n s_and_b32 s2, s2, 0xf7\n s_lshl_b32 s4, s4, 8\n s_lshl_b32 s5, s5, 3\n s_or_b32 s2, s2, s4\n s_or_b32 s2, s2, s5')
    a.I('s_cmp_lt_u32 s2, 256')
    a.I('s_cbranch_scc0 L_b_pre' if AFIRST else 's_cbranch_scc1 L_b_pre')
    A = RoleA()
    A.pre(a)
    A.body(a)
    nb = a.ninst
    a.label('L_exit'); a.I('s_endpgm')
    role_b(a)
    a.raw('L_code_end:')
    nv = (a.maxv + 1 + 3) // 4 * 4
    print('vgpr', a.maxv + 1, 'sgpr', a.maxs + 1, 'ninst', nb, a.ninst - nb, 'lds', LDS_BYTES, file=sys.stderr)
    launch = f'; @launch kernel={NAME} grid=(512,1,1) block=(256,1,1) lds={LDS_BYTES}' if os.environ.get('LIST') else f'; @launch grid=(512,1,1) block=(256,1,1) lds={LDS_BYTES}'
    hdr = f'''; gated_mix( S4D conv , GFNet spectral filter ) -- generated by gen/gen11.py
{launch}
.amdgcn_target "amdgcn-amd-amdhsa--gfx950"
.text
'''
    kd = f'''.section .rodata,"a"
.p2align 6
.amdhsa_kernel {NAME}
  .amdhsa_next_free_vgpr {nv}
  .amdhsa_next_free_sgpr {a.maxs + 1}
  .amdhsa_accum_offset {nv}
  .amdhsa_group_segment_fixed_size 0
  .amdhsa_kernarg_size 112
  .amdhsa_user_sgpr_count 2
  .amdhsa_user_sgpr_kernarg_segment_ptr 1
  .amdhsa_system_sgpr_workgroup_id_x 1
.end_amdhsa_kernel
'''
    open(out, 'w').write(hdr + a.text() + kd)
```

```python
import sys, math, os
from asmlib import *
E = lambda k, d: int(os.environ.get(k, str(d)))
BS = 12288 + E('BSPAD', 192)
Y_OFF  = 0x000000
V_OFF  = 0x310000
AW_OFF = 0x620000
UT_OFF = 0x930000
EP_OFF = 0xC40000
WS_BYTES = 0x1000000
LOG2E = 1.4426950408889634
TOKC = 0x9E3779B9
SPIN = 30000
PROF = E('PROF', 0); PREFETCH = E('PREFETCH', 1); BPRIO = E('BPRIO', 2); WPOS = E('WPOS', 1); BACKOFF = E('BACKOFF', 4)
AFIRST = E('AFIRST', 1); WPF = E('WPF', 2)
NAME = 'gated_mix__ssm_conv_s4d__spectral_gfnet__prompt_kernel'
DBG_OFF = 0xFC0000
NST = 15
def stamp(a, i, wait=True):
    if PROF:
        if wait: a.I(f's_memrealtime s[{64+2*i}:{65+2*i}]\n s_waitcnt lgkmcnt(0)')
        else: a.I(f's_memrealtime s[{64+2*i}:{65+2*i}]')
def endpgm(a, srdb, last, role):
    if PROF:
        stamp(a, last)
        a.I('s_waitcnt vmcnt(0)')
        stamp(a, last + 1)
        a.I('s_mov_b64 exec, 1')
        for i in range(16): a.I(f'v_mov_b32 v{4+i}, s{64+2*i}' if i < NST else f'v_mov_b32 v{4+i}, s60')
        a.I(f's_and_b32 s61, s2, 255\n s_lshl_b32 s61, s61, 2\n s_add_u32 s61, s61, s3\n s_lshl_b32 s61, s61, 6\n s_add_u32 s61, s61, {DBG_OFF + role*65536}')
        a.I('v_mov_b32 v1, 0')
        for k in range(4): a.I(f'buffer_store_dwordx4 v[{4+4*k}:{7+4*k}], v1, s[{srdb}:{srdb+3}], s61 offen offset:{16*k}')
    a.I('s_endpgm')
def srd(a, d, b, nbytes):
    a.I(f's_mov_b32 s{d}, s{b}\n s_mov_b32 s{d+1}, s{b+1}\n s_mov_b32 s{d+2}, {nbytes}\n s_mov_b32 s{d+3}, 0x00020000')
def task_of(a, dst, tmp):
    a.I(f's_and_b32 s{dst}, s2, 7\n s_lshl_b32 s{dst}, s{dst}, 5\n s_bfe_u32 s{tmp}, s2, 0x50003\n s_or_b32 s{dst}, s{dst}, s{tmp}')
def lanes(a, V):
    n, q = V.get(), V.get()
    a.I(f'v_lshrrev_b32 {v(q)}, 6, v0')
    a.I(f'v_and_b32 {v(n)}, 15, v0')
    a.I(f'v_readfirstlane_b32 s3, {v(q)}')
    a.I(f'v_bfe_u32 {v(q)}, v0, 4, 2')
    return n, q
def cm1(a, re, im, c, s_, t1, t2, sign):
    a.I(f'v_mul_f32 {v(t1)}, {v(im)}, {v(s_)}\n v_mul_f32 {v(t2)}, {v(re)}, {v(s_)}')
    a.I(f'v_fma_f32 {v(re)}, {v(re)}, {v(c)}, {"-" if sign > 0 else ""}{v(t1)}')
    a.I(f'v_fma_f32 {v(im)}, {v(im)}, {v(c)}, {"-" if sign < 0 else ""}{v(t2)}')
def cmul_tw(a, re, im, c, s_, t1, t2, sign):
    cm1(a, re, im, c, s_, t1, t2, sign); cm1(a, re+1, im+1, c+1, s_+1, t1+1, t2+1, sign)
def mfma(a, d, A, B, c):
    a.I(f'v_mfma_f32_16x16x32_bf16 {v(d,4)}, {v(A,4)}, {v(B,4)}, {c if isinstance(c,str) else v(c,4)}')
def cvt(a, d, x, y, nx=False, ny=False):
    a.I(f'v_cvt_pk_bf16_f32 {v(d)}, {"-" if nx else ""}{v(x)}, {"-" if ny else ""}{v(y)}')
def chk(a, g, tok):
    a.I(f'v_add3_u32 {v(g+3)}, {v(g)}, {v(g+1)}, {v(g+2)}\n v_add_u32 {v(g+3)}, s{tok}, {v(g+3)}')
_lab = [0]
def poll_check(a, loads, R, tmp, tok, backoff=None):
    _lab[0] += 1
    L = f'L_poll{_lab[0]}'
    bo = BACKOFF if backoff is None else backoff
    a.I(f's_mov_b32 s59, {SPIN}')
    a.label(L, keep=True)
    for k in range(3):
        g = R + 4*k
        a.I(f's_waitcnt vmcnt({2-k})')
        a.I(f'v_add3_u32 {v(tmp+k)}, {v(g)}, {v(g+1)}, {v(g+2)}\n v_sub_u32 {v(tmp+k)}, {v(g+3)}, {v(tmp+k)}\n v_xor_b32 {v(tmp+k)}, s{tok}, {v(tmp+k)}')
    a.I(f'v_or3_b32 {v(tmp)}, {v(tmp)}, {v(tmp+1)}, {v(tmp+2)}')
    a.I(f'v_cmp_ne_u32 vcc, 0, {v(tmp)}\n s_cbranch_vccz {L}_out\n s_sub_u32 s59, s59, 1\n s_cbranch_scc1 {L}_out\n s_mov_b64 exec, vcc')
    if bo: a.I(f's_sleep {bo}')
    for x in loads: a.I(x)
    if PROF: a.I('s_add_u32 s60, s60, 1')
    a.I(f's_branch {L}')
    a.label(L + '_out', keep=True)
    a.vm = []
    a.I('s_mov_b64 exec, -1')
def slotmap(a, V, t0, t1):
    CL = V.get(3); G16 = V.get(3); A64 = V.get(3); A32 = V.get(3)
    a.I(f's_mul_i32 s56, s3, 3072\n v_and_b32 {v(t0)}, 63, v0')
    for k in range(3):
        if k: a.I(f'v_add_u32 {v(t0)}, 64, {v(t0)}')
        a.I(f'v_mul_u32_u24 {v(CL+k)}, 21846, {v(t0)}\n v_lshrrev_b32 {v(CL+k)}, 16, {v(CL+k)}')
        a.I(f'v_mul_u32_u24 {v(t1)}, 3, {v(CL+k)}\n v_sub_u32 {v(t1)}, {v(t0)}, {v(t1)}\n v_lshlrev_b32 {v(G16+k)}, 4, {v(t1)}')
        a.I(f'v_mul_u32_u24 {v(A32+k)}, 48, {v(CL+k)}\n v_add_u32 {v(A32+k)}, s56, {v(A32+k)}')
        a.I(f'v_lshl_add_u32 {v(A64+k)}, {v(t1)}, 3, {v(A32+k)}\n v_lshl_add_u32 {v(A32+k)}, {v(t1)}, 2, {v(A32+k)}')
    return CL, G16, A64, A32
def publish(a, img, R, A64, A32, vl16, srdb, soff, tok):
    for k in range(3):
        a.I(f'ds_read_b64 {v(R+4*k,2)}, {v(A64+k)} offset:{img}\n ds_read_b32 {v(R+4*k+2)}, {v(A32+k)} offset:{img+24}')
    for k in range(3):
        chk(a, R+4*k, tok)
        a.I(f'buffer_store_dwordx4 {v(R+4*k,4)}, {v(vl16)}, s[{srdb}:{srdb+3}], s{soff} offen offset:{1024*k} sc1')
def unpack(a, img, R, A64, A32):
    for k in range(3):
        a.I(f'ds_write_b64 {v(A64+k)}, {v(R+4*k,2)} offset:{img}\n ds_write_b32 {v(A32+k)}, {v(R+4*k+2)} offset:{img+24}')

LX = 0; LI0 = 8704; LI1 = LI0 + 12288; LW = LI1 + 12288; LG = LW + 256*80; LDUM = LG + 64
VERB = E('VERB', 0)
def role_b(a):
    V = VAlloc(1, 255)
    a.label('L_b_pre'); a.lg = [('smem', {('s', i) for i in list(range(4, 22)) + list(range(48, 56))})]
    if E('ONLYA', 0): a.I('s_endpgm')
    def hi(p=3): a.I(f's_setprio {p}')
    def lo(): a.I(f's_setprio {E("LOPRIO", 1)}')
    a.I(f's_setprio {E("B0PRIO", 1)}')
    task_of(a, 22, 23)
    n, q = lanes(a, V)
    t0 = V.get(); t1 = V.get(); TM = V.get(3)
    vl16 = V.get(); a.I(f'v_and_b32 {v(vl16)}, 63, v0\n v_lshlrev_b32 {v(vl16)}, 4, {v(vl16)}')
    a.I(f's_lshl_b32 s24, s3, 9\n s_add_u32 s24, s24, s22\n s_lshl_b32 s24, s24, 10\n s_add_u32 s25, s24, {256*1024}')
    a.I(f's_mul_i32 s26, s3, 2112\n s_mov_b32 s30, 2097152\n s_mov_b32 s31, 0x00020000')
    WR = V.get(4, 4); WI = V.get(4, 4); WNR = V.get(2); GW = V.get(8, 4)
    XA = V.get(32, 4); ACC = V.get(32, 4); T = V.get(16)
    base = V.get(); fN = V.get()
    POOL = V.get(120, 4)
    C1 = POOL; TC = POOL + 16; TS = POOL + 32; C2 = POOL + 48; CN = POOL + 96; A2 = POOL + 100
    f1, kH, fF, fK, sgn = (ACC + i for i in range(5))
    b = Block(a, 'c1')
    b.I(f'v_lshrrev_b32 {v(f1)}, 3, {v(n)}\n s_lshl_b32 s56, s3, 1\n v_add_u32 {v(f1)}, s56, {v(f1)}\n v_and_b32 {v(kH)}, 7, {v(n)}')
    b.I(f'v_cvt_f32_u32 {v(fF)}, {v(f1)}\n v_cvt_f32_u32 {v(fK)}, {v(kH)}')
    b.I(f'v_and_b32 {v(t0)}, 1, {v(q)}\n v_lshlrev_b32 {v(t0)}, 2, {v(t0)}\n v_mul_u32_u24 {v(t0)}, {v(t0)}, {v(f1)}')
    b.I(f'v_and_b32 {v(t1)}, 2, {v(q)}\n v_mad_u32_u24 {v(t0)}, {v(t1)}, {v(kH)}, {v(t0)}')
    b.I(f'v_cvt_f32_u32 {v(base)}, {v(t0)}\n v_mul_f32 {v(base)}, 0.125, {v(base)}')
    b.I(f'v_and_b32 {v(sgn)}, 1, {v(kH)}\n v_mul_u32_u24 {v(sgn)}, 0x8000, {v(sgn)}\n v_lshl_or_b32 {v(sgn)}, {v(sgn)}, 16, {v(sgn)}')
    for h in range(2):
        if h == 1: b.I(f'v_fmamk_f32 {v(base)}, {v(fK)}, {f32(0.125)}, {v(base)}')
        for r in range(1, 4): b.I(f'v_fmamk_f32 {v(T+8+r)}, {v(fF)}, {f32(0.125*r)}, {v(base)}')
        for r in range(4):
            ang = base if r == 0 else T + 8 + r
            b.I(f'v_cos_f32 {v(T+r)}, {v(ang)}\n v_sin_f32 {v(T+4+r)}, {v(ang)}')
        cvt(b, C1+2*h, T, T+1); cvt(b, C1+2*h+1, T+2, T+3)
        cvt(b, C1+8+2*h, T+4, T+5, True, True); cvt(b, C1+8+2*h+1, T+6, T+7, True, True)
    for i in range(4):
        b.I(f'v_xor_b32 {v(C1+4+i)}, {v(sgn)}, {v(C1+i)}\n v_xor_b32 {v(C1+12+i)}, {v(sgn)}, {v(C1+8+i)}')
    if E('EARLYC', 1): b.emit(VERB)
    a.I('s_waitcnt lgkmcnt(0)'); stamp(a, 1)
    a.I('s_mov_b32 s28, s4\n s_mov_b32 s29, s5\n s_mov_b32 m0, s26')
    a.I(f'buffer_load_dwordx4 {v(vl16)}, s[28:31], s24 offen lds')
    a.I('s_add_u32 m0, s26, 1056')
    a.I(f'buffer_load_dwordx4 {v(vl16)}, s[28:31], s25 offen lds')
    srd(a, 44, 20, WS_BYTES)
    a.I(f's_add_u32 s20, s20, {EP_OFF}\n s_addc_u32 s21, s21, 0\n s_load_dword s57, s[20:21], 0')
    srd(a, 32, 48, 1052672); srd(a, 36, 50, 1052672); srd(a, 40, 52, 1024); srd(a, 12, 54, 2097152)
    a.I(f's_and_b32 s27, s2, 7\n s_mul_i32 s61, s27, 514\n s_lshl_b32 s62, s23, 4\n s_add_u32 s62, s62, s61')
    a.I(f's_mul_i32 s6, s22, {BS}\n s_mul_i32 s7, s3, 3072\n s_add_u32 s6, s6, s7\n s_add_u32 s8, s6, {V_OFF}')
    a.I(f's_mul_i32 s63, s23, {8*4112}\n s_add_u32 s63, s63, s61\n s_and_b32 s63, s63, -4')
    if not E('EARLYC', 1): b.emit(VERB)
    vw = V.get(); vj4 = V.get(); vpf = V.get(); vrow = V.get()
    a.I(f's_mul_i32 s58, s23, {E("WROT", 8)}\n v_mul_u32_u24 {v(vrow)}, {E("WMUL", 1)}, v0\n v_add_u32 {v(vrow)}, s58, {v(vrow)}\n v_and_b32 {v(vrow)}, 255, {v(vrow)}\n v_mul_u32_u24 {v(vw)}, 4112, {v(vrow)}')
    a.I(f'v_mov_b32 {v(WNR)}, 0\n v_mov_b32 {v(WNR+1)}, 0\n s_cmp_eq_u32 s23, 31\n s_cselect_b64 s[10:11], -1, 0')
    ndrip = [0]
    def drip(k):
        if E('WST', 1) != 3: return
        lo_, hi_ = ((0xffff, 0), (0xffff0000, 0), (0, 0xffff), (0, 0xffff0000))[k]
        a.I(f's_mov_b32 exec_lo, {lo_}\n s_mov_b32 exec_hi, {hi_}')
        for r, rn, sr in ((WR, WNR, 32), (WI, WNR+1, 36)):
            a.raw(f'    buffer_load_dwordx4 {v(r,4)}, {v(vw)}, s[{sr}:{sr+3}], s62 offen'); a.vm.append(set())
        a.I(f's_and_b64 exec, exec, s[10:11]\n s_cbranch_execz L_drip{k}')
        for r, rn, sr in ((WR, WNR, 32), (WI, WNR+1, 36)):
            a.raw(f'    buffer_load_short_d16_hi {v(rn)}, {v(vw)}, s[{sr}:{sr+3}], s62 offen offset:16')
        a.label(f'L_drip{k}', keep=True)
        a.I('s_mov_b64 exec, -1')
        ndrip[0] += 2
    DR = [int(x) for x in os.environ.get('DRIP', '0123')]
    def slot(i):
        for k, x in enumerate(DR):
            if x == i: drip(k)
    slot(0)
    b.I(f'v_mul_u32_u24 {v(t0)}, {v(kH)}, {v(q)}\n v_lshlrev_b32 {v(t0)}, 4, {v(t0)}\n v_mad_u32_u24 {v(t0)}, {v(f1)}, s22, {v(t0)}')
    b.I(f'v_cvt_f32_u32 {v(base)}, {v(t0)}\n v_mul_f32 {v(base)}, {f32(1/2048)}, {v(base)}')
    for t in range(4):
        for i in range(4):
            k = 16*t + i
            if k == 0: ang = base
            else:
                ang = T + 4*t + i
                b.I(f'v_fmamk_f32 {v(ang)}, {v(fK)}, {f32(k/512)}, {v(base)}')
            b.I(f'v_cos_f32 {v(TC+4*t+i)}, {v(ang)}\n v_sin_f32 {v(TS+4*t+i)}, {v(ang)}')
    b.I(f'v_lshrrev_b32 {v(vj4)}, 5, v0\n v_mul_u32_u24 {v(vpf)}, 4112, {v(vj4)}\n v_and_b32 {v(t1)}, 7, v0\n v_lshl_add_u32 {v(vpf)}, {v(t1)}, 7, {v(vpf)}\n v_lshlrev_b32 {v(vj4)}, 2, {v(vj4)}')
    b.emit(VERB)
    WST = E('WST', 1)
    def wstorm():
        a.I(f'v_mov_b32 {v(WNR)}, 0\n v_mov_b32 {v(WNR+1)}, 0\n s_cmp_eq_u32 s23, 31\n s_cselect_b64 s[10:11], -1, 1')
        if not E('NOW', 0):
            a.I(f'buffer_load_dwordx4 {v(WR,4)}, {v(vw)}, s[32:35], s62 offen')
            a.I('s_mov_b64 exec, s[10:11]')
            a.I(f'buffer_load_short_d16_hi {v(WNR)}, {v(vw)}, s[32:35], s62 offen offset:16')
            a.I('s_mov_b64 exec, -1')
            a.I(f'buffer_load_dwordx4 {v(WI,4)}, {v(vw)}, s[36:39], s62 offen')
            a.I('s_mov_b64 exec, s[10:11]')
            a.I(f'buffer_load_short_d16_hi {v(WNR+1)}, {v(vw)}, s[36:39], s62 offen offset:16')
            a.I('s_mov_b64 exec, -1')
    def wpf():
        a.I('s_mov_b32 exec_lo, 0x1f\n s_mov_b32 exec_hi, 0x1f')
        a.I(f'buffer_load_dword {v(TM)}, {v(vpf)}, s[32:35], s63 offen')
        a.I(f'buffer_load_dword {v(TM+1)}, {v(vpf)}, s[36:39], s63 offen')
        a.I('s_mov_b64 exec, -1')
    if WPF == 1: wpf()
    slot(1)
    b.I(f'v_cvt_f32_u32 {v(fN)}, {v(n)}\n v_mul_u32_u24 {v(t0)}, {v(n)}, {v(q)}\n v_cvt_f32_u32 {v(base)}, {v(t0)}\n v_mul_f32 {v(base)}, {f32(1/16)}, {v(base)}')
    for t in range(2):
        TT = XA + 12*t
        for i in range(4):
            k = 16*t + i
            if k == 0: ang = base
            else:
                ang = TT + 8 + i
                b.I(f'v_fmamk_f32 {v(ang)}, {v(fN)}, {f32(k/64)}, {v(base)}')
            b.I(f'v_cos_f32 {v(TT+i)}, {v(ang)}\n v_sin_f32 {v(TT+4+i)}, {v(ang)}')
        c = [TT+i for i in range(4)]; s_ = [TT+4+i for i in range(4)]
        b0 = C2 + 6*t; b1 = C2 + 24 + 6*t
        cvt(b, b0+0, s_[0], s_[1], True, True); cvt(b, b0+2, c[0], c[1]); cvt(b, b0+4, s_[0], s_[1])
        cvt(b, b1+0, s_[0], c[1], True, True); cvt(b, b1+2, c[0], s_[1], False, True); cvt(b, b1+4, s_[0], c[1])
        cvt(b, b0+3, c[2], c[3]); cvt(b, b1+1, s_[2], c[3]); cvt(b, b1+5, s_[2], c[3], True, True)
        cvt(b, b0+1, s_[2], s_[3], True, True); cvt(b, b0+5, s_[2], s_[3]); cvt(b, b1+3, c[2], s_[3], True, False)
        for ct in range(2):
            for i in range(6): b.I(f'v_xor_b32 {v(C2+24*ct+6*t+12+i)}, {v(sgn)}, {v(C2+24*ct+6*t+i)}')
    b.I(f'v_mov_b32 {v(T)}, 0xbf803f80')
    b.I(f'v_cmp_eq_u32 vcc, 0, {v(n)}\n v_cndmask_b32 {v(CN)}, 0, {v(T)}, vcc\n v_cndmask_b32 {v(CN+1)}, 0, {v(T)}, vcc')
    b.I(f'v_cmp_eq_u32 vcc, 1, {v(n)}\n v_cndmask_b32 {v(CN+2)}, 0, {v(T)}, vcc\n v_cndmask_b32 {v(CN+3)}, 0, {v(T)}, vcc')
    vtr = V.get(); vys = V.get(); vyn = V.get()
    b.I(f'v_bfe_u32 {v(T+1)}, v0, 2, 3\n v_mul_u32_u24 {v(vtr)}, 1056, {v(T+1)}')
    b.I(f'v_bfe_u32 {v(T+2)}, v0, 5, 1\n v_lshl_add_u32 {v(vtr)}, {v(T+2)}, 8, {v(vtr)}')
    b.I(f'v_and_b32 {v(T+3)}, 3, v0\n v_lshl_add_u32 {v(vtr)}, {v(T+3)}, 3, {v(vtr)}')
    b.emit(VERB)
    if WPF == 2: wpf()
    slot(2)
    V.put(vpf)
    stamp(a, 2)
    if WST == 2: wstorm()
    a.I(f's_waitcnt vmcnt({(2 if WPF else 0) + (4 if WST == 2 and not E("NOW", 0) else 0) + ndrip[0]})')
    hi(E('P1PRIO', 3))
    a.I('s_barrier'); stamp(a, 3)
    if WST == 0: wstorm()
    slot(3)
    a.I(f's_add_u32 s57, s57, {TOKC}')
    b = Block(a, 'phase1')
    for t in range(4):
        for g in range(2):
            for h in range(2):
                b.I(f'ds_read_b64_tr_b16 {v(XA+8*t+4*g+2*h,2)}, {v(vtr)} offset:{LX+512*g+128*h+32*t}')
    CL, G16, A64, A32 = slotmap(b, V, t0, t1)
    b.I(f'v_mul_u32_u24 {v(vyn)}, 384, {v(vj4)}\n v_mad_u32_u24 {v(vys)}, {v(n)}, 48, {v(vyn)}\n v_and_b32 {v(t0)}, 16, v0\n v_add_u32 {v(vys)}, {v(vys)}, {v(t0)}')
    b.I(f'v_lshl_add_u32 {v(vyn)}, {v(n)}, 1, {v(vyn)}\n v_and_b32 {v(t0)}, 30, v0\n v_cmp_eq_u32 vcc, 0, {v(t0)}\n v_mov_b32 {v(t1)}, {LDUM - (LI0+31*48+32)}\n v_cndmask_b32 {v(vyn)}, {v(t1)}, {v(vyn)}, vcc')
    for t in range(4):
        for p in range(2): mfma(b, ACC+8*t+4*p, XA+8*t, C1+8*p, '0')
        for p in range(2): mfma(b, ACC+8*t+4*p, XA+8*t+4, C1+8*p+4, ACC+8*t+4*p)
    for t in range(4):
        re, im = ACC+8*t, ACC+8*t+4
        for i in range(4): cm1(b, re+i, im+i, TC+4*t+i, TS+4*t+i, T+8*(t&1)+2*i, T+8*(t&1)+2*i+1, -1)
        F = XA + 8*t
        cvt(b, F, re, re+1); cvt(b, F+2, im, im+1); cvt(b, F+1, re+2, re+3); cvt(b, F+3, im+2, im+3)
        mfma(b, A2+16, F, CN, '0' if t == 0 else A2+16)
        for ct in range(2):
            bb = C2 + 24*ct + 6*t
            mfma(b, A2+8*ct, F, bb+2, '0' if t == 0 else A2+8*ct)
            mfma(b, A2+8*ct+4, F, bb, '0' if t == 0 else A2+8*ct+4)
    cvt(b, T, A2+16, A2+16)
    b.I(f'ds_write_b16 {v(vyn)}, {v(T)} offset:{LI0+31*48+32}')
    for ct in range(2):
        O = XA + 4 + 8*ct
        for i in range(4): cvt(b, O+i, A2+8*ct+i, A2+8*ct+4+i)
        b.I(f'ds_write_b128 {v(vys)}, {v(O,4)} offset:{LI0+768*ct}')
    publish(b, LI0, ACC, A64, A32, vl16, 44, 6, 57)
    b.emit(VERB)
    stamp(a, 4)
    V.put(vtr); V.put(vys); V.put(vyn)
    if WST == 1: wstorm()
    slot(4)
    FR_, FI_, TC2, TS2 = POOL + 88, POOL + 92, GW, GW + 4
    b = Block(a, 'w1a')
    b.I(f'v_mul_f32 {v(base)}, {f32(1/4)}, {v(base)}')
    for i in range(4):
        ang = T + 4*i + 2
        if i == 0: ang = base
        else: b.I(f'v_fmamk_f32 {v(ang)}, {v(fN)}, {f32(i/256)}, {v(base)}')
        b.I(f'v_mul_f32 {v(T+4*i+3)}, {f32(16.0)}, {v(ang)}')
        b.I(f'v_cos_f32 {v(T+4*i)}, {v(T+4*i+3)}\n v_sin_f32 {v(T+4*i+1)}, {v(T+4*i+3)}')
        b.I(f'v_cos_f32 {v(TC2+i)}, {v(ang)}\n v_sin_f32 {v(TS2+i)}, {v(ang)}')
        cvt(b, FR_+i, T+4*i, T+4*i+1); cvt(b, FI_+i, T+4*i+1, T+4*i, True, False)
    GA = V.get(3); vy = V.get(); vnn = V.get(); vnw = V.get(); vy1 = V.get(); vww = V.get()
    for k in range(3): b.I(f'v_mul_u32_u24 {v(GA+k)}, {BS}, {v(CL+k)}\n v_add_u32 {v(GA+k)}, {v(GA+k)}, {v(G16+k)}')
    b.I(f'v_lshlrev_b32 {v(t0)}, 6, {v(q)}\n v_add_u32 {v(t0)}, {v(t0)}, {v(n)}\n v_mul_u32_u24 {v(vnn)}, 48, {v(t0)}\n v_mul_u32_u24 {v(vnw)}, 80, {v(t0)}')
    b.I(f's_lshl_b32 s56, s3, 3\n v_add_u32 {v(vy)}, s56, {v(vnn)}\n v_add_u32 {v(vy1)}, 4, {v(vy)}\n v_add_u32 {v(vnn)}, 32, {v(vnn)}\n s_lshl_b32 s58, s3, 4\n v_add_u32 {v(vww)}, s58, {v(vnw)}')
    b.I(f's_mul_i32 s24, s22, 48\n s_mul_i32 s25, s3, {64*BS}\n s_add_u32 s25, s25, s24')
    P1, PTC, PTS, P2 = POOL, POOL + 16, POOL + 32, POOL + 48
    fD = fN; b2 = V.get()
    def p3c_1(b):
        b.I(f'v_add_u32 {v(t1)}, s58, {v(n)}\n v_cvt_f32_u32 {v(fD)}, {v(t1)}')
        b.I(f'v_mul_u32_u24 {v(t1)}, {v(t1)}, {v(q)}\n v_cvt_f32_u32 {v(base)}, {v(t1)}\n v_mul_f32 {v(base)}, {f32(1/16)}, {v(base)}')
        for g in range(2):
            for i in range(4):
                k = 16*g + i
                if k: b.I(f'v_fmamk_f32 {v(T+8+i)}, {v(fD)}, {f32(k/64)}, {v(base)}')
            for i in range(4):
                ang = base if 16*g + i == 0 else T + 8 + i
                b.I(f'v_cos_f32 {v(T+i)}, {v(ang)}\n v_sin_f32 {v(T+4+i)}, {v(ang)}')
            for i in range(4):
                cvt(b, P1+8*g+i, T+i, T+4+i, False, True); cvt(b, P1+8*g+4+i, T+4+i, T+i)
    def p3c_2(b):
        b.I(f'v_mul_u32_u24 {v(t1)}, s22, {v(q)}\n v_cvt_f32_u32 {v(base)}, {v(t1)}\n v_mul_f32 {v(base)}, {f32(1/1024)}, {v(base)}')
        b.I(f'v_cvt_f32_u32 {v(b2)}, s22\n v_fmamk_f32 {v(b2)}, {v(b2)}, {f32(1/2048)}, {v(base)}')
        for t in range(4):
            for i in range(4):
                kH_ = 4*(i & 1) + t
                bb = base if i < 2 else b2
                ang = T + 4*t + i
                if kH_ == 0: ang = bb
                else: b.I(f'v_fmamk_f32 {v(ang)}, {v(fD)}, {f32(kH_/512)}, {v(bb)}')
                b.I(f'v_cos_f32 {v(PTC+4*t+i)}, {v(ang)}\n v_sin_f32 {v(PTS+4*t+i)}, {v(ang)}')
    def p3c_3(b):
        fB = fD
        b.I(f'v_and_b32 {v(t0)}, 7, {v(n)}\n v_cvt_f32_u32 {v(b2)}, {v(t0)}\n v_mul_u32_u24 {v(t0)}, {v(t0)}, {v(q)}\n v_cvt_f32_u32 {v(base)}, {v(t0)}\n v_mul_f32 {v(base)}, {f32(0.25)}, {v(base)}')
        b.I(f'v_fmamk_f32 {v(b2)}, {v(b2)}, {f32(0.125)}, {v(base)}')
        b.I(f'v_lshrrev_b32 {v(t0)}, 3, {v(n)}\n v_cvt_f32_u32 {v(fB)}, {v(t0)}')
        for t in range(4):
            TT = ACC + 8 + 12*(t & 1)
            for i in range(4):
                kH_ = 4*(i & 1) + t
                bb = base if i < 2 else b2
                ang = TT + 8 + i
                if kH_ == 0: ang = bb
                else: b.I(f'v_fmamk_f32 {v(ang)}, {v(fB)}, {f32(kH_/8)}, {v(bb)}')
                b.I(f'v_cos_f32 {v(TT+i)}, {v(ang)}\n v_sin_f32 {v(TT+4+i)}, {v(ang)}')
            d = P2 + 10*t
            cvt(b, d, TT, TT+1); cvt(b, d+1, TT+2, TT+3)
            cvt(b, d+2, TT+4, TT+5, True, True); cvt(b, d+3, TT+6, TT+7, True, True)
            if t > 0:
                cvt(b, d+4, TT, TT+1, True, True); cvt(b, d+5, TT+2, TT+3, True, True)
                cvt(b, d+6, TT+4, TT+5); cvt(b, d+7, TT+6, TT+7)
            if t in (1, 3):
                cvt(b, d+8, TT, TT+1); cvt(b, d+9, TT+2, TT+3)
    D1 = E('D1', 0)
    if D1 >= 1: p3c_1(b)
    if D1 >= 2: p3c_2(b)
    b.emit(VERB)
    if E('D1S', 0): a.I(f's_sleep {E("D1S", 0)}')
    stamp(a, 5)
    R = XA
    loads = [f'buffer_load_dwordx4 {v(R+4*k,4)}, {v(GA+k)}, s[44:47], s25 offen sc1' for k in range(3)]
    for x in loads: a.I(x)
    if WST == 4: wstorm()
    a.I('s_waitcnt vmcnt(3)' if WST != 4 else 's_waitcnt vmcnt(0)')
    WO = ACC + 12
    for p in range(4):
        b.I(f'v_lshlrev_b32 {v(WO+4*p)}, 16, {v(WR+p)}\n v_lshlrev_b32 {v(WO+4*p+1)}, 16, {v(WI+p)}')
        b.I(f'v_and_b32 {v(WO+4*p+2)}, 0xffff0000, {v(WR+p)}\n v_and_b32 {v(WO+4*p+3)}, 0xffff0000, {v(WI+p)}')
    b.I(f's_cmp_eq_u32 s23, 0\n s_cselect_b32 s56, 0.5, 1.0')
    b.I(f'v_mul_f32 {v(WO)}, s56, {v(WO)}\n v_mul_f32 {v(WO+1)}, s56, {v(WO+1)}')
    b.I(f'v_mul_f32 {v(WNR)}, 0.5, {v(WNR)}\n v_mul_f32 {v(WNR+1)}, 0.5, {v(WNR+1)}')
    b.I(f'v_mul_u32_u24 {v(t1)}, 80, {v(vrow)}')
    for p in range(4): b.I(f'ds_write_b128 {v(t1)}, {v(WO+4*p,4)} offset:{LW+16*p}')
    b.I(f'ds_write_b64 {v(t1)}, {v(WNR,2)} offset:{LW+64}')
    b.emit(VERB)
    V.put(vrow)
    stamp(a, 12)
    hi()
    poll_check(a, loads, R, TM, 57)
    stamp(a, 6)
    unpack(a, LI1, R, A64, A32)
    a.I('s_waitcnt lgkmcnt(0)\n s_barrier'); stamp(a, 7)
    Y = XA; X = XA + 8
    D = ACC; WF = POOL + 48; T2 = POOL + 72; T3 = POOL + 80
    o = LI1 // 256
    b = Block(a, 'phase2')
    for c, ad in enumerate((vy, vy1, vnn)):
        for p in range(2): b.I(f'ds_read2st64_b32 {v(X+4*c+2*p,2)}, {v(ad)} offset0:{o+6*p} offset1:{o+6*p+3}')
    for i in range(4): b.I(f'ds_read_b128 {v(WF+4*i,4)}, {v(vww)} offset:{LW+1280*i}')
    for i in range(4): b.I(f'ds_read_b64 {v(WF+16+2*i,2)}, {v(vnw)} offset:{LW+64+1280*i}')
    nc = 3
    for c in range(nc):
        mfma(b, D+8*c, X+4*c, FR_, '0'); mfma(b, D+8*c+4, X+4*c, FI_, '0')
    def stage(tw, sign, swap):
        for c in range(nc):
            re, im = D+8*c, D+8*c+4
            tt = (T, T2, T3)[c]
            for i in range(4):
                tc, ts = tw(c, i)
                cm1(b, re+i, im+i, tc, ts, tt+2*i, tt+2*i+1, sign)
            for i in range(4):
                if swap: cvt(b, X+4*c+i, im+i, re+i)
                else: cvt(b, X+4*c+i, re+i, im+i)
            yield c
    for c in stage(lambda c, i: (TC2+i, TS2+i), -1, False):
        mfma(b, D+8*c, FR_, X+4*c, '0'); mfma(b, D+8*c+4, FI_, X+4*c, '0')
    for c in stage(lambda c, i: (WF+4*i+2*c, WF+4*i+2*c+1) if c < 2 else (WF+16+2*i, WF+17+2*i), +1, True):
        mfma(b, D+8*c+4, X+4*c, FR_, '0'); mfma(b, D+8*c, X+4*c, FI_, '0')
    for c in stage(lambda c, i: (TC2+i, TS2+i), +1, True):
        mfma(b, D+8*c+4, FR_, X+4*c, '0'); mfma(b, D+8*c, FI_, X+4*c, '0')
    for i in range(4):
        cvt(b, Y+2*i, D+i, D+4+i); cvt(b, Y+2*i+1, D+8+i, D+12+i)
        b.I(f'ds_write_b64 {v(vy)}, {v(Y+2*i,2)} offset:{LI0+768*i}')
    for i in range(4):
        cvt(b, XA+20+i, D+16+i, D+20+i)
        b.I(f'ds_write_b32 {v(vnn)}, {v(XA+20+i)} offset:{LI0+768*i}')
    b.emit(VERB)
    a.I('s_waitcnt lgkmcnt(0)\n s_barrier')
    publish(a, LI0, XA + 12, A64, A32, vl16, 44, 8, 57)
    stamp(a, 8)
    lo()
    for r in (vy, vnn, vnw, vw, vy1, vww): V.put(r)
    V.put(WNR, 2)
    vgw = V.get()
    GWL = POOL + 104; GX = POOL + 112
    a.I(f'v_and_b32 {v(vgw)}, 31, v0\n v_lshlrev_b32 {v(vgw)}, 5, {v(vgw)}')
    a.I(f'buffer_load_dwordx4 {v(GWL,4)}, {v(vgw)}, s[40:43], 0 offen')
    a.I(f'buffer_load_dwordx4 {v(GWL+4,4)}, {v(vgw)}, s[40:43], 0 offen offset:16')
    b = Block(a, 'w2a')
    if D1 < 1: p3c_1(b)
    if D1 < 2: p3c_2(b)
    if E('D3', 0): p3c_3(b)
    G2 = V.get(2); vr = V.get(); vta = V.get(); vst = V.get(); sgn = V.get(); vn = V.get()
    AA_ = WR
    for k in range(3):
        x0, x1 = T + 2*k, T + 2*k + 1
        b.I(f'v_and_b32 {v(x0)}, 7, {v(CL+k)}\n v_lshrrev_b32 {v(x1)}, 3, {v(CL+k)}')
        b.I(f'v_lshl_add_u32 {v(GA+k)}, {v(x0)}, 5, {v(x1)}\n v_mul_u32_u24 {v(GA+k)}, {BS}, {v(GA+k)}\n v_add_u32 {v(GA+k)}, {v(GA+k)}, {v(G16+k)}')
        b.I(f'v_lshl_add_u32 {v(AA_+k)}, {v(x1)}, 5, {v(x0)}\n v_mul_u32_u24 {v(AA_+k)}, {BS}, {v(AA_+k)}\n v_add_u32 {v(AA_+k)}, {v(AA_+k)}, {v(G16+k)}')
    b.I(f's_mul_i32 s25, s3, {8*BS}\n s_add_u32 s25, s25, s24\n s_add_u32 s61, s25, {AW_OFF}\n s_add_u32 s25, s25, {V_OFF}')
    b.I(f'v_lshrrev_b32 {v(t0)}, 1, {v(n)}\n v_lshl_add_u32 {v(t0)}, {v(q)}, 5, {v(t0)}\n v_mul_u32_u24 {v(vr)}, 48, {v(t0)}\n v_and_b32 {v(t1)}, 1, v0\n v_lshl_add_u32 {v(vr)}, {v(t1)}, 4, {v(vr)}')
    b.I(f'v_bfe_u32 {v(t0)}, v0, 1, 1\n v_bfe_u32 {v(vta)}, v0, 3, 3\n v_lshl_add_u32 {v(t0)}, {v(t0)}, 3, {v(vta)}\n v_mul_u32_u24 {v(vta)}, 48, {v(t0)}')
    b.I(f'v_bfe_u32 {v(t0)}, v0, 2, 1\n v_lshl_add_u32 {v(vta)}, {v(t0)}, 4, {v(vta)}\n v_lshl_add_u32 {v(vta)}, {v(t1)}, 3, {v(vta)}\n v_add_u32 {v(vta)}, s7, {v(vta)}')
    b.I(f'v_and_b32 {v(t0)}, 7, {v(n)}\n v_lshlrev_b32 {v(vst)}, 18, {v(t0)}\n v_lshlrev_b32 {v(t1)}, 2, {v(t0)}\n v_lshrrev_b32 {v(t0)}, 3, {v(n)}\n v_lshl_add_u32 {v(vst)}, {v(t0)}, 7, {v(vst)}')
    vgr = V.get(); b.I(f'v_mov_b32 {v(vgr)}, {v(t1)}')
    b.I(f'v_lshrrev_b32 {v(t0)}, 4, v0\n v_lshl_add_u32 {v(vst)}, {v(t0)}, 3, {v(vst)}\n s_lshl_b32 s9, s22, 10')
    b.I(f'v_lshlrev_b32 {v(sgn)}, 31, v0\n v_mul_u32_u24 {v(vn)}, 96, {v(q)}\n v_add_u32 {v(vn)}, {LI1 + 248*48 + 32}, {v(vn)}')
    b.I(f'v_mov_b32 {v(ACC+1)}, 0\n v_mov_b32 {v(ACC+3)}, 0\n v_mov_b32 {v(ACC+5)}, 0\n v_mov_b32 {v(ACC+7)}, 0')
    b.emit(VERB)
    if E('D2', 0): a.I(f's_sleep {E("D2", 0)}')
    stamp(a, 9)
    for x in loads: a.I(x)
    if not E('D3', 0): p3c_3(b)
    b.emit(VERB)
    a.I('s_waitcnt vmcnt(3)')
    b.I(f'v_mul_u32_u24 {v(t0)}, 264, {v(vj4)}\n v_add_u32 {v(t0)}, {v(t0)}, {v(vgw)}')
    b.I(f'ds_read_b128 {v(GX,4)}, {v(t0)} offset:{LX}\n ds_read_b128 {v(GX+4,4)}, {v(t0)} offset:{LX+16}')
    acc = T + 8; acc2 = T + 9
    for i in range(8):
        x, y = T + 2*(i % 4), T + 2*(i % 4) + 1
        b.I(f'v_lshlrev_b32 {v(x)}, 16, {v(GX+i)}\n v_lshlrev_b32 {v(y)}, 16, {v(GWL+i)}')
        b.I(f'v_mul_f32 {v(acc)}, {v(x)}, {v(y)}' if i == 0 else f'v_fmac_f32 {v(acc)}, {v(x)}, {v(y)}')
        b.I(f'v_and_b32 {v(GX+i)}, 0xffff0000, {v(GX+i)}\n v_and_b32 {v(GWL+i)}, 0xffff0000, {v(GWL+i)}')
        b.I(f'v_mul_f32 {v(acc2)}, {v(GX+i)}, {v(GWL+i)}' if i == 0 else f'v_fmac_f32 {v(acc2)}, {v(GX+i)}, {v(GWL+i)}')
    b.I(f'v_add_f32 {v(acc)}, {v(acc)}, {v(acc2)}')
    for m in ('quad_perm:[1,0,3,2]', 'quad_perm:[2,3,0,1]', 'row_half_mirror', 'row_mirror'):
        b.I(f'v_add_f32_dpp {v(acc)}, {v(acc)}, {v(acc)} {m} row_mask:0xf bank_mask:0xf')
    b.I(f'v_add_f32_dpp {v(acc)}, {v(acc)}, {v(acc)} row_bcast:15 row_mask:0xa bank_mask:0xf')
    b.I(f'v_mul_f32 {v(acc)}, {f32(-LOG2E)}, {v(acc)}\n v_exp_f32 {v(acc)}, {v(acc)}\n v_add_f32 {v(acc)}, 1.0, {v(acc)}\n v_rcp_f32 {v(acc)}, {v(acc)}')
    b.emit(VERB)
    a.I('s_mov_b32 exec_lo, 0x80000000\n s_mov_b32 exec_hi, 0x80000000')
    a.I(f'ds_write_b32 {v(vj4)}, {v(acc)} offset:{LG}')
    a.I('s_mov_b64 exec, -1')
    hi()
    poll_check(a, loads, R, TM, 57)
    unpack(a, LI1, R, A64, A32)
    AL = POOL + 104; NQ = GW
    aloads = [f'buffer_load_dwordx4 {v(AL+4*k,4)}, {v(AA_+k)}, s[44:47], s61 offen sc1' for k in range(3)]
    a.I('s_waitcnt lgkmcnt(0)\n s_barrier'); stamp(a, 10)
    X = POOL + 88
    b = Block(a, 'phase3')
    for g in range(2):
        for i in range(4): b.I(f'ds_read_b128 {v(R+16*g+4*i,4)}, {v(vr)} offset:{LI1+6144*g+384*i}')
        if g == 0: b.I(f'ds_read2_b32 {v(NQ,2)}, {v(vn)} offset0:0 offset1:12')
    for x in aloads: b.I(x)
    b.I(f'ds_read_b32 {v(G2)}, {v(vgr)} offset:{LG}')
    b.I(f'v_sub_f32 {v(G2+1)}, 1.0, {v(G2)}\n v_mul_f32 {v(G2+1)}, {f32(2.0**-19)}, {v(G2+1)}')
    for g in range(2):
        for i in range(4):
            for t in range(i+1, 4): b.I(f'v_swap_b32 {v(R+16*g+4*i+t)}, {v(R+16*g+4*t+i)}')
        if g == 0:
            for k in range(2):
                b.I(f'v_lshlrev_b32 {v(ACC+2*k)}, 16, {v(NQ+k)}\n v_and_b32 {v(ACC+4+2*k)}, 0xffff0000, {v(NQ+k)}')
                b.I(f'v_xor_b32 {v(ACC+2*k)}, {v(sgn)}, {v(ACC+2*k)}\n v_xor_b32 {v(ACC+4+2*k)}, {v(sgn)}, {v(ACC+4+2*k)}')
        for t in range(4):
            for p in range(2):
                d = ACC+8*t+4*p
                mfma(b, d, R+16*g+4*t, P1+8*g+4*p, d if (g == 1 or t == 0) else '0')
    A2 = R
    for t in range(4):
        re, im = ACC+8*t, ACC+8*t+4
        for i in range(4): cm1(b, re+i, im+i, PTC+4*t+i, PTS+4*t+i, T+8*(t&1)+2*i, T+8*(t&1)+2*i+1, +1)
        F = X + 4*t
        cvt(b, F, re, re+1); cvt(b, F+2, im, im+1); cvt(b, F+1, re+2, re+3); cvt(b, F+3, im+2, im+3)
        for ot in range(4):
            rot = (t*ot) % 4
            mfma(b, A2+4*ot, F, P2+10*t+2*rot, '0' if t == 0 else A2+4*ot)
    b.emit(VERB)
    stamp(a, 11)
    if E('ONLYB', 0) or E('NOA', 0): a.I('s_waitcnt vmcnt(0)')
    else: poll_check(a, aloads, AL, TM, 57, E('ABACKOFF', 8))
    OUTM = E('OUTM', 0)
    b = Block(a, 'final')
    vos = vr
    if OUTM:
        b.I(f'v_and_b32 {v(t0)}, 7, {v(n)}\n v_mul_u32_u24 {v(vos)}, 1056, {v(t0)}\n v_and_b32 {v(t0)}, 0x3ff, {v(vst)}\n v_add_u32 {v(vos)}, {v(vos)}, {v(t0)}')
        b.I(f's_mul_i32 s26, s3, 2112\n v_add_u32 {v(vn)}, s26, {v(vl16)}\n s_lshl_b32 s24, s3, 19\n s_add_u32 s24, s24, s9\n s_add_u32 s25, s24, {256*1024}')
    unpack(b, LI0, AL, A64, A32)
    AA = R + 16
    for ot in range(4): b.I(f'ds_read_b64_tr_b16 {v(AA+2*ot,2)}, {v(vta)} offset:{LI0+768*ot}')
    for i in range(16): b.I(f'v_mul_f32 {v(A2+i)}, {v(G2+1)}, {v(A2+i)}')
    AF = ACC
    for ot in range(4):
        for p in range(2):
            b.I(f'v_lshlrev_b32 {v(AF+4*ot+2*p)}, 16, {v(AA+2*ot+p)}\n v_and_b32 {v(AF+4*ot+2*p+1)}, 0xffff0000, {v(AA+2*ot+p)}')
        for p in range(2):
            x = AF+4*ot+2*p; bb = A2+4*ot+2*p
            b.I(f'v_fmac_f32 {v(bb)}, {v(x)}, {v(G2)}\n v_fmac_f32 {v(bb+1)}, {v(x+1)}, {v(G2)}')
            cvt(b, X+2*ot+p, bb, bb+1)
        if OUTM == 0:
            b.I(f'buffer_store_dwordx2 {v(X+2*ot,2)}, {v(vst)}, s[12:15], s9 offen offset:{256*ot}')
        else: b.I(f'ds_write_b64 {v(vos)}, {v(X+2*ot,2)} offset:{LX+256*ot}')
    b.emit(VERB)
    if OUTM:
        fl = {1: 'sc1', 2: 'nt', 3: '', 4: 'sc0 sc1'}[OUTM]
        a.I('s_waitcnt lgkmcnt(0)\n s_barrier')
        a.I(f'ds_read_b128 {v(R,4)}, {v(vn)} offset:{LX}\n ds_read_b128 {v(R+4,4)}, {v(vn)} offset:{LX+1056}')
        a.I(f'buffer_store_dwordx4 {v(R,4)}, {v(vl16)}, s[12:15], s24 offen {fl}\n buffer_store_dwordx4 {v(R+4,4)}, {v(vl16)}, s[12:15], s25 offen {fl}')
    a.I('s_or_b32 s56, s22, s3\n s_cmp_lg_u32 s56, 0\n s_cbranch_scc1 L_b_end')
    a.I(f's_mov_b64 exec, 1\n v_mov_b32 {v(t0)}, s57\n v_mov_b32 {v(t1)}, {EP_OFF}')
    a.I(f'buffer_store_dword {v(t0)}, {v(t1)}, s[44:47], 0 offen')
    a.label('L_b_end', keep=True)
    endpgm(a, 44, 13, 0)

RS = 544
TB_CH = 53 * RS
KF_OFF = 2 * TB_CH + 64
KF_CH = 2368 + 64
K8_OFF = KF_OFF + 2 * KF_CH
K8_CH = 512
LU = K8_OFF + 2 * K8_CH
U_CH = 4608
LDS_BYTES = LU + 2 * U_CH
LK = 0
KC = 2240
LRED = 4 * KC
LAO = LRED + 16384
def cmul(a, d, x, y, t):
    if E('PKCHAIN', 1):
        a.I(f'v_pk_mul_f32 {v(t,2)}, {v(x,2)}, {v(y,2)} op_sel_hi:[0,1]')
        a.I(f'v_pk_fma_f32 {v(d,2)}, {v(x,2)}, {v(y,2)}, {v(t,2)} op_sel:[1,1,0] op_sel_hi:[1,0,1] neg_lo:[1,0,0]')
    else:
        a.I(f'v_mul_f32 {v(t)}, {v(x)}, {v(y)}\n v_mul_f32 {v(t+1)}, {v(x)}, {v(y+1)}')
        a.I(f'v_fma_f32 {v(d)}, -{v(x+1)}, {v(y+1)}, {v(t)}\n v_fma_f32 {v(d+1)}, {v(x+1)}, {v(y)}, {v(t+1)}')

class RoleA:
  def pre(self, a):
    V = self.V = VAlloc(1, 128); W = self.W = VAlloc(128, 256)
    a.label('L_a_pre', keep=True)
    if E('ONLYB', 0): a.I('s_endpgm')
    a.I(f's_setprio {E("APRIO", 2)}')
    task_of(a, 22, 23)
    n, q = self.n, self.q = lanes(a, V)
    t0 = self.t0 = V.get(); t1 = self.t1 = V.get()
    vp = W.get(); a.I(f'v_lshlrev_b32 {v(vp)}, 1, v0')
    vch = self.vch = V.get(); a.I(f'v_lshrrev_b32 {v(vch)}, 7, v0')
    vd = W.get(); a.I(f'v_lshlrev_b32 {v(vd)}, 1, {v(vch)}')
    vd2 = W.get(); a.I(f'v_bfe_u32 {v(vd2)}, v0, 6, 1\n v_lshlrev_b32 {v(vd2)}, 1, {v(vd2)}')
    vut = W.get()
    a.I(f'v_and_b32 {v(t1)}, 0xc0, v0\n v_lshl_add_u32 {v(t1)}, {v(n)}, 2, {v(t1)}\n v_lshl_add_u32 {v(vut)}, {v(q)}, 13, {v(t1)}')
    a.I('s_lshl_b32 s24, s22, 9\n s_lshl_b32 s25, s22, 2\n s_lshr_b32 s26, s23, 2\n s_lshl_b32 s26, s26, 3\n s_and_b32 s27, s2, 7\n s_add_u32 s26, s26, s27\n s_and_b32 s27, s23, 3')
    a.I(f's_lshl_b32 s28, s26, 15\n s_lshl_b32 s29, s27, 8\n s_add_u32 s28, s28, s29\n s_add_u32 s29, s28, 4096')
    a.I('s_mov_b32 s34, 131072\n s_mov_b32 s35, 0x00020000\n s_mov_b32 s38, 131072\n s_mov_b32 s39, 0x00020000\n s_mov_b32 s42, 1024\n s_mov_b32 s43, 0x00020000\n s_mov_b32 s46, 2097152\n s_mov_b32 s47, 0x00020000')
    a.I('s_waitcnt lgkmcnt(0)'); stamp(a, 1)
    self.PR = LA, AI, CR, CI, LD, DS = tuple(V.get() for _ in range(6))
    a.I(f's_mov_b32 s40, s14\n s_mov_b32 s41, s15\n buffer_load_short_d16_hi {v(LD)}, {v(vd)}, s[40:43], s25 offen')
    for k, r in enumerate((LA, AI, CR, CI)):
        d = 32 + 4*(k & 1)
        a.I(f's_mov_b32 s{d}, s{6+2*k}\n s_mov_b32 s{d+1}, s{7+2*k}\n buffer_load_short_d16_hi {v(r)}, {v(vp)}, s[{d}:{d+3}], s24 offen')
    a.I('s_mov_b32 s44, s4\n s_mov_b32 s45, s5')
    UTL = self.UTL = W.get(8)
    for e in range(8):
        if not E('NOTILE', 0): a.I(f'buffer_load_dword {v(UTL+e)}, {v(vut)}, s[44:47], s{28 if e < 4 else 29} offen offset:{(e%4)*1024}')
    a.I(f's_mov_b32 s40, s16\n s_mov_b32 s41, s17\n buffer_load_short_d16_hi {v(DS)}, {v(vd2)}, s[40:43], s25 offen')
    srd(a, 48, 20, WS_BYTES)
    a.I(f's_add_u32 s20, s20, {EP_OFF}\n s_addc_u32 s21, s21, 0\n s_load_dword s4, s[20:21], 0')
    stamp(a, 12, False)
    self.st = (list(a.vm), list(a.lg))
  def body(self, a):
    V, W, n, q, t0, t1, vch, UTL = self.V, self.W, self.n, self.q, self.t0, self.t1, self.vch, self.UTL
    LA, AI, CR, CI, LD, DS = self.PR
    TOK, CH, HR = 4, 6, 7
    b = Block(a, 'a_shadow')
    vt16 = V.get(); b.I(f'v_lshlrev_b32 {v(vt16)}, 4, v0')
    vuts = W.get()
    b.I(f'v_mul_u32_u24 {v(vuts)}, 3072, {v(t1)}\n v_lshl_add_u32 {v(vuts)}, {v(q)}, 4, {v(vuts)}')
    b.I(f's_mul_i32 s27, s27, {64*12288}\n s_lshl_b32 s26, s26, 6\n s_add_u32 s26, s26, s27\n s_add_u32 s26, s26, {UT_OFF}\n s_add_u32 s27, s26, 4096\n s_add_u32 s28, s26, 8192')
    b.I('s_mov_b32 s8, 0x05040100\n s_mov_b32 s9, 0x07060302')
    b.I(f's_and_b32 s{CH}, s3, 1\n s_lshr_b32 s{HR}, s3, 1\n s_mul_i32 s10, s{HR}, {TB_CH}\n s_lshl_b32 s11, s{CH}, 8\n s_add_u32 m0, s10, s11')
    b.I(f's_mul_i32 s52, s22, 12288\n s_add_u32 s52, s52, {UT_OFF}\n s_add_u32 s53, s52, 4096\n s_add_u32 s54, s52, 8192')
    U0 = V.get(12, 4); EG = V.get(9, 1); TM = V.get(3, 1)
    J0, sh, JM, cst, kfb, yy, y1, y2, y3, y4, y5, y6 = (W.get() for _ in range(12))
    zero = V.get(); vks = V.get(); veg = V.get(); vem = V.get()
    b.I(f'v_and_b32 {v(yy)}, 127, v0\n v_lshlrev_b32 {v(J0)}, 3, {v(yy)}\n v_sub_u32 {v(J0)}, 1016, {v(J0)}')
    b.I(f'v_mul_u32_u24 {v(vks)}, {2*KC}, {v(vch)}\n v_lshl_add_u32 {v(vks)}, {v(yy)}, 4, {v(vks)}')
    b.I(f'v_or_b32 {v(sh)}, 1, {v(J0)}\n v_ffbh_u32 {v(sh)}, {v(sh)}\n v_sub_u32 {v(sh)}, 24, {v(sh)}\n v_max_i32 {v(sh)}, 0, {v(sh)}')
    b.I(f'v_add_u32 {v(JM)}, 150, {v(sh)}\n v_lshlrev_b32 {v(JM)}, 23, {v(JM)}')
    b.I(f'v_mul_u32_u24 {v(kfb)}, {KF_CH}, {v(vch)}\n v_mov_b32 {v(zero)}, 0\n ds_write_b32 {v(kfb)}, {v(zero)} offset:{KF_OFF-8}\n v_add_u32 {v(kfb)}, {KF_OFF}, {v(kfb)}')
    b.I(f'v_lshrrev_b32 {v(yy)}, {v(sh)}, {v(J0)}\n v_add_u32 {v(sh)}, 1, {v(sh)}')
    b.I(f'v_add_u32 {v(JM)}, {v(JM)}, {v(yy)}\n v_lshlrev_b32 {v(cst)}, {v(sh)}, {v(JM)}')
    b.I(f'v_lshrrev_b32 {v(yy)}, 4, {v(J0)}\n v_lshl_add_u32 {v(yy)}, {v(yy)}, 2, {v(kfb)}\n v_lshl_add_u32 {v(EG+1)}, {v(J0)}, 1, {v(yy)}\n v_sub_u32 {v(cst)}, {v(EG+1)}, {v(cst)}')
    b.I(f'v_add_u32 {v(yy)}, 16, {v(EG+1)}\n v_bfe_u32 {v(y5)}, {v(J0)}, 3, 1\n v_lshlrev_b32 {v(y5)}, 2, {v(y5)}')
    for e in range(1, 8):
        b.I(f'v_add_f32 {v(EG+1+e)}, {f32(float(e))}, {v(JM)}')
        b.I(f'v_lshl_add_u32 {v(EG+1+e)}, {v(EG+1+e)}, {v(sh)}, {v(cst)}')
        if e >= 6: b.I(f'v_cmp_eq_u32 vcc, {v(EG+1+e)}, {v(yy)}\n v_cndmask_b32 {v(EG)}, 0, {v(y5)}, vcc\n v_add_u32 {v(EG+1+e)}, {v(EG+1+e)}, {v(EG)}')
    b.I(f'v_sub_u32 {v(y5)}, 6, {v(y5)}\n v_cmp_ge_u32 vcc, 256, {v(J0)}\n v_cndmask_b32 {v(yy)}, 0, {v(y5)}, vcc\n v_sub_u32 {v(EG)}, {v(EG+1)}, {v(yy)}')
    b.I(f'v_add_u32 {v(veg)}, 2304, {v(kfb)}')
    b.I(f'v_bfe_u32 {v(y6)}, v0, 6, 1\n v_lshl_add_u32 {v(y6)}, {v(n)}, 1, {v(y6)}\n v_and_b32 {v(yy)}, 16, v0\n v_cmp_ne_u32 vcc, 0, {v(yy)}\n v_cndmask_b32 {v(y6)}, {v(y6)}, 0, vcc')
    b.I(f'v_mov_b32 {v(vem)}, 0x10000\n v_cmp_le_u32 vcc, 26, {v(y6)}\n v_cndmask_b32 {v(vem)}, 0, {v(vem)}, vcc\n v_cmp_le_u32 vcc, 27, {v(y6)}\n v_cndmask_b32 {v(y6)}, 0, 1, vcc\n v_or_b32 {v(vem)}, {v(vem)}, {v(y6)}')
    b.I(f'v_and_b32 {v(y6)}, 31, v0\n v_lshlrev_b32 {v(y6)}, 2, {v(y6)}\n v_lshl_add_u32 {v(y6)}, {v(vch)}, 9, {v(y6)}\n ds_write_b32 {v(y6)}, {v(zero)} offset:{K8_OFF}')
    b.I(f'v_mul_u32_u24 {v(y1)}, {U_CH - 512}, {v(vch)}\n v_lshl_add_u32 {v(y1)}, v0, 2, {v(y1)}\n v_add_u32 {v(y1)}, {LU}, {v(y1)}\n ds_write_b32 {v(y1)}, {v(zero)}')
    b.I(f'v_mov_b32 {v(y2)}, 0x3f80\n ds_write_addtid_b32 {v(y2)} offset:{21*RS}')
    vra = V.get(); vrb = V.get(); KW = V.get(4, 1); kw1 = V.get(); kw2 = V.get(); va = V.get(); vb = V.get(3, 1); vkz = V.get(); vuw = V.get(); vk8 = V.get(2, 1); vf = V.get(2, 1); BND = V.get(8, 4)
    b.I(f's_mul_i32 s10, s{CH}, {TB_CH}\n s_mul_i32 s11, s{HR}, {16*RS}\n s_add_u32 s11, s11, {21*RS}')
    b.I(f'v_mul_u32_u24 {v(vra)}, {RS}, {v(n)}\n v_lshl_add_u32 {v(vra)}, {v(q)}, 4, {v(vra)}\n v_add_u32 {v(vra)}, s10, {v(vra)}\n v_add_u32 {v(vrb)}, s11, {v(vra)}')
    b.I(f's_mul_i32 s12, s{CH}, {KF_CH}\n s_mul_i32 s13, s{HR}, 288\n s_add_u32 s12, s12, s13\n s_add_u32 s12, s12, {KF_OFF}')
    b.I(f'v_lshlrev_b32 {v(kw1)}, 4, {v(n)}\n v_lshrrev_b32 {v(y3)}, 1, {v(n)}\n v_lshl_add_u32 {v(kw1)}, {v(y3)}, 2, {v(kw1)}\n v_add_u32 {v(kw1)}, s12, {v(kw1)}')
    b.I(f'v_lshlrev_b32 {v(t0)}, 3, {v(q)}\n s_mov_b32 s14, 0x90480100\n s_mov_b32 s15, 0x08040202\n s_mov_b32 s16, 0x90020101')
    b.I(f'v_bfe_u32 {v(KW)}, s14, {v(t0)}, 8\n v_lshl_add_u32 {v(KW)}, {v(KW)}, 3, {v(kw1)}')
    b.I(f'v_bfe_u32 {v(y3)}, s15, {v(t0)}, 8\n v_add_u32 {v(KW+1)}, {v(KW)}, {v(y3)}')
    b.I(f'v_bfe_u32 {v(KW+2)}, s16, {v(t0)}, 8\n v_lshl_add_u32 {v(KW+2)}, {v(KW+2)}, 2, {v(KW)}\n v_add_u32 {v(KW+3)}, {v(KW+2)}, {v(y3)}')
    b.I(f's_lshl_b32 s19, s{CH}, 9\n s_add_u32 s19, s19, {K8_OFF}\n s_lshl_b32 s13, s{HR}, 5\n s_add_u32 s13, s13, s19\n s_add_u32 s13, s13, 126')
    b.I(f'v_add_u32 {v(y5)}, 2304, {v(kw1)}\n v_lshlrev_b32 {v(kw1)}, 1, {v(n)}\n v_add_u32 {v(kw1)}, s13, {v(kw1)}')
    b.I(f'v_mov_b32 {v(y4)}, {LU + 512}\n v_cmp_eq_u32 vcc, 0, {v(q)}\n v_cndmask_b32 {v(kw2)}, {v(y4)}, {v(kw1)}, vcc')
    b.I(f'v_add_u32 {v(y4)}, 256, {v(kw1)}\n v_cmp_eq_u32 vcc, 1, {v(q)}\n v_cndmask_b32 {v(kw1)}, {v(kw2)}, {v(y4)}, vcc')
    b.I(f'v_and_b32 {v(y4)}, 0xbf, v0\n v_cmp_eq_u32 vcc, 0, {v(y4)}\n v_cndmask_b32 {v(kw1)}, {v(kw1)}, {v(y5)}, vcc')
    b.I(f'v_lshlrev_b32 {v(y4)}, 2, {v(q)}\n v_sub_u32 {v(y4)}, {v(n)}, {v(y4)}\n v_lshlrev_b32 {v(y4)}, 2, {v(y4)}\n s_lshl_b32 s13, s{HR}, 6')
    b.I(f's_sub_u32 s29, s19, s13\n s_add_u32 s29, s29, {128 - 12}\n v_add_u32 {v(vk8)}, s29, {v(y4)}\n s_add_u32 s29, s19, s13\n s_sub_u32 s29, s29, {64 + 12}\n v_add_u32 {v(vk8+1)}, s29, {v(y4)}')
    for k, (w_, s0) in enumerate(((7, 5), (9, 4))):
        b.I(f'v_mov_b32 {v(y4)}, {((1 << w_) - 1) << s0}\n v_lshlrev_b32 {v(y4)}, {v(n)}, {v(y4)}\n v_lshrrev_b32 {v(y4)}, {v(t0)}, {v(y4)}')
        for i in range(4):
            d = BND + 4*k + i
            b.I(f'v_bfe_u32 {v(d)}, {v(y4)}, {2*i}, 2\n v_mul_u32_u24 {v(d)}, 0x8001, {v(d)}\n v_and_b32 {v(d)}, 0x10001, {v(d)}\n v_mul_u32_u24 {v(d)}, 0x3f80, {v(d)}')
    b.I(f's_lshl_b32 s13, s{HR}, 8\n s_mul_i32 s12, s{CH}, {U_CH}\n s_sub_u32 s12, s12, s13\n s_add_u32 s12, s12, {LU + 512 - 32 - 192}')
    b.I(f'v_lshlrev_b32 {v(va)}, 5, {v(n)}\n v_lshl_add_u32 {v(va)}, {v(q)}, 4, {v(va)}\n v_add_u32 {v(va)}, s12, {v(va)}')
    b.I(f's_mul_i32 s29, s{HR}, 768\n s_add_u32 s29, s29, {192 - 16}\n v_add_u32 {v(vf)}, s29, {v(va)}\n s_mul_i32 s29, s{HR}, -256\n s_add_u32 s29, s29, {192 - 16 + 1536}\n v_add_u32 {v(vf+1)}, s29, {v(va)}')
    b.I(f's_mul_i32 s17, s{CH}, {2*KC}\n s_sub_u32 s17, s17, s13\n s_add_u32 s17, s17, {LK - 192 - 512}')
    b.I(f'v_sub_u32 {v(t0)}, {v(t0)}, {v(n)}\n v_add_u32 {v(t0)}, 1039, {v(t0)}')
    b.I(f'v_and_b32 {v(y3)}, 1, {v(t0)}\n v_mul_u32_u24 {v(y3)}, {KC}, {v(y3)}\n v_lshrrev_b32 {v(t0)}, 1, {v(t0)}')
    b.I(f'v_lshl_add_u32 {v(vb)}, {v(t0)}, 2, {v(y3)}\n v_add_u32 {v(vb)}, s17, {v(vb)}\n v_add_u32 {v(vb+1)}, -1024, {v(vb)}')
    b.I(f'v_add_u32 {v(vb+2)}, {192 + 512 - 2048}, {v(vb)}\n v_mov_b32 {v(y3)}, {LU}\n s_cmp_eq_u32 s{HR}, 0\n s_cselect_b64 s[30:31], -1, 0\n v_cndmask_b32 {v(vb+2)}, {v(y3)}, {v(vb+2)}, s[30:31]')
    b.I(f's_mul_i32 s18, s3, {KC}\n v_and_b32 {v(y3)}, 16, v0\n v_mul_u32_u24 {v(y3)}, 132, {v(y3)}\n v_lshl_add_u32 {v(vkz)}, {v(n)}, 2, {v(y3)}\n v_add_u32 {v(vkz)}, s18, {v(vkz)}\n v_add_u32 {v(vuw)}, {LU + 512}, {v(vt16)}')
    b.emit(VERB)
    stamp(a, 2)
    def utpub():
        a.I(f's_add_u32 s{TOK}, s{TOK}, {TOKC}')
        for i in range(4):
            b.I(f'v_perm_b32 {v(U0+i if i < 3 else U0+8)}, {v(UTL+2*i+1)}, {v(UTL+2*i)}, s8')
            b.I(f'v_perm_b32 {v(U0+4+i if i < 3 else U0+9)}, {v(UTL+2*i+1)}, {v(UTL+2*i)}, s9')
        b.I(f'v_mov_b32 {v(U0+10)}, 0')
        for k, sr in enumerate((26, 27, 28)):
            chk(b, U0+4*k, TOK)
            if not E('NOUT', 0): b.I(f'buffer_store_dwordx4 {v(U0+4*k,4)}, {v(vuts)}, s[48:51], s{sr} offen sc1 ;!3000')
    dt = W.get(); ar_ = W.get(); rev = W.get()
    b = Block(a, 'a_chain')
    if E('UTPOS', 3) < 0:
        utpub(); b.emit(VERB); stamp(a, 4)
    b.I(f'v_mul_f32 {v(dt)}, {f32(LOG2E)}, {v(LD)}\n v_mul_f32 {v(ar_)}, {f32(LOG2E)}, {v(LA)}\n v_exp_f32 {v(dt)}, {v(dt)}\n v_exp_f32 {v(ar_)}, {v(ar_)}')
    cvt(b, t0, dt, ar_)
    b.I(f'v_lshlrev_b32 {v(dt)}, 16, {v(t0)}\n v_and_b32 {v(ar_)}, 0xffff0000, {v(t0)}')
    b.I(f'v_mul_f32 {v(ar_)}, {v(ar_)}, {v(dt)}\n v_mul_f32 {v(ar_)}, {f32(-LOG2E)}, {v(ar_)}')
    b.I(f'v_mul_f32 {v(rev)}, {v(AI)}, {v(dt)}\n v_mul_f32 {v(rev)}, 0.15915494, {v(rev)}')
    Z = {}
    mag = W.get(4); ang = W.get(4)
    for k, p in enumerate((8, 1, 128, 256)):
        Z[p] = W.get(2)
        b.I(f'v_mul_f32 {v(mag+k)}, {f32(float(p))}, {v(ar_)}\n v_mul_f32 {v(ang+k)}, {f32(float(p))}, {v(rev)}')
        b.I(f'v_fract_f32 {v(ang+k)}, {v(ang+k)}\n v_exp_f32 {v(mag+k)}, {v(mag+k)}')
        b.I(f'v_cos_f32 {v(Z[p])}, {v(ang+k)}\n v_sin_f32 {v(Z[p]+1)}, {v(ang+k)}')
    Ee = W.get(16)
    b.I(f'v_add_f32 {v(dt)}, {v(dt)}, {v(dt)}\n v_mul_f32 {v(Ee)}, {v(CR)}, {v(dt)}\n v_mul_f32 {v(Ee+1)}, {v(CI)}, {v(dt)}')
    for k, p in enumerate((8, 1, 128, 256)):
        b.I(f'v_mul_f32 {v(Z[p])}, {v(mag+k)}, {v(Z[p])}\n v_mul_f32 {v(Z[p]+1)}, {v(mag+k)}, {v(Z[p]+1)}')
    TT = W.get(8); PK = W.get(8); O = W.get(4); H = W.get(4)
    cnt = [0]
    def put(row, x, neg):
        r = PK + cnt[0] % 8; cnt[0] += 1
        cvt(b, r, x, x+1, False, neg)
        b.I(f'ds_write_addtid_b32 {v(r)} offset:{row*RS} ;@T{row}')
    offs_ops = []; cur = Z[8]
    offs_ops.append(lambda: (put(21+1, Z[8], False), put(21+16, Z[128], False)))
    offs_ops.append(lambda: (cmul(b, H, Z[8], Z[128], TT+2), put(21+17, H, False)))
    for i in range(2, 16):
        nxt = O + 2*(i % 2)
        def f(i=i, cur=cur, nxt=nxt):
            cmul(b, nxt, cur, Z[8], TT); cmul(b, H + 2*(i % 2), nxt, Z[128], TT+2)
            put(21+i, nxt, False); put(21+16+i, H + 2*(i % 2), False)
        offs_ops.append(f); cur = nxt
    base_ops = [lambda: put(0, Ee, True)]
    for e in range(1, 8): base_ops.append(lambda e=e: (cmul(b, Ee+2*e, Ee+2*e-2, Z[1], TT+4), put(e, Ee+2*e, True)))
    for k, e in enumerate((0, 2, 4, 6)): base_ops.append(lambda k=k, e=e: (cmul(b, Ee+2*e, Ee+2*e, Z[256], TT+4), put(8+k, Ee+2*e, True)))
    for i in range(2):
        for k, e in enumerate((0, 4)): base_ops.append(lambda i=i, k=k, e=e: (cmul(b, Ee+2*e, Ee+2*e, Z[256], TT+4), put(12+2*i+k, Ee+2*e, True)))
    for i in range(5): base_ops.append(lambda i=i: (cmul(b, Ee, Ee, Z[256], TT+4), put(16+i, Ee, True)))
    uloads = [f'buffer_load_dwordx4 {v(U0+4*k,4)}, {v(vt16)}, s[48:51], s{52+k} offen sc1' for k in range(3)]
    it = 0
    while offs_ops or base_ops:
        if E('UPOS', 0) == 3 and it == E('UIT', 12):
            b.emit(VERB)
            for x in uloads: a.I(x)
        if it == E('UTPOS', 3):
            b.emit(VERB); stamp(a, 4); utpub()
        it += 1
        if offs_ops: offs_ops.pop(0)()
        if base_ops: base_ops.pop(0)()
    ACCK = V.get(8, 4); PK = V.get(4)
    b.I(f'v_and_b32 {v(t0)}, 0xbf, v0\n v_cmp_eq_u32 vcc, 0, {v(t0)}\n v_cndmask_b32 {v(ACCK)}, 0, {v(DS)}, vcc')
    b.I(f'v_mov_b32 {v(ACCK+1)}, 0\n v_mov_b32 {v(ACCK+2)}, 0\n v_mov_b32 {v(ACCK+3)}, 0')
    b.emit(VERB)
    if E('UPOS', 0) == 2:
        for x in uloads: a.I(x)
    a.I('s_waitcnt lgkmcnt(0)\n s_barrier'); stamp(a, 5)
    S = [128, 192]; FR = 128
    for k in range(8):
        a.I(f'ds_read_b128 {v(FR+12*k,4)}, {v(vrb)} offset:{64*k}')
        a.I(f'ds_read_b128 {v(FR+12*k+4,4)}, {v(vra)} offset:{64*k}')
        a.I(f'ds_read_b128 {v(FR+12*k+8,4)}, {v(vra)} offset:{64*k+16*RS}')
        if k >= 4:
            kk = k - 4
            mfma(a, ACCK, FR+12*kk+4, FR+12*kk, ACCK); mfma(a, ACCK+4, FR+12*kk+8, FR+12*kk, '0' if kk == 0 else ACCK+4)
    uloads = [f'buffer_load_dwordx4 {v(U0+4*k,4)}, {v(vt16)}, s[48:51], s{52+k} offen sc1' for k in range(3)]
    if E('UPOS', 0) == 0 and not E('NOUT', 0):
        for x in uloads: a.I(x)
    for k in range(4, 8):
        mfma(a, ACCK, FR+12*k+4, FR+12*k, ACCK); mfma(a, ACCK+4, FR+12*k+8, FR+12*k, ACCK+4)
    cvt(a, PK, ACCK, ACCK+1); cvt(a, PK+1, ACCK+2, ACCK+3)
    a.I(f'ds_write_b16 {v(KW)}, {v(PK)}\n ds_write_b16_d16_hi {v(KW+1)}, {v(PK)}\n ds_write_b16 {v(KW+2)}, {v(PK+1)}\n ds_write_b16_d16_hi {v(KW+3)}, {v(PK+1)}')
    cvt(a, PK+2, ACCK+4, ACCK+5); cvt(a, PK+3, ACCK+6, ACCK+7)
    a.I(f'ds_write_b16 {v(kw1)}, {v(PK+2)}\n ds_write_b16_d16_hi {v(kw2)}, {v(PK+2)} offset:64')
    a.I(f'ds_write_b16 {v(kw2)}, {v(PK+3)} offset:128\n ds_write_b16_d16_hi {v(kw2)}, {v(PK+3)} offset:192')
    a.I('s_waitcnt lgkmcnt(0)\n s_barrier'); stamp(a, 6)
    for e in range(8, -1, -1): a.I(f'ds_read_u16 {v(EG+e)}, {v(EG+e)}')
    a.I(f'ds_read_u16 {v(veg)}, {v(veg)}')
    if E('UPOS', 0) == 1 and not E('NOUT', 0):
        for x in uloads: a.I(x)
    EO = FR
    for bb in range(4):
        a.I(f'v_lshl_or_b32 {v(EO+bb)}, {v(EG+1+6-2*bb)}, 16, {v(EG+1+7-2*bb)}')
        a.I(f'v_lshl_or_b32 {v(EO+4+bb)}, {v(EG+1+5-2*bb)}, 16, {v(EG+1+6-2*bb)}')
    a.I(f'ds_write_b128 {v(vks)}, {v(EO,4)} offset:{LK+64}\n ds_write_b128 {v(vks)}, {v(EO+4,4)} offset:{LK+KC+64}')
    a.I(f'v_mul_u32_u24 {v(veg)}, {v(veg)}, {v(vem)}\n ds_write_b32 {v(vkz)}, {v(veg)} offset:{LK}')
    stamp(a, 7)
    if not E('NOUT', 0): poll_check(a, uloads, U0, TM, TOK)
    a.I(f'v_mov_b32 {v(U0+3)}, {v(U0+8)}\n v_mov_b32 {v(U0+7)}, {v(U0+9)}')
    a.I(f'ds_write_b128 {v(vuw)}, {v(U0,4)}\n ds_write_b128 {v(vuw)}, {v(U0+4,4)} offset:{U_CH}')
    a.I(f's_setprio {E("CPRIO", 2)}')
    a.I('s_waitcnt lgkmcnt(0)\n s_barrier'); stamp(a, 8)
    V.put(EG, 9); V.put(ACCK, 8); V.put(KW, 4); V.put(PK, 4); V.put(U0, 12)
    ACC = V.get(32, 4)
    b = Block(a, 'conv')
    S = [128, 176]; X = 224
    def loads(rl):
        L = []
        for k in range(8):
            if k < 4:
                o = 16*(3-rl) + (128 if k % 2 == 0 else 0)
                r = S[rl%2] + 32 + 4*k
                L += [f'ds_read2_b32 {v(r,2)}, {v(vb+k//2)} offset0:{o} offset1:{o+1}', f'ds_read2_b32 {v(r+2,2)}, {v(vb+k//2)} offset0:{o+2} offset1:{o+3}']
            L.append(f'ds_read_b128 {v(S[rl%2]+4*k,4)}, {v(va)} offset:{64*(3-rl)+512*k}')
        return L
    def mf(d, A, B, c): return f'v_mfma_f32_16x16x32_bf16 {v(d,4)}, {v(A,4)}, {v(B,4)}, {c if isinstance(c, str) else v(c,4)}'
    SB = V.get(8, 4); SD = V.get(16, 4)
    for x in loads(0): a.I(x)
    a.I(f'ds_read2_b32 {v(X,2)}, {v(vb+2)} offset0:0 offset1:1\n ds_read2_b32 {v(X+2,2)}, {v(vb+2)} offset0:2 offset1:3')
    extra = {0: [], 1: [], 2: [], 3: []}
    for k in range(2):
        extra[0] += [f'ds_read_b128 {v(X+4+8*k,4)}, {v(vf+k)} offset:16', f'ds_read_b128 {v(X+8+8*k,4)}, {v(vf+k)}']
    def k8(r, k, T):
        o = 16*(T-4)
        return [f'ds_read2_b32 {v(r,2)}, {v(vk8+k)} offset0:{o+3} offset1:{o+2}', f'ds_read2_b32 {v(r+2,2)}, {v(vk8+k)} offset0:{o+1} offset1:{o}']
    far = [(0, 4), (0, 5), (0, 6), (0, 7), (1, 6), (1, 7)]
    for j, (k, T) in enumerate(far): extra[1] += k8(X+4*j, k, T)
    for k in range(2):
        for i in range(4): extra[1].append(f'v_cvt_pk_bf16_f32 {v(SB+4*k+i)}, {v(SD+8*k+i)}, {v(SD+8*k+4+i)}')
    for rl in range(4):
        pairs = sorted([(i, g) for i in range(8) for g in range(4) if i + g <= 7], key=lambda p: (max(p), p[0]+p[1]))
        M = []; seen = set()
        for (i, g) in pairs:
            d = ACC + 4*(i+g)
            first = (rl == 0 and (i+g) not in seen); seen.add(i+g)
            M.append(mf(d, S[rl%2]+4*i, S[rl%2]+32+4*g, '0' if first else d))
        if rl == 0:
            M += [mf(ACC+4*(i+4), S[0]+4*i, X, ACC+4*(i+4)) for i in range(4)]
            M += [mf(SD+8*k+4*h, X+4+8*k+4*h, BND+4*h, '0') for k in range(2) for h in range(2)]
        if rl == 2: M = M[:8] + [mf(ACC+4*T, X+4*j, SB+4*k, ACC+4*T) for j, (k, T) in enumerate(far)] + M[8:]
        if rl == 3:
            tailM = M; break
        nxt = (extra[rl] + loads(rl+1)) if rl == 0 else (loads(rl+1) + extra[rl])
        for k, x in enumerate(M):
            a.I(x)
            if k >= (6 if rl == 0 else 0):
                for _ in range(2 if (rl == 1 and k % 2) else 1):
                    if nxt: a.I(nxt.pop(0))
        for x in nxt: a.I(x)
    for x in tailM: b.I(x)
    CL, G16, A64, A32 = slotmap(b, V, t0, t1)
    vrw = V.get(); vrr = V.get(); vao = V.get(); vl16 = V.get()
    b.I(f'v_lshlrev_b32 {v(vrw)}, 3, v0\n v_xor_b32 {v(vrr)}, 1024, {v(vrw)}')
    b.I(f'v_lshlrev_b32 {v(vao)}, 6, {v(q)}\n v_add_u32 {v(vao)}, {v(vao)}, {v(n)}\n v_mul_u32_u24 {v(vao)}, 48, {v(vao)}\n s_mul_i32 s10, s{HR}, {32*48}\n s_lshl_b32 s11, s{CH}, 4\n s_add_u32 s10, s10, s11\n v_add_u32 {v(vao)}, s10, {v(vao)}')
    b.I(f'v_and_b32 {v(vl16)}, 1023, {v(vt16)}\n s_mul_i32 s62, s22, {BS}\n s_add_u32 s62, s62, s56\n s_add_u32 s62, s62, {AW_OFF}')
    Gv = S[0]; R = S[0] + 16; Kp = S[0] + 32
    for i in range(8):
        for j in range(2): b.I(f'v_cndmask_b32 {v(Gv+2*i+j)}, {v(ACC+4*i+j)}, {v(ACC+4*i+2+j)}, s[30:31]')
        b.I(f'ds_write_b64 {v(vrw)}, {v(Gv+2*i,2)} offset:{LRED+2048*i} ;@R{i} ;!100')
        for j in range(2): b.I(f'v_cndmask_b32 {v(Kp+2*i+j)}, {v(ACC+4*i+2+j)}, {v(ACC+4*i+j)}, s[30:31]')
    b.emit(VERB)
    stamp(a, 9)
    a.I(f's_setprio {E("EPRIO", 3)}')
    a.I('s_waitcnt lgkmcnt(0)\n s_barrier')
    for i in range(8): a.I(f'ds_read_b64 {v(R+2*i,2)}, {v(vrr)} offset:{LRED+2048*i}')
    for i in range(16): a.I(f'v_add_f32 {v(R+i)}, {v(R+i)}, {v(Kp+i)}')
    Oo = X
    for jj in range(2):
        for i in range(4): cvt(a, Oo+4*jj+i, R+4*i+jj, R+4*i+2+jj)
        a.I(f'ds_write_b128 {v(vao)}, {v(Oo+4*jj,4)} offset:{LAO+768*jj}')
    a.I('s_waitcnt lgkmcnt(0)\n s_barrier')
    if not E('NOA', 0): publish(a, LAO, X + 8, A64, A32, vl16, 48, 62, TOK)
    endpgm(a, 48, 10, 1)

if __name__ == '__main__':
    out = sys.argv[1]
    a = Asm()
    a.raw(f'.globl {NAME}\n.p2align 8\n.type {NAME},@function\n{NAME}:')
    if PROF:
        for i in range(NST): a.I(f's_mov_b32 s{64+2*i}, 0')
        a.I('s_mov_b32 s60, 0')
    stamp(a, 0)
    a.I('s_load_dwordx16 s[4:19], s[0:1], 0\n s_load_dwordx2 s[20:21], s[0:1], 104\n s_load_dwordx8 s[48:55], s[0:1], 64')
    if PREFETCH:
        a.I(f's_cmp_ge_u32 s2, {8*PREFETCH}\n s_cbranch_scc1 L_nopf')
        a.I('s_getpc_b64 s[62:63]')
        a.label('L_pc', keep=True)
        a.I(f'v_lshlrev_b32 v1, 7, v0\n v_cmp_gt_u32 vcc, L_code_end-L_pc, v1\n s_and_saveexec_b64 s[58:59], vcc\n s_cbranch_execz L_pf2')
        a.I(f'global_load_dword v255, v1, s[62:63]')
        a.label('L_pf2', keep=True)
        a.I('s_mov_b64 exec, -1')
        a.label('L_nopf', keep=True); a.vm = []
    lo, hi = ('L_a_pre', 'L_b_pre') if AFIRST else ('L_b_pre', 'L_a_pre')
    a.I(f's_cmp_ge_u32 s2, 512\n s_cbranch_scc1 L_exit')
    if E('SEP', 0):
        a.I('s_bfe_u32 s4, s2, 0x10003\n s_bfe_u32 s5, s2, 0x10008\n s_and_b32 s2, s2, 0xf7\n s_lshl_b32 s4, s4, 8\n s_lshl_b32 s5, s5, 3\n s_or_b32 s2, s2, s4\n s_or_b32 s2, s2, s5')
    a.I('s_cmp_lt_u32 s2, 256')
    a.I('s_cbranch_scc0 L_b_pre' if AFIRST else 's_cbranch_scc1 L_b_pre')
    A = RoleA()
    A.pre(a)
    A.body(a)
    nb = a.ninst
    a.label('L_exit'); a.I('s_endpgm')
    role_b(a)
    a.raw('L_code_end:')
    nv = (a.maxv + 1 + 3) // 4 * 4
    print('vgpr', a.maxv + 1, 'sgpr', a.maxs + 1, 'ninst', nb, a.ninst - nb, 'lds', LDS_BYTES, file=sys.stderr)
    launch = f'; @launch kernel={NAME} grid=(512,1,1) block=(256,1,1) lds={LDS_BYTES}' if os.environ.get('LIST') else f'; @launch grid=(512,1,1) block=(256,1,1) lds={LDS_BYTES}'
    hdr = f'''; gated_mix( S4D conv , GFNet spectral filter ) -- generated by gen/gen13.py
{launch}
.amdgcn_target "amdgcn-amd-amdhsa--gfx950"
.text
'''
    kd = f'''.section .rodata,"a"
.p2align 6
.amdhsa_kernel {NAME}
  .amdhsa_next_free_vgpr {nv}
  .amdhsa_next_free_sgpr {a.maxs + 1}
  .amdhsa_accum_offset {nv}
  .amdhsa_group_segment_fixed_size 0
  .amdhsa_kernarg_size 112
  .amdhsa_user_sgpr_count 2
  .amdhsa_user_sgpr_kernarg_segment_ptr 1
  .amdhsa_system_sgpr_workgroup_id_x 1
.end_amdhsa_kernel
'''
    open(out, 'w').write(hdr + a.text() + kd)
```

```python
import re
class AsmError(Exception): pass

def regs_of(tok):
    tok = tok.strip()
    neg = False
    t = tok
    if t.startswith('-'): t = t[1:]
    if t.startswith('abs(') and t.endswith(')'): t = t[4:-1]
    if t.startswith('|') and t.endswith('|'): t = t[1:-1]
    m = re.fullmatch(r'([vsa])(\d+)', t)
    if m: return [(m.group(1), int(m.group(2)))]
    m = re.fullmatch(r'([vsa])\[(\d+):(\d+)\]', t)
    if m: return [(m.group(1), i) for i in range(int(m.group(2)), int(m.group(3)) + 1)]
    if t == 'vcc': return [('s', 106), ('s', 107)]
    if t == 'vcc_lo': return [('s', 106)]
    if t == 'vcc_hi': return [('s', 107)]
    if t == 'exec': return [('s', 126), ('s', 127)]
    if t == 'm0': return [('s', 124)]
    return []

TRANS = ('v_exp_f32', 'v_log_f32', 'v_rcp_f32', 'v_rsq_f32', 'v_sqrt_f32', 'v_sin_f32', 'v_cos_f32')

class Ins:
    def __init__(self, text):
        self.text = text
        code = text.split(';')[0].strip()
        parts = code.split(None, 1)
        self.op = parts[0]
        rest = parts[1] if len(parts) > 1 else ''
        ops, cur, depth = [], '', 0
        for ch in rest:
            if ch in '[(': depth += 1
            if ch in '])': depth -= 1
            if ch == ',' and depth == 0:
                ops.append(cur.strip()); cur = ''
            else: cur += ch
        if cur.strip(): ops.append(cur.strip())
        mods = ''
        if ops:
            sp = ops[-1].split(None, 1)
            ops[-1] = sp[0]
            mods = sp[1] if len(sp) > 1 else ''
        self.ops, self.mods = ops, mods
        op = self.op
        self.w, self.r = [], []
        self.kind = 'other'
        R = lambda i: regs_of(ops[i]) if i < len(ops) else []
        allr = lambda a: [x for i in range(a, len(ops)) for x in R(i)]
        if op.startswith('v_mfma'):
            self.kind = 'mfma'; self.w = R(0); self.r = allr(1)
            self.A, self.B, self.C = R(1), R(2), R(3)
            self.passes = 8 if '32x32' in op else 4
        elif op.startswith('v_'):
            self.kind = 'trans' if op.replace('_e32','').replace('_e64','') in TRANS else 'valu'
            if op.startswith('v_swap') or 'permlane16_swap' in op or 'permlane32_swap' in op:
                self.w = R(0) + R(1); self.r = R(0) + R(1)
            elif '_co_' in op:
                self.w = R(0) + R(1); self.r = allr(2)
            else:
                self.w = R(0); self.r = allr(1)
                if op.startswith(('v_fmac', 'v_dot2c', 'v_pk_fmac', 'v_writelane')): self.r += R(0)
                if '_dpp' in op: self.r += R(0)
                if op.startswith('v_cmpx'): self.w += [('s',126),('s',127)]
        elif op.startswith('ds_'):
            self.kind = 'ds'
            if op.startswith(('ds_read', 'ds_bpermute', 'ds_permute', 'ds_swizzle')) or '_rtn' in op:
                self.w = R(0); self.r = allr(1)
            else: self.r = allr(0)
        elif op.startswith(('buffer_', 'global_')):
            self.kind = 'vmem'
            self.lds = ' lds' in (' ' + mods) or '_lds_' in op
            if 'load' in op and not self.lds:
                self.w = R(0); self.r = allr(1)
            elif 'atomic' in op and 'sc0' in mods:
                self.w = R(0); self.r = allr(0)
            else: self.r = allr(0)
            if self.lds: self.r += [('s', 124)]
            self.store = 'store' in op
            self.wide = self.store and ('x3' in op or 'x4' in op)
            if self.store:
                self.data = R(0) if op.startswith('buffer_') else R(1)
        elif op.startswith(('s_load', 's_buffer_load', 's_memtime', 's_memrealtime')):
            self.kind = 'smem'; self.w = R(0); self.r = allr(1)
        elif op.startswith('s_'):
            self.kind = 'salu'
            if op.startswith(('s_cmp', 's_bitcmp', 's_cbranch', 's_branch', 's_waitcnt', 's_nop', 's_barrier', 's_endpgm', 's_sleep', 's_setprio')):
                self.r = allr(0)
            else:
                self.w = R(0); self.r = allr(1)
                if 'saveexec' in op: self.w += [('s',126),('s',127)]
    def states(self):
        if self.op == 's_nop': return int(self.ops[0], 0) + 1
        return 1

class Asm:
    def __init__(self):
        self.out = []
        self.reset()
        self.maxv = 0; self.maxs = 0; self.maxa = -1
        self.ninst = 0
    def reset(self):
        self.hist = []
        self.vm = []
        self.lg = []
    def raw(self, text): self.out.append(text)
    def comment(self, t): self.out.append('    ; ' + t)
    def label(self, name, keep=False):
        self.out.append(name + ':')
        if not keep: self.reset()
    def _emit(self, ins):
        self.out.append('    ' + ins.text)
        self.hist.append(ins)
        if len(self.hist) > 40: self.hist.pop(0)
        self.ninst += 1
        for k, i in ins.w + ins.r:
            if k == 'v': self.maxv = max(self.maxv, i)
            if k == 'a': self.maxa = max(self.maxa, i)
            if k == 's' and i < 102: self.maxs = max(self.maxs, i)
    def _need(self, ins):
        need = 0
        dist = 0
        rs, ws = set(ins.r), set(ins.w)
        for p in reversed(self.hist):
            req = 0
            pw = set(p.w)
            if p.kind in ('valu', 'trans'):
                pv = {x for x in pw if x[0] != 's'}; ps = {x for x in pw if x[0] == 's'}
                if ins.kind == 'mfma' and pv & rs: req = max(req, 2)
                if ins.kind == 'mfma' and (('s',126) in ps): req = max(req, 4)
                if p.kind == 'trans' and ins.kind in ('valu', 'mfma') and pv & rs: req = max(req, 1)
                if p.kind == 'trans' and ins.kind in ('ds', 'vmem') and pv & rs: req = max(req, 1)
                if ins.kind in ('valu', 'trans'):
                    if ('_dpp' in ins.op or 'permlane' in ins.op) and pv & rs: req = max(req, 2)
                    if ('readlane' in ins.op or 'readfirstlane' in ins.op) and pv & rs: req = max(req, 1)
                    if ps & rs: req = max(req, 4 if ('readlane' in ins.op or 'writelane' in ins.op) else 2)
                    if '_dpp' in ins.op and ('s',126) in ps: req = max(req, 5)
                    if ('op_sel' in p.mods and not p.op.startswith('v_pk')) and pv & (rs | ws): req = max(req, 1)
                if ins.kind == 'vmem' and ps & rs: req = max(req, 5)
                if ins.kind == 'salu' and ps & rs: req = max(req, 1)
            if p.kind == 'mfma':
                D = pw
                big = 12 if p.passes == 8 else 8
                if ins.kind == 'mfma':
                    if D & (set(ins.A) | set(ins.B)): req = max(req, big)
                    if D & set(ins.C):
                        if not (p.w == ins.C and p.passes == ins.passes): req = max(req, 10 if p.passes == 8 else 6)
                    elif D & ws and not (p.w == ins.w): req = max(req, big)
                elif ins.kind in ('valu', 'trans', 'ds', 'vmem'):
                    if D & (rs | ws): req = max(req, big)
                if ins.kind in ('valu', 'trans') and set(p.C) & ws: req = max(req, 7 if p.passes == 8 else 3)
            if p.kind == 'vmem' and getattr(p, 'wide', False) and set(p.data) & ws:
                req = max(req, 2)
            if p.kind == 'salu' and ('s',124) in pw and ((ins.kind == 'vmem' and ins.lds) or 'addtid' in ins.op): req = max(req, 1)
            if p.op.startswith('v_dot') and ins.kind in ('valu','trans','mfma','ds','vmem') and pw & (rs | ws):
                if not (ins.op == p.op and not (pw & set(x for o in ins.ops[1:3] for x in regs_of(o)))): req = max(req, 3)
            need = max(need, req - dist)
            dist += p.states()
            if dist > 24: break
        return need
    def I(self, text):
        for line in text.strip().split('\n'):
            line = line.strip()
            if not line: continue
            if line.startswith(';'): self.comment(line[1:].strip()); continue
            self._I(line)
    def _I(self, text):
        ins = Ins(text)
        touched = set(ins.r) | set(ins.w)
        if ins.op == 's_waitcnt':
            m = re.search(r'vmcnt\((\d+)\)', text)
            if m:
                n = int(m.group(1)); self.vm = self.vm[len(self.vm) - n:] if n < len(self.vm) else self.vm
                if n == 0: self.vm = []
            m = re.search(r'lgkmcnt\((\d+)\)', text)
            if m:
                n = int(m.group(1)); self.lg = self.lg[len(self.lg) - n:] if n < len(self.lg) else self.lg
                if n == 0: self.lg = []
            self._emit(ins); return
        wv = wl = None
        for idx, regs in enumerate(self.vm):
            if regs & touched: wv = len(self.vm) - 1 - idx
        for idx, (kind, regs) in enumerate(self.lg):
            if regs & touched: wl = len(self.lg) - 1 - idx
        if wl is not None and any(k == 'smem' for k, _ in self.lg): wl = 0
        if wv is not None or wl is not None:
            s = 's_waitcnt'
            if wv is not None: s += f' vmcnt({min(wv, 63)})'
            if wl is not None: s += f' lgkmcnt({min(wl, 15)})'
            self._I(s)
        n = self._need(ins)
        while n > 0:
            k = min(n, 16)
            self._emit(Ins(f's_nop {k - 1}')); n -= k
        self._emit(ins)
        if ins.kind == 'vmem': self.vm.append(set(ins.w))
        if ins.kind == 'ds': self.lg.append(('ds', set(ins.w)))
        if ins.kind == 'smem': self.lg.append(('smem', set(ins.w)))
    def text(self): return '\n'.join(self.out) + '\n'

class VAlloc:
    def __init__(self, start=1, limit=256):
        self.free = set(range(start, limit)); self.limit = limit
    def get(self, n=1, align=None):
        if align is None: align = 2 if n > 1 else 1
        for b in range(0, self.limit, align):
            if all((b + i) in self.free for i in range(n)):
                for i in range(n): self.free.discard(b + i)
                return b
        raise AsmError('out of vgprs')
    def put(self, b, n=1):
        for i in range(n):
            assert (b + i) not in self.free
            self.free.add(b + i)
def v(b, n=1): return f'v{b}' if n == 1 else f'v[{b}:{b + n - 1}]'
def ar(b, n=1): return f'a{b}' if n == 1 else f'a[{b}:{b + n - 1}]'
def s(b, n=1): return f's{b}' if n == 1 else f's[{b}:{b + n - 1}]'
import struct
def f32(x): return '0x%08x' % struct.unpack('<I', struct.pack('<f', x))[0]

def _lat(p, c, kind):
    if kind == 'raw':
        if p.kind == 'mfma':
            if c.kind == 'mfma' and p.w == c.C and not (set(p.w) & (set(c.A) | set(c.B))): return 16
            return 44
        if p.kind == 'ds': return 120
        if p.kind == 'vmem': return 600
        if p.kind == 'trans': return 16 if c.kind != 'mfma' else 20
        if p.kind == 'valu':
            if c.kind == 'mfma' or 'dpp' in c.op or 'permlane' in c.op: return 12
            if any(x[0] == 's' for x in p.w): return 12
            return 4
        return 4
    if kind == 'war':
        if p.kind == 'mfma' and set(p.C) & set(c.w) and c.kind != 'mfma': return 16
        return 4
    if kind == 'waw':
        if p.kind == 'mfma': return 44 if c.kind != 'mfma' else 16
        return 4
    return 4
def _issue(i):
    if i.kind == 'trans' or i.op.startswith('v_swap'): return 8
    if i.kind == 'mfma': return 8
    return 4
def schedule(lines):
    ins = [Ins(l) for l in lines]
    n = len(ins)
    for i in ins:
        if i.kind == 'salu': i.r = i.r + [('c', 0)]; i.w = i.w + [('c', 0)]
        if i.kind == 'ds':
            mt = re.search(r';@(\w+)', i.text)
            if mt:
                tag = ('m', mt.group(1))
                if i.op.startswith('ds_read'): i.r = i.r + [tag]
                else: i.r = i.r + [tag]; i.w = i.w + [tag]
            else: i.r = i.r + [('m', 0)]; i.w = i.w + [('m', 0)]
            if 'addtid' in i.op: i.r = i.r + [('s', 124)]
        if i.kind == 'vmem': i.r = i.r + [('m', 1)]; i.w = i.w + [('m', 1)]
        if i.op.startswith('v_cndmask') and len(i.ops) == 3: i.r = i.r + [('s', 106), ('s', 107)]
    preds = [[] for _ in range(n)]; succs = [[] for _ in range(n)]
    lastw = {}; readers = {}
    for k, i in enumerate(ins):
        dep = {}
        for x in i.r:
            if x in lastw:
                l = 4 if x[0] in 'cm' else _lat(ins[lastw[x]], i, 'raw')
                dep[lastw[x]] = max(dep.get(lastw[x], 0), l)
        for x in i.w:
            if x in lastw and x[0] not in 'cm': dep[lastw[x]] = max(dep.get(lastw[x], 0), _lat(ins[lastw[x]], i, 'waw'))
            for r in readers.get(x, []):
                if r != k: dep[r] = max(dep.get(r, 0), _lat(ins[r], i, 'war'))
        for p, l in dep.items(): preds[k].append((p, l)); succs[p].append((k, l))
        for x in i.r: readers.setdefault(x, []).append(k)
        for x in i.w: lastw[x] = k; readers[x] = []
    prio = [0] * n
    for k in range(n - 1, -1, -1):
        mt = re.search(r';!(\d+)', ins[k].text)
        prio[k] = _issue(ins[k]) + max([l + prio[s] for s, l in succs[k]] + [int(mt.group(1)) if mt else 0])
    done = [None] * n; npred = [len(p) for p in preds]
    ready = [k for k in range(n) if npred[k] == 0]
    t = 0; mf_free = 0; ds_free = 0; order = []
    while ready:
        def est(k):
            e = max([done[p] + l for p, l in preds[k]], default=0)
            if ins[k].kind == 'mfma' or ins[k].op.startswith('v_pk'): e = max(e, mf_free)
            if ins[k].kind == 'ds': e = max(e, ds_free)
            return e
        avail = [k for k in ready if est(k) <= t]
        if avail: k = max(avail, key=lambda k: (prio[k], -k))
        else:
            k = min(ready, key=lambda k: (est(k), -prio[k])); t = est(k)
        done[k] = t; order.append(k); ready.remove(k)
        if ins[k].kind == 'mfma': mf_free = t + 4 * ins[k].passes
        if ins[k].kind == 'ds': ds_free = t + (16 if ('b128' in ins[k].op or 'read2' in ins[k].op) else 8)
        t += _issue(ins[k])
        for s_, l in succs[k]:
            npred[s_] -= 1
            if npred[s_] == 0: ready.append(s_)
    return [lines[k] for k in order], t

class Block:
    def __init__(self, a, name=''): self.a = a; self.l = []; self.name = name
    def I(self, text):
        for line in text.strip().split('\n'):
            line = line.strip()
            if line and not line.startswith(';'):
                assert not line.startswith(('s_waitcnt', 's_barrier', 's_cbranch', 's_branch')) and 'exec' not in line, line
                self.l.append(line)
    def emit(self, verbose=False):
        out, t = schedule(self.l)
        if verbose:
            import sys; print(f'block {self.name}: {len(out)} instrs, est {t} cycles', file=sys.stderr)
        for x in out: self.a.I(x)
        self.l = []

def emit_split(b, frac, mid, verbose=False):
    out, t = schedule(b.l)
    k = int(len(out) * frac)
    for x in out[:k]: b.a.I(x)
    mid()
    for x in out[k:]: b.a.I(x)
    b.l = []
```

```python
import sys, math, os
from asmlib import *
E = lambda k, d: int(os.environ.get(k, str(d)))
BS = 12288 + E('BSPAD', 192)
Y_OFF  = 0x000000
V_OFF  = 0x310000
AW_OFF = 0x620000
UT_OFF = 0x930000
WT_OFF = 0xC40000
EP_OFF = 0xF60000
WS_BYTES = 0x1000000
LOG2E = 1.4426950408889634
TOKC = 0x9E3779B9
SPIN = 30000
PROF = E('PROF', 0); PREFETCH = E('PREFETCH', 1); BPRIO = E('BPRIO', 2); WPOS = E('WPOS', 1); BACKOFF = E('BACKOFF', 4)
AFIRST = E('AFIRST', 1); WPF = E('WPF', 2)
NAME = 'gated_mix__ssm_conv_s4d__spectral_gfnet__prompt_kernel'
DBG_OFF = 0xFC0000
NST = 15
def stamp(a, i, wait=True):
    if PROF:
        op = 's_memtime' if PROF == 2 else 's_memrealtime'
        if wait: a.I(f'{op} s[{64+2*i}:{65+2*i}]\n s_waitcnt lgkmcnt(0)')
        else: a.I(f's_memrealtime s[{64+2*i}:{65+2*i}]')
def endpgm(a, srdb, last, role):
    if PROF:
        stamp(a, last)
        a.I('s_waitcnt vmcnt(0)')
        stamp(a, last + 1)
        a.I('s_mov_b64 exec, 1')
        for i in range(16): a.I(f'v_mov_b32 v{4+i}, s{64+2*i}' if i < NST else f'v_mov_b32 v{4+i}, s60')
        a.I(f's_and_b32 s61, s2, 255\n s_lshl_b32 s61, s61, 2\n s_add_u32 s61, s61, s3\n s_lshl_b32 s61, s61, 6\n s_add_u32 s61, s61, {DBG_OFF + role*65536}')
        a.I('v_mov_b32 v1, 0')
        for k in range(4): a.I(f'buffer_store_dwordx4 v[{4+4*k}:{7+4*k}], v1, s[{srdb}:{srdb+3}], s61 offen offset:{16*k}')
    a.I('s_endpgm')
def srd(a, d, b, nbytes):
    a.I(f's_mov_b32 s{d}, s{b}\n s_mov_b32 s{d+1}, s{b+1}\n s_mov_b32 s{d+2}, {nbytes}\n s_mov_b32 s{d+3}, 0x00020000')
def task_of(a, dst, tmp):
    a.I(f's_and_b32 s{dst}, s2, 7\n s_lshl_b32 s{dst}, s{dst}, 5\n s_bfe_u32 s{tmp}, s2, 0x50003\n s_or_b32 s{dst}, s{dst}, s{tmp}')
def lanes(a, V):
    n, q = V.get(), V.get()
    a.I(f'v_lshrrev_b32 {v(q)}, 6, v0')
    a.I(f'v_and_b32 {v(n)}, 15, v0')
    a.I(f'v_readfirstlane_b32 s3, {v(q)}')
    a.I(f'v_bfe_u32 {v(q)}, v0, 4, 2')
    return n, q
def cm1(a, re, im, c, s_, t1, t2, sign):
    a.I(f'v_mul_f32 {v(t1)}, {v(im)}, {v(s_)}\n v_mul_f32 {v(t2)}, {v(re)}, {v(s_)}')
    a.I(f'v_fma_f32 {v(re)}, {v(re)}, {v(c)}, {"-" if sign > 0 else ""}{v(t1)}')
    a.I(f'v_fma_f32 {v(im)}, {v(im)}, {v(c)}, {"-" if sign < 0 else ""}{v(t2)}')
def cmul_tw(a, re, im, c, s_, t1, t2, sign):
    cm1(a, re, im, c, s_, t1, t2, sign); cm1(a, re+1, im+1, c+1, s_+1, t1+1, t2+1, sign)
def mfma(a, d, A, B, c):
    f = lambda x: x if isinstance(x, str) else v(x, 4)
    a.I(f'v_mfma_f32_16x16x32_bf16 {v(d,4)}, {f(A)}, {f(B)}, {f(c)}')
def cvt(a, d, x, y, nx=False, ny=False):
    a.I(f'v_cvt_pk_bf16_f32 {v(d)}, {"-" if nx else ""}{v(x)}, {"-" if ny else ""}{v(y)}')
def chk(a, g, tok):
    a.I(f'v_add3_u32 {v(g+3)}, {v(g)}, {v(g+1)}, {v(g+2)}\n v_add_u32 {v(g+3)}, s{tok}, {v(g+3)}')
_lab = [0]
def poll_check(a, loads, R, tmp, tok, backoff=None, young=0):
    _lab[0] += 1
    L = f'L_poll{_lab[0]}'
    bo = BACKOFF if backoff is None else backoff
    Gs = R if isinstance(R, list) else [R, R+4, R+8]
    a.I(f's_mov_b32 s59, {SPIN}')
    a.label(L, keep=True)
    for k, g in enumerate(Gs):
        a.I(f's_waitcnt vmcnt({len(Gs)-1-k+young})')
        a.I(f'v_add3_u32 {v(tmp+1)}, {v(g)}, {v(g+1)}, {v(g+2)}\n v_sub_u32 {v(tmp+1)}, {v(g+3)}, {v(tmp+1)}')
        a.I(f'v_xor_b32 {v(tmp)}, s{tok}, {v(tmp+1)}' if k == 0 else f'v_xor_b32 {v(tmp+1)}, s{tok}, {v(tmp+1)}\n v_or_b32 {v(tmp)}, {v(tmp)}, {v(tmp+1)}')
    a.I(f'v_cmp_ne_u32 vcc, 0, {v(tmp)}\n s_cbranch_vccz {L}_out\n s_sub_u32 s59, s59, 1\n s_cbranch_scc1 {L}_out\n s_mov_b64 exec, vcc')
    if bo: a.I(f's_sleep {bo}')
    for x in loads: a.I(x)
    if PROF: a.I('s_add_u32 s60, s60, 1')
    if young: a.I('s_waitcnt vmcnt(0)')
    a.I(f's_branch {L}')
    a.label(L + '_out', keep=True)
    a.vm = []
    a.I('s_mov_b64 exec, -1')
def slotmap(a, V, t0, t1, sbase):
    CL = V.get(3, 1); G16 = V.get(3, 1); A64 = V.get(3, 1); A32 = V.get(3, 1)
    a.I(f'v_and_b32 {v(t0)}, 63, v0')
    for k in range(3):
        if k: a.I(f'v_add_u32 {v(t0)}, 64, {v(t0)}')
        a.I(f'v_mul_u32_u24 {v(CL+k)}, 21846, {v(t0)}\n v_lshrrev_b32 {v(CL+k)}, 16, {v(CL+k)}')
        a.I(f'v_mul_u32_u24 {v(t1)}, 3, {v(CL+k)}\n v_sub_u32 {v(t1)}, {v(t0)}, {v(t1)}\n v_lshlrev_b32 {v(G16+k)}, 4, {v(t1)}')
        a.I(f'v_mul_u32_u24 {v(A32+k)}, 48, {v(CL+k)}\n v_add_u32 {v(A32+k)}, s{sbase}, {v(A32+k)}')
        a.I(f'v_lshl_add_u32 {v(A64+k)}, {v(t1)}, 3, {v(A32+k)}\n v_lshl_add_u32 {v(A32+k)}, {v(t1)}, 2, {v(A32+k)}')
    return CL, G16, A64, A32
def publish(a, img, R, A64, A32, vl16, srdb, soff, tok, tag='', w=0):
    for k in range(3):
        a.I(f'ds_read_b64 {v(R+4*k,2)}, {v(A64+k)} offset:{img} {tag}\n ds_read_b32 {v(R+4*k+2)}, {v(A32+k)} offset:{img+24} {tag}')
    for k in range(3):
        chk(a, R+4*k, tok)
        a.I(f'buffer_store_dwordx4 {v(R+4*k,4)}, {v(vl16)}, s[{srdb}:{srdb+3}], s{soff} offen offset:{1024*k} sc1' + (f' ;!{w}' if w else ''))
def unpack(a, img, R, A64, A32, tag=''):
    for k in range(3):
        a.I(f'ds_write_b64 {v(A64+k)}, {v(R+4*k,2)} offset:{img} {tag}\n ds_write_b32 {v(A32+k)}, {v(R+4*k+2)} offset:{img+24} {tag}')


RS = 544
TB_CH = 53 * RS
KF_OFF = 2 * TB_CH + 64
KF_CH = 2368 + 64
K8_OFF = KF_OFF + 2 * KF_CH
K8_CH = 512
LU = K8_OFF + 2 * K8_CH
U_CH = 4608
LK = 0
KC = 2240
LRED = 4 * KC
LAO = LRED + 16384
BOFF = (LU + 2 * U_CH + 255) // 256 * 256
LX = 0; LI0 = 8704; LI1 = LI0 + 12288; LW = LI1 + 12288; LG = LW + 256*80; LDUM = LG + 64
LDS_BYTES = BOFF + LDUM + 320
VERB = E('VERB', 0)
def cmul(a, d, x, y, t):
    if E('PKCHAIN', 1):
        a.I(f'v_pk_mul_f32 {v(t,2)}, {v(x,2)}, {v(y,2)} op_sel_hi:[0,1]')
        a.I(f'v_pk_fma_f32 {v(d,2)}, {v(x,2)}, {v(y,2)}, {v(t,2)} op_sel:[1,1,0] op_sel_hi:[1,0,1] neg_lo:[1,0,0]')
    else:
        a.I(f'v_mul_f32 {v(t)}, {v(x)}, {v(y)}\n v_mul_f32 {v(t+1)}, {v(x)}, {v(y+1)}')
        a.I(f'v_fma_f32 {v(d)}, -{v(x+1)}, {v(y+1)}, {v(t)}\n v_fma_f32 {v(d+1)}, {v(x+1)}, {v(y)}, {v(t+1)}')
def prio(a, name, d): a.I(f's_setprio {E(name, d)}')
def bar(a): a.I('s_waitcnt lgkmcnt(0)\n s_barrier')

def role_b(a):
    V = VAlloc(1, 255)
    TASK, KL, TOK, SWB, WS = 30, 31, 57, 58, 44
    a.label('L_b'); a.lg = [('smem', {('s', i) for i in range(4, 30)})]
    prio(a, 'B0', 1)
    task_of(a, TASK, KL)
    n, q = lanes(a, V)
    t0 = V.get(); t1 = V.get(); TM = V.get(2, 1)
    vl16 = V.get()
    WR = V.get(4, 4); WI = V.get(4, 4); FR_ = V.get(4, 4); FI_ = V.get(4, 4); GW = V.get(8, 4); WNR = V.get(2)
    assert FI_ == FR_ + 4 and WI == WR + 4
    XA = V.get(32, 4); ACC = V.get(32, 4); T = V.get(16)
    POOL = V.get(120, 4)
    base = V.get(); fN = V.get()
    C1 = POOL; TC = POOL + 16; TS = POOL + 32; C2 = POOL + 48; CN = POOL + 96; A2 = POOL + 100
    f1, kH, fF, fK, sgn = (GW + i for i in range(5))
    a.I(f'v_and_b32 {v(vl16)}, 63, v0\n v_lshlrev_b32 {v(vl16)}, 4, {v(vl16)}')
    a.I('s_waitcnt lgkmcnt(0)'); stamp(a, 1)
    srd(a, WS, 28, WS_BYTES)
    a.I(f's_add_u32 s28, s28, {EP_OFF}\n s_addc_u32 s29, s29, 0\n s_load_dword s{TOK}, s[28:29], 0')
    srd(a, 4, 20, 1052672); srd(a, 8, 22, 1052672); srd(a, 12, 24, 1024); srd(a, 16, 26, 2097152)
    b = Block(a, 'k1')
    b.I(f'v_lshrrev_b32 {v(f1)}, 3, {v(n)}\n s_lshl_b32 s56, s3, 1\n v_add_u32 {v(f1)}, s56, {v(f1)}\n v_and_b32 {v(kH)}, 7, {v(n)}')
    b.I(f'v_cvt_f32_u32 {v(fF)}, {v(f1)}\n v_cvt_f32_u32 {v(fK)}, {v(kH)}')
    b.I(f'v_and_b32 {v(t0)}, 1, {v(q)}\n v_lshlrev_b32 {v(t0)}, 2, {v(t0)}\n v_mul_u32_u24 {v(t0)}, {v(t0)}, {v(f1)}')
    b.I(f'v_and_b32 {v(t1)}, 2, {v(q)}\n v_mad_u32_u24 {v(t0)}, {v(t1)}, {v(kH)}, {v(t0)}')
    b.I(f'v_cvt_f32_u32 {v(base)}, {v(t0)}\n v_mul_f32 {v(base)}, 0.125, {v(base)}')
    b.I(f'v_and_b32 {v(sgn)}, 1, {v(kH)}\n v_mul_u32_u24 {v(sgn)}, 0x8000, {v(sgn)}\n v_lshl_or_b32 {v(sgn)}, {v(sgn)}, 16, {v(sgn)}')
    for h in range(2):
        if h == 1: b.I(f'v_fmamk_f32 {v(base)}, {v(fK)}, {f32(0.125)}, {v(base)}')
        for r in range(1, 4): b.I(f'v_fmamk_f32 {v(T+8+r)}, {v(fF)}, {f32(0.125*r)}, {v(base)}')
        for r in range(4):
            ang = base if r == 0 else T + 8 + r
            b.I(f'v_cos_f32 {v(T+r)}, {v(ang)}\n v_sin_f32 {v(T+4+r)}, {v(ang)}')
        cvt(b, C1+2*h, T, T+1); cvt(b, C1+2*h+1, T+2, T+3)
        cvt(b, C1+8+2*h, T+4, T+5, True, True); cvt(b, C1+8+2*h+1, T+6, T+7, True, True)
    for i in range(4):
        b.I(f'v_xor_b32 {v(C1+4+i)}, {v(sgn)}, {v(C1+i)}\n v_xor_b32 {v(C1+12+i)}, {v(sgn)}, {v(C1+8+i)}')
    b.I(f's_and_b32 s56, s2, 7\n s_mul_i32 s56, s56, 514\n s_lshl_b32 s20, s{KL}, 4\n s_add_u32 s20, s20, s56')
    b.I(f's_mul_i32 s21, s{KL}, {8*4112}\n s_add_u32 s21, s21, s56\n s_and_b32 s21, s21, -4')
    b.I(f's_mul_i32 s22, s{TASK}, {BS}\n s_mul_i32 s{SWB}, s3, 3072\n s_add_u32 s22, s22, s{SWB}\n s_add_u32 s23, s22, {V_OFF}\n s_add_u32 s24, s22, {AW_OFF}\n s_add_u32 s25, s22, {UT_OFF}\n s_add_u32 s{SWB}, s{SWB}, {BOFF}')
    b.I(f's_mul_i32 s26, s{TASK}, 48\n s_mul_i32 s27, s3, {64*BS}\n s_add_u32 s27, s27, s26\n s_add_u32 s36, s27, {UT_OFF}')
    def tw_():
        b.I(f'v_mul_u32_u24 {v(t0)}, {v(kH)}, {v(q)}\n v_lshlrev_b32 {v(t0)}, 4, {v(t0)}\n v_mad_u32_u24 {v(t0)}, {v(f1)}, s{TASK}, {v(t0)}')
        b.I(f'v_cvt_f32_u32 {v(base)}, {v(t0)}\n v_mul_f32 {v(base)}, {f32(1/2048)}, {v(base)}')
        for t in range(4):
            for i in range(4):
                k = 16*t + i
                if k == 0: ang = base
                else:
                    ang = T + 4*t + i
                    b.I(f'v_fmamk_f32 {v(ang)}, {v(fK)}, {f32(k/512)}, {v(base)}')
                b.I(f'v_cos_f32 {v(TC+4*t+i)}, {v(ang)}\n v_sin_f32 {v(TS+4*t+i)}, {v(ang)}')
    def c2_():
        b.I(f'v_cvt_f32_u32 {v(fN)}, {v(n)}\n v_mul_u32_u24 {v(t0)}, {v(n)}, {v(q)}\n v_cvt_f32_u32 {v(base)}, {v(t0)}\n v_mul_f32 {v(base)}, {f32(1/16)}, {v(base)}')
        for t in range(2):
            TT = XA + 12*t
            for i in range(4):
                k = 16*t + i
                if k == 0: ang = base
                else:
                    ang = TT + 8 + i
                    b.I(f'v_fmamk_f32 {v(ang)}, {v(fN)}, {f32(k/64)}, {v(base)}')
                b.I(f'v_cos_f32 {v(TT+i)}, {v(ang)}\n v_sin_f32 {v(TT+4+i)}, {v(ang)}')
            c = [TT+i for i in range(4)]; s_ = [TT+4+i for i in range(4)]
            b0 = C2 + 6*t; b1 = C2 + 24 + 6*t
            cvt(b, b0+0, s_[0], s_[1], True, True); cvt(b, b0+2, c[0], c[1]); cvt(b, b0+4, s_[0], s_[1])
            cvt(b, b1+0, s_[0], c[1], True, True); cvt(b, b1+2, c[0], s_[1], False, True); cvt(b, b1+4, s_[0], c[1])
            cvt(b, b0+3, c[2], c[3]); cvt(b, b1+1, s_[2], c[3]); cvt(b, b1+5, s_[2], c[3], True, True)
            cvt(b, b0+1, s_[2], s_[3], True, True); cvt(b, b0+5, s_[2], s_[3]); cvt(b, b1+3, c[2], s_[3], True, False)
            for ct in range(2):
                for i in range(6): b.I(f'v_xor_b32 {v(C2+24*ct+6*t+12+i)}, {v(sgn)}, {v(C2+24*ct+6*t+i)}')
    K1A = E('K1A', 2)
    if K1A >= 1: tw_()
    if K1A >= 2: c2_()
    x0 = A2
    b.I(f'v_mov_b32 {v(x0)}, 0xbf803f80')
    b.I(f'v_cmp_eq_u32 vcc, 0, {v(n)}\n v_cndmask_b32 {v(CN)}, 0, {v(x0)}, vcc\n v_cndmask_b32 {v(CN+1)}, 0, {v(x0)}, vcc')
    b.I(f'v_cmp_eq_u32 vcc, 1, {v(n)}\n v_cndmask_b32 {v(CN+2)}, 0, {v(x0)}, vcc\n v_cndmask_b32 {v(CN+3)}, 0, {v(x0)}, vcc')
    vtr, vtu, vus, vys = FI_, FI_ + 1, FI_ + 2, FI_ + 3
    vyn, vpf = WNR, WNR + 1
    b.I(f'v_bfe_u32 {v(x0+1)}, v0, 2, 3\n v_mul_u32_u24 {v(vtr)}, 1056, {v(x0+1)}\n v_and_b32 {v(x0+3)}, 3, v0\n v_lshl_add_u32 {v(vtr)}, {v(x0+3)}, 3, {v(vtr)}\n v_add_u32 {v(vtr)}, {BOFF}, {v(vtr)}')
    b.I(f'v_bfe_u32 {v(x0+2)}, v0, 5, 1\n v_lshl_add_u32 {v(vtu)}, {v(x0+2)}, 5, {v(vtr)}\n s_lshl_b32 s56, s3, 8\n v_add_u32 {v(vtu)}, s56, {v(vtu)}\n v_lshl_add_u32 {v(vtr)}, {v(x0+2)}, 8, {v(vtr)}')
    b.I(f'v_lshrrev_b32 {v(x0+4)}, 1, {v(n)}\n v_lshl_add_u32 {v(x0+4)}, {v(x0+2)}, 3, {v(x0+4)}\n v_mul_u32_u24 {v(vus)}, 48, {v(x0+4)}\n v_and_b32 {v(x0+5)}, 1, v0\n v_lshl_add_u32 {v(vus)}, {v(x0+5)}, 4, {v(vus)}')
    b.I(f'v_bfe_u32 {v(x0+6)}, v0, 4, 1\n v_lshl_add_u32 {v(vus)}, {v(x0+6)}, 3, {v(vus)}\n v_add_u32 {v(vus)}, s{SWB}, {v(vus)}')
    b.I(f'v_mul_u32_u24 {v(vyn)}, 1536, {v(x0+2)}\n v_add_u32 {v(vyn)}, s{SWB}, {v(vyn)}\n v_mad_u32_u24 {v(vys)}, {v(n)}, 48, {v(vyn)}\n v_lshl_add_u32 {v(vys)}, {v(x0+6)}, 4, {v(vys)}')
    b.I(f'v_lshl_add_u32 {v(vyn)}, {v(n)}, 1, {v(vyn)}\n v_and_b32 {v(x0+7)}, 30, v0\n v_cmp_eq_u32 vcc, 0, {v(x0+7)}\n v_mov_b32 {v(x0+7)}, {BOFF + LDUM - (LI0+31*48+32)}\n v_cndmask_b32 {v(vyn)}, {v(x0+7)}, {v(vyn)}, vcc')
    b.I(f'v_lshrrev_b32 {v(vpf)}, 5, v0\n v_mul_u32_u24 {v(vpf)}, 4112, {v(vpf)}\n v_and_b32 {v(x0+8)}, 7, v0\n v_lshl_add_u32 {v(vpf)}, {v(x0+8)}, 7, {v(vpf)}')
    CL, G16, A64, A32 = slotmap(b, V, t0, t1, SWB)
    GA = V.get(3, 1)
    for k in range(3): b.I(f'v_mul_u32_u24 {v(GA+k)}, {BS}, {v(CL+k)}\n v_add_u32 {v(GA+k)}, {v(GA+k)}, {v(G16+k)}')
    b.emit(VERB)
    stamp(a, 2)
    a.I(f's_add_u32 s{TOK}, s{TOK}, {TOKC}')
    if WPF == 2:
        a.I('s_mov_b32 exec_lo, 0x1f\n s_mov_b32 exec_hi, 0x1f')
        a.I(f'buffer_load_dword {v(TM)}, {v(vpf)}, s[4:7], s21 offen\n buffer_load_dword {v(TM+1)}, {v(vpf)}, s[8:11], s21 offen')
        a.I('s_mov_b64 exec, -1')
    prio(a, 'B1', 3)
    a.I('s_barrier'); stamp(a, 3)
    b = Block(a, 'utpub')
    UQ = WR; UR = A2
    for k in range(4): b.I(f'ds_read_b64_tr_b16 {v(UQ+2*k,2)}, {v(vtu)} offset:{LX+64*k} ;@X')
    for k in range(4): b.I(f'ds_write_b64 {v(vus)}, {v(UQ+2*k,2)} offset:{LI1+768*k} ;@I1')
    publish(b, LI1, UR, A64, A32, vl16, WS, 25, TOK, ';@I1', 5000)
    if K1A < 1: tw_()
    if K1A < 2: c2_()
    b.emit(VERB)
    if WPF == 3:
        a.I('s_mov_b32 exec_lo, 0x1f\n s_mov_b32 exec_hi, 0x1f')
        a.I(f'buffer_load_dword {v(TM)}, {v(vpf)}, s[4:7], s21 offen\n buffer_load_dword {v(TM+1)}, {v(vpf)}, s[8:11], s21 offen')
        a.I('s_mov_b64 exec, -1')
    G1F = E('G1F', 100); G2F = E('G2F', 100)
    b = Block(a, 'phase1')
    for t in range(4):
        for g in range(2):
            for h in range(2):
                b.I(f'ds_read_b64_tr_b16 {v(XA+8*t+4*g+2*h,2)}, {v(vtr)} offset:{LX+512*g+128*h+32*t} ;@X')
    for t in range(4):
        for p in range(2): mfma(b, ACC+8*t+4*p, XA+8*t, C1+8*p, '0')
        for p in range(2): mfma(b, ACC+8*t+4*p, XA+8*t+4, C1+8*p+4, ACC+8*t+4*p)
    for t in range(4):
        re, im = ACC+8*t, ACC+8*t+4
        for i in range(4): cm1(b, re+i, im+i, TC+4*t+i, TS+4*t+i, T+8*(t&1)+2*i, T+8*(t&1)+2*i+1, -1)
        F = XA + 8*t
        cvt(b, F, re, re+1); cvt(b, F+2, im, im+1); cvt(b, F+1, re+2, re+3); cvt(b, F+3, im+2, im+3)
        mfma(b, A2+16, F, CN, '0' if t == 0 else A2+16)
        for ct in range(2):
            bb = C2 + 24*ct + 6*t
            mfma(b, A2+8*ct, F, bb+2, '0' if t == 0 else A2+8*ct)
            mfma(b, A2+8*ct+4, F, bb, '0' if t == 0 else A2+8*ct+4)
    cvt(b, T, A2+16, A2+16)
    b.I(f'ds_write_b16 {v(vyn)}, {v(T)} offset:{LI0+31*48+32} ;@I0')
    for ct in range(2):
        Oo = XA + 4 + 8*ct
        for i in range(4): cvt(b, Oo+i, A2+8*ct+i, A2+8*ct+4+i)
        b.I(f'ds_write_b128 {v(vys)}, {v(Oo,4)} offset:{LI0+768*ct} ;@I0')
    publish(b, LI0, ACC, A64, A32, vl16, WS, 22, TOK, ';@I0', 3000)
    vw = GW + 2
    b.I(f'v_mul_u32_u24 {v(vw)}, 4112, v0\n s_cmp_eq_u32 s{KL}, 31\n s_cselect_b64 s[42:43], -1, 1')
    out, _ = schedule(b.l); b.l = []
    for k, x in enumerate(out):
        if k == len(out) * G1F // 100: a.I('s_barrier')
        if k == len(out) * G2F // 100: a.I('s_barrier')
        a.I(x)
    stamp(a, 4)
    RU = XA + 12; R = XA
    uloads = [f'buffer_load_dwordx4 {v(RU+4*k,4)}, {v(GA+k)}, s[44:47], s36 offen sc1' for k in range(3)]
    loads = [f'buffer_load_dwordx4 {v(R+4*k,4)}, {v(GA+k)}, s[44:47], s27 offen sc1' for k in range(3)]
    def storm():
        a.I(f'v_mov_b32 {v(WNR)}, 0\n v_mov_b32 {v(WNR+1)}, 0')
        if not E('NOW', 0):
            a.I(f'buffer_load_dwordx4 {v(WR,4)}, {v(vw)}, s[4:7], s20 offen')
            a.I('s_mov_b64 exec, s[42:43]')
            a.I(f'buffer_load_short_d16_hi {v(WNR)}, {v(vw)}, s[4:7], s20 offen offset:16')
            a.I('s_mov_b64 exec, -1')
            a.I(f'buffer_load_dwordx4 {v(WI,4)}, {v(vw)}, s[8:11], s20 offen')
            a.I('s_mov_b64 exec, s[42:43]')
            a.I(f'buffer_load_short_d16_hi {v(WNR+1)}, {v(vw)}, s[8:11], s20 offen offset:16')
            a.I('s_mov_b64 exec, -1')
    if G1F >= 100: a.I('s_barrier')
    if G2F >= 100: a.I('s_barrier')
    prio(a, 'B2', 1)
    b = Block(a, 'p2c')
    TC2, TS2 = POOL + 88, POOL + 92
    b.I(f'v_mul_f32 {v(base)}, {f32(1/4)}, {v(base)}')
    for i in range(4):
        ang = T + 4*i + 2
        if i == 0: ang = base
        else: b.I(f'v_fmamk_f32 {v(ang)}, {v(fN)}, {f32(i/256)}, {v(base)}')
        b.I(f'v_mul_f32 {v(T+4*i+3)}, {f32(16.0)}, {v(ang)}')
        b.I(f'v_cos_f32 {v(T+4*i)}, {v(T+4*i+3)}\n v_sin_f32 {v(T+4*i+1)}, {v(T+4*i+3)}')
        b.I(f'v_cos_f32 {v(TC2+i)}, {v(ang)}\n v_sin_f32 {v(TS2+i)}, {v(ang)}')
        cvt(b, FR_+i, T+4*i, T+4*i+1); cvt(b, FI_+i, T+4*i+1, T+4*i, True, False)
    vy, vy1, vnn, vnw, vww = (POOL + 96 + i for i in range(5))
    b.I(f'v_lshlrev_b32 {v(t0)}, 6, {v(q)}\n v_add_u32 {v(t0)}, {v(t0)}, {v(n)}\n v_mul_u32_u24 {v(vnn)}, 48, {v(t0)}\n v_mul_u32_u24 {v(vnw)}, 80, {v(t0)}\n v_add_u32 {v(vnw)}, {BOFF}, {v(vnw)}')
    b.I(f's_lshl_b32 s40, s3, 3\n s_add_u32 s40, s40, {BOFF}\n v_add_u32 {v(vy)}, s40, {v(vnn)}\n v_add_u32 {v(vy1)}, 4, {v(vy)}\n v_add_u32 {v(vnn)}, {BOFF+32}, {v(vnn)}\n s_lshl_b32 s41, s3, 4\n v_add_u32 {v(vww)}, s41, {v(vnw)}')
    b.emit(VERB)
    stamp(a, 5)
    ORD = E('ORD', 0)
    if ORD == 0: a.I('s_barrier')
    storm()
    for x in loads: a.I(x)
    if ORD == 1: a.I('s_barrier')
    stamp(a, 6)
    prio(a, 'B3', 1)
    WO = POOL + 64
    for p in range(4):
        b.I(f'v_lshlrev_b32 {v(WO+4*p)}, 16, {v(WR+p)}\n v_lshlrev_b32 {v(WO+4*p+1)}, 16, {v(WI+p)}')
        b.I(f'v_and_b32 {v(WO+4*p+2)}, 0xffff0000, {v(WR+p)}\n v_and_b32 {v(WO+4*p+3)}, 0xffff0000, {v(WI+p)}')
    b.I(f's_cmp_eq_u32 s{KL}, 0\n s_cselect_b32 s56, 0.5, 1.0')
    b.I(f'v_mul_f32 {v(WO)}, s56, {v(WO)}\n v_mul_f32 {v(WO+1)}, s56, {v(WO+1)}')
    b.I(f'v_mul_f32 {v(WNR)}, 0.5, {v(WNR)}\n v_mul_f32 {v(WNR+1)}, 0.5, {v(WNR+1)}')
    b.I(f'v_mul_u32_u24 {v(t1)}, 80, v0\n v_add_u32 {v(t1)}, {BOFF}, {v(t1)}')
    for p in range(4): b.I(f'ds_write_b128 {v(t1)}, {v(WO+4*p,4)} offset:{LW+16*p} ;@W{p}')
    b.I(f'ds_write_b64 {v(t1)}, {v(WNR,2)} offset:{LW+64} ;@W4')
    b.emit(VERB)
    poll_check(a, loads, R, TM, TOK)
    unpack(a, LI1, R, A64, A32)
    stamp(a, 7)
    prio(a, 'B5', 3)
    bar(a); stamp(a, 8)
    CA = POOL + 84
    P1, PTC, PTS, P2 = POOL, POOL + 16, POOL + 32, POOL + 48
    fD = fN; b2 = WNR
    def p3c_1(b):
        if E('NOFILL', 0): return
        b.I(f's_lshl_b32 s56, s3, 4\n v_add_u32 {v(t1)}, s56, {v(n)}\n v_cvt_f32_u32 {v(fD)}, {v(t1)}')
        b.I(f'v_mul_u32_u24 {v(t1)}, {v(t1)}, {v(q)}\n v_cvt_f32_u32 {v(base)}, {v(t1)}\n v_mul_f32 {v(base)}, {f32(1/16)}, {v(base)}')
        for g in range(2):
            for i in range(4):
                k = 16*g + i
                if k: b.I(f'v_fmamk_f32 {v(T+8+i)}, {v(fD)}, {f32(k/64)}, {v(base)}')
            for i in range(4):
                ang = base if 16*g + i == 0 else T + 8 + i
                b.I(f'v_cos_f32 {v(T+i)}, {v(ang)}\n v_sin_f32 {v(T+4+i)}, {v(ang)}')
            for i in range(4):
                cvt(b, P1+8*g+i, T+i, T+4+i, False, True); cvt(b, P1+8*g+4+i, T+4+i, T+i)
    def p3c_2(b):
        if E('NOFILL', 0): return
        b.I(f'v_mul_u32_u24 {v(t1)}, s{TASK}, {v(q)}\n v_cvt_f32_u32 {v(base)}, {v(t1)}\n v_mul_f32 {v(base)}, {f32(1/1024)}, {v(base)}')
        b.I(f'v_cvt_f32_u32 {v(b2)}, s{TASK}\n v_fmamk_f32 {v(b2)}, {v(b2)}, {f32(1/2048)}, {v(base)}')
        for t in range(4):
            for i in range(4):
                kH_ = 4*(i & 1) + t
                bb = base if i < 2 else b2
                ang = T + 4*t + i
                if kH_ == 0: ang = bb
                else: b.I(f'v_fmamk_f32 {v(ang)}, {v(fD)}, {f32(kH_/512)}, {v(bb)}')
                b.I(f'v_cos_f32 {v(PTC+4*t+i)}, {v(ang)}\n v_sin_f32 {v(PTS+4*t+i)}, {v(ang)}')
    P2O = [0, 4, 14, 22]
    def p3c_3(b):
        if E('NOFILL', 0): return
        fB = fD
        b.I(f'v_and_b32 {v(t0)}, 7, {v(n)}\n v_cvt_f32_u32 {v(b2)}, {v(t0)}\n v_mul_u32_u24 {v(t0)}, {v(t0)}, {v(q)}\n v_cvt_f32_u32 {v(base)}, {v(t0)}\n v_mul_f32 {v(base)}, {f32(0.25)}, {v(base)}')
        b.I(f'v_fmamk_f32 {v(b2)}, {v(b2)}, {f32(0.125)}, {v(base)}')
        b.I(f'v_lshrrev_b32 {v(t0)}, 3, {v(n)}\n v_cvt_f32_u32 {v(fB)}, {v(t0)}')
        for t in range(4):
            TT = T
            for i in range(4):
                kH_ = 4*(i & 1) + t
                bb = base if i < 2 else b2
                ang = TT + 8 + i
                if kH_ == 0: ang = bb
                else: b.I(f'v_fmamk_f32 {v(ang)}, {v(fB)}, {f32(kH_/8)}, {v(bb)}')
                b.I(f'v_cos_f32 {v(TT+i)}, {v(ang)}\n v_sin_f32 {v(TT+4+i)}, {v(ang)}')
            d = P2 + P2O[t]
            cvt(b, d, TT, TT+1); cvt(b, d+1, TT+2, TT+3)
            cvt(b, d+2, TT+4, TT+5, True, True); cvt(b, d+3, TT+6, TT+7, True, True)
            if t > 0:
                cvt(b, d+4, TT, TT+1, True, True); cvt(b, d+5, TT+2, TT+3, True, True)
                cvt(b, d+6, TT+4, TT+5); cvt(b, d+7, TT+6, TT+7)
            if t in (1, 3):
                cvt(b, d+8, TT, TT+1); cvt(b, d+9, TT+2, TT+3)
    Y = XA; X = XA + 8
    D = ACC; WF = POOL + 48; T2 = POOL + 72; T3 = ACC + 24
    o = LI1 // 256
    b = Block(a, 'phase2')
    for c, ad in enumerate((vy, vy1, vnn)):
        for p in range(2): b.I(f'ds_read2st64_b32 {v(X+4*c+2*p,2)}, {v(ad)} offset0:{o+6*p} offset1:{o+6*p+3} ;@I1')
    for i in range(4): b.I(f'ds_read_b128 {v(WF+4*i,4)}, {v(vww)} offset:{LW+1280*i} ;@W')
    for i in range(4): b.I(f'ds_read_b64 {v(WF+16+2*i,2)}, {v(vnw)} offset:{LW+64+1280*i} ;@W')
    nc = E('NC', 3)
    for c in range(nc):
        mfma(b, D+8*c, X+4*c, FR_, '0'); mfma(b, D+8*c+4, X+4*c, FI_, '0')
    def stage(tw, sign, swap):
        for c in range(nc):
            re, im = D+8*c, D+8*c+4
            tt = (T, T2, T3)[c]
            for i in range(4):
                tc, ts = tw(c, i)
                cm1(b, re+i, im+i, tc, ts, tt+2*i, tt+2*i+1, sign)
            for i in range(4):
                if swap: cvt(b, X+4*c+i, im+i, re+i)
                else: cvt(b, X+4*c+i, re+i, im+i)
            yield c
    for c in stage(lambda c, i: (TC2+i, TS2+i), -1, False):
        mfma(b, D+8*c, FR_, X+4*c, '0'); mfma(b, D+8*c+4, FI_, X+4*c, '0')
    for c in stage(lambda c, i: (WF+4*i+2*c, WF+4*i+2*c+1) if c < 2 else (WF+16+2*i, WF+17+2*i), +1, True):
        mfma(b, D+8*c+4, X+4*c, FR_, '0'); mfma(b, D+8*c, X+4*c, FI_, '0')
    for c in stage(lambda c, i: (TC2+i, TS2+i), +1, True):
        mfma(b, D+8*c+4, FR_, X+4*c, '0'); mfma(b, D+8*c, FI_, X+4*c, '0')
    for i in range(4):
        cvt(b, Y+2*i, D+i, D+4+i); cvt(b, Y+2*i+1, D+8+i, D+12+i)
        b.I(f'ds_write_b64 {v(vy)}, {v(Y+2*i,2)} offset:{LI0+768*i} ;@Va{i}')
    for i in range(4):
        cvt(b, XA+20+i, D+16+i, D+20+i)
        b.I(f'ds_write_b32 {v(vnn)}, {v(XA+20+i)} offset:{LI0+768*i} ;@Vb{i}')
    emit_split(b, E('G5F', 20) / 100, lambda: a.I('s_barrier'))
    bar(a)
    publish(a, LI0, XA + 12, A64, A32, vl16, WS, 23, TOK)
    stamp(a, 9)
    prio(a, 'B4', 1)
    vgw = WR + 3
    a.I(f'v_and_b32 {v(vgw)}, 31, v0\n v_lshlrev_b32 {v(vgw)}, 5, {v(vgw)}')
    a.I(f'buffer_load_dwordx4 {v(GW,4)}, {v(vgw)}, s[12:15], 0 offen\n buffer_load_dwordx4 {v(GW+4,4)}, {v(vgw)}, s[12:15], 0 offen offset:16')
    b = Block(a, 'w2a')
    AA_ = WI
    for k in range(3):
        x0, x1 = FR_ + 2*k, FR_ + 2*k + 1
        b.I(f'v_and_b32 {v(x0)}, 7, {v(CL+k)}\n v_lshrrev_b32 {v(x1)}, 3, {v(CL+k)}')
        b.I(f'v_lshl_add_u32 {v(GA+k)}, {v(x0)}, 5, {v(x1)}\n v_mul_u32_u24 {v(GA+k)}, {BS}, {v(GA+k)}\n v_add_u32 {v(GA+k)}, {v(GA+k)}, {v(G16+k)}')
        b.I(f'v_lshl_add_u32 {v(AA_+k)}, {v(x1)}, 5, {v(x0)}\n v_mul_u32_u24 {v(AA_+k)}, {BS}, {v(AA_+k)}\n v_add_u32 {v(AA_+k)}, {v(AA_+k)}, {v(G16+k)}')
    b.I(f's_mul_i32 s27, s3, {8*BS}\n s_add_u32 s27, s27, s26\n s_add_u32 s20, s27, {AW_OFF}\n s_add_u32 s27, s27, {V_OFF}')
    p3c_1(b)
    if E('D2', 2) >= 1: p3c_2(b)
    if E('D2', 2) >= 2: p3c_3(b)
    b.emit(VERB)
    stamp(a, 10)
    for x in loads: a.I(x)
    b = Block(a, 'w2')
    if E('D2', 2) < 1: p3c_2(b)
    vr, vta, vst, sgn, vn, vgr, vj4 = FR_, FR_ + 1, FR_ + 2, FR_ + 3, FI_, FI_ + 1, FI_ + 2
    b.I(f'v_lshrrev_b32 {v(t0)}, 1, {v(n)}\n v_lshl_add_u32 {v(t0)}, {v(q)}, 5, {v(t0)}\n v_mul_u32_u24 {v(vr)}, 48, {v(t0)}\n v_and_b32 {v(t1)}, 1, v0\n v_lshl_add_u32 {v(vr)}, {v(t1)}, 4, {v(vr)}\n v_add_u32 {v(vr)}, {BOFF}, {v(vr)}')
    b.I(f'v_bfe_u32 {v(t0)}, v0, 1, 1\n v_bfe_u32 {v(vta)}, v0, 3, 3\n v_lshl_add_u32 {v(t0)}, {v(t0)}, 3, {v(vta)}\n v_mul_u32_u24 {v(vta)}, 48, {v(t0)}')
    b.I(f'v_bfe_u32 {v(t0)}, v0, 2, 1\n v_lshl_add_u32 {v(vta)}, {v(t0)}, 4, {v(vta)}\n v_lshl_add_u32 {v(vta)}, {v(t1)}, 3, {v(vta)}\n v_add_u32 {v(vta)}, s{SWB}, {v(vta)}')
    if E('D2', 2) < 2: p3c_3(b)
    b.I(f'v_and_b32 {v(t0)}, 7, {v(n)}\n v_lshlrev_b32 {v(vst)}, 18, {v(t0)}\n v_lshlrev_b32 {v(vgr)}, 2, {v(t0)}\n v_add_u32 {v(vgr)}, {BOFF}, {v(vgr)}\n v_lshrrev_b32 {v(t0)}, 3, {v(n)}\n v_lshl_add_u32 {v(vst)}, {v(t0)}, 7, {v(vst)}')
    b.I(f'v_lshrrev_b32 {v(t0)}, 4, v0\n v_lshl_add_u32 {v(vst)}, {v(t0)}, 3, {v(vst)}\n s_lshl_b32 s21, s{TASK}, 10')
    b.I(f'v_lshlrev_b32 {v(sgn)}, 31, v0\n v_mul_u32_u24 {v(vn)}, 96, {v(q)}\n v_add_u32 {v(vn)}, {BOFF + LI1 + 248*48 + 32}, {v(vn)}')
    GX = XA + 16; TG = ACC + 8
    b.I(f'v_lshrrev_b32 {v(vj4)}, 5, v0\n v_mul_u32_u24 {v(t1)}, 1056, {v(vj4)}\n v_add_u32 {v(t1)}, {v(t1)}, {v(vgw)}\n v_add_u32 {v(t1)}, {BOFF}, {v(t1)}\n v_lshlrev_b32 {v(vj4)}, 2, {v(vj4)}\n v_add_u32 {v(vj4)}, {BOFF}, {v(vj4)}')
    b.I(f'ds_read_b128 {v(GX,4)}, {v(t1)} offset:{LX} ;@X\n ds_read_b128 {v(GX+4,4)}, {v(t1)} offset:{LX+16} ;@X')
    acc = TG + 8; acc2 = TG + 9
    b.I(f'v_mov_b32 {v(acc)}, 0\n v_mov_b32 {v(acc2)}, 0')
    for i in range(8): b.I(f'v_dot2c_f32_bf16 {v(acc if i % 2 == 0 else acc2)}, {v(GX+i)}, {v(GW+i)}')
    b.I(f'v_add_f32 {v(acc)}, {v(acc)}, {v(acc2)}')
    for m in ('quad_perm:[1,0,3,2]', 'quad_perm:[2,3,0,1]', 'row_half_mirror', 'row_mirror'):
        b.I(f'v_add_f32_dpp {v(acc)}, {v(acc)}, {v(acc)} {m} row_mask:0xf bank_mask:0xf')
    b.I(f'v_add_f32_dpp {v(acc)}, {v(acc)}, {v(acc)} row_bcast:15 row_mask:0xa bank_mask:0xf')
    b.I(f'v_mul_f32 {v(acc)}, {f32(-LOG2E)}, {v(acc)}\n v_exp_f32 {v(acc)}, {v(acc)}\n v_add_f32 {v(acc)}, 1.0, {v(acc)}\n v_rcp_f32 {v(acc)}, {v(acc)}')
    b.I(f'v_mov_b32 {v(ACC+1)}, 0\n v_mov_b32 {v(ACC+3)}, 0\n v_mov_b32 {v(ACC+5)}, 0\n v_mov_b32 {v(ACC+7)}, 0')
    b.emit(VERB)
    a.I('s_mov_b32 exec_lo, 0x80000000\n s_mov_b32 exec_hi, 0x80000000')
    a.I(f'ds_write_b32 {v(vj4)}, {v(acc)} offset:{LG}')
    a.I('s_mov_b64 exec, -1')
    poll_check(a, loads, R, TM, TOK)
    unpack(a, LI1, R, A64, A32)
    AL = CA + 20; NQ = GW; G2 = GW + 2
    aloads = [f'buffer_load_dwordx4 {v(AL+4*k,4)}, {v(AA_+k)}, s[44:47], s20 offen sc1' for k in range(3)]
    a.I('s_waitcnt lgkmcnt(0)\n s_barrier'); stamp(a, 11)
    X = CA
    b = Block(a, 'phase3')
    for g in range(2):
        for i in range(4): b.I(f'ds_read_b128 {v(R+16*g+4*i,4)}, {v(vr)} offset:{LI1+6144*g+384*i}')
        if g == 0: b.I(f'ds_read2_b32 {v(NQ,2)}, {v(vn)} offset0:0 offset1:12')
    for x in aloads: b.I(x)
    b.I(f'ds_read_b32 {v(G2)}, {v(vgr)} offset:{LG}')
    b.I(f'v_sub_f32 {v(G2+1)}, 1.0, {v(G2)}\n v_mul_f32 {v(G2+1)}, {f32(2.0**-19)}, {v(G2+1)}')
    for g in range(2):
        for i in range(4):
            for t in range(i+1, 4): b.I(f'v_swap_b32 {v(R+16*g+4*i+t)}, {v(R+16*g+4*t+i)}')
        if g == 0:
            for k in range(2):
                b.I(f'v_lshlrev_b32 {v(ACC+2*k)}, 16, {v(NQ+k)}\n v_and_b32 {v(ACC+4+2*k)}, 0xffff0000, {v(NQ+k)}')
                b.I(f'v_xor_b32 {v(ACC+2*k)}, {v(sgn)}, {v(ACC+2*k)}\n v_xor_b32 {v(ACC+4+2*k)}, {v(sgn)}, {v(ACC+4+2*k)}')
        for t in range(4):
            for p in range(2):
                d = ACC+8*t+4*p
                mfma(b, d, R+16*g+4*t, P1+8*g+4*p, d if (g == 1 or t == 0) else '0')
    A2 = R
    for t in range(4):
        re, im = ACC+8*t, ACC+8*t+4
        for i in range(4): cm1(b, re+i, im+i, PTC+4*t+i, PTS+4*t+i, T+8*(t&1)+2*i, T+8*(t&1)+2*i+1, +1)
        F = X + 4*t
        cvt(b, F, re, re+1); cvt(b, F+2, im, im+1); cvt(b, F+1, re+2, re+3); cvt(b, F+3, im+2, im+3)
        for ot in range(4):
            rot = (t*ot) % 4
            mfma(b, A2+4*ot, F, P2+P2O[t]+2*rot, '0' if t == 0 else A2+4*ot)
    b.emit(VERB)
    stamp(a, 12)
    poll_check(a, aloads, AL, TM, TOK, E('ABACKOFF', 4))
    b = Block(a, 'final')
    unpack(b, LI0, AL, A64, A32)
    AA = R + 16
    for ot in range(4): b.I(f'ds_read_b64_tr_b16 {v(AA+2*ot,2)}, {v(vta)} offset:{LI0+768*ot}')
    for i in range(16): b.I(f'v_mul_f32 {v(A2+i)}, {v(G2+1)}, {v(A2+i)}')
    AF = ACC
    for ot in range(4):
        for p in range(2):
            b.I(f'v_lshlrev_b32 {v(AF+4*ot+2*p)}, 16, {v(AA+2*ot+p)}\n v_and_b32 {v(AF+4*ot+2*p+1)}, 0xffff0000, {v(AA+2*ot+p)}')
        for p in range(2):
            x = AF+4*ot+2*p; bb = A2+4*ot+2*p
            b.I(f'v_fmac_f32 {v(bb)}, {v(x)}, {v(G2)}\n v_fmac_f32 {v(bb+1)}, {v(x+1)}, {v(G2)}')
            cvt(b, X+2*ot+p, bb, bb+1)
        b.I(f'buffer_store_dwordx2 {v(X+2*ot,2)}, {v(vst)}, s[16:19], s21 offen offset:{256*ot}')
    b.emit(VERB)
    a.I(f's_or_b32 s56, s{TASK}, s3\n s_cmp_lg_u32 s56, 0\n s_cbranch_scc1 L_end')
    a.I(f's_mov_b64 exec, 1\n v_mov_b32 {v(t0)}, s{TOK}\n v_mov_b32 {v(t1)}, {EP_OFF}')
    a.I(f'buffer_store_dword {v(t0)}, {v(t1)}, s[44:47], 0 offen')
    a.label('L_end', keep=True)
    endpgm(a, 44, 13, 0)

class RoleA:
  def pre(self, a):
    V = self.V = VAlloc(1, 128); W = self.W = VAlloc(128, 232)
    a.label('L_a_pre', keep=True)
    if E('ONLYB', 0): a.I('s_endpgm')
    a.I(f's_setprio {E("APRIO", 2)}')
    task_of(a, 30, 31)
    n, q = self.n, self.q = lanes(a, V)
    t0 = self.t0 = V.get(); t1 = self.t1 = V.get()
    vp = W.get(); a.I(f'v_lshlrev_b32 {v(vp)}, 1, v0')
    vch = self.vch = V.get(); a.I(f'v_lshrrev_b32 {v(vch)}, 7, v0')
    vd = W.get(); a.I(f'v_lshlrev_b32 {v(vd)}, 1, {v(vch)}')
    vd2 = W.get(); a.I(f'v_bfe_u32 {v(vd2)}, v0, 6, 1\n v_lshlrev_b32 {v(vd2)}, 1, {v(vd2)}')
    a.I('s_lshl_b32 s56, s30, 9\n s_lshl_b32 s57, s30, 2')
    vl16 = self.vl16 = V.get()
    a.I(f'v_and_b32 {v(vl16)}, 63, v0\n v_lshlrev_b32 {v(vl16)}, 4, {v(vl16)}')
    a.I(f's_lshl_b32 s62, s3, 9\n s_add_u32 s62, s62, s30\n s_lshl_b32 s62, s62, 10\n s_add_u32 s63, s62, {256*1024}\n s_mul_i32 s61, s3, 2112\n s_add_u32 s61, s61, {BOFF+LX}')
    a.I('s_mov_b32 s34, 131072\n s_mov_b32 s35, 0x00020000\n s_mov_b32 s38, 131072\n s_mov_b32 s39, 0x00020000\n s_mov_b32 s42, 1024\n s_mov_b32 s43, 0x00020000\n s_mov_b32 s46, 2097152\n s_mov_b32 s47, 0x00020000')
    a.I('s_waitcnt lgkmcnt(0)'); stamp(a, 1)
    self.PR = LA, AI, CR, CI, LD, DS = tuple(V.get() for _ in range(6))
    a.I(f's_mov_b32 s40, s14\n s_mov_b32 s41, s15\n buffer_load_short_d16_hi {v(LD)}, {v(vd)}, s[40:43], s57 offen')
    for k, r in enumerate((LA, AI, CR, CI)):
        d = 32 + 4*(k & 1)
        a.I(f's_mov_b32 s{d}, s{6+2*k}\n s_mov_b32 s{d+1}, s{7+2*k}\n buffer_load_short_d16_hi {v(r)}, {v(vp)}, s[{d}:{d+3}], s56 offen')
    a.I('s_mov_b32 s44, s4\n s_mov_b32 s45, s5\n s_mov_b32 m0, s61')
    a.I(f'buffer_load_dwordx4 {v(vl16)}, s[44:47], s62 offen lds')
    a.I('s_add_u32 m0, s61, 1056')
    a.I(f'buffer_load_dwordx4 {v(vl16)}, s[44:47], s63 offen lds')
    a.I(f's_mov_b32 s40, s16\n s_mov_b32 s41, s17\n buffer_load_short_d16_hi {v(DS)}, {v(vd2)}, s[40:43], s57 offen')
    srd(a, 48, 28, WS_BYTES)
    a.I(f's_add_u32 s28, s28, {EP_OFF}\n s_addc_u32 s29, s29, 0\n s_load_dword s4, s[28:29], 0\n s_mov_b32 s22, s30')
    stamp(a, 12, False)
    self.st = (list(a.vm), list(a.lg))
  def body(self, a):
    V, W, n, q, t0, t1, vch = self.V, self.W, self.n, self.q, self.t0, self.t1, self.vch
    LA, AI, CR, CI, LD, DS = self.PR
    TOK, CH, HR = 4, 6, 7
    vl16 = self.vl16
    b = Block(a, 'a_shadow')
    vt16 = V.get(); b.I(f'v_lshlrev_b32 {v(vt16)}, 4, v0')
    b.I(f's_and_b32 s{CH}, s3, 1\n s_lshr_b32 s{HR}, s3, 1\n s_mul_i32 s10, s{HR}, {TB_CH}\n s_lshl_b32 s11, s{CH}, 8\n s_add_u32 m0, s10, s11')
    EG = V.get(9, 1); TM = V.get(3, 1)
    J0, sh, JM, cst, kfb, yy, y1, y2, y3, y4, y5, y6 = (W.get() for _ in range(12))
    zero = V.get(); vks = V.get(); veg = V.get(); vem = V.get()
    b.I(f'v_and_b32 {v(yy)}, 127, v0\n v_lshlrev_b32 {v(J0)}, 3, {v(yy)}\n v_sub_u32 {v(J0)}, 1016, {v(J0)}')
    b.I(f'v_mul_u32_u24 {v(vks)}, {2*KC}, {v(vch)}\n v_lshl_add_u32 {v(vks)}, {v(yy)}, 4, {v(vks)}')
    b.I(f'v_or_b32 {v(sh)}, 1, {v(J0)}\n v_ffbh_u32 {v(sh)}, {v(sh)}\n v_sub_u32 {v(sh)}, 24, {v(sh)}\n v_max_i32 {v(sh)}, 0, {v(sh)}')
    b.I(f'v_add_u32 {v(JM)}, 150, {v(sh)}\n v_lshlrev_b32 {v(JM)}, 23, {v(JM)}')
    b.I(f'v_mul_u32_u24 {v(kfb)}, {KF_CH}, {v(vch)}\n v_mov_b32 {v(zero)}, 0\n ds_write_b32 {v(kfb)}, {v(zero)} offset:{KF_OFF-8}\n v_add_u32 {v(kfb)}, {KF_OFF}, {v(kfb)}')
    b.I(f'v_lshrrev_b32 {v(yy)}, {v(sh)}, {v(J0)}\n v_add_u32 {v(sh)}, 1, {v(sh)}')
    b.I(f'v_add_u32 {v(JM)}, {v(JM)}, {v(yy)}\n v_lshlrev_b32 {v(cst)}, {v(sh)}, {v(JM)}')
    b.I(f'v_lshrrev_b32 {v(yy)}, 4, {v(J0)}\n v_lshl_add_u32 {v(yy)}, {v(yy)}, 2, {v(kfb)}\n v_lshl_add_u32 {v(EG+1)}, {v(J0)}, 1, {v(yy)}\n v_sub_u32 {v(cst)}, {v(EG+1)}, {v(cst)}')
    b.I(f'v_add_u32 {v(yy)}, 16, {v(EG+1)}\n v_bfe_u32 {v(y5)}, {v(J0)}, 3, 1\n v_lshlrev_b32 {v(y5)}, 2, {v(y5)}')
    for e in range(1, 8):
        b.I(f'v_add_f32 {v(EG+1+e)}, {f32(float(e))}, {v(JM)}')
        b.I(f'v_lshl_add_u32 {v(EG+1+e)}, {v(EG+1+e)}, {v(sh)}, {v(cst)}')
        if e >= 6: b.I(f'v_cmp_eq_u32 vcc, {v(EG+1+e)}, {v(yy)}\n v_cndmask_b32 {v(EG)}, 0, {v(y5)}, vcc\n v_add_u32 {v(EG+1+e)}, {v(EG+1+e)}, {v(EG)}')
    b.I(f'v_sub_u32 {v(y5)}, 6, {v(y5)}\n v_cmp_ge_u32 vcc, 256, {v(J0)}\n v_cndmask_b32 {v(yy)}, 0, {v(y5)}, vcc\n v_sub_u32 {v(EG)}, {v(EG+1)}, {v(yy)}')
    b.I(f'v_add_u32 {v(veg)}, 2304, {v(kfb)}')
    b.I(f'v_bfe_u32 {v(y6)}, v0, 6, 1\n v_lshl_add_u32 {v(y6)}, {v(n)}, 1, {v(y6)}\n v_and_b32 {v(yy)}, 16, v0\n v_cmp_ne_u32 vcc, 0, {v(yy)}\n v_cndmask_b32 {v(y6)}, {v(y6)}, 0, vcc')
    b.I(f'v_mov_b32 {v(vem)}, 0x10000\n v_cmp_le_u32 vcc, 26, {v(y6)}\n v_cndmask_b32 {v(vem)}, 0, {v(vem)}, vcc\n v_cmp_le_u32 vcc, 27, {v(y6)}\n v_cndmask_b32 {v(y6)}, 0, 1, vcc\n v_or_b32 {v(vem)}, {v(vem)}, {v(y6)}')
    b.I(f'v_and_b32 {v(y6)}, 31, v0\n v_lshlrev_b32 {v(y6)}, 2, {v(y6)}\n v_lshl_add_u32 {v(y6)}, {v(vch)}, 9, {v(y6)}\n ds_write_b32 {v(y6)}, {v(zero)} offset:{K8_OFF}')
    b.I(f'v_mul_u32_u24 {v(y1)}, {U_CH - 512}, {v(vch)}\n v_lshl_add_u32 {v(y1)}, v0, 2, {v(y1)}\n v_add_u32 {v(y1)}, {LU}, {v(y1)}\n ds_write_b32 {v(y1)}, {v(zero)}')
    b.I(f'v_mov_b32 {v(y2)}, 0x3f80\n ds_write_addtid_b32 {v(y2)} offset:{21*RS}')
    vra = V.get(); vrb = V.get(); KW = V.get(4, 1); kw1 = V.get(); kw2 = V.get(); va = V.get(); vb = V.get(3, 1); vkz = V.get(); vuw = V.get(); vk8 = V.get(2, 1); vf = V.get(2, 1); BND = V.get(8, 4)
    b.I(f's_mul_i32 s10, s{CH}, {TB_CH}\n s_mul_i32 s11, s{HR}, {16*RS}\n s_add_u32 s11, s11, {21*RS}')
    b.I(f'v_mul_u32_u24 {v(vra)}, {RS}, {v(n)}\n v_lshl_add_u32 {v(vra)}, {v(q)}, 4, {v(vra)}\n v_add_u32 {v(vra)}, s10, {v(vra)}\n v_add_u32 {v(vrb)}, s11, {v(vra)}')
    b.I(f's_mul_i32 s12, s{CH}, {KF_CH}\n s_mul_i32 s13, s{HR}, 288\n s_add_u32 s12, s12, s13\n s_add_u32 s12, s12, {KF_OFF}')
    b.I(f'v_lshlrev_b32 {v(kw1)}, 4, {v(n)}\n v_lshrrev_b32 {v(y3)}, 1, {v(n)}\n v_lshl_add_u32 {v(kw1)}, {v(y3)}, 2, {v(kw1)}\n v_add_u32 {v(kw1)}, s12, {v(kw1)}')
    b.I(f'v_lshlrev_b32 {v(t0)}, 3, {v(q)}\n s_mov_b32 s14, 0x90480100\n s_mov_b32 s15, 0x08040202\n s_mov_b32 s16, 0x90020101')
    b.I(f'v_bfe_u32 {v(KW)}, s14, {v(t0)}, 8\n v_lshl_add_u32 {v(KW)}, {v(KW)}, 3, {v(kw1)}')
    b.I(f'v_bfe_u32 {v(y3)}, s15, {v(t0)}, 8\n v_add_u32 {v(KW+1)}, {v(KW)}, {v(y3)}')
    b.I(f'v_bfe_u32 {v(KW+2)}, s16, {v(t0)}, 8\n v_lshl_add_u32 {v(KW+2)}, {v(KW+2)}, 2, {v(KW)}\n v_add_u32 {v(KW+3)}, {v(KW+2)}, {v(y3)}')
    b.I(f's_lshl_b32 s19, s{CH}, 9\n s_add_u32 s19, s19, {K8_OFF}\n s_lshl_b32 s13, s{HR}, 5\n s_add_u32 s13, s13, s19\n s_add_u32 s13, s13, 126')
    b.I(f'v_add_u32 {v(y5)}, 2304, {v(kw1)}\n v_lshlrev_b32 {v(kw1)}, 1, {v(n)}\n v_add_u32 {v(kw1)}, s13, {v(kw1)}')
    b.I(f'v_mov_b32 {v(y4)}, {BOFF + LDUM + 64}\n v_cmp_eq_u32 vcc, 0, {v(q)}\n v_cndmask_b32 {v(kw2)}, {v(y4)}, {v(kw1)}, vcc')
    b.I(f'v_add_u32 {v(y4)}, 256, {v(kw1)}\n v_cmp_eq_u32 vcc, 1, {v(q)}\n v_cndmask_b32 {v(kw1)}, {v(kw2)}, {v(y4)}, vcc')
    b.I(f'v_and_b32 {v(y4)}, 0xbf, v0\n v_cmp_eq_u32 vcc, 0, {v(y4)}\n v_cndmask_b32 {v(kw1)}, {v(kw1)}, {v(y5)}, vcc')
    b.I(f'v_lshlrev_b32 {v(y4)}, 2, {v(q)}\n v_sub_u32 {v(y4)}, {v(n)}, {v(y4)}\n v_lshlrev_b32 {v(y4)}, 2, {v(y4)}\n s_lshl_b32 s13, s{HR}, 6')
    b.I(f's_sub_u32 s23, s19, s13\n s_add_u32 s23, s23, {128 - 12}\n v_add_u32 {v(vk8)}, s23, {v(y4)}\n s_add_u32 s23, s19, s13\n s_sub_u32 s23, s23, {64 + 12}\n v_add_u32 {v(vk8+1)}, s23, {v(y4)}')
    for k, (w_, s0) in enumerate(((7, 5), (9, 4))):
        b.I(f'v_mov_b32 {v(y4)}, {((1 << w_) - 1) << s0}\n v_lshlrev_b32 {v(y4)}, {v(n)}, {v(y4)}\n v_lshrrev_b32 {v(y4)}, {v(t0)}, {v(y4)}')
        for i in range(4):
            d = BND + 4*k + i
            b.I(f'v_bfe_u32 {v(d)}, {v(y4)}, {2*i}, 2\n v_mul_u32_u24 {v(d)}, 0x8001, {v(d)}\n v_and_b32 {v(d)}, 0x10001, {v(d)}\n v_mul_u32_u24 {v(d)}, 0x3f80, {v(d)}')
    b.I(f's_lshl_b32 s13, s{HR}, 8\n s_mul_i32 s12, s{CH}, {U_CH}\n s_sub_u32 s12, s12, s13\n s_add_u32 s12, s12, {LU + 512 - 32 - 192}')
    b.I(f'v_lshlrev_b32 {v(va)}, 5, {v(n)}\n v_lshl_add_u32 {v(va)}, {v(q)}, 4, {v(va)}\n v_add_u32 {v(va)}, s12, {v(va)}')
    b.I(f's_mul_i32 s23, s{HR}, 768\n s_add_u32 s23, s23, {192 - 16}\n v_add_u32 {v(vf)}, s23, {v(va)}\n s_mul_i32 s23, s{HR}, -256\n s_add_u32 s23, s23, {192 - 16 + 1536}\n v_add_u32 {v(vf+1)}, s23, {v(va)}')
    b.I(f's_mul_i32 s17, s{CH}, {2*KC}\n s_sub_u32 s17, s17, s13\n s_add_u32 s17, s17, {LK - 192 - 512}')
    b.I(f'v_sub_u32 {v(t0)}, {v(t0)}, {v(n)}\n v_add_u32 {v(t0)}, 1039, {v(t0)}')
    b.I(f'v_and_b32 {v(y3)}, 1, {v(t0)}\n v_mul_u32_u24 {v(y3)}, {KC}, {v(y3)}\n v_lshrrev_b32 {v(t0)}, 1, {v(t0)}')
    b.I(f'v_lshl_add_u32 {v(vb)}, {v(t0)}, 2, {v(y3)}\n v_add_u32 {v(vb)}, s17, {v(vb)}\n v_add_u32 {v(vb+1)}, -1024, {v(vb)}')
    b.I(f'v_add_u32 {v(vb+2)}, {192 + 512 - 2048}, {v(vb)}\n v_mov_b32 {v(y3)}, {LU}\n s_cmp_eq_u32 s{HR}, 0\n s_cselect_b64 s[30:31], -1, 0\n v_cndmask_b32 {v(vb+2)}, {v(y3)}, {v(vb+2)}, s[30:31]')
    b.I(f's_mul_i32 s18, s3, {KC}\n v_and_b32 {v(y3)}, 16, v0\n v_mul_u32_u24 {v(y3)}, 132, {v(y3)}\n v_lshl_add_u32 {v(vkz)}, {v(n)}, 2, {v(y3)}\n v_add_u32 {v(vkz)}, s18, {v(vkz)}')
    b.emit(VERB)
    stamp(a, 2)
    dt = W.get(); ar_ = W.get(); rev = W.get()
    b = Block(a, 'a_chain')
    b.I(f'v_mul_f32 {v(dt)}, {f32(LOG2E)}, {v(LD)}\n v_mul_f32 {v(ar_)}, {f32(LOG2E)}, {v(LA)}\n v_exp_f32 {v(dt)}, {v(dt)}\n v_exp_f32 {v(ar_)}, {v(ar_)}')
    cvt(b, t0, dt, ar_)
    b.I(f'v_lshlrev_b32 {v(dt)}, 16, {v(t0)}\n v_and_b32 {v(ar_)}, 0xffff0000, {v(t0)}')
    b.I(f'v_mul_f32 {v(ar_)}, {v(ar_)}, {v(dt)}\n v_mul_f32 {v(ar_)}, {f32(-LOG2E)}, {v(ar_)}')
    b.I(f'v_mul_f32 {v(rev)}, {v(AI)}, {v(dt)}\n v_mul_f32 {v(rev)}, 0.15915494, {v(rev)}')
    Z = {}
    mag = W.get(4); ang = W.get(4)
    for k, p in enumerate((8, 1, 128, 256)):
        Z[p] = W.get(2)
        b.I(f'v_mul_f32 {v(mag+k)}, {f32(float(p))}, {v(ar_)}\n v_mul_f32 {v(ang+k)}, {f32(float(p))}, {v(rev)}')
        b.I(f'v_fract_f32 {v(ang+k)}, {v(ang+k)}\n v_exp_f32 {v(mag+k)}, {v(mag+k)}')
        b.I(f'v_cos_f32 {v(Z[p])}, {v(ang+k)}\n v_sin_f32 {v(Z[p]+1)}, {v(ang+k)}')
    Ee = W.get(16)
    b.I(f'v_add_f32 {v(dt)}, {v(dt)}, {v(dt)}\n v_mul_f32 {v(Ee)}, {v(CR)}, {v(dt)}\n v_mul_f32 {v(Ee+1)}, {v(CI)}, {v(dt)}')
    for k, p in enumerate((8, 1, 128, 256)):
        b.I(f'v_mul_f32 {v(Z[p])}, {v(mag+k)}, {v(Z[p])}\n v_mul_f32 {v(Z[p]+1)}, {v(mag+k)}, {v(Z[p]+1)}')
    TT = W.get(8); PK = W.get(8); O = W.get(4); H = W.get(4)
    cnt = [0]
    def put(row, x, neg):
        r = PK + cnt[0] % 8; cnt[0] += 1
        cvt(b, r, x, x+1, False, neg)
        b.I(f'ds_write_addtid_b32 {v(r)} offset:{row*RS} ;@T{row}')
    offs_ops = []; cur = Z[8]
    offs_ops.append(lambda: (put(21+1, Z[8], False), put(21+16, Z[128], False)))
    offs_ops.append(lambda: (cmul(b, H, Z[8], Z[128], TT+2), put(21+17, H, False)))
    for i in range(2, 16):
        nxt = O + 2*(i % 2)
        def f(i=i, cur=cur, nxt=nxt):
            cmul(b, nxt, cur, Z[8], TT); cmul(b, H + 2*(i % 2), nxt, Z[128], TT+2)
            put(21+i, nxt, False); put(21+16+i, H + 2*(i % 2), False)
        offs_ops.append(f); cur = nxt
    base_ops = [lambda: put(0, Ee, True)]
    for e in range(1, 8): base_ops.append(lambda e=e: (cmul(b, Ee+2*e, Ee+2*e-2, Z[1], TT+4), put(e, Ee+2*e, True)))
    for k, e in enumerate((0, 2, 4, 6)): base_ops.append(lambda k=k, e=e: (cmul(b, Ee+2*e, Ee+2*e, Z[256], TT+4), put(8+k, Ee+2*e, True)))
    for i in range(2):
        for k, e in enumerate((0, 4)): base_ops.append(lambda i=i, k=k, e=e: (cmul(b, Ee+2*e, Ee+2*e, Z[256], TT+4), put(12+2*i+k, Ee+2*e, True)))
    for i in range(5): base_ops.append(lambda i=i: (cmul(b, Ee, Ee, Z[256], TT+4), put(16+i, Ee, True)))
    it = 0
    while offs_ops or base_ops:
        if it == E('XPOS', 6):
            b.emit(VERB); stamp(a, 3); a.I('s_waitcnt vmcnt(1)\n s_barrier'); stamp(a, 4)
        it += 1
        if offs_ops: offs_ops.pop(0)()
        if base_ops: base_ops.pop(0)()
    b.I('s_mul_i32 s56, s3, 3072')
    CL, G16, A64, A32 = slotmap(b, V, t0, t1, 56)
    GA = G16; vur = V.get(); z0 = W.get()
    for k in range(3): b.I(f'v_mul_u32_u24 {v(CL+k)}, {BS}, {v(CL+k)}\n v_add_u32 {v(GA+k)}, {v(CL+k)}, {v(G16+k)}')
    b.I(f's_mul_i32 s52, s22, 48\n s_mul_i32 s53, s3, {64*BS}\n s_add_u32 s52, s52, s53\n s_add_u32 s52, s52, {UT_OFF}')
    b.I(f'v_bfe_u32 {v(z0)}, v0, 2, 2\n v_lshl_add_u32 {v(z0)}, {v(q)}, 4, {v(z0)}\n v_mul_u32_u24 {v(vur)}, 48, {v(z0)}\n v_and_b32 {v(z0)}, 3, v0\n v_lshl_add_u32 {v(vur)}, {v(z0)}, 3, {v(vur)}\n v_add_u32 {v(vur)}, s56, {v(vur)}')
    b.I(f'v_and_b32 {v(z0)}, 7, v0\n v_lshlrev_b32 {v(vuw)}, 9, {v(z0)}\n v_bfe_u32 {v(z0)}, v0, 3, 1\n v_mul_u32_u24 {v(z0)}, {U_CH}, {v(z0)}\n v_add_u32 {v(vuw)}, {v(vuw)}, {v(z0)}')
    b.I(f'v_lshrrev_b32 {v(z0)}, 4, v0\n v_lshl_add_u32 {v(vuw)}, {v(z0)}, 5, {v(vuw)}\n v_add_u32 {v(vuw)}, {LU + 512}, {v(vuw)}')
    RU = 232
    uloads = [f'buffer_load_dwordx4 {v(RU+4*k,4)}, {v(GA+k)}, s[48:51], s52 offen sc1' for k in range(3)]
    ACCK = V.get(8, 4); PK = V.get(4)
    b.I(f'v_and_b32 {v(t0)}, 0xbf, v0\n v_cmp_eq_u32 vcc, 0, {v(t0)}\n v_cndmask_b32 {v(ACCK)}, 0, {v(DS)}, vcc')
    b.I(f'v_mov_b32 {v(ACCK+1)}, 0\n v_mov_b32 {v(ACCK+2)}, 0\n v_mov_b32 {v(ACCK+3)}, 0')
    b.emit(VERB)
    a.I(f's_add_u32 s{TOK}, s{TOK}, {TOKC}')
    if E('UPOS', 2) == 2:
        for x in uloads: a.I(x)
    a.I('s_waitcnt lgkmcnt(0)\n s_barrier'); stamp(a, 5)
    S = [128, 192]; FR = 128
    for k in range(8):
        a.I(f'ds_read_b128 {v(FR+12*k,4)}, {v(vrb)} offset:{64*k}')
        a.I(f'ds_read_b128 {v(FR+12*k+4,4)}, {v(vra)} offset:{64*k}')
        a.I(f'ds_read_b128 {v(FR+12*k+8,4)}, {v(vra)} offset:{64*k+16*RS}')
        if k >= 4:
            kk = k - 4
            mfma(a, ACCK, FR+12*kk+4, FR+12*kk, ACCK); mfma(a, ACCK+4, FR+12*kk+8, FR+12*kk, '0' if kk == 0 else ACCK+4)
    if E('UPOS', 2) == 0:
        for x in uloads: a.I(x)
    for k in range(4, 8):
        mfma(a, ACCK, FR+12*k+4, FR+12*k, ACCK); mfma(a, ACCK+4, FR+12*k+8, FR+12*k, ACCK+4)
    cvt(a, PK, ACCK, ACCK+1); cvt(a, PK+1, ACCK+2, ACCK+3)
    a.I(f'ds_write_b16 {v(KW)}, {v(PK)}\n ds_write_b16_d16_hi {v(KW+1)}, {v(PK)}\n ds_write_b16 {v(KW+2)}, {v(PK+1)}\n ds_write_b16_d16_hi {v(KW+3)}, {v(PK+1)}')
    cvt(a, PK+2, ACCK+4, ACCK+5); cvt(a, PK+3, ACCK+6, ACCK+7)
    a.I(f'ds_write_b16 {v(kw1)}, {v(PK+2)}\n ds_write_b16_d16_hi {v(kw2)}, {v(PK+2)} offset:64')
    a.I(f'ds_write_b16 {v(kw2)}, {v(PK+3)} offset:128\n ds_write_b16_d16_hi {v(kw2)}, {v(PK+3)} offset:192')
    a.I('s_waitcnt lgkmcnt(0)\n s_barrier'); stamp(a, 6)
    for e in range(8, -1, -1): a.I(f'ds_read_u16 {v(EG+e)}, {v(EG+e)}')
    a.I(f'ds_read_u16 {v(veg)}, {v(veg)}')
    if E('UPOS', 2) == 1:
        for x in uloads: a.I(x)
    EO = FR
    for bb in range(4):
        a.I(f'v_lshl_or_b32 {v(EO+bb)}, {v(EG+1+6-2*bb)}, 16, {v(EG+1+7-2*bb)}')
        a.I(f'v_lshl_or_b32 {v(EO+4+bb)}, {v(EG+1+5-2*bb)}, 16, {v(EG+1+6-2*bb)}')
    a.I(f'ds_write_b128 {v(vks)}, {v(EO,4)} offset:{LK+64}\n ds_write_b128 {v(vks)}, {v(EO+4,4)} offset:{LK+KC+64}')
    a.I(f'v_mul_u32_u24 {v(veg)}, {v(veg)}, {v(vem)}\n ds_write_b32 {v(vkz)}, {v(veg)} offset:{LK}')
    stamp(a, 7)
    poll_check(a, uloads, RU, TM, TOK)
    unpack(a, LAO, RU, A64, A32)
    UQ = 244
    for x in range(4): a.I(f'ds_read_b64_tr_b16 {v(UQ+2*x,2)}, {v(vur)} offset:{LAO+192*x}')
    a.I(f'ds_write_b128 {v(vuw)}, {v(UQ,4)}\n ds_write_b128 {v(vuw)}, {v(UQ+4,4)} offset:16')
    a.I(f's_setprio {E("CPRIO", 2)}')
    a.I('s_waitcnt lgkmcnt(0)\n s_barrier'); stamp(a, 8)
    V.put(EG, 9); V.put(ACCK, 8); V.put(KW, 4); V.put(PK, 4)
    ACC = V.get(32, 4)
    b = Block(a, 'conv')
    S = [128, 176]; X = 224
    def loads(rl):
        L = []
        for k in range(8):
            if k < 4:
                o = 16*(3-rl) + (128 if k % 2 == 0 else 0)
                r = S[rl%2] + 32 + 4*k
                L += [f'ds_read2_b32 {v(r,2)}, {v(vb+k//2)} offset0:{o} offset1:{o+1}', f'ds_read2_b32 {v(r+2,2)}, {v(vb+k//2)} offset0:{o+2} offset1:{o+3}']
            L.append(f'ds_read_b128 {v(S[rl%2]+4*k,4)}, {v(va)} offset:{64*(3-rl)+512*k}')
        return L
    def mf(d, A, B, c): return f'v_mfma_f32_16x16x32_bf16 {v(d,4)}, {v(A,4)}, {v(B,4)}, {c if isinstance(c, str) else v(c,4)}'
    SB = V.get(8, 4); SD = V.get(16, 4)
    for x in loads(0): a.I(x)
    a.I(f'ds_read2_b32 {v(X,2)}, {v(vb+2)} offset0:0 offset1:1\n ds_read2_b32 {v(X+2,2)}, {v(vb+2)} offset0:2 offset1:3')
    extra = {0: [], 1: [], 2: [], 3: []}
    for k in range(2):
        extra[0] += [f'ds_read_b128 {v(X+4+8*k,4)}, {v(vf+k)} offset:16', f'ds_read_b128 {v(X+8+8*k,4)}, {v(vf+k)}']
    def k8(r, k, T):
        o = 16*(T-4)
        return [f'ds_read2_b32 {v(r,2)}, {v(vk8+k)} offset0:{o+3} offset1:{o+2}', f'ds_read2_b32 {v(r+2,2)}, {v(vk8+k)} offset0:{o+1} offset1:{o}']
    far = [(0, 4), (0, 5), (0, 6), (0, 7), (1, 6), (1, 7)]
    for j, (k, T) in enumerate(far): extra[1] += k8(X+4*j, k, T)
    for k in range(2):
        for i in range(4): extra[1].append(f'v_cvt_pk_bf16_f32 {v(SB+4*k+i)}, {v(SD+8*k+i)}, {v(SD+8*k+4+i)}')
    for rl in range(4):
        pairs = sorted([(i, g) for i in range(8) for g in range(4) if i + g <= 7], key=lambda p: (max(p), p[0]+p[1]))
        M = []; seen = set()
        for (i, g) in pairs:
            d = ACC + 4*(i+g)
            first = (rl == 0 and (i+g) not in seen); seen.add(i+g)
            M.append(mf(d, S[rl%2]+4*i, S[rl%2]+32+4*g, '0' if first else d))
        if rl == 0:
            M += [mf(ACC+4*(i+4), S[0]+4*i, X, ACC+4*(i+4)) for i in range(4)]
            M += [mf(SD+8*k+4*h, X+4+8*k+4*h, BND+4*h, '0') for k in range(2) for h in range(2)]
        if rl == 2: M = M[:8] + [mf(ACC+4*T, X+4*j, SB+4*k, ACC+4*T) for j, (k, T) in enumerate(far)] + M[8:]
        if rl == 3:
            tailM = M; break
        nxt = (extra[rl] + loads(rl+1)) if rl == 0 else (loads(rl+1) + extra[rl])
        for k, x in enumerate(M):
            a.I(x)
            if k >= (6 if rl == 0 else 0):
                for _ in range(2 if (rl == 1 and k % 2) else 1):
                    if nxt: a.I(nxt.pop(0))
        for x in nxt: a.I(x)
    for x in tailM: b.I(x)
    vrw = V.get(); vrr = V.get(); vao = V.get()
    b.I(f'v_lshlrev_b32 {v(vrw)}, 3, v0\n v_xor_b32 {v(vrr)}, 1024, {v(vrw)}')
    b.I(f'v_lshlrev_b32 {v(vao)}, 6, {v(q)}\n v_add_u32 {v(vao)}, {v(vao)}, {v(n)}\n v_mul_u32_u24 {v(vao)}, 48, {v(vao)}\n s_mul_i32 s10, s{HR}, {32*48}\n s_lshl_b32 s11, s{CH}, 4\n s_add_u32 s10, s10, s11\n v_add_u32 {v(vao)}, s10, {v(vao)}')
    b.I(f's_mul_i32 s62, s22, {BS}\n s_add_u32 s62, s62, s56\n s_add_u32 s62, s62, {AW_OFF}')
    Gv = S[0]; R = S[0] + 16; Kp = S[0] + 32
    for i in range(8):
        for j in range(2): b.I(f'v_cndmask_b32 {v(Gv+2*i+j)}, {v(ACC+4*i+j)}, {v(ACC+4*i+2+j)}, s[30:31]')
        b.I(f'ds_write_b64 {v(vrw)}, {v(Gv+2*i,2)} offset:{LRED+2048*i} ;@R{i} ;!100')
        for j in range(2): b.I(f'v_cndmask_b32 {v(Kp+2*i+j)}, {v(ACC+4*i+2+j)}, {v(ACC+4*i+j)}, s[30:31]')
    b.emit(VERB)
    stamp(a, 9)
    a.I(f's_setprio {E("EPRIO", 3)}')
    a.I('s_waitcnt lgkmcnt(0)\n s_barrier')
    for i in range(8): a.I(f'ds_read_b64 {v(R+2*i,2)}, {v(vrr)} offset:{LRED+2048*i}')
    for i in range(16): a.I(f'v_add_f32 {v(R+i)}, {v(R+i)}, {v(Kp+i)}')
    Oo = X
    for jj in range(2):
        for i in range(4): cvt(a, Oo+4*jj+i, R+4*i+jj, R+4*i+2+jj)
        a.I(f'ds_write_b128 {v(vao)}, {v(Oo+4*jj,4)} offset:{LAO+768*jj}')
    a.I('s_waitcnt lgkmcnt(0)\n s_barrier')
    if not E('NOA', 0): publish(a, LAO, X + 8, A64, A32, vl16, 48, 62, TOK)
    a.I('s_barrier')
    endpgm(a, 48, 10, 1)

if __name__ == '__main__':
    out = sys.argv[1]
    a = Asm()
    a.raw(f'.globl {NAME}\n.p2align 8\n.type {NAME},@function\n{NAME}:')
    if PROF:
        for i in range(NST): a.I(f's_mov_b32 s{64+2*i}, 0')
        a.I('s_mov_b32 s60, 0')
    stamp(a, 0)
    a.I('s_load_dwordx16 s[4:19], s[0:1], 0\n s_load_dwordx8 s[20:27], s[0:1], 64\n s_load_dwordx2 s[28:29], s[0:1], 104')
    a.I('s_cmp_ge_u32 s2, 256\n s_cbranch_scc1 L_exit')
    if PREFETCH:
        a.I(f's_cmp_ge_u32 s2, {8*PREFETCH}\n s_cbranch_scc1 L_nopf')
        a.I('s_getpc_b64 s[62:63]')
        a.label('L_pc', keep=True)
        a.I(f'v_lshlrev_b32 v1, 7, v0\n v_cmp_gt_u32 vcc, L_code_end-L_pc, v1\n s_and_saveexec_b64 s[58:59], vcc\n s_cbranch_execz L_pf2')
        a.I(f'global_load_dword v255, v1, s[62:63]')
        a.label('L_pf2', keep=True)
        a.I('s_mov_b64 exec, -1')
        a.label('L_nopf', keep=True); a.vm = []
    a.I('v_readfirstlane_b32 s3, v0\n v_and_b32 v0, 255, v0\n s_cmp_lt_u32 s3, 256')
    a.I('s_cbranch_scc0 L_b' if AFIRST else 's_cbranch_scc1 L_b')
    A = RoleA()
    A.pre(a); A.body(a)
    nb = a.ninst
    a.label('L_exit'); a.I('s_endpgm')
    role_b(a)
    a.raw('L_code_end:')
    print('vgpr', a.maxv + 1, 'sgpr', a.maxs + 1, 'ninst', nb, a.ninst - nb, 'lds', LDS_BYTES, file=sys.stderr)
    launch = f'; @launch kernel={NAME} grid=(256,1,1) block=(512,1,1) lds={LDS_BYTES}' if os.environ.get('LIST') else f'; @launch grid=(256,1,1) block=(512,1,1) lds={LDS_BYTES}'
    hdr = f"""; gated_mix( S4D conv , GFNet spectral filter ) -- generated by gen/gen16.py
{launch}
.amdgcn_target "amdgcn-amd-amdhsa--gfx950"
.text
"""
    kd = f""".section .rodata,"a"
.p2align 6
.amdhsa_kernel {NAME}
  .amdhsa_next_free_vgpr 256
  .amdhsa_next_free_sgpr {a.maxs + 1}
  .amdhsa_accum_offset 256
  .amdhsa_group_segment_fixed_size 0
  .amdhsa_kernarg_size 112
  .amdhsa_user_sgpr_count 2
  .amdhsa_user_sgpr_kernarg_segment_ptr 1
  .amdhsa_system_sgpr_workgroup_id_x 1
.end_amdhsa_kernel
"""
    open(out, 'w').write(hdr + a.text() + kd)
```

```python
import re
class AsmError(Exception): pass

def regs_of(tok):
    tok = tok.strip()
    neg = False
    t = tok
    if t.startswith('-'): t = t[1:]
    if t.startswith('abs(') and t.endswith(')'): t = t[4:-1]
    if t.startswith('|') and t.endswith('|'): t = t[1:-1]
    m = re.fullmatch(r'([vsa])(\d+)', t)
    if m: return [(m.group(1), int(m.group(2)))]
    m = re.fullmatch(r'([vsa])\[(\d+):(\d+)\]', t)
    if m: return [(m.group(1), i) for i in range(int(m.group(2)), int(m.group(3)) + 1)]
    if t == 'vcc': return [('s', 106), ('s', 107)]
    if t == 'vcc_lo': return [('s', 106)]
    if t == 'vcc_hi': return [('s', 107)]
    if t == 'exec': return [('s', 126), ('s', 127)]
    if t == 'm0': return [('s', 124)]
    return []

TRANS = ('v_exp_f32', 'v_log_f32', 'v_rcp_f32', 'v_rsq_f32', 'v_sqrt_f32', 'v_sin_f32', 'v_cos_f32')

class Ins:
    def __init__(self, text):
        self.text = text
        code = text.split(';')[0].strip()
        parts = code.split(None, 1)
        self.op = parts[0]
        rest = parts[1] if len(parts) > 1 else ''
        ops, cur, depth = [], '', 0
        for ch in rest:
            if ch in '[(': depth += 1
            if ch in '])': depth -= 1
            if ch == ',' and depth == 0:
                ops.append(cur.strip()); cur = ''
            else: cur += ch
        if cur.strip(): ops.append(cur.strip())
        mods = ''
        if ops:
            sp = ops[-1].split(None, 1)
            ops[-1] = sp[0]
            mods = sp[1] if len(sp) > 1 else ''
        self.ops, self.mods = ops, mods
        op = self.op
        self.w, self.r = [], []
        self.kind = 'other'
        R = lambda i: regs_of(ops[i]) if i < len(ops) else []
        allr = lambda a: [x for i in range(a, len(ops)) for x in R(i)]
        if op.startswith('v_mfma'):
            self.kind = 'mfma'; self.w = R(0); self.r = allr(1)
            self.A, self.B, self.C = R(1), R(2), R(3)
            self.passes = 8 if '32x32' in op else 4
        elif op.startswith('v_'):
            self.kind = 'trans' if op.replace('_e32','').replace('_e64','') in TRANS else 'valu'
            if op.startswith('v_swap') or 'permlane16_swap' in op or 'permlane32_swap' in op:
                self.w = R(0) + R(1); self.r = R(0) + R(1)
            elif '_co_' in op:
                self.w = R(0) + R(1); self.r = allr(2)
            else:
                self.w = R(0); self.r = allr(1)
                if op.startswith(('v_fmac', 'v_dot2c', 'v_pk_fmac', 'v_writelane')): self.r += R(0)
                if '_dpp' in op: self.r += R(0)
                if op.startswith('v_cmpx'): self.w += [('s',126),('s',127)]
        elif op.startswith('ds_'):
            self.kind = 'ds'
            if op.startswith(('ds_read', 'ds_bpermute', 'ds_permute', 'ds_swizzle')) or '_rtn' in op:
                self.w = R(0); self.r = allr(1)
            else: self.r = allr(0)
        elif op.startswith(('buffer_', 'global_')):
            self.kind = 'vmem'
            self.lds = ' lds' in (' ' + mods) or '_lds_' in op
            if 'load' in op and not self.lds:
                self.w = R(0); self.r = allr(1)
            elif 'atomic' in op and 'sc0' in mods:
                self.w = R(0); self.r = allr(0)
            else: self.r = allr(0)
            if self.lds: self.r += [('s', 124)]
            self.store = 'store' in op
            self.wide = self.store and ('x3' in op or 'x4' in op)
            if self.store:
                self.data = R(0) if op.startswith('buffer_') else R(1)
        elif op.startswith(('s_load', 's_buffer_load', 's_memtime', 's_memrealtime')):
            self.kind = 'smem'; self.w = R(0); self.r = allr(1)
        elif op.startswith('s_'):
            self.kind = 'salu'
            if op.startswith(('s_cmp', 's_bitcmp', 's_cbranch', 's_branch', 's_waitcnt', 's_nop', 's_barrier', 's_endpgm', 's_sleep', 's_setprio')):
                self.r = allr(0)
            else:
                self.w = R(0); self.r = allr(1)
                if 'saveexec' in op: self.w += [('s',126),('s',127)]
    def states(self):
        if self.op == 's_nop': return int(self.ops[0], 0) + 1
        return 1

class Asm:
    def __init__(self):
        self.out = []
        self.reset()
        self.maxv = 0; self.maxs = 0; self.maxa = -1
        self.ninst = 0
    def reset(self):
        self.hist = []
        self.vm = []
        self.lg = []
    def raw(self, text): self.out.append(text)
    def comment(self, t): self.out.append('    ; ' + t)
    def label(self, name, keep=False):
        self.out.append(name + ':')
        if not keep: self.reset()
    def _emit(self, ins):
        self.out.append('    ' + ins.text)
        self.hist.append(ins)
        if len(self.hist) > 40: self.hist.pop(0)
        self.ninst += 1
        for k, i in ins.w + ins.r:
            if k == 'v': self.maxv = max(self.maxv, i)
            if k == 'a': self.maxa = max(self.maxa, i)
            if k == 's' and i < 102: self.maxs = max(self.maxs, i)
    def _need(self, ins):
        need = 0
        dist = 0
        rs, ws = set(ins.r), set(ins.w)
        for p in reversed(self.hist):
            req = 0
            pw = set(p.w)
            if p.kind in ('valu', 'trans'):
                pv = {x for x in pw if x[0] != 's'}; ps = {x for x in pw if x[0] == 's'}
                if ins.kind == 'mfma' and pv & rs: req = max(req, 2)
                if ins.kind == 'mfma' and (('s',126) in ps): req = max(req, 4)
                if p.kind == 'trans' and ins.kind in ('valu', 'mfma') and pv & rs: req = max(req, 1)
                if p.kind == 'trans' and ins.kind in ('ds', 'vmem') and pv & rs: req = max(req, 1)
                if ins.kind in ('valu', 'trans'):
                    if ('_dpp' in ins.op or 'permlane' in ins.op) and pv & rs: req = max(req, 2)
                    if ('readlane' in ins.op or 'readfirstlane' in ins.op) and pv & rs: req = max(req, 1)
                    if ps & rs: req = max(req, 4 if ('readlane' in ins.op or 'writelane' in ins.op) else 2)
                    if '_dpp' in ins.op and ('s',126) in ps: req = max(req, 5)
                    if ('op_sel' in p.mods and not p.op.startswith('v_pk')) and pv & (rs | ws): req = max(req, 1)
                if ins.kind == 'vmem' and ps & rs: req = max(req, 5)
                if ins.kind == 'salu' and ps & rs: req = max(req, 1)
            if p.kind == 'mfma':
                D = pw
                big = 12 if p.passes == 8 else 8
                if ins.kind == 'mfma':
                    if D & (set(ins.A) | set(ins.B)): req = max(req, big)
                    if D & set(ins.C):
                        if not (p.w == ins.C and p.passes == ins.passes): req = max(req, 10 if p.passes == 8 else 6)
                    elif D & ws and not (p.w == ins.w): req = max(req, big)
                elif ins.kind in ('valu', 'trans', 'ds', 'vmem'):
                    if D & (rs | ws): req = max(req, big)
                if ins.kind in ('valu', 'trans') and set(p.C) & ws: req = max(req, 7 if p.passes == 8 else 3)
            if p.kind == 'vmem' and getattr(p, 'wide', False) and set(p.data) & ws:
                req = max(req, 2)
            if p.kind == 'salu' and ('s',124) in pw and ((ins.kind == 'vmem' and ins.lds) or 'addtid' in ins.op): req = max(req, 1)
            if p.op.startswith('v_dot') and ins.kind in ('valu','trans','mfma','ds','vmem') and pw & (rs | ws):
                if not (ins.op == p.op and not (pw & set(x for o in ins.ops[1:3] for x in regs_of(o)))): req = max(req, 3)
            need = max(need, req - dist)
            dist += p.states()
            if dist > 24: break
        return need
    def I(self, text):
        for line in text.strip().split('\n'):
            line = line.strip()
            if not line: continue
            if line.startswith(';'): self.comment(line[1:].strip()); continue
            self._I(line)
    def _I(self, text):
        ins = Ins(text)
        touched = set(ins.r) | set(ins.w)
        if ins.op == 's_waitcnt':
            m = re.search(r'vmcnt\((\d+)\)', text)
            if m:
                n = int(m.group(1)); self.vm = self.vm[len(self.vm) - n:] if n < len(self.vm) else self.vm
                if n == 0: self.vm = []
            m = re.search(r'lgkmcnt\((\d+)\)', text)
            if m:
                n = int(m.group(1)); self.lg = self.lg[len(self.lg) - n:] if n < len(self.lg) else self.lg
                if n == 0: self.lg = []
            self._emit(ins); return
        wv = wl = None
        for idx, regs in enumerate(self.vm):
            if regs & touched: wv = len(self.vm) - 1 - idx
        for idx, (kind, regs) in enumerate(self.lg):
            if regs & touched: wl = len(self.lg) - 1 - idx
        if wl is not None and any(k == 'smem' for k, _ in self.lg): wl = 0
        if wv is not None or wl is not None:
            s = 's_waitcnt'
            if wv is not None: s += f' vmcnt({min(wv, 63)})'
            if wl is not None: s += f' lgkmcnt({min(wl, 15)})'
            self._I(s)
        n = self._need(ins)
        while n > 0:
            k = min(n, 16)
            self._emit(Ins(f's_nop {k - 1}')); n -= k
        self._emit(ins)
        if ins.kind == 'vmem': self.vm.append(set(ins.w))
        if ins.kind == 'ds': self.lg.append(('ds', set(ins.w)))
        if ins.kind == 'smem': self.lg.append(('smem', set(ins.w)))
    def text(self): return '\n'.join(self.out) + '\n'

class VAlloc:
    def __init__(self, start=1, limit=256):
        self.free = set(range(start, limit)); self.limit = limit
    def get(self, n=1, align=None):
        if align is None: align = 2 if n > 1 else 1
        for b in range(0, self.limit, align):
            if all((b + i) in self.free for i in range(n)):
                for i in range(n): self.free.discard(b + i)
                return b
        raise AsmError('out of vgprs')
    def put(self, b, n=1):
        for i in range(n):
            assert (b + i) not in self.free
            self.free.add(b + i)
def v(b, n=1): return f'v{b}' if n == 1 else f'v[{b}:{b + n - 1}]'
def ar(b, n=1): return f'a{b}' if n == 1 else f'a[{b}:{b + n - 1}]'
def s(b, n=1): return f's{b}' if n == 1 else f's[{b}:{b + n - 1}]'
import struct
def f32(x): return '0x%08x' % struct.unpack('<I', struct.pack('<f', x))[0]

def _lat(p, c, kind):
    if kind == 'raw':
        if p.kind == 'mfma':
            if c.kind == 'mfma' and p.w == c.C and not (set(p.w) & (set(c.A) | set(c.B))): return 16
            return 44
        if p.kind == 'ds': return 120
        if p.kind == 'vmem': return 600
        if p.kind == 'trans': return 16 if c.kind != 'mfma' else 20
        if p.kind == 'valu':
            if c.kind == 'mfma' or 'dpp' in c.op or 'permlane' in c.op: return 12
            if any(x[0] == 's' for x in p.w): return 12
            return 4
        return 4
    if kind == 'war':
        if p.kind == 'mfma' and set(p.C) & set(c.w) and c.kind != 'mfma': return 16
        return 4
    if kind == 'waw':
        if p.kind == 'mfma': return 44 if c.kind != 'mfma' else 16
        return 4
    return 4
def _issue(i):
    if i.kind == 'trans' or i.op.startswith('v_swap'): return 8
    if i.kind == 'mfma': return 8
    return 4
def schedule(lines):
    ins = [Ins(l) for l in lines]
    n = len(ins)
    for i in ins:
        if i.kind == 'salu': i.r = i.r + [('c', 0)]; i.w = i.w + [('c', 0)]
        if i.kind == 'ds':
            mt = re.search(r';@(\w+)', i.text)
            if mt:
                tag = ('m', mt.group(1))
                if i.op.startswith('ds_read'): i.r = i.r + [tag]
                else: i.r = i.r + [tag]; i.w = i.w + [tag]
            else: i.r = i.r + [('m', 0)]; i.w = i.w + [('m', 0)]
            if 'addtid' in i.op: i.r = i.r + [('s', 124)]
        if i.kind == 'vmem': i.r = i.r + [('m', 1)]; i.w = i.w + [('m', 1)]
        if i.op.startswith('v_cndmask') and len(i.ops) == 3: i.r = i.r + [('s', 106), ('s', 107)]
    preds = [[] for _ in range(n)]; succs = [[] for _ in range(n)]
    lastw = {}; readers = {}
    for k, i in enumerate(ins):
        dep = {}
        for x in i.r:
            if x in lastw:
                l = 4 if x[0] in 'cm' else _lat(ins[lastw[x]], i, 'raw')
                dep[lastw[x]] = max(dep.get(lastw[x], 0), l)
        for x in i.w:
            if x in lastw and x[0] not in 'cm': dep[lastw[x]] = max(dep.get(lastw[x], 0), _lat(ins[lastw[x]], i, 'waw'))
            for r in readers.get(x, []):
                if r != k: dep[r] = max(dep.get(r, 0), _lat(ins[r], i, 'war'))
        for p, l in dep.items(): preds[k].append((p, l)); succs[p].append((k, l))
        for x in i.r: readers.setdefault(x, []).append(k)
        for x in i.w: lastw[x] = k; readers[x] = []
    prio = [0] * n
    for k in range(n - 1, -1, -1):
        mt = re.search(r';!(\d+)', ins[k].text)
        prio[k] = _issue(ins[k]) + max([l + prio[s] for s, l in succs[k]] + [int(mt.group(1)) if mt else 0])
    done = [None] * n; npred = [len(p) for p in preds]
    ready = [k for k in range(n) if npred[k] == 0]
    t = 0; mf_free = 0; ds_free = 0; order = []
    while ready:
        def est(k):
            e = max([done[p] + l for p, l in preds[k]], default=0)
            if ins[k].kind == 'mfma' or ins[k].op.startswith('v_pk'): e = max(e, mf_free)
            if ins[k].kind == 'ds': e = max(e, ds_free)
            return e
        avail = [k for k in ready if est(k) <= t]
        if avail: k = max(avail, key=lambda k: (prio[k], -k))
        else:
            k = min(ready, key=lambda k: (est(k), -prio[k])); t = est(k)
        done[k] = t; order.append(k); ready.remove(k)
        if ins[k].kind == 'mfma': mf_free = t + 4 * ins[k].passes
        if ins[k].kind == 'ds': ds_free = t + (16 if ('b128' in ins[k].op or 'read2' in ins[k].op) else 8)
        t += _issue(ins[k])
        for s_, l in succs[k]:
            npred[s_] -= 1
            if npred[s_] == 0: ready.append(s_)
    return [lines[k] for k in order], t

class Block:
    def __init__(self, a, name=''): self.a = a; self.l = []; self.name = name
    def I(self, text):
        for line in text.strip().split('\n'):
            line = line.strip()
            if line and not line.startswith(';'):
                assert not line.startswith(('s_waitcnt', 's_barrier', 's_cbranch', 's_branch')) and 'exec' not in line, line
                self.l.append(line)
    def emit(self, verbose=False):
        out, t = schedule(self.l)
        if verbose:
            import sys; print(f'block {self.name}: {len(out)} instrs, est {t} cycles', file=sys.stderr)
        for x in out: self.a.I(x)
        self.l = []

def emit_split(b, frac, mid, verbose=False):
    out, t = schedule(b.l)
    k = int(len(out) * frac)
    for x in out[:k]: b.a.I(x)
    mid()
    for x in out[k:]: b.a.I(x)
    b.l = []

import numpy as np
def _f2u(x): return np.asarray(x, dtype=np.float32).view(np.uint32)
def _u2f(x): return np.asarray(x, dtype=np.uint32).view(np.float32)
def _bf16(x):
    u = _f2u(x).astype(np.uint64)
    return (((u + 0x7FFF + ((u >> 16) & 1)) >> 16) & 0xFFFF).astype(np.uint32)
_FC = {'0.5': 0.5, '1.0': 1.0, '2.0': 2.0, '4.0': 4.0, '0.125': 0.125, '-1.0': -1.0}
class Interp:
    def __init__(self, nthreads=256):
        self.n = nthreads
        t = np.arange(nthreads, dtype=np.uint32)
        self.r = {('v', 0): t, ('s', 3): t >> 6}
    def val(self, tok):
        neg = tok.startswith('-') and tok[1] in 'vs'
        t = tok[1:] if neg else tok
        rs = regs_of(t)
        if rs:
            x = self.r[rs[0]]
        elif t in _FC: x = np.full(self.n, int(_f2u(_FC[t])), dtype=np.uint32)
        else: x = np.full(self.n, int(t, 0) & 0xffffffff, dtype=np.uint32)
        return x ^ np.uint32(0x80000000) if neg else x
    def run(self, line):
        i = Ins(line); op = i.op
        if i.kind in ('ds', 'vmem', 'smem', 'mfma'): return False
        try:
            if op.startswith(('s_cmp', 'v_cmp')):
                a, b = (self.val(x) for x in i.ops[-2:])
                c = op.split('_')[2]
                m = {'eq': a == b, 'ne': a != b, 'lg': a != b, 'ge': a >= b, 'le': a <= b, 'lt': a < b, 'gt': a > b}[c]
                self.r[('c', 0) if op[0] == 's' else regs_of(i.ops[0])[0]] = m
                return True
            S = [self.val(x) for x in i.ops[1:]] if not op.startswith(('v_cndmask', 's_cselect_b64')) else None
            u64 = lambda x: x.astype(np.uint64)
            w = lambda x: (x & np.uint64(0xffffffff)).astype(np.uint32)
            if op == 'v_cndmask_b32': r = np.where(self.r[regs_of(i.ops[3])[0]], self.val(i.ops[2]), self.val(i.ops[1]))
            elif op == 's_cselect_b64': r = np.where(self.r[('c', 0)], int(i.ops[1]) != 0, int(i.ops[2]) != 0)
            elif op in ('v_mov_b32', 's_mov_b32'): r = S[0]
            elif op in ('v_and_b32', 's_and_b32'): r = S[0] & S[1]
            elif op in ('v_or_b32', 's_or_b32'): r = S[0] | S[1]
            elif op == 'v_xor_b32': r = S[0] ^ S[1]
            elif op in ('v_add_u32', 's_add_u32'): r = S[0] + S[1]
            elif op in ('v_sub_u32', 's_sub_u32'): r = S[0] - S[1]
            elif op == 'v_lshlrev_b32': r = S[1] << (S[0] & 31)
            elif op == 'v_lshrrev_b32': r = S[1] >> (S[0] & 31)
            elif op == 's_lshl_b32': r = S[0] << (S[1] & 31)
            elif op == 's_lshr_b32': r = S[0] >> (S[1] & 31)
            elif op == 's_mul_i32': r = w(u64(S[0]) * u64(S[1]))
            elif op == 'v_mul_u32_u24': r = w(u64(S[0] & 0xffffff) * u64(S[1] & 0xffffff))
            elif op == 'v_mad_u32_u24': r = w(u64(S[0] & 0xffffff) * u64(S[1] & 0xffffff) + u64(S[2]))
            elif op == 'v_lshl_add_u32': r = (S[0] << (S[1] & 31)) + S[2]
            elif op == 'v_lshl_or_b32': r = (S[0] << (S[1] & 31)) | S[2]
            elif op == 'v_bfe_u32': r = (S[0] >> (S[1] & 31)) & ((np.uint32(1) << S[2]) - np.uint32(1))
            elif op == 'v_ffbh_u32': r = np.array([32 - int(x).bit_length() for x in S[0]], dtype=np.uint32)
            elif op == 'v_max_i32': r = np.maximum(S[0].view(np.int32), S[1].view(np.int32)).view(np.uint32)
            elif op == 'v_cvt_f32_u32': r = _f2u(S[0].astype(np.float32))
            elif op == 'v_add_f32': r = _f2u(_u2f(S[0]) + _u2f(S[1]))
            elif op == 'v_mul_f32': r = _f2u(_u2f(S[0]) * _u2f(S[1]))
            elif op == 'v_fmamk_f32': r = _f2u((_u2f(S[0]).astype(np.float64) * _u2f(S[1]) + _u2f(S[2])).astype(np.float32))
            elif op in ('v_cos_f32', 'v_sin_f32'):
                x = _u2f(S[0]).astype(np.float64); y = np.cos(2*np.pi*x) if 'cos' in op else np.sin(2*np.pi*x)
                r = _f2u(np.where(np.abs(y) < 1e-9, 0.0, y).astype(np.float32))
            elif op == 'v_cvt_pk_bf16_f32': r = _bf16(_u2f(S[0])) | (_bf16(_u2f(S[1])) << 16)
            else: raise AsmError('interp: ' + op)
        except KeyError:
            for x in i.w: self.r.pop(x, None)
            if i.kind == 'salu': self.r.pop(('c', 0), None)
            return False
        self.r[regs_of(i.ops[0])[0]] = r
        return True
```

```python
import sys
base, out = sys.argv[1], sys.argv[2]
role, st, mode = int(sys.argv[3]), int(sys.argv[4]), sys.argv[5]
s = open(base).read()
lines = s.split('\n')
last = max(i for i, l in enumerate(lines) if l.startswith('; @launch'))
lines.insert(last + 1, '; @launch kernel=spin_kernel grid=(1,1,1) block=(64,1,1) lds=0')
s = '\n'.join(lines)
off = 0xFC0000 + role * 65536 + st * 4
off0 = 0xFC0000 + 65536
rl0 = ''.join(f'    v_readlane_b32 s7, v6, {i}\n    s_min_u32 s11, s11, s7\n' for i in range(1, 64))
rl = ''.join(f'    v_readlane_b32 s7, v2, {i}\n    s_{mode}_u32 s6, s6, s7\n' for i in range(1, 64))
code = f'''.globl spin_kernel
.p2align 8
.type spin_kernel,@function
spin_kernel:
    s_cmp_lg_u32 s2, 0
    s_cbranch_scc1 L_spin_end
    s_load_dwordx2 s[4:5], s[0:1], 104
    v_lshlrev_b32 v1, 10, v0
    v_add_u32 v1, {off}, v1
    s_waitcnt lgkmcnt(0)
    global_load_dword v2, v1, s[4:5]
    global_load_dword v3, v1, s[4:5] offset:256
    global_load_dword v4, v1, s[4:5] offset:512
    global_load_dword v5, v1, s[4:5] offset:768
    v_lshlrev_b32 v1, 10, v0
    v_add_u32 v1, {off0}, v1
    global_load_dword v6, v1, s[4:5]
    global_load_dword v7, v1, s[4:5] offset:256
    global_load_dword v8, v1, s[4:5] offset:512
    global_load_dword v9, v1, s[4:5] offset:768
    s_waitcnt vmcnt(0)
    v_min_u32 v6, v6, v7
    v_min_u32 v8, v8, v9
    v_min_u32 v6, v6, v8
    v_{mode}_u32 v2, v2, v3
    v_{mode}_u32 v4, v4, v5
    v_{mode}_u32 v2, v2, v4
    s_nop 1
    v_readlane_b32 s6, v2, 0
{rl}    v_readlane_b32 s11, v6, 0
{rl0}    s_sub_u32 s6, s6, s11
    s_lshl_b32 s6, s6, 3
    s_add_u32 s6, s6, s11
    s_add_u32 s6, s6, 2000
    s_mov_b32 s10, 20000
L_spin:
    s_memrealtime s[8:9]
    s_waitcnt lgkmcnt(0)
    s_sub_u32 s10, s10, 1
    s_cmp_eq_u32 s10, 0
    s_cbranch_scc1 L_spin_end
    s_sub_u32 s8, s8, s6
    s_cmp_lt_i32 s8, 0
    s_cbranch_scc1 L_spin
L_spin_end:
    s_endpgm
'''
kd = '''.p2align 6
.amdhsa_kernel spin_kernel
  .amdhsa_next_free_vgpr 16
  .amdhsa_next_free_sgpr 16
  .amdhsa_accum_offset 16
  .amdhsa_group_segment_fixed_size 0
  .amdhsa_kernarg_size 112
  .amdhsa_user_sgpr_count 2
  .amdhsa_user_sgpr_kernarg_segment_ptr 1
  .amdhsa_system_sgpr_workgroup_id_x 1
.end_amdhsa_kernel
'''
s = s.replace('.section .rodata,"a"', code + '.section .rodata,"a"') + kd
open(out, 'w').write(s)
```

```python
import sys, math, os
from asmlib import *
E = lambda k, d: int(os.environ.get(k, str(d)))
BS = 8192 + E('BSPAD', 256)
Y_OFF  = 0x000000
V_OFF  = 256*BS if E('COMPACT', 1) else 0x310000
AW_OFF = 2*V_OFF
UT_OFF = 3*V_OFF
YN_OFF = 0xC60000
VN_OFF = 0xC50000
EP_OFF = 0xC40000
WS_BYTES = 0x1000000
LOG2E = 1.4426950408889634
TOKC = 0x9E3779B9
SPIN = 30000
PROF = E('PROF', 0); PREFETCH = E('PREFETCH', 1); BPRIO = E('BPRIO', 2); WPOS = E('WPOS', 1); BACKOFF = E('BACKOFF', 4)
AFIRST = E('AFIRST', 1); WPF = E('WPF', 1)
NAME = 'gated_mix__ssm_conv_s4d__spectral_gfnet__prompt_kernel'
DBG_OFF = 0xFC0000
NST = 15
SKIP = ()
def stamp(a, i, wait=True):
    if PROF and i not in SKIP:
        if wait: a.I(f's_memrealtime s[{64+2*i}:{65+2*i}]\n s_waitcnt lgkmcnt(0)')
        else: a.I(f's_memrealtime s[{64+2*i}:{65+2*i}]')
def endpgm(a, srdb, last, role):
    if PROF:
        stamp(a, last)
        a.I('s_waitcnt vmcnt(0)')
        stamp(a, last + 1)
        a.I('s_mov_b64 exec, 1')
        for i in range(16): a.I(f'v_mov_b32 v{4+i}, s{64+2*i}' if i < NST else f'v_mov_b32 v{4+i}, s60')
        a.I(f's_and_b32 s61, s2, 255\n s_lshl_b32 s61, s61, 2\n s_add_u32 s61, s61, s3\n s_lshl_b32 s61, s61, 6\n s_add_u32 s61, s61, {DBG_OFF + role*65536}')
        a.I('v_mov_b32 v1, 0')
        for k in range(4): a.I(f'buffer_store_dwordx4 v[{4+4*k}:{7+4*k}], v1, s[{srdb}:{srdb+3}], s61 offen offset:{16*k}')
    a.I('s_endpgm')
def srd(a, d, b, nbytes):
    if nbytes == WS_BYTES and E('WSBASE', 0): a.I(f's_add_u32 s{b}, s{b}, {E("WSBASE", 0) << 20}\n s_addc_u32 s{b+1}, s{b+1}, 0')
    a.I(f's_mov_b32 s{d}, s{b}\n s_mov_b32 s{d+1}, s{b+1}\n s_mov_b32 s{d+2}, {nbytes}\n s_mov_b32 s{d+3}, 0x00020000')
def task_of(a, dst, tmp):
    a.I(f's_and_b32 s{dst}, s2, 7\n s_lshl_b32 s{dst}, s{dst}, 5\n s_bfe_u32 s{tmp}, s2, 0x50003\n s_or_b32 s{dst}, s{dst}, s{tmp}')
def lanes(a, V):
    n, q = V.get(), V.get()
    a.I(f'v_lshrrev_b32 {v(q)}, 6, v0')
    a.I(f'v_and_b32 {v(n)}, 15, v0')
    a.I(f'v_readfirstlane_b32 s3, {v(q)}')
    a.I(f'v_bfe_u32 {v(q)}, v0, 4, 2')
    return n, q
def cm1(a, re, im, c, s_, t1, t2, sign):
    a.I(f'v_mul_f32 {v(t1)}, {v(im)}, {v(s_)}\n v_mul_f32 {v(t2)}, {v(re)}, {v(s_)}')
    a.I(f'v_fma_f32 {v(re)}, {v(re)}, {v(c)}, {"-" if sign > 0 else ""}{v(t1)}')
    a.I(f'v_fma_f32 {v(im)}, {v(im)}, {v(c)}, {"-" if sign < 0 else ""}{v(t2)}')
def cmul_tw(a, re, im, c, s_, t1, t2, sign):
    cm1(a, re, im, c, s_, t1, t2, sign); cm1(a, re+1, im+1, c+1, s_+1, t1+1, t2+1, sign)
def mfma(a, d, A, B, c):
    a.I(f'v_mfma_f32_16x16x32_bf16 {v(d,4)}, {v(A,4)}, {v(B,4)}, {c if isinstance(c,str) else v(c,4)}')
def cvt(a, d, x, y, nx=False, ny=False):
    a.I(f'v_cvt_pk_bf16_f32 {v(d)}, {"-" if nx else ""}{v(x)}, {"-" if ny else ""}{v(y)}')
def chk(a, g, tok):
    a.I(f'v_add3_u32 {v(g+3)}, {v(g)}, {v(g+1)}, {v(g+2)}\n v_add_u32 {v(g+3)}, s{tok}, {v(g+3)}')
_lab = [0]
def poll_check(a, loads, R, tmp, tok, backoff=None, young=0):
    _lab[0] += 1
    L = f'L_poll{_lab[0]}'
    bo = BACKOFF if backoff is None else backoff
    Gs = R if isinstance(R, list) else [R, R+4, R+8]
    a.I(f's_mov_b32 s59, {SPIN}')
    a.label(L, keep=True)
    for k, g in enumerate(Gs):
        a.I(f's_waitcnt vmcnt({len(Gs)-1-k+young})')
        a.I(f'v_add3_u32 {v(tmp+1)}, {v(g)}, {v(g+1)}, {v(g+2)}\n v_sub_u32 {v(tmp+1)}, {v(g+3)}, {v(tmp+1)}')
        a.I(f'v_xor_b32 {v(tmp)}, s{tok}, {v(tmp+1)}' if k == 0 else f'v_xor_b32 {v(tmp+1)}, s{tok}, {v(tmp+1)}\n v_or_b32 {v(tmp)}, {v(tmp)}, {v(tmp+1)}')
    a.I(f'v_cmp_ne_u32 vcc, 0, {v(tmp)}\n s_cbranch_vccz {L}_out\n s_sub_u32 s59, s59, 1\n s_cbranch_scc1 {L}_out\n s_mov_b64 exec, vcc')
    if bo: a.I(f's_sleep {bo}')
    for x in loads: a.I(x)
    if young: a.I('s_waitcnt vmcnt(0)')
    a.I(f's_branch {L}')
    a.label(L + '_out', keep=True)
    a.vm = []
    a.I('s_mov_b64 exec, -1')
def mktok(a, tok, tmp):
    a.I(f's_xor_b32 s{tok}, s{tok}, 0xffff\n s_add_u32 s{tok}, s{tok}, 0x9e370000')
def tagregs(a, TG, t0, tok, sm, piece4=None, clean=True):
    a.I(piece4 or f'v_and_b32 {v(t0)}, 3, v0\n v_lshlrev_b32 {v(t0)}, 2, {v(t0)}')
    a.I(f's_mov_b32 s{sm}, 0x10001\n v_lshrrev_b32 {v(TG)}, {v(t0)}, s{tok}')
    for i in range(1, 4): a.I(f'v_lshrrev_b32 {v(TG+i)}, {i}, {v(TG)}')
    if clean:
        for i in range(4): a.I(f'v_and_b32 {v(TG+i)}, 0x10001, {v(TG+i)}')
def publish(a, img, R, vps, TG, vl16, srdb, soff, sm):
    for k in range(2): a.I(f'ds_read_b128 {v(R+4*k,4)}, {v(vps)} offset:{img+1536*k}')
    for k in range(2):
        for i in range(4): a.I(f'v_bfi_b32 {v(R+4*k+i)}, s{sm}, {v(TG+i)}, {v(R+4*k+i)}')
        a.I(f'buffer_store_dwordx4 {v(R+4*k,4)}, {v(vl16)}, s[{srdb}:{srdb+3}], s{soff} offen offset:{1024*k} sc1')
def tag_check(a, loads, R, TG, tmp, tok, extra=None, backoff=None, young=0):
    _lab[0] += 1
    L = f'L_tag{_lab[0]}'
    bo = BACKOFF if backoff is None else backoff
    nl = len(loads)
    a.I(f's_mov_b32 s59, {SPIN}')
    a.label(L, keep=True)
    for k in range(nl - (extra is not None)):
        g = R + 4*k
        a.I(f's_waitcnt vmcnt({nl-1-k+young})')
        for i in range(4): a.I(f'v_xor_b32 {v(g+i)}, {v(TG+i)}, {v(g+i)}')
        if k == 0: a.I(f'v_or3_b32 {v(tmp)}, {v(g)}, {v(g+1)}, {v(g+2)}\n v_or_b32 {v(tmp)}, {v(tmp)}, {v(g+3)}')
        else: a.I(f'v_or3_b32 {v(tmp)}, {v(tmp)}, {v(g)}, {v(g+1)}\n v_or3_b32 {v(tmp)}, {v(tmp)}, {v(g+2)}, {v(g+3)}')
    a.I(f'v_and_b32 {v(tmp)}, 0x10001, {v(tmp)}')
    if extra is not None:
        g = extra
        a.I(f's_waitcnt vmcnt(0)\n v_add3_u32 {v(tmp+1)}, {v(g)}, {v(g+1)}, {v(g+2)}\n v_sub_u32 {v(tmp+1)}, {v(g+3)}, {v(tmp+1)}\n v_xor_b32 {v(tmp+1)}, s{tok}, {v(tmp+1)}\n v_or_b32 {v(tmp)}, {v(tmp)}, {v(tmp+1)}')
    a.I(f'v_cmp_ne_u32 vcc, 0, {v(tmp)}\n s_cbranch_vccz {L}_out\n s_sub_u32 s59, s59, 1\n s_cbranch_scc1 {L}_out\n s_wqm_b64 exec, vcc')
    if bo: a.I(f's_sleep {bo}')
    for x in loads: a.I(x)
    if PROF: a.I('s_add_u32 s60, s60, 1')
    if young: a.I('s_waitcnt vmcnt(0)')
    a.I(f's_branch {L}')
    a.label(L + '_out', keep=True)
    a.vm = []
    a.I('s_mov_b64 exec, -1')
def unpack(a, img, R, vun, masked=False):
    if masked: a.I('s_mov_b64 exec, s[10:11]')
    for k in range(4): a.I(f'ds_write_b128 {v(vun)}, {v(R+4*k,4)} offset:{img+768*k}')
    if masked: a.I('s_mov_b64 exec, -1')

LX = 0; LI0 = 8704; LI1 = LI0 + 12288; LW = LI1 + 12288; LG = LW + 256*80; LDUM = LG + 64
VERB = E('VERB', 0)
def role_b(a, split=None):
    V = VAlloc(1, 255)
    a.label('L_b_pre'); a.lg = [('smem', {('s', i) for i in list(range(4, 22)) + list(range(48, 56))})]
    if E('ONLYA', 0): a.I('s_endpgm')
    def hi(p=3): a.I(f's_setprio {p}')
    def lo(): a.I(f's_setprio {E("LOPRIO", 1)}')
    a.I(f's_setprio {E("B0PRIO", 2)}')
    task_of(a, 22, 23)
    n, q = lanes(a, V)
    t0 = V.get(); t1 = V.get(); TM = V.get(3)
    vl16 = V.get(); a.I(f'v_and_b32 {v(vl16)}, 63, v0\n v_lshlrev_b32 {v(vl16)}, 4, {v(vl16)}')
    a.I(f's_lshl_b32 s24, s3, 9\n s_add_u32 s24, s24, s22\n s_lshl_b32 s24, s24, 10\n s_add_u32 s25, s24, {256*1024}')
    a.I(f's_mul_i32 s26, s3, 2112\n s_mov_b32 s30, 2097152\n s_mov_b32 s31, 0x00020000')
    WR = V.get(4, 4); WI = V.get(4, 4); WNR = V.get(2); GW = V.get(8, 4)
    XA = V.get(32, 4); ACC = V.get(32, 4); T = V.get(16)
    base = V.get(); fN = V.get()
    POOL = V.get(120, 4)
    C1 = POOL; TC = POOL + 16; TS = POOL + 32; C2 = POOL + 48; CN = POOL + 96; A2 = POOL + 100
    f1, kH, fF, fK, sgn = (ACC + i for i in range(5))
    b = Block(a, 'c1')
    b.I(f'v_lshrrev_b32 {v(f1)}, 3, {v(n)}\n s_lshl_b32 s56, s3, 1\n v_add_u32 {v(f1)}, s56, {v(f1)}\n v_and_b32 {v(kH)}, 7, {v(n)}')
    b.I(f'v_cvt_f32_u32 {v(fF)}, {v(f1)}\n v_cvt_f32_u32 {v(fK)}, {v(kH)}')
    b.I(f'v_and_b32 {v(t0)}, 1, {v(q)}\n v_lshlrev_b32 {v(t0)}, 2, {v(t0)}\n v_mul_u32_u24 {v(t0)}, {v(t0)}, {v(f1)}')
    b.I(f'v_and_b32 {v(t1)}, 2, {v(q)}\n v_mad_u32_u24 {v(t0)}, {v(t1)}, {v(kH)}, {v(t0)}')
    b.I(f'v_cvt_f32_u32 {v(base)}, {v(t0)}\n v_mul_f32 {v(base)}, 0.125, {v(base)}')
    b.I(f'v_and_b32 {v(sgn)}, 1, {v(kH)}\n v_mul_u32_u24 {v(sgn)}, 0x8000, {v(sgn)}\n v_lshl_or_b32 {v(sgn)}, {v(sgn)}, 16, {v(sgn)}')
    for h in range(2):
        if h == 1: b.I(f'v_fmamk_f32 {v(base)}, {v(fK)}, {f32(0.125)}, {v(base)}')
        for r in range(1, 4): b.I(f'v_fmamk_f32 {v(T+8+r)}, {v(fF)}, {f32(0.125*r)}, {v(base)}')
        for r in range(4):
            ang = base if r == 0 else T + 8 + r
            b.I(f'v_cos_f32 {v(T+r)}, {v(ang)}\n v_sin_f32 {v(T+4+r)}, {v(ang)}')
        cvt(b, C1+2*h, T, T+1); cvt(b, C1+2*h+1, T+2, T+3)
        cvt(b, C1+8+2*h, T+4, T+5, True, True); cvt(b, C1+8+2*h+1, T+6, T+7, True, True)
    for i in range(4):
        b.I(f'v_xor_b32 {v(C1+4+i)}, {v(sgn)}, {v(C1+i)}\n v_xor_b32 {v(C1+12+i)}, {v(sgn)}, {v(C1+8+i)}')
    if E('EARLYC', 1): b.emit(VERB)
    a.I('s_waitcnt lgkmcnt(0)'); stamp(a, 1)
    a.I('s_mov_b32 s28, s4\n s_mov_b32 s29, s5\n s_mov_b32 m0, s26')
    a.I(f'buffer_load_dwordx4 {v(vl16)}, s[28:31], s24 offen lds')
    a.I('s_add_u32 m0, s26, 1056')
    a.I(f'buffer_load_dwordx4 {v(vl16)}, s[28:31], s25 offen lds')
    a.I('s_mov_b32 s4, s16\n s_mov_b32 s5, s17')
    srd(a, 44, 20, WS_BYTES)
    a.I(f's_add_u32 s20, s20, {EP_OFF}\n s_addc_u32 s21, s21, 0\n s_load_dword s57, s[20:21], 0')
    srd(a, 32, 48, 1052672); srd(a, 36, 50, 1052672); srd(a, 40, 52, 1024); srd(a, 12, 54, 2097152)
    a.I(f's_and_b32 s27, s2, 7\n s_mul_i32 s61, s27, 514\n s_lshl_b32 s62, s23, 4\n s_add_u32 s62, s62, s61')
    a.I(f's_mul_i32 s6, s22, {BS}\n s_lshl_b32 s7, s3, 11\n s_add_u32 s6, s6, s7\n s_mul_i32 s7, s3, 3072\n s_add_u32 s8, s6, {V_OFF}')
    a.I(f's_mul_i32 s63, s23, {8*4112}\n s_add_u32 s63, s63, s61\n s_and_b32 s63, s63, -4')
    if split:
        a.I('s_branch L_b2'); st_ = (list(a.vm), list(a.lg)); split(); a.label('L_b2'); a.vm, a.lg = st_
    npt = 0
    if E('PT', 0):
        st = E('PTS', 17)
        a.I(f'v_and_b32 {v(t0)}, 63, v0\n v_lshlrev_b32 {v(t0)}, {st}, {v(t0)}\n s_mov_b32 s56, {0x2F0000 if st >= 21 else 0}')
        if E('PT', 0) == 2: a.I(f'v_mul_u32_u24 {v(t0)}, {BS}, v0\n s_mov_b32 s56, {V_OFF + 8192}')
        a.I(f'buffer_load_dword v255, {v(t0)}, s[44:47], s56 offen')
        npt = 1
    PRE = E('PRE', 0)
    def prest(sr):
        a.I(f'v_lshlrev_b32 {v(TM+2)}, 2, {v(vl16)}\n s_mov_b32 exec_hi, 0xffff')
        a.I(f'buffer_store_dword {v(TM+2)}, {v(TM+2)}, s[44:47], s{sr} offen sc1' if not E('PRELD', 0) else f's_mov_b32 exec_lo, 0x55555555\n s_mov_b32 exec_hi, 0x5555\n buffer_load_dword v255, {v(TM+2)}, s[44:47], s{sr} offen')
        a.I('s_mov_b64 exec, -1')
    npre = 0
    if PRE & 1: prest(6); npre += 1
    if PRE & 2: prest(8); npre += 1
    if not E('EARLYC', 1): b.emit(VERB)
    vw = V.get(); vj4 = V.get(); vpf = V.get(); vrow = V.get()
    a.I(f's_mul_i32 s58, s23, {E("WROT", 8)}\n v_mul_u32_u24 {v(vrow)}, {E("WMUL", 1)}, v0\n v_add_u32 {v(vrow)}, s58, {v(vrow)}\n v_and_b32 {v(vrow)}, 255, {v(vrow)}\n v_mul_u32_u24 {v(vw)}, 4112, {v(vrow)}')
    a.I(f'v_mov_b32 {v(WNR)}, 0\n v_mov_b32 {v(WNR+1)}, 0\n s_cmp_eq_u32 s23, 31\n s_cselect_b64 s[10:11], -1, 0')
    ndrip = [0]
    def drip(k):
        if E('WST', 1) != 3: return
        lo_, hi_ = ((0xffff, 0), (0xffff0000, 0), (0, 0xffff), (0, 0xffff0000))[k]
        a.I(f's_mov_b32 exec_lo, {lo_}\n s_mov_b32 exec_hi, {hi_}')
        for r, rn, sr in ((WR, WNR, 32), (WI, WNR+1, 36)):
            a.raw(f'    buffer_load_dwordx4 {v(r,4)}, {v(vw)}, s[{sr}:{sr+3}], s62 offen'); a.vm.append(set())
        a.I(f's_and_b64 exec, exec, s[10:11]\n s_cbranch_execz L_drip{k}')
        for r, rn, sr in ((WR, WNR, 32), (WI, WNR+1, 36)):
            a.raw(f'    buffer_load_short_d16_hi {v(rn)}, {v(vw)}, s[{sr}:{sr+3}], s62 offen offset:16')
        a.label(f'L_drip{k}', keep=True)
        a.I('s_mov_b64 exec, -1')
        ndrip[0] += 2
    DR = [int(x) for x in os.environ.get('DRIP', '0123')]
    def slot(i):
        for k, x in enumerate(DR):
            if x == i: drip(k)
    slot(0)
    b.I(f'v_mul_u32_u24 {v(t0)}, {v(kH)}, {v(q)}\n v_lshlrev_b32 {v(t0)}, 4, {v(t0)}\n v_mad_u32_u24 {v(t0)}, {v(f1)}, s22, {v(t0)}')
    b.I(f'v_cvt_f32_u32 {v(base)}, {v(t0)}\n v_mul_f32 {v(base)}, {f32(1/2048)}, {v(base)}')
    for t in range(4):
        for i in range(4):
            k = 16*t + i
            if k == 0: ang = base
            else:
                ang = T + 4*t + i
                b.I(f'v_fmamk_f32 {v(ang)}, {v(fK)}, {f32(k/512)}, {v(base)}')
            b.I(f'v_cos_f32 {v(TC+4*t+i)}, {v(ang)}\n v_sin_f32 {v(TS+4*t+i)}, {v(ang)}')
    b.I(f'v_lshrrev_b32 {v(vj4)}, 5, v0\n v_mul_u32_u24 {v(vpf)}, 4112, {v(vj4)}\n v_and_b32 {v(t1)}, 7, v0\n v_lshl_add_u32 {v(vpf)}, {v(t1)}, 7, {v(vpf)}\n v_lshlrev_b32 {v(vj4)}, 2, {v(vj4)}')
    b.emit(VERB)
    WST = E('WST', 1)
    def wstorm(parts=(0, 1)):
        a.I(f's_cmp_eq_u32 s23, 31\n s_cselect_b64 s[10:11], -1, 1')
        for k in parts:
            r, sr = ((WR, 32), (WI, 36))[k]
            a.I(f'v_mov_b32 {v(WNR+k)}, 0')
            a.I(f'buffer_load_dwordx4 {v(r,4)}, {v(vw)}, s[{sr}:{sr+3}], s62 offen')
            a.I('s_mov_b64 exec, s[10:11]')
            a.I(f'buffer_load_short_d16_hi {v(WNR+k)}, {v(vw)}, s[{sr}:{sr+3}], s62 offen offset:16')
            a.I('s_mov_b64 exec, -1')
    def wpf():
        a.I('s_mov_b32 exec_lo, 0x1f\n s_mov_b32 exec_hi, 0x1f')
        a.I(f'buffer_load_dword {v(TM)}, {v(vpf)}, s[32:35], s63 offen')
        a.I(f'buffer_load_dword {v(TM+1)}, {v(vpf)}, s[36:39], s63 offen')
        a.I('s_mov_b64 exec, -1')
    if WPF == 1: wpf()
    slot(1)
    b.I(f'v_cvt_f32_u32 {v(fN)}, {v(n)}\n v_mul_u32_u24 {v(t0)}, {v(n)}, {v(q)}\n v_cvt_f32_u32 {v(base)}, {v(t0)}\n v_mul_f32 {v(base)}, {f32(1/16)}, {v(base)}')
    for t in range(2):
        TT = XA + 12*t
        for i in range(4):
            k = 16*t + i
            if k == 0: ang = base
            else:
                ang = TT + 8 + i
                b.I(f'v_fmamk_f32 {v(ang)}, {v(fN)}, {f32(k/64)}, {v(base)}')
            b.I(f'v_cos_f32 {v(TT+i)}, {v(ang)}\n v_sin_f32 {v(TT+4+i)}, {v(ang)}')
        c = [TT+i for i in range(4)]; s_ = [TT+4+i for i in range(4)]
        b0 = C2 + 6*t; b1 = C2 + 24 + 6*t
        cvt(b, b0+0, s_[0], s_[1], True, True); cvt(b, b0+2, c[0], c[1]); cvt(b, b0+4, s_[0], s_[1])
        cvt(b, b1+0, s_[0], c[1], True, True); cvt(b, b1+2, c[0], s_[1], False, True); cvt(b, b1+4, s_[0], c[1])
        cvt(b, b0+3, c[2], c[3]); cvt(b, b1+1, s_[2], c[3]); cvt(b, b1+5, s_[2], c[3], True, True)
        cvt(b, b0+1, s_[2], s_[3], True, True); cvt(b, b0+5, s_[2], s_[3]); cvt(b, b1+3, c[2], s_[3], True, False)
        for ct in range(2):
            for i in range(6): b.I(f'v_xor_b32 {v(C2+24*ct+6*t+12+i)}, {v(sgn)}, {v(C2+24*ct+6*t+i)}')
    b.I(f'v_mov_b32 {v(T)}, 0xbf803f80')
    b.I(f'v_cmp_eq_u32 vcc, 0, {v(n)}\n v_cndmask_b32 {v(CN)}, 0, {v(T)}, vcc\n v_cndmask_b32 {v(CN+1)}, 0, {v(T)}, vcc')
    b.I(f'v_cmp_eq_u32 vcc, 1, {v(n)}\n v_cndmask_b32 {v(CN+2)}, 0, {v(T)}, vcc\n v_cndmask_b32 {v(CN+3)}, 0, {v(T)}, vcc')
    vtr = V.get(); vys = V.get(); vyn = V.get()
    b.I(f'v_bfe_u32 {v(T+1)}, v0, 2, 3\n v_mul_u32_u24 {v(vtr)}, 1056, {v(T+1)}')
    b.I(f'v_bfe_u32 {v(T+2)}, v0, 5, 1\n v_lshl_add_u32 {v(vtr)}, {v(T+2)}, 8, {v(vtr)}')
    b.I(f'v_and_b32 {v(T+3)}, 3, v0\n v_lshl_add_u32 {v(vtr)}, {v(T+3)}, 3, {v(vtr)}')
    b.emit(VERB)
    if WPF == 2: wpf()
    slot(2)
    V.put(vpf)
    stamp(a, 2)
    if WST == 2: wstorm()
    a.I(f's_waitcnt vmcnt({(2 if WPF else 0) + (4 if WST == 2 and not E("NOW", 0) else 0) + ndrip[0] + npre + npt})')
    hi(E('P1PRIO', 1))
    a.I('s_barrier'); stamp(a, 3)
    if WST == 0: wstorm()
    slot(3)
    mktok(a, 57, 56)
    if PRE & 16: prest(8)
    b = Block(a, 'phase1')
    for t in range(4):
        for g in range(2):
            for h in range(2):
                b.I(f'ds_read_b64_tr_b16 {v(XA+8*t+4*g+2*h,2)}, {v(vtr)} offset:{LX+512*g+128*h+32*t}')
    TG = V.get(4, 1); vps = V.get(); vun = V.get(); NG = V.get(4, 4)
    TY = GW
    tagregs(b, TY, GW+4, 57, 16, f'v_bfe_u32 {v(GW+4)}, v0, 2, 3\n v_and_b32 {v(GW+4)}, 4, {v(GW+4)}\n v_and_b32 {v(GW+5)}, 1, v0\n v_lshl_add_u32 {v(GW+4)}, {v(GW+5)}, 3, {v(GW+4)}', False)
    b.I(f'v_lshlrev_b32 {v(vys)}, 8, {v(vj4)}\n v_lshl_add_u32 {v(vys)}, {v(n)}, 5, {v(vys)}\n v_and_b32 {v(t0)}, 16, v0\n v_add_u32 {v(vys)}, {v(vys)}, {v(t0)}\n s_mul_i32 s18, s22, {BS}')
    b.I(f'v_lshlrev_b32 {v(vyn)}, 3, {v(vj4)}\n v_and_b32 {v(t0)}, 1, v0\n v_lshl_add_u32 {v(vyn)}, {v(t0)}, 4, {v(vyn)}\n v_and_b32 {v(t0)}, 30, v0\n v_lshl_add_u32 {v(vyn)}, {v(t0)}, 24, {v(vyn)}\n s_mul_i32 s17, s22, {BS}\n s_add_u32 s17, s17, 8192')
    b.I(f'v_mov_b32 {v(NG+1)}, 0\n v_mov_b32 {v(NG+2)}, 0')
    for t in range(4):
        for p in range(2): mfma(b, ACC+8*t+4*p, XA+8*t, C1+8*p, '0')
        for p in range(2): mfma(b, ACC+8*t+4*p, XA+8*t+4, C1+8*p+4, ACC+8*t+4*p)
    for t in range(4):
        re, im = ACC+8*t, ACC+8*t+4
        for i in range(4): cm1(b, re+i, im+i, TC+4*t+i, TS+4*t+i, T+8*(t&1)+2*i, T+8*(t&1)+2*i+1, -1)
        F = XA + 8*t
        cvt(b, F, re, re+1); cvt(b, F+2, im, im+1); cvt(b, F+1, re+2, re+3); cvt(b, F+3, im+2, im+3)
        mfma(b, A2+16, F, CN, '0' if t == 0 else A2+16)
        for ct in range(2):
            bb = C2 + 24*ct + 6*t
            mfma(b, A2+8*ct, F, bb+2, '0' if t == 0 else A2+8*ct)
            mfma(b, A2+8*ct+4, F, bb, '0' if t == 0 else A2+8*ct+4)
    for ct in range(2):
        O = XA + 4 + 8*ct
        for i in range(4): cvt(b, O+i, A2+8*ct+i, A2+8*ct+4+i)
        for i in range(4): b.I(f'v_bfi_b32 {v(O+i)}, s16, {v(TY+i)}, {v(O+i)}')
        b.I(f'buffer_store_dwordx4 {v(O,4)}, {v(vys)}, s[44:47], s18 offen offset:{512*ct} sc1 ;!200')
    if PRE & 1:
        b.emit(VERB); a.I(f's_waitcnt vmcnt({(2 if WPF else 0) + (1 if PRE & 2 else 0) + (1 if PRE & 16 else 0)})')
    b.I(f'v_mov_b32_dpp {v(T)}, {v(A2+16)} quad_perm:[1,1,1,1] row_mask:0xf bank_mask:0xf')
    cvt(b, NG, A2+16, T)
    b.I(f'v_add_u32 {v(NG+3)}, s57, {v(NG)}\n buffer_store_dwordx4 {v(NG,4)}, {v(vyn)}, s[44:47], s17 offen sc1')
    b.emit(VERB)
    stamp(a, 4)
    V.put(vtr); V.put(vys); V.put(vyn)
    if WST == 1: wstorm()
    if WST == 6: wstorm((0,))
    slot(4)
    if E('W1PRIO', -1) >= 0: hi(E('W1PRIO', -1))
    FR_, FI_, TC2, TS2 = POOL + 88, POOL + 92, GW, GW + 4
    b = Block(a, 'w1a')
    b.I(f'v_mul_f32 {v(base)}, {f32(1/4)}, {v(base)}')
    for i in range(4):
        ang = T + 4*i + 2
        if i == 0: ang = base
        else: b.I(f'v_fmamk_f32 {v(ang)}, {v(fN)}, {f32(i/256)}, {v(base)}')
        b.I(f'v_mul_f32 {v(T+4*i+3)}, {f32(16.0)}, {v(ang)}')
        b.I(f'v_cos_f32 {v(T+4*i)}, {v(T+4*i+3)}\n v_sin_f32 {v(T+4*i+1)}, {v(T+4*i+3)}')
        b.I(f'v_cos_f32 {v(TC2+i)}, {v(ang)}\n v_sin_f32 {v(TS2+i)}, {v(ang)}')
        cvt(b, FR_+i, T+4*i, T+4*i+1); cvt(b, FI_+i, T+4*i+1, T+4*i, True, False)
    tagregs(b, TG, t1, 57, 16)
    b.I(f'v_bfe_u32 {v(vps)}, v0, 1, 5\n v_mul_u32_u24 {v(vps)}, 48, {v(vps)}\n v_and_b32 {v(t0)}, 1, v0\n v_lshl_add_u32 {v(vps)}, {v(t0)}, 4, {v(vps)}\n v_add_u32 {v(vps)}, s7, {v(vps)}')
    GA = V.get(); vy = V.get(); vnn = V.get(); vnw = V.get(); vy1 = V.get(); vww = V.get(); vp16 = V.get()
    b.I(f'v_and_b32 {v(vp16)}, 3, v0\n v_lshlrev_b32 {v(vp16)}, 4, {v(vp16)}\n v_bfe_u32 {v(t1)}, v0, 2, 4\n v_mul_u32_u24 {v(GA)}, {BS}, {v(t1)}\n v_add_u32 {v(GA)}, {v(GA)}, {v(vp16)}')
    b.I(f'v_mul_u32_u24 {v(vun)}, 48, {v(t1)}\n v_and_b32 {v(t1)}, 16, {v(vp16)}\n v_add3_u32 {v(vun)}, {v(vun)}, {v(t1)}, s7\n v_bfe_u32 {v(t1)}, v0, 1, 1\n s_and_b32 s56, s22, 1\n v_cmp_eq_u32 vcc, s56, {v(t1)}')
    b.I(f'v_add_u32 {v(t1)}, {LDUM - LI0}, {v(vl16)}\n v_cndmask_b32 {v(vun)}, {v(t1)}, {v(vun)}, vcc')
    b.I(f'v_lshlrev_b32 {v(t0)}, 6, {v(q)}\n v_add_u32 {v(t0)}, {v(t0)}, {v(n)}\n v_mul_u32_u24 {v(vnn)}, 48, {v(t0)}\n v_mul_u32_u24 {v(vnw)}, 80, {v(t0)}')
    b.I(f's_lshl_b32 s56, s3, 3\n v_add_u32 {v(vy)}, s56, {v(vnn)}\n v_add_u32 {v(vy1)}, 4, {v(vy)}\n v_mul_u32_u24 {v(vnn)}, {BS}, {v(t0)}\n s_lshl_b32 s52, s27, 5\n s_add_u32 s52, s52, 8192\n s_add_u32 s53, s52, {16*BS}\n s_add_u32 s54, s52, {32*BS}\n s_add_u32 s55, s52, {48*BS}\n s_lshl_b32 s19, s23, 2\n s_add_u32 s19, s19, s3\n s_lshl_b32 s58, s3, 4\n v_add_u32 {v(vww)}, s58, {v(vnw)}')
    b.I(f's_lshr_b32 s24, s22, 1\n s_lshl_b32 s24, s24, 6\n s_mul_i32 s48, s3, {64*BS}\n s_add_u32 s48, s48, s24\n s_add_u32 s49, s48, {16*BS}\n s_add_u32 s50, s48, {32*BS}\n s_add_u32 s51, s48, {48*BS}')
    P1, PTC, PTS, P2 = POOL, POOL + 16, POOL + 32, POOL + 48
    fD = fN; b2 = V.get()
    def p3c_1(b):
        b.I(f'v_add_u32 {v(t1)}, s58, {v(n)}\n v_cvt_f32_u32 {v(fD)}, {v(t1)}')
        b.I(f'v_mul_u32_u24 {v(t1)}, {v(t1)}, {v(q)}\n v_cvt_f32_u32 {v(base)}, {v(t1)}\n v_mul_f32 {v(base)}, {f32(1/16)}, {v(base)}')
        for g in range(2):
            for i in range(4):
                k = 16*g + i
                if k: b.I(f'v_fmamk_f32 {v(T+8+i)}, {v(fD)}, {f32(k/64)}, {v(base)}')
            for i in range(4):
                ang = base if 16*g + i == 0 else T + 8 + i
                b.I(f'v_cos_f32 {v(T+i)}, {v(ang)}\n v_sin_f32 {v(T+4+i)}, {v(ang)}')
            for i in range(4):
                cvt(b, P1+8*g+i, T+i, T+4+i, False, True); cvt(b, P1+8*g+4+i, T+4+i, T+i)
    def p3c_2(b):
        b.I(f'v_mul_u32_u24 {v(t1)}, s22, {v(q)}\n v_cvt_f32_u32 {v(base)}, {v(t1)}\n v_mul_f32 {v(base)}, {f32(1/1024)}, {v(base)}')
        b.I(f'v_cvt_f32_u32 {v(b2)}, s22\n v_fmamk_f32 {v(b2)}, {v(b2)}, {f32(1/2048)}, {v(base)}')
        for t in range(4):
            for i in range(4):
                kH_ = 4*(i & 1) + t
                bb = base if i < 2 else b2
                ang = T + 4*t + i
                if kH_ == 0: ang = bb
                else: b.I(f'v_fmamk_f32 {v(ang)}, {v(fD)}, {f32(kH_/512)}, {v(bb)}')
                b.I(f'v_cos_f32 {v(PTC+4*t+i)}, {v(ang)}\n v_sin_f32 {v(PTS+4*t+i)}, {v(ang)}')
    def p3c_3(b):
        fB = fD
        b.I(f'v_and_b32 {v(t0)}, 7, {v(n)}\n v_cvt_f32_u32 {v(b2)}, {v(t0)}\n v_mul_u32_u24 {v(t0)}, {v(t0)}, {v(q)}\n v_cvt_f32_u32 {v(base)}, {v(t0)}\n v_mul_f32 {v(base)}, {f32(0.25)}, {v(base)}')
        b.I(f'v_fmamk_f32 {v(b2)}, {v(b2)}, {f32(0.125)}, {v(base)}')
        b.I(f'v_lshrrev_b32 {v(t0)}, 3, {v(n)}\n v_cvt_f32_u32 {v(fB)}, {v(t0)}')
        for t in range(4):
            TT = ACC + 8 + 12*(t & 1)
            for i in range(4):
                kH_ = 4*(i & 1) + t
                bb = base if i < 2 else b2
                ang = TT + 8 + i
                if kH_ == 0: ang = bb
                else: b.I(f'v_fmamk_f32 {v(ang)}, {v(fB)}, {f32(kH_/8)}, {v(bb)}')
                b.I(f'v_cos_f32 {v(TT+i)}, {v(ang)}\n v_sin_f32 {v(TT+4+i)}, {v(ang)}')
            d = P2 + 10*t
            cvt(b, d, TT, TT+1); cvt(b, d+1, TT+2, TT+3)
            cvt(b, d+2, TT+4, TT+5, True, True); cvt(b, d+3, TT+6, TT+7, True, True)
            if t > 0:
                cvt(b, d+4, TT, TT+1, True, True); cvt(b, d+5, TT+2, TT+3, True, True)
                cvt(b, d+6, TT+4, TT+5); cvt(b, d+7, TT+6, TT+7)
            if t in (1, 3):
                cvt(b, d+8, TT, TT+1); cvt(b, d+9, TT+2, TT+3)
    D1 = E('D1', 0)
    if D1 >= 1: p3c_1(b)
    if D1 >= 2: p3c_2(b)
    b.emit(VERB)
    if E('D1S', 0): a.I(f's_sleep {E("D1S", 0)}')
    stamp(a, 5)
    R = XA
    loads = [f'buffer_load_dwordx4 {v(R+4*k,4)}, {v(GA)}, s[44:47], s{48+k} offen sc1' for k in range(4)]
    for x in loads: a.I(x)
    def wstage(b):
        WO = ACC + 16
        for p in range(4):
            b.I(f'v_lshlrev_b32 {v(WO+4*p)}, 16, {v(WR+p)}\n v_lshlrev_b32 {v(WO+4*p+1)}, 16, {v(WI+p)}')
            b.I(f'v_and_b32 {v(WO+4*p+2)}, 0xffff0000, {v(WR+p)}\n v_and_b32 {v(WO+4*p+3)}, 0xffff0000, {v(WI+p)}')
        b.I(f's_cmp_eq_u32 s23, 0\n s_cselect_b32 s56, 0.5, 1.0')
        b.I(f'v_mul_f32 {v(WO)}, s56, {v(WO)}\n v_mul_f32 {v(WO+1)}, s56, {v(WO+1)}')
        b.I(f'v_mul_f32 {v(WNR)}, 0.5, {v(WNR)}\n v_mul_f32 {v(WNR+1)}, 0.5, {v(WNR+1)}')
        b.I(f'v_mul_u32_u24 {v(t1)}, 80, {v(vrow)}')
        for p in range(4): b.I(f'ds_write_b128 {v(t1)}, {v(WO+4*p,4)} offset:{LW+16*p}')
        b.I(f'ds_write_b64 {v(t1)}, {v(WNR,2)} offset:{LW+64}')
        b.emit(VERB)
        V.put(vrow)
    LATEW = WST in (5, 6)
    if WST == 5: wstorm()
    if WST == 6: wstorm((1,))
    if not LATEW:
        if E('W2PRIO', -1) >= 0: hi(E('W2PRIO', -1))
        if E('DBGH1', 0):
            stamp(a, 9); a.I('s_waitcnt vmcnt(8)'); stamp(a, 10); a.I('s_waitcnt vmcnt(4)'); stamp(a, 11)
            globals()['SKIP'] = (9, 10, 11)
        a.I('s_waitcnt vmcnt(4)'); wstage(b)
    a.I('s_bitcmp1_b32 s22, 0\n s_mov_b32 s10, 0x33333333\n s_cselect_b32 s10, 0xcccccccc, s10\n s_mov_b32 s11, s10')
    stamp(a, 12)
    hi(E('P2PRIO', 3))
    tag_check(a, loads, R, TG, TM, 57, young={5: 4, 6: 2}.get(WST, 0))
    stamp(a, 6)
    unpack(a, LI1, R, vun, E('MASKU', 1))
    a.I('s_waitcnt lgkmcnt(0)\n s_barrier'); stamp(a, 7)
    Y = XA; X = XA + 8
    D = ACC; WF = POOL + 48; T2 = POOL + 72; T3 = POOL + 80
    o = LI1 // 256
    def fft_cols(b, cols, hook=None):
        for c in cols:
            mfma(b, D+8*c, X+4*c, FR_, '0'); mfma(b, D+8*c+4, X+4*c, FI_, '0')
        def stage(tw, sign, swap):
            for c in cols:
                re, im = D+8*c, D+8*c+4
                tt = (T, T2, T3)[c]
                for i in range(4):
                    tc, ts = tw(c, i)
                    cm1(b, re+i, im+i, tc, ts, tt+2*i, tt+2*i+1, sign)
                for i in range(4):
                    if swap: cvt(b, X+4*c+i, im+i, re+i)
                    else: cvt(b, X+4*c+i, re+i, im+i)
                yield c
        for c in stage(lambda c, i: (TC2+i, TS2+i), -1, False):
            mfma(b, D+8*c, FR_, X+4*c, '0'); mfma(b, D+8*c+4, FI_, X+4*c, '0')
        if hook: hook()
        for c in stage(lambda c, i: (WF+4*i+2*c, WF+4*i+2*c+1) if c < 2 else (WF+16+2*i, WF+17+2*i), +1, True):
            mfma(b, D+8*c+4, X+4*c, FR_, '0'); mfma(b, D+8*c, X+4*c, FI_, '0')
        for c in stage(lambda c, i: (TC2+i, TS2+i), +1, True):
            mfma(b, D+8*c+4, FR_, X+4*c, '0'); mfma(b, D+8*c, FI_, X+4*c, '0')
    NY = POOL + 104
    nloads = [f'buffer_load_dwordx4 {v(NY+4*i,4)}, {v(vnn)}, s[44:47], s{52+i} offen sc1' for i in range(4)]
    def nyl():
        a.I('s_cmp_lg_u32 s19, 127\n s_cbranch_scc1 L_b_nn1')
        for x in nloads: a.I(x)
        a.label('L_b_nn1', keep=True)
    if not LATEW: nyl()
    b = Block(a, 'phase2')
    for c, ad in enumerate((vy, vy1)):
        for p in range(2): b.I(f'ds_read2st64_b32 {v(X+4*c+2*p,2)}, {v(ad)} offset0:{o+6*p} offset1:{o+6*p+3}')
    def wread():
        for i in range(4): b.I(f'ds_read_b128 {v(WF+4*i,4)}, {v(vww)} offset:{LW+1280*i}')
    def hook():
        b.emit(VERB); a.I('s_waitcnt vmcnt(0)'); wstage(b); a.I('s_waitcnt lgkmcnt(0)\n s_barrier'); nyl(); wread()
    if not LATEW: wread()
    fft_cols(b, (0, 1), hook if LATEW else None)
    for i in range(4):
        b.I(f'v_cvt_pk_bf16_f32 {v(Y+2*i)}, {v(D+i)}, {v(D+4+i)} ;!{E("STAG", 60)}'); cvt(b, Y+2*i+1, D+8+i, D+12+i)
        b.I(f'ds_write_b64 {v(vy)}, {v(Y+2*i,2)} offset:{LI0+768*i}')
    b.emit(VERB)
    a.I('s_waitcnt lgkmcnt(0)\n s_barrier')
    publish(a, LI0, XA + 20, vps, TG, vl16, 44, 8, 16)
    a.I('s_cmp_lg_u32 s19, 127\n s_cbranch_scc1 L_b_nonyq')
    poll_check(a, nloads, [NY, NY+4, NY+8, NY+12], TM, 57, young=2)
    b = Block(a, 'nyq')
    for i in range(4): b.I(f'v_mov_b32 {v(X+8+i)}, {v(NY+4*i)}')
    for i in range(4): b.I(f'ds_read_b64 {v(WF+16+2*i,2)}, {v(vnw)} offset:{LW+64+1280*i}')
    fft_cols(b, (2,))
    b.I(f'v_lshlrev_b32 {v(t0)}, 10, {v(q)}\n v_lshl_add_u32 {v(t0)}, {v(n)}, 4, {v(t0)}\n s_lshl_b32 s56, s27, 12\n s_add_u32 s56, s56, {VN_OFF}')
    for i in range(4):
        g = D + 4*i
        cvt(b, g, D+16+i, D+20+i)
        b.I(f'v_mov_b32 {v(g+1)}, 0\n v_mov_b32 {v(g+2)}, 0\n v_add_u32 {v(g+3)}, s57, {v(g)}')
        b.I(f'buffer_store_dwordx4 {v(g,4)}, {v(t0)}, s[44:47], s56 offen offset:{256*i} sc1')
    b.emit(VERB)
    a.I('s_nop 1')
    a.label('L_b_nonyq', keep=True)
    stamp(a, 8)
    lo()
    for r in (vy, vnn, vnw, vw, vy1, vww): V.put(r)
    V.put(WNR, 2)
    vgw = V.get()
    GWL = POOL + 104; GX = POOL + 112
    a.I(f'v_and_b32 {v(vgw)}, 31, v0\n v_lshlrev_b32 {v(vgw)}, 5, {v(vgw)}')
    a.I(f'buffer_load_dwordx4 {v(GWL,4)}, {v(vgw)}, s[40:43], 0 offen')
    a.I(f'buffer_load_dwordx4 {v(GWL+4,4)}, {v(vgw)}, s[40:43], 0 offen offset:16')
    DK = XA + 16; vdk = V.get()
    srd(a, 28, 4, 1024)
    a.I(f'v_lshrrev_b32 {v(t0)}, 3, {v(n)}\n v_lshlrev_b32 {v(vdk)}, 7, {v(t0)}\n v_lshrrev_b32 {v(t0)}, 4, v0\n v_lshl_add_u32 {v(vdk)}, {v(t0)}, 3, {v(vdk)}')
    for ot in range(4): a.I(f'buffer_load_dwordx2 {v(DK+2*ot,2)}, {v(vdk)}, s[28:31], 0 offen offset:{256*ot}')
    b = Block(a, 'w2a')
    if D1 < 1: p3c_1(b)
    if D1 < 2: p3c_2(b)
    if E('D3', 1): p3c_3(b)
    G2 = V.get(2); vr = V.get(); vta = V.get(); vst = V.get(); sgn = V.get(); vn = V.get()
    AA_ = WR
    x0, x1 = WR + 1, WR + 2
    b.I(f'v_bfe_u32 {v(x0)}, v0, 2, 3\n v_bfe_u32 {v(x1)}, v0, 5, 1')
    b.I(f'v_lshl_add_u32 {v(GA)}, {v(x0)}, 5, {v(x1)}\n v_mul_u32_u24 {v(GA)}, {BS}, {v(GA)}\n v_add_u32 {v(GA)}, {v(GA)}, {v(vp16)}')
    b.I(f'v_lshl_add_u32 {v(AA_)}, {v(x1)}, 5, {v(x0)}\n v_mul_u32_u24 {v(AA_)}, {BS}, {v(AA_)}\n v_add_u32 {v(AA_)}, {v(AA_)}, {v(vp16)}')
    b.I(f's_mul_i32 s48, s3, {8*BS}\n s_add_u32 s48, s48, s24\n s_add_u32 s52, s48, {AW_OFF}\n s_add_u32 s48, s48, {V_OFF}')
    for k in range(1, 4): b.I(f's_add_u32 s{48+k}, s48, {2*k*BS}\n s_add_u32 s{52+k}, s52, {64*k*BS}')
    b.I(f'v_lshrrev_b32 {v(t0)}, 1, {v(n)}\n v_lshl_add_u32 {v(t0)}, {v(q)}, 5, {v(t0)}\n v_mul_u32_u24 {v(vr)}, 48, {v(t0)}\n v_and_b32 {v(t1)}, 1, v0\n v_lshl_add_u32 {v(vr)}, {v(t1)}, 4, {v(vr)}')
    b.I(f'v_bfe_u32 {v(t0)}, v0, 1, 1\n v_bfe_u32 {v(vta)}, v0, 3, 3\n v_lshl_add_u32 {v(t0)}, {v(t0)}, 3, {v(vta)}\n v_mul_u32_u24 {v(vta)}, 48, {v(t0)}')
    b.I(f'v_bfe_u32 {v(t0)}, v0, 2, 1\n v_lshl_add_u32 {v(vta)}, {v(t0)}, 4, {v(vta)}\n v_lshl_add_u32 {v(vta)}, {v(t1)}, 3, {v(vta)}\n v_add_u32 {v(vta)}, s7, {v(vta)}')
    b.I(f'v_and_b32 {v(t0)}, 7, {v(n)}\n v_lshlrev_b32 {v(vst)}, 18, {v(t0)}\n v_lshlrev_b32 {v(t1)}, 2, {v(t0)}\n v_lshrrev_b32 {v(t0)}, 3, {v(n)}\n v_lshl_add_u32 {v(vst)}, {v(t0)}, 7, {v(vst)}')
    vgr = V.get(); b.I(f'v_mov_b32 {v(vgr)}, {v(t1)}')
    b.I(f'v_lshrrev_b32 {v(t0)}, 4, v0\n v_lshl_add_u32 {v(vst)}, {v(t0)}, 3, {v(vst)}\n s_lshl_b32 s9, s22, 10')
    NC, NS = WI, WI + 1
    b.I(f'v_bfe_u32 {v(vn)}, v0, 3, 3\n v_and_b32 {v(sgn)}, 7, v0\n v_lshlrev_b32 {v(sgn)}, 8, {v(sgn)}\n v_add_u32 {v(sgn)}, s22, {v(sgn)}\n v_mul_u32_u24 {v(sgn)}, {v(sgn)}, {v(vn)}')
    b.I(f'v_cvt_f32_u32 {v(sgn)}, {v(sgn)}\n v_mul_f32 {v(sgn)}, {f32(1/2048)}, {v(sgn)}\n v_cos_f32 {v(NC)}, {v(sgn)}\n v_sin_f32 {v(NS)}, {v(sgn)}')
    b.I(f'v_lshlrev_b32 {v(vn)}, 12, {v(vn)}\n s_lshl_b32 s62, s22, 4\n s_add_u32 s62, s62, {VN_OFF}')
    b.emit(VERB)
    if E('D2', 0): a.I(f's_sleep {E("D2", 0)}')
    stamp(a, 9)
    for x in loads: a.I(x)
    if not E('D3', 1): p3c_3(b)
    b.emit(VERB)
    a.I('s_waitcnt vmcnt(4)')
    b.I(f'v_mul_u32_u24 {v(t0)}, 264, {v(vj4)}\n v_add_u32 {v(t0)}, {v(t0)}, {v(vgw)}')
    b.I(f'ds_read_b128 {v(GX,4)}, {v(t0)} offset:{LX}\n ds_read_b128 {v(GX+4,4)}, {v(t0)} offset:{LX+16}')
    SKL = [P2+4+i for i in range(6)] + [P2+28, P2+29] + [GW+4+i for i in range(4)] + [NG+i for i in range(4)]; UX = XA + 24
    b.I(f'v_mul_u32_u24 {v(t1)}, 264, {v(vgr)}\n v_add_u32 {v(t1)}, {v(t1)}, {v(vdk)}')
    for ot in range(4): b.I(f'ds_read_b64 {v(UX+2*ot,2)}, {v(t1)} offset:{LX+256*ot}')
    for i in range(8):
        b.I(f'v_lshlrev_b32 {v(SKL[2*i])}, 16, {v(UX+i)}\n v_lshlrev_b32 {v(SKL[2*i+1])}, 16, {v(DK+i)}\n v_mul_f32 {v(SKL[2*i])}, {v(SKL[2*i])}, {v(SKL[2*i+1])}')
        b.I(f'v_and_b32 {v(UX+i)}, 0xffff0000, {v(UX+i)}\n v_and_b32 {v(DK+i)}, 0xffff0000, {v(DK+i)}\n v_mul_f32 {v(SKL[2*i+1])}, {v(UX+i)}, {v(DK+i)}')
    acc = T + 8; acc2 = T + 9
    for i in range(8):
        x, y = T + 2*(i % 4), T + 2*(i % 4) + 1
        b.I(f'v_lshlrev_b32 {v(x)}, 16, {v(GX+i)}\n v_lshlrev_b32 {v(y)}, 16, {v(GWL+i)}')
        b.I(f'v_mul_f32 {v(acc)}, {v(x)}, {v(y)}' if i == 0 else f'v_fmac_f32 {v(acc)}, {v(x)}, {v(y)}')
        b.I(f'v_and_b32 {v(GX+i)}, 0xffff0000, {v(GX+i)}\n v_and_b32 {v(GWL+i)}, 0xffff0000, {v(GWL+i)}')
        b.I(f'v_mul_f32 {v(acc2)}, {v(GX+i)}, {v(GWL+i)}' if i == 0 else f'v_fmac_f32 {v(acc2)}, {v(GX+i)}, {v(GWL+i)}')
    b.I(f'v_add_f32 {v(acc)}, {v(acc)}, {v(acc2)}')
    for m in ('quad_perm:[1,0,3,2]', 'quad_perm:[2,3,0,1]', 'row_half_mirror', 'row_mirror'):
        b.I(f'v_add_f32_dpp {v(acc)}, {v(acc)}, {v(acc)} {m} row_mask:0xf bank_mask:0xf')
    b.I(f'v_add_f32_dpp {v(acc)}, {v(acc)}, {v(acc)} row_bcast:15 row_mask:0xa bank_mask:0xf')
    b.I(f'v_mul_f32 {v(acc)}, {f32(-LOG2E)}, {v(acc)}\n v_exp_f32 {v(acc)}, {v(acc)}\n v_add_f32 {v(acc)}, 1.0, {v(acc)}\n v_rcp_f32 {v(acc)}, {v(acc)}')
    b.emit(VERB)
    a.I('s_mov_b32 exec_lo, 0x80000000\n s_mov_b32 exec_hi, 0x80000000')
    a.I(f'ds_write_b32 {v(vj4)}, {v(acc)} offset:{LG}')
    a.I('s_mov_b64 exec, -1')
    hi()
    tag_check(a, loads, R, TG, TM, 57)
    AL = POOL + 104; NQ = GW
    aloads = [f'buffer_load_dwordx4 {v(AL+4*k,4)}, {v(AA_)}, s[44:47], s{52+k} offen sc1' for k in range(4)] + [f'buffer_load_dwordx4 {v(NQ,4)}, {v(vn)}, s[44:47], s62 offen sc1']
    if E('APOS', 0) < 0:
        for x in aloads[:4]: a.I(x)
    unpack(a, LI1, R, vun, E('MASKU', 1))
    a.I('s_waitcnt lgkmcnt(0)\n s_barrier'); stamp(a, 10)
    X = POOL + 88
    b = Block(a, 'phase3')
    for g in range(2):
        for i in range(4): b.I(f'ds_read_b128 {v(R+16*g+4*i,4)}, {v(vr)} offset:{LI1+6144*g+384*i}')
    if not E('APOS', 0):
        for x in aloads: b.I(x)
    if E('APOS', 0) < 0: b.I(aloads[4])
    b.I(f'ds_read_b32 {v(G2)}, {v(vgr)} offset:{LG}')
    b.I(f'v_sub_f32 {v(G2+1)}, 1.0, {v(G2)}\n v_mul_f32 {v(G2+1)}, {f32(2.0**-19)}, {v(G2+1)}')
    for i in range(16): b.I(f'v_mul_f32 {v(SKL[i])}, {v(G2)}, {v(SKL[i])}')
    for g in range(2):
        for i in range(4):
            for t in range(i+1, 4): b.I(f'v_swap_b32 {v(R+16*g+4*i+t)}, {v(R+16*g+4*t+i)}')
        for t in range(4):
            for p in range(2):
                d = ACC+8*t+4*p
                mfma(b, d, R+16*g+4*t, P1+8*g+4*p, d if g == 1 else '0')
    vos = vr; vor = vgr; OS = E('OS', 1040)
    b.I(f'v_and_b32 {v(t0)}, 7, {v(n)}\n v_mul_u32_u24 {v(vos)}, {OS}, {v(t0)}\n v_and_b32 {v(t0)}, 0x3ff, {v(vst)}\n v_add_u32 {v(vos)}, {v(vos)}, {v(t0)}')
    b.I(f's_mul_i32 s26, s3, {2*OS}\n v_add_u32 {v(vor)}, s26, {v(vl16)}\n s_lshl_b32 s24, s3, 19\n s_add_u32 s24, s24, s9\n s_add_u32 s25, s24, {256*1024}')
    A2 = R
    for t in range(4):
        re, im = ACC+8*t, ACC+8*t+4
        for i in range(4): cm1(b, re+i, im+i, PTC+4*t+i, PTS+4*t+i, T+8*(t&1)+2*i, T+8*(t&1)+2*i+1, +1)
        F = X + 4*t
        cvt(b, F, re, re+1); cvt(b, F+2, im, im+1); cvt(b, F+1, re+2, re+3); cvt(b, F+3, im+2, im+3)
        for ot in range(4):
            rot = (t*ot) % 4
            mfma(b, A2+4*ot, F, P2+10*t+2*rot, '0' if t == 0 else A2+4*ot)
    if E('APOS', 0) > 1: emit_split(b, E('APOS', 0) / 100, lambda: [a.I(x) for x in aloads])
    b.emit(VERB)
    stamp(a, 11)
    if E('APOS', 0) == 1:
        for x in aloads: a.I(x)
    if E('ONLYB', 0) or E('NOA', 0): a.I('s_waitcnt vmcnt(0)')
    else: tag_check(a, aloads, AL, TG, TM, 57, NQ, E('ABACKOFF', 8))
    a.I('s_or_b32 s56, s22, s3\n s_cmp_lg_u32 s56, 0\n s_cbranch_scc1 L_b_end')
    a.I(f's_mov_b64 exec, 0xffffffff\n v_mov_b32 {v(t0)}, s57\n v_lshlrev_b32 {v(t1)}, 2, v0\n s_mov_b32 s56, {EP_OFF}')
    a.I(f'buffer_store_dword {v(t0)}, {v(t1)}, s[44:47], s56 offen sc1\n s_mov_b64 exec, -1')
    a.label('L_b_end', keep=True)
    OUTM = E('OUTM', 1)
    b = Block(a, 'final')
    unpack(b, LI0, AL, vun)
    AA = R + 16
    for ot in range(4): b.I(f'ds_read_b64_tr_b16 {v(AA+2*ot,2)}, {v(vta)} offset:{LI0+768*ot}')
    b.I(f'v_lshlrev_b32 {v(NQ+1)}, 16, {v(NQ)}\n v_and_b32 {v(NQ)}, 0xffff0000, {v(NQ)}\n v_mul_f32 {v(NQ+1)}, {v(NQ+1)}, {v(NC)}\n v_fma_f32 {v(NQ)}, -{v(NQ)}, {v(NS)}, {v(NQ+1)}')
    b.I(f'v_add_f32_dpp {v(NQ)}, {v(NQ)}, {v(NQ)} row_ror:8 row_mask:0xf bank_mask:0xf')
    b.I(f'v_mov_b32 {v(NQ+1)}, {v(NQ)}\n v_permlane16_swap_b32 {v(NQ)}, {v(NQ+1)}\n v_add_f32 {v(NQ)}, {v(NQ)}, {v(NQ+1)}')
    b.I(f'v_mov_b32 {v(NQ+1)}, {v(NQ)}\n v_permlane32_swap_b32 {v(NQ)}, {v(NQ+1)}\n v_add_f32 {v(NQ)}, {v(NQ)}, {v(NQ+1)}\n v_mul_f32 {v(NQ)}, {v(NQ)}, {v(G2+1)}')
    for i in range(16): b.I(f'v_fma_f32 {v(A2+i)}, {v(G2+1)}, {v(A2+i)}, {v(SKL[i])}\n v_{"sub" if i & 1 else "add"}_f32 {v(A2+i)}, {v(A2+i)}, {v(NQ)}')
    AF = ACC
    for ot in range(4):
        for p in range(2):
            b.I(f'v_lshlrev_b32 {v(AF+4*ot+2*p)}, 16, {v(AA+2*ot+p)}\n v_and_b32 {v(AF+4*ot+2*p+1)}, 0xffff0000, {v(AA+2*ot+p)}')
        for p in range(2):
            x = AF+4*ot+2*p; bb = A2+4*ot+2*p
            b.I(f'v_fmac_f32 {v(bb)}, {v(x)}, {v(G2)}\n v_fmac_f32 {v(bb+1)}, {v(x+1)}, {v(G2)}')
            cvt(b, X+2*ot+p, bb, bb+1)
        if OUTM == 0:
            b.I(f'buffer_store_dwordx2 {v(X+2*ot,2)}, {v(vst)}, s[12:15], s9 offen offset:{256*ot}')
        else: b.I(f'ds_write_b64 {v(vos)}, {v(X+2*ot,2)} offset:{LX+256*ot}')
    b.emit(VERB)
    if OUTM:
        fl = {1: 'sc1', 2: 'nt', 3: '', 4: 'sc0 sc1'}[OUTM]
        a.I('s_waitcnt lgkmcnt(0)\n s_barrier')
        a.I(f'ds_read_b128 {v(R,4)}, {v(vor)} offset:{LX}\n ds_read_b128 {v(R+4,4)}, {v(vor)} offset:{LX+OS}')
        a.I(f'buffer_store_dwordx4 {v(R,4)}, {v(vl16)}, s[12:15], s24 offen {fl}\n buffer_store_dwordx4 {v(R+4,4)}, {v(vl16)}, s[12:15], s25 offen {fl}')
    endpgm(a, 44, 13, 0)

RS = 544
TB_CH = 53 * RS
KF_OFF = 2 * TB_CH + 64
KF_CH = 2368 + 64
K8_OFF = KF_OFF + 2 * KF_CH
K8_CH = 512
LU = K8_OFF + 2 * K8_CH
U_CH = 4608
LDS_BYTES = LU + 2 * U_CH
LK = 0
KC = 2240
LRED = 4 * KC
LAO = LRED + 16384
def cmul(a, d, x, y, t):
    if E('PKCHAIN', 1):
        a.I(f'v_pk_mul_f32 {v(t,2)}, {v(x,2)}, {v(y,2)} op_sel_hi:[0,1]')
        a.I(f'v_pk_fma_f32 {v(d,2)}, {v(x,2)}, {v(y,2)}, {v(t,2)} op_sel:[1,1,0] op_sel_hi:[1,0,1] neg_lo:[1,0,0]')
    else:
        a.I(f'v_mul_f32 {v(t)}, {v(x)}, {v(y)}\n v_mul_f32 {v(t+1)}, {v(x)}, {v(y+1)}')
        a.I(f'v_fma_f32 {v(d)}, -{v(x+1)}, {v(y+1)}, {v(t)}\n v_fma_f32 {v(d+1)}, {v(x+1)}, {v(y)}, {v(t+1)}')

class RoleA:
  def pre(self, a):
    V = self.V = VAlloc(1, 128); W = self.W = VAlloc(128, 256)
    a.label('L_a_pre', keep=True)
    if E('ONLYB', 0): a.I('s_endpgm')
    a.I(f's_setprio {E("APRIO", 2)}')
    task_of(a, 22, 23)
    n, q = self.n, self.q = lanes(a, V)
    t0 = self.t0 = V.get(); t1 = self.t1 = V.get()
    vp = W.get(); a.I(f'v_lshlrev_b32 {v(vp)}, 1, v0')
    vch = self.vch = V.get(); a.I(f'v_lshrrev_b32 {v(vch)}, 7, v0')
    vd = W.get(); a.I(f'v_lshlrev_b32 {v(vd)}, 1, {v(vch)}')
    vut = W.get()
    a.I(f'v_and_b32 {v(t1)}, 0xc0, v0\n v_lshl_add_u32 {v(t1)}, {v(n)}, 2, {v(t1)}\n v_lshl_add_u32 {v(vut)}, {v(q)}, 13, {v(t1)}')
    a.I('s_lshl_b32 s24, s22, 9\n s_lshl_b32 s25, s22, 2\n s_lshr_b32 s26, s23, 2\n s_lshl_b32 s26, s26, 3\n s_and_b32 s27, s2, 7\n s_add_u32 s26, s26, s27\n s_and_b32 s27, s23, 3')
    a.I(f's_lshl_b32 s28, s26, 15\n s_lshl_b32 s29, s27, 8\n s_add_u32 s28, s28, s29\n s_add_u32 s29, s28, 4096')
    a.I('s_mov_b32 s34, 131072\n s_mov_b32 s35, 0x00020000\n s_mov_b32 s38, 131072\n s_mov_b32 s39, 0x00020000\n s_mov_b32 s42, 1024\n s_mov_b32 s43, 0x00020000\n s_mov_b32 s46, 2097152\n s_mov_b32 s47, 0x00020000')
    a.I('s_waitcnt lgkmcnt(0)'); stamp(a, 1)
    self.PR = LA, AI, CR, CI, LD, DS = tuple(V.get() for _ in range(6))
    a.I(f's_mov_b32 s40, s14\n s_mov_b32 s41, s15\n buffer_load_short_d16_hi {v(LD)}, {v(vd)}, s[40:43], s25 offen')
    for k, r in enumerate((LA, AI, CR, CI)):
        d = 32 + 4*(k & 1)
        a.I(f's_mov_b32 s{d}, s{6+2*k}\n s_mov_b32 s{d+1}, s{7+2*k}\n buffer_load_short_d16_hi {v(r)}, {v(vp)}, s[{d}:{d+3}], s24 offen')
    a.I('s_mov_b32 s44, s4\n s_mov_b32 s45, s5')
    UTL = self.UTL = W.get(8)
    for e in range(8):
        if not E('NOTILE', 0): a.I(f'buffer_load_dword {v(UTL+e)}, {v(vut)}, s[44:47], s{28 if e < 4 else 29} offen offset:{(e%4)*1024}')
    srd(a, 48, 20, WS_BYTES)
    a.I(f's_add_u32 s20, s20, {EP_OFF}\n s_addc_u32 s21, s21, 0\n s_load_dword s4, s[20:21], 0')
    stamp(a, 12, False)
    self.st = (list(a.vm), list(a.lg))
  def body(self, a):
    V, W, n, q, t0, t1, vch, UTL = self.V, self.W, self.n, self.q, self.t0, self.t1, self.vch, self.UTL
    LA, AI, CR, CI, LD, DS = self.PR
    TOK, CH, HR = 4, 6, 7
    b = Block(a, 'a_shadow')
    vt16 = V.get(); b.I(f'v_lshlrev_b32 {v(vt16)}, 4, v0')
    vuts = W.get()
    b.I(f'v_mul_u32_u24 {v(vuts)}, {BS//4}, {v(t1)}\n v_lshl_add_u32 {v(vuts)}, {v(q)}, 4, {v(vuts)}')
    b.I(f's_mul_i32 s27, s27, {64*BS}\n s_lshl_b32 s26, s26, 7\n s_add_u32 s26, s26, s27\n s_add_u32 s26, s26, {UT_OFF}\n s_add_u32 s27, s26, 4096\n s_add_u32 s28, s26, 8192')
    b.I('s_mov_b32 s8, 0x05040100\n s_mov_b32 s9, 0x07060302')
    b.I(f's_and_b32 s{CH}, s3, 1\n s_lshr_b32 s{HR}, s3, 1\n s_mul_i32 s10, s{HR}, {TB_CH}\n s_lshl_b32 s11, s{CH}, 8\n s_add_u32 m0, s10, s11')
    b.I(f's_mul_i32 s52, s22, {BS}\n s_add_u32 s52, s52, {UT_OFF}\n s_add_u32 s53, s52, 4096\n s_add_u32 s54, s52, 8192')
    U0 = V.get(12, 4); EG = V.get(9, 1); TM = V.get(3, 1)
    J0, sh, JM, cst, kfb, yy, y1, y2, y3, y4, y5, y6 = (W.get() for _ in range(12))
    zero = V.get(); vks = V.get(); veg = V.get(); vem = V.get()
    b.I(f'v_mul_u32_u24 {v(kfb)}, {KF_CH}, {v(vch)}\n v_mov_b32 {v(zero)}, 0\n ds_write_b32 {v(kfb)}, {v(zero)} offset:{KF_OFF-8}')
    b.I(f'v_and_b32 {v(y6)}, 31, v0\n v_lshlrev_b32 {v(y6)}, 2, {v(y6)}\n v_lshl_add_u32 {v(y6)}, {v(vch)}, 9, {v(y6)}\n ds_write_b32 {v(y6)}, {v(zero)} offset:{K8_OFF}')
    b.I(f'v_mul_u32_u24 {v(y1)}, {U_CH - 512}, {v(vch)}\n v_lshl_add_u32 {v(y1)}, v0, 2, {v(y1)}\n v_add_u32 {v(y1)}, {LU}, {v(y1)}\n ds_write_b32 {v(y1)}, {v(zero)}')
    b.I(f'v_mov_b32 {v(y2)}, 0x3f80\n ds_write_addtid_b32 {v(y2)} offset:{21*RS}')
    vra = V.get(); vrb = V.get(); KW = V.get(4, 1); kw1 = V.get(); kw2 = V.get(); va = V.get(); vb = V.get(3, 1); vkz = V.get(); vuw = V.get(); vk8 = V.get(2, 1); vf = V.get(2, 1); BND = V.get(8, 4)
    b.I(f's_mul_i32 s10, s{CH}, {TB_CH}\n s_mul_i32 s11, s{HR}, {16*RS}\n s_add_u32 s11, s11, {21*RS}')
    b.I(f'v_mul_u32_u24 {v(vra)}, {RS}, {v(n)}\n v_lshl_add_u32 {v(vra)}, {v(q)}, 4, {v(vra)}\n v_add_u32 {v(vra)}, s10, {v(vra)}\n v_add_u32 {v(vrb)}, s11, {v(vra)}')
    def mid():
        J0, sh, JM, cst, kfb, yy, y3, y4, y5, y6 = range(232, 242)
        b.I(f's_mul_i32 s12, s{CH}, {KF_CH}\n s_mul_i32 s13, s{HR}, 288\n s_add_u32 s12, s12, s13\n s_add_u32 s12, s12, {KF_OFF}')
        b.I(f'v_lshlrev_b32 {v(kw1)}, 4, {v(n)}\n v_lshrrev_b32 {v(y3)}, 1, {v(n)}\n v_lshl_add_u32 {v(kw1)}, {v(y3)}, 2, {v(kw1)}\n v_add_u32 {v(kw1)}, s12, {v(kw1)}')
        b.I(f'v_lshlrev_b32 {v(t0)}, 3, {v(q)}\n s_mov_b32 s14, 0x90480100\n s_mov_b32 s15, 0x08040202\n s_mov_b32 s16, 0x90020101')
        b.I(f'v_bfe_u32 {v(KW)}, s14, {v(t0)}, 8\n v_lshl_add_u32 {v(KW)}, {v(KW)}, 3, {v(kw1)}')
        b.I(f'v_bfe_u32 {v(y3)}, s15, {v(t0)}, 8\n v_add_u32 {v(KW+1)}, {v(KW)}, {v(y3)}')
        b.I(f'v_bfe_u32 {v(KW+2)}, s16, {v(t0)}, 8\n v_lshl_add_u32 {v(KW+2)}, {v(KW+2)}, 2, {v(KW)}\n v_add_u32 {v(KW+3)}, {v(KW+2)}, {v(y3)}')
        b.I(f's_lshl_b32 s19, s{CH}, 9\n s_add_u32 s19, s19, {K8_OFF}\n s_lshl_b32 s13, s{HR}, 5\n s_add_u32 s13, s13, s19\n s_add_u32 s13, s13, 126')
        b.I(f'v_add_u32 {v(y5)}, 2304, {v(kw1)}\n v_lshlrev_b32 {v(kw1)}, 1, {v(n)}\n v_add_u32 {v(kw1)}, s13, {v(kw1)}')
        b.I(f'v_mov_b32 {v(y4)}, {LU + 512}\n v_cmp_eq_u32 vcc, 0, {v(q)}\n v_cndmask_b32 {v(kw2)}, {v(y4)}, {v(kw1)}, vcc')
        b.I(f'v_add_u32 {v(y4)}, 256, {v(kw1)}\n v_cmp_eq_u32 vcc, 1, {v(q)}\n v_cndmask_b32 {v(kw1)}, {v(kw2)}, {v(y4)}, vcc')
        b.I(f'v_and_b32 {v(y4)}, 0xbf, v0\n v_cmp_eq_u32 vcc, 0, {v(y4)}\n v_cndmask_b32 {v(kw1)}, {v(kw1)}, {v(y5)}, vcc')
        b.I(f'v_and_b32 {v(yy)}, 127, v0\n v_lshlrev_b32 {v(J0)}, 3, {v(yy)}\n v_sub_u32 {v(J0)}, 1016, {v(J0)}')
        b.I(f'v_mul_u32_u24 {v(vks)}, {2*KC}, {v(vch)}\n v_lshl_add_u32 {v(vks)}, {v(yy)}, 4, {v(vks)}')
        b.I(f'v_or_b32 {v(sh)}, 1, {v(J0)}\n v_ffbh_u32 {v(sh)}, {v(sh)}\n v_sub_u32 {v(sh)}, 24, {v(sh)}\n v_max_i32 {v(sh)}, 0, {v(sh)}')
        b.I(f'v_add_u32 {v(JM)}, 150, {v(sh)}\n v_lshlrev_b32 {v(JM)}, 23, {v(JM)}')
        b.I(f'v_mul_u32_u24 {v(kfb)}, {KF_CH}, {v(vch)}\n v_add_u32 {v(kfb)}, {KF_OFF}, {v(kfb)}')
        b.I(f'v_lshrrev_b32 {v(yy)}, {v(sh)}, {v(J0)}\n v_add_u32 {v(sh)}, 1, {v(sh)}')
        b.I(f'v_add_u32 {v(JM)}, {v(JM)}, {v(yy)}\n v_lshlrev_b32 {v(cst)}, {v(sh)}, {v(JM)}')
        b.I(f'v_lshrrev_b32 {v(yy)}, 4, {v(J0)}\n v_lshl_add_u32 {v(yy)}, {v(yy)}, 2, {v(kfb)}\n v_lshl_add_u32 {v(EG+1)}, {v(J0)}, 1, {v(yy)}\n v_sub_u32 {v(cst)}, {v(EG+1)}, {v(cst)}')
        b.I(f'v_add_u32 {v(yy)}, 16, {v(EG+1)}\n v_bfe_u32 {v(y5)}, {v(J0)}, 3, 1\n v_lshlrev_b32 {v(y5)}, 2, {v(y5)}')
        for e in range(1, 8):
            b.I(f'v_add_f32 {v(EG+1+e)}, {f32(float(e))}, {v(JM)}')
            b.I(f'v_lshl_add_u32 {v(EG+1+e)}, {v(EG+1+e)}, {v(sh)}, {v(cst)}')
            if e >= 6: b.I(f'v_cmp_eq_u32 vcc, {v(EG+1+e)}, {v(yy)}\n v_cndmask_b32 {v(EG)}, 0, {v(y5)}, vcc\n v_add_u32 {v(EG+1+e)}, {v(EG+1+e)}, {v(EG)}')
        b.I(f'v_sub_u32 {v(y5)}, 6, {v(y5)}\n v_cmp_ge_u32 vcc, 256, {v(J0)}\n v_cndmask_b32 {v(yy)}, 0, {v(y5)}, vcc\n v_sub_u32 {v(EG)}, {v(EG+1)}, {v(yy)}')
        b.I(f'v_add_u32 {v(veg)}, 2304, {v(kfb)}')
        b.I(f'v_bfe_u32 {v(y6)}, v0, 6, 1\n v_lshl_add_u32 {v(y6)}, {v(n)}, 1, {v(y6)}\n v_and_b32 {v(yy)}, 16, v0\n v_cmp_ne_u32 vcc, 0, {v(yy)}\n v_cndmask_b32 {v(y6)}, {v(y6)}, 0, vcc')
        b.I(f'v_mov_b32 {v(vem)}, 0x10000\n v_cmp_le_u32 vcc, 26, {v(y6)}\n v_cndmask_b32 {v(vem)}, 0, {v(vem)}, vcc\n v_cmp_le_u32 vcc, 27, {v(y6)}\n v_cndmask_b32 {v(y6)}, 0, 1, vcc\n v_or_b32 {v(vem)}, {v(vem)}, {v(y6)}')
        b.I(f's_mul_i32 s18, s3, {KC}\n v_and_b32 {v(y3)}, 16, v0\n v_mul_u32_u24 {v(y3)}, 132, {v(y3)}\n v_lshl_add_u32 {v(vkz)}, {v(n)}, 2, {v(y3)}\n v_add_u32 {v(vkz)}, s18, {v(vkz)}\n v_lshrrev_b32 {v(vuw)}, 3, v0\n v_lshlrev_b32 {v(vuw)}, 6, {v(vuw)}\n v_and_b32 {v(y3)}, 48, {v(vt16)}\n v_add_u32 {v(vuw)}, {v(vuw)}, {v(y3)}\n v_bfe_u32 {v(y3)}, v0, 2, 1\n v_mul_u32_u24 {v(y3)}, {U_CH}, {v(y3)}\n v_add_u32 {v(vuw)}, {v(vuw)}, {v(y3)}\n v_add_u32 {v(vuw)}, {LU + 512}, {v(vuw)}')
    if not E('MID', 0): mid()
    np_ = V.get()
    def late():
        y3 = 246
        b.I(f'v_lshlrev_b32 {v(t0)}, 3, {v(q)}\n s_lshl_b32 s13, s{HR}, 1\n v_xor_b32 {v(np_)}, s13, {v(n)}')
        b.I(f's_lshl_b32 s13, s{HR}, 8\n s_mul_i32 s12, s{CH}, {U_CH}\n s_sub_u32 s12, s12, s13\n s_add_u32 s12, s12, {LU + 512 - 32 - 192}')
        b.I(f'v_lshlrev_b32 {v(va)}, 5, {v(np_)}\n v_lshl_add_u32 {v(va)}, {v(q)}, 4, {v(va)}\n v_add_u32 {v(va)}, s12, {v(va)}')
        b.I(f's_mul_i32 s17, s{CH}, {2*KC}\n s_sub_u32 s17, s17, s13\n s_add_u32 s17, s17, {LK - 192 - 512}')
        b.I(f'v_sub_u32 {v(t1)}, {v(t0)}, {v(n)}\n v_add_u32 {v(t1)}, 1039, {v(t1)}')
        b.I(f'v_and_b32 {v(y3)}, 1, {v(t1)}\n v_mul_u32_u24 {v(y3)}, {KC}, {v(y3)}\n v_lshrrev_b32 {v(t1)}, 1, {v(t1)}')
        b.I(f'v_lshl_add_u32 {v(vb)}, {v(t1)}, 2, {v(y3)}\n v_add_u32 {v(vb)}, s17, {v(vb)}\n v_add_u32 {v(vb+1)}, -1024, {v(vb)}')
        b.I(f'v_add_u32 {v(vb+2)}, {192 + 512 - 2048}, {v(vb)}\n v_mov_b32 {v(y3)}, {LU}\n s_cmp_eq_u32 s{HR}, 0\n s_cselect_b64 s[30:31], -1, 0\n v_cndmask_b32 {v(vb+2)}, {v(y3)}, {v(vb+2)}, s[30:31]')
    def late2(b):
        y4 = t1
        b.I(f'v_lshlrev_b32 {v(y4)}, 5, {v(n)}\n v_lshl_add_u32 {v(y4)}, {v(q)}, 4, {v(y4)}')
        b.I(f's_mul_i32 s29, s{HR}, 768\n s_add_u32 s29, s29, s12\n s_add_u32 s29, s29, {192 - 16}\n v_add_u32 {v(vf)}, s29, {v(y4)}\n s_sub_u32 s29, s12, s13\n s_add_u32 s29, s29, {192 - 16 + 1536}\n v_add_u32 {v(vf+1)}, s29, {v(y4)}')
        b.I(f'v_lshlrev_b32 {v(y4)}, 2, {v(q)}\n v_sub_u32 {v(y4)}, {v(np_)}, {v(y4)}\n v_lshlrev_b32 {v(y4)}, 2, {v(y4)}\n s_lshl_b32 s13, s{HR}, 6')
        b.I(f's_sub_u32 s29, s19, s13\n s_add_u32 s29, s29, {128 - 12}\n v_add_u32 {v(vk8)}, s29, {v(y4)}\n s_add_u32 s29, s19, s13\n s_sub_u32 s29, s29, {64 + 12}\n v_add_u32 {v(vk8+1)}, s29, {v(y4)}')
        for k, (w_, s0) in enumerate(((7, 5), (9, 4))):
            b.I(f'v_mov_b32 {v(y4)}, {((1 << w_) - 1) << s0}\n v_lshlrev_b32 {v(y4)}, {v(n)}, {v(y4)}\n v_lshrrev_b32 {v(y4)}, {v(t0)}, {v(y4)}')
            for i in range(4):
                d = BND + 4*k + i
                b.I(f'v_bfe_u32 {v(d)}, {v(y4)}, {2*i}, 2\n v_mul_u32_u24 {v(d)}, 0x8001, {v(d)}\n v_and_b32 {v(d)}, 0x10001, {v(d)}\n v_mul_u32_u24 {v(d)}, 0x3f80, {v(d)}')
    if not E('LATE', 1): late()
    b.emit(VERB)
    if E('PRE', 0) & 4:
        a.I(f'v_and_b32 {v(y1)}, 63, v0\n v_lshlrev_b32 {v(y1)}, 6, {v(y1)}\n s_mul_i32 s62, s22, {BS}\n s_mul_i32 s63, s3, 3072\n s_add_u32 s62, s62, s63\n s_add_u32 s62, s62, {AW_OFF}\n s_mov_b32 exec_hi, 0xffff')
        a.I(f'buffer_store_dword {v(y1)}, {v(y1)}, s[48:51], s62 offen sc1' if not E('PRELD', 0) else f's_mov_b32 exec_lo, 0x55555555\n s_mov_b32 exec_hi, 0x5555\n buffer_load_dword {v(y2)}, {v(y1)}, s[48:51], s62 offen')
        a.I('s_mov_b64 exec, -1')
    stamp(a, 2)
    def utpub():
        mktok(a, TOK, 5)
        TU = U0 + 8
        tagregs(b, TU, y1, TOK, 5, f'v_lshlrev_b32 {v(y1)}, 2, {v(q)}', False)
        for i in range(4):
            b.I(f'v_perm_b32 {v(U0+i)}, {v(UTL+2*i+1)}, {v(UTL+2*i)}, s8\n v_bfi_b32 {v(U0+i)}, s5, {v(TU+i)}, {v(U0+i)}')
            b.I(f'v_perm_b32 {v(U0+4+i)}, {v(UTL+2*i+1)}, {v(UTL+2*i)}, s9\n v_bfi_b32 {v(U0+4+i)}, s5, {v(TU+i)}, {v(U0+4+i)}')
        for k in range(2): b.I(f'buffer_store_dwordx4 {v(U0+4*k,4)}, {v(vuts)}, s[48:51], s26 offen offset:{64*k} sc1 ;!3000')
    TG = V.get(4, 1)
    dt = W.get(); ar_ = W.get(); rev = W.get()
    b = Block(a, 'a_chain')
    if E('UTPOS', 0) < 0:
        utpub(); b.emit(VERB); stamp(a, 4)
    b.I(f'v_mul_f32 {v(dt)}, {f32(LOG2E)}, {v(LD)}\n v_mul_f32 {v(ar_)}, {f32(LOG2E)}, {v(LA)}\n v_exp_f32 {v(dt)}, {v(dt)}\n v_exp_f32 {v(ar_)}, {v(ar_)}')
    cvt(b, t0, dt, ar_)
    b.I(f'v_lshlrev_b32 {v(dt)}, 16, {v(t0)}\n v_and_b32 {v(ar_)}, 0xffff0000, {v(t0)}')
    b.I(f'v_mul_f32 {v(ar_)}, {v(ar_)}, {v(dt)}\n v_mul_f32 {v(ar_)}, {f32(-LOG2E)}, {v(ar_)}')
    b.I(f'v_mul_f32 {v(rev)}, {v(AI)}, {v(dt)}\n v_mul_f32 {v(rev)}, 0.15915494, {v(rev)}')
    Z = {}
    mag = W.get(4); ang = W.get(4)
    for k, p in enumerate((8, 1, 128, 256)):
        Z[p] = W.get(2)
        b.I(f'v_mul_f32 {v(mag+k)}, {f32(float(p))}, {v(ar_)}\n v_mul_f32 {v(ang+k)}, {f32(float(p))}, {v(rev)}')
        b.I(f'v_fract_f32 {v(ang+k)}, {v(ang+k)}\n v_exp_f32 {v(mag+k)}, {v(mag+k)}')
        b.I(f'v_cos_f32 {v(Z[p])}, {v(ang+k)}\n v_sin_f32 {v(Z[p]+1)}, {v(ang+k)}')
    Ee = W.get(16)
    b.I(f'v_add_f32 {v(dt)}, {v(dt)}, {v(dt)}\n v_mul_f32 {v(Ee)}, {v(CR)}, {v(dt)}\n v_mul_f32 {v(Ee+1)}, {v(CI)}, {v(dt)}')
    for k, p in enumerate((8, 1, 128, 256)):
        b.I(f'v_mul_f32 {v(Z[p])}, {v(mag+k)}, {v(Z[p])}\n v_mul_f32 {v(Z[p]+1)}, {v(mag+k)}, {v(Z[p]+1)}')
    TT = W.get(8); PK = W.get(8); O = W.get(4); H = W.get(4)
    cnt = [0]
    def put(row, x, neg):
        r = PK + cnt[0] % 8; cnt[0] += 1
        cvt(b, r, x, x+1, False, neg)
        b.I(f'ds_write_addtid_b32 {v(r)} offset:{row*RS} ;@T{row}')
    offs_ops = []; cur = Z[8]
    offs_ops.append(lambda: (put(21+1, Z[8], False), put(21+16, Z[128], False)))
    offs_ops.append(lambda: (cmul(b, H, Z[8], Z[128], TT+2), put(21+17, H, False)))
    for i in range(2, 16):
        nxt = O + 2*(i % 2)
        def f(i=i, cur=cur, nxt=nxt):
            cmul(b, nxt, cur, Z[8], TT); cmul(b, H + 2*(i % 2), nxt, Z[128], TT+2)
            put(21+i, nxt, False); put(21+16+i, H + 2*(i % 2), False)
        offs_ops.append(f); cur = nxt
    base_ops = [lambda: put(0, Ee, True)]
    for e in range(1, 8): base_ops.append(lambda e=e: (cmul(b, Ee+2*e, Ee+2*e-2, Z[1], TT+4), put(e, Ee+2*e, True)))
    for k, e in enumerate((0, 2, 4, 6)): base_ops.append(lambda k=k, e=e: (cmul(b, Ee+2*e, Ee+2*e, Z[256], TT+4), put(8+k, Ee+2*e, True)))
    for i in range(2):
        for k, e in enumerate((0, 4)): base_ops.append(lambda i=i, k=k, e=e: (cmul(b, Ee+2*e, Ee+2*e, Z[256], TT+4), put(12+2*i+k, Ee+2*e, True)))
    for i in range(5): base_ops.append(lambda i=i: (cmul(b, Ee, Ee, Z[256], TT+4), put(16+i, Ee, True)))
    uloads = [f'buffer_load_dwordx4 {v(U0+4*k,4)}, {v(vt16)}, s[48:51], s{52+k} offen sc1' for k in range(2)]
    it = 0
    while offs_ops or base_ops:
        if E('UPOS', 1) == 3 and it == E('UIT', 12):
            b.emit(VERB)
            for x in uloads: a.I(x)
        if it == E('UTPOS', 0):
            b.emit(VERB); stamp(a, 4); utpub()
        it += 1
        if offs_ops: offs_ops.pop(0)()
        if base_ops: base_ops.pop(0)()
    ACCK = V.get(8, 4); PK = V.get(4)
    b.emit(VERB)
    if E('UPOS', 1) == 2:
        for x in uloads: a.I(x)
    if E('KPRIO', -1) >= 0: a.I(f's_setprio {E("KPRIO", -1)}')
    a.I('s_waitcnt lgkmcnt(0)\n s_barrier'); stamp(a, 5)
    S = [128, 192]; FR = 128
    if E('UPOS', 1) == 0:
        for x in uloads: a.I(x)
    b = Block(a, 'kmfma')
    for k in range(8):
        b.I(f'ds_read_b128 {v(FR+12*k,4)}, {v(vrb)} offset:{64*k} ;@T')
        b.I(f'ds_read_b128 {v(FR+12*k+4,4)}, {v(vra)} offset:{64*k} ;@T')
        b.I(f'ds_read_b128 {v(FR+12*k+8,4)}, {v(vra)} offset:{64*k+16*RS} ;@T')
    for k in range(8):
        mfma(b, ACCK, FR+12*k+4, FR+12*k, '0' if k == 0 else ACCK); mfma(b, ACCK+4, FR+12*k+8, FR+12*k, '0' if k == 0 else ACCK+4)
    if E('MID', 0): mid()
    if E('LATE', 1) == 2: late(); tagregs(b, TG, 245, TOK, 5)
    cvt(b, PK, ACCK, ACCK+1); cvt(b, PK+1, ACCK+2, ACCK+3); cvt(b, PK+2, ACCK+4, ACCK+5); cvt(b, PK+3, ACCK+6, ACCK+7)
    b.I(f'ds_write_b16 {v(KW)}, {v(PK)} ;@K0 ;!300\n ds_write_b16_d16_hi {v(KW+1)}, {v(PK)} ;@K1 ;!300\n ds_write_b16 {v(KW+2)}, {v(PK+1)} ;@K2 ;!300\n ds_write_b16_d16_hi {v(KW+3)}, {v(PK+1)} ;@K3 ;!300')
    b.I(f'ds_write_b16 {v(kw1)}, {v(PK+2)} ;@K4 ;!300\n ds_write_b16_d16_hi {v(kw2)}, {v(PK+2)} offset:64 ;@K5 ;!300')
    b.I(f'ds_write_b16 {v(kw2)}, {v(PK+3)} offset:128 ;@K6 ;!300\n ds_write_b16_d16_hi {v(kw2)}, {v(PK+3)} offset:192 ;@K7 ;!300')
    b.emit(VERB)
    if E('UPOS', 1) == 4:
        for x in uloads: a.I(x)
    a.I('s_waitcnt lgkmcnt(0)\n s_barrier'); stamp(a, 6)
    for e in range(8, -1, -1): a.I(f'ds_read_u16 {v(EG+e)}, {v(EG+e)}')
    a.I(f'ds_read_u16 {v(veg)}, {v(veg)}')
    if E('UPOS', 1) == 1 and not E('NOUT', 0):
        for x in uloads: a.I(x)
    EO = FR
    for bb in range(4):
        a.I(f'v_lshl_or_b32 {v(EO+bb)}, {v(EG+1+6-2*bb)}, 16, {v(EG+1+7-2*bb)}')
        a.I(f'v_lshl_or_b32 {v(EO+4+bb)}, {v(EG+1+5-2*bb)}, 16, {v(EG+1+6-2*bb)}')
    a.I(f'ds_write_b128 {v(vks)}, {v(EO,4)} offset:{LK+64}\n ds_write_b128 {v(vks)}, {v(EO+4,4)} offset:{LK+KC+64}')
    a.I(f'v_mul_u32_u24 {v(veg)}, {v(veg)}, {v(vem)}\n ds_write_b32 {v(vkz)}, {v(veg)} offset:{LK}')
    if E('LATE', 1) == 1: late()
    if E('LATE', 1) < 2:
        tagregs(b, TG, 245, TOK, 5); b.emit(VERB)
    stamp(a, 7)
    tag_check(a, uloads, U0, TG, TM, TOK)
    a.I(f'ds_write_b128 {v(vuw)}, {v(U0,4)}\n ds_write_b128 {v(vuw)}, {v(U0+4,4)} offset:2048')
    a.I(f's_setprio {E("CPRIO", 2)}')
    a.I('s_waitcnt lgkmcnt(0)\n s_barrier'); stamp(a, 8)
    V.put(EG, 9); V.put(ACCK, 8); V.put(KW, 4); V.put(PK, 4); V.put(U0, 12)
    ACC = V.get(32, 4)
    b = Block(a, 'conv')
    S = [128, 176]; X = 224
    def loads(rl):
        L = []
        for k in range(8):
            if k < 4:
                o = 16*(3-rl) + (128 if k % 2 == 0 else 0)
                r = S[rl%2] + 32 + 4*k
                L += [f'ds_read2_b32 {v(r,2)}, {v(vb+k//2)} offset0:{o} offset1:{o+1}', f'ds_read2_b32 {v(r+2,2)}, {v(vb+k//2)} offset0:{o+2} offset1:{o+3}']
            L.append(f'ds_read_b128 {v(S[rl%2]+4*k,4)}, {v(va)} offset:{64*(3-rl)+512*k}')
        return L
    def mf(d, A, B, c): return f'v_mfma_f32_16x16x32_bf16 {v(d,4)}, {v(A,4)}, {v(B,4)}, {c if isinstance(c, str) else v(c,4)}'
    SB = V.get(8, 4); SD = V.get(16, 4)
    for x in loads(0): a.I(x)
    a.I(f'ds_read2_b32 {v(X,2)}, {v(vb+2)} offset0:0 offset1:1\n ds_read2_b32 {v(X+2,2)}, {v(vb+2)} offset0:2 offset1:3')
    L2 = E('L2', 1)
    bb = Block(a); late2(bb); fill = bb.l
    if not L2:
        pass
    extra = {0: [], 1: [], 2: []}
    for k in range(2):
        extra[1] += [f'ds_read_b128 {v(X+4+8*k,4)}, {v(vf+k)} offset:16', f'ds_read_b128 {v(X+8+8*k,4)}, {v(vf+k)}']
    def k8(r, k, T):
        o = 16*(T-4)
        return [f'ds_read2_b32 {v(r,2)}, {v(vk8+k)} offset0:{o+3} offset1:{o+2}', f'ds_read2_b32 {v(r+2,2)}, {v(vk8+k)} offset0:{o+1} offset1:{o}']
    far = [(0, 4), (0, 5), (0, 6), (0, 7), (1, 6), (1, 7)]
    for j, (k, T) in enumerate(far): extra[2] += k8(X+4*j, k, T)
    for k in range(2):
        for i in range(4): extra[2].append(f'v_cvt_pk_bf16_f32 {v(SB+4*k+i)}, {v(SD+8*k+i)}, {v(SD+8*k+4+i)}')
    for _ in range(24): a.I(fill.pop(0))
    for rl in range(4):
        pairs = sorted([(i, g) for i in range(8) for g in range(4) if i + g <= 7], key=lambda p: (max(p), p[0]+p[1]))
        if rl == 3: pairs = sorted(pairs, key=lambda p: (p[0]+p[1]) // 2)
        M = []; seen = set()
        for (i, g) in pairs:
            d = ACC + 4*(i+g)
            first = (rl == 0 and (i+g) not in seen); seen.add(i+g)
            M.append(mf(d, S[rl%2]+4*i, S[rl%2]+32+4*g, '0' if first else d))
        if rl == 0: M += [mf(ACC+4*(i+4), S[0]+4*i, X, ACC+4*(i+4)) for i in range(4)]
        if rl == 1: M += [mf(SD+8*k+4*h, X+4+8*k+4*h, BND+4*h, '0') for k in range(2) for h in range(2)]
        if rl == 3:
            tailM = [mf(ACC+4*T, X+4*j, SB+4*k, ACC+4*T) for j, (k, T) in enumerate(far)] + M; break
        nxt = (extra[rl] + loads(rl+1)) if rl == 1 else (loads(rl+1) + extra[rl])
        for k, x in enumerate(M):
            a.I(x)
            if k >= (4 if rl == 0 else 0):
                for _ in range(2 if (rl == 2 and k % 2) else 1):
                    if nxt: a.I(nxt.pop(0))
            if fill and rl < 2:
                a.I(fill.pop(0))
        for x in nxt: a.I(x)
    assert not fill
    vps = V.get()
    b.I(f's_mul_i32 s56, s3, 3072\n v_bfe_u32 {v(vps)}, v0, 1, 5\n v_mul_u32_u24 {v(vps)}, 48, {v(vps)}\n v_and_b32 {v(t0)}, 1, v0\n v_lshl_add_u32 {v(vps)}, {v(t0)}, 4, {v(vps)}\n v_add_u32 {v(vps)}, s56, {v(vps)}\n s_lshl_b32 s56, s3, 11')
    vrw = V.get(); vrr = V.get(); vao = V.get(); vl16 = V.get()
    b.I(f'v_lshlrev_b32 {v(vrw)}, 3, v0\n v_xor_b32 {v(vrr)}, 1024, {v(vrw)}')
    b.I(f'v_lshlrev_b32 {v(vao)}, 6, {v(q)}\n v_add_u32 {v(vao)}, {v(vao)}, {v(n)}\n v_mul_u32_u24 {v(vao)}, 48, {v(vao)}\n s_mul_i32 s10, s{HR}, {32*48}\n s_lshl_b32 s11, s{CH}, 4\n s_add_u32 s10, s10, s11\n v_add_u32 {v(vao)}, s10, {v(vao)}')
    b.I(f'v_and_b32 {v(vl16)}, 1023, {v(vt16)}\n s_mul_i32 s62, s22, {BS}\n s_add_u32 s62, s62, s56\n s_add_u32 s62, s62, {AW_OFF}')
    R = S[0] + 16
    fl = b.l; b.l = []
    last = {}
    for k, x in enumerate(tailM): last[int(x.split('v[')[1].split(':')[0])] = k
    pend = []
    for k, x in enumerate(tailM):
        a.I(x)
        for _ in range(2):
            if fl: a.I(fl.pop(0))
        for i in range(8):
            if last[ACC+4*i] + 4 == k and not fl: a.I(f'ds_write_b64 {v(vrw)}, {v(ACC+4*i+2,2)} offset:{LRED+2048*i}'); pend.append(i)
    for i in range(8):
        if i not in pend: a.I(f'ds_write_b64 {v(vrw)}, {v(ACC+4*i+2,2)} offset:{LRED+2048*i}')
    stamp(a, 9)
    a.I(f's_setprio {E("EPRIO", 3)}')
    a.I('s_waitcnt lgkmcnt(0)\n s_barrier')
    for i in range(8): a.I(f'ds_read_b64 {v(R+2*i,2)}, {v(vrr)} offset:{LRED+2048*i}')
    for i in range(16): a.I(f'v_add_f32 {v(R+i)}, {v(R+i)}, {v(ACC+4*(i//2)+(i&1))}')
    Oo = X
    for jj in range(2):
        for i in range(4): cvt(a, Oo+4*jj+i, R+4*i+jj, R+4*i+2+jj)
        a.I(f'ds_write_b128 {v(vao)}, {v(Oo+4*jj,4)} offset:{LAO+768*jj}')
    a.I('s_waitcnt lgkmcnt(0)\n s_barrier')
    if not E('NOA', 0): publish(a, LAO, X + 8, vps, TG, vl16, 48, 62, 5)
    endpgm(a, 48, 10, 1)

if __name__ == '__main__':
    out = sys.argv[1]
    a = Asm()
    a.raw(f'.globl {NAME}\n.p2align 8\n.type {NAME},@function\n{NAME}:')
    if PROF:
        for i in range(NST): a.I(f's_mov_b32 s{64+2*i}, 0')
        a.I('s_mov_b32 s60, 0')
    stamp(a, 0)
    a.I('s_load_dwordx16 s[4:19], s[0:1], 0\n s_load_dwordx2 s[20:21], s[0:1], 104\n s_load_dwordx8 s[48:55], s[0:1], 64')
    if PREFETCH:
        a.I(f's_cmp_ge_u32 s2, {8*PREFETCH}\n s_cbranch_scc1 L_nopf')
        a.I('s_getpc_b64 s[62:63]')
        a.label('L_pc', keep=True)
        a.I(f'v_lshlrev_b32 v1, 7, v0\n v_cmp_gt_u32 vcc, L_code_end-L_pc, v1\n s_and_saveexec_b64 s[58:59], vcc\n s_cbranch_execz L_pf2')
        a.I(f'global_load_dword v255, v1, s[62:63]')
        a.label('L_pf2', keep=True)
        a.I('s_mov_b64 exec, -1')
        a.label('L_nopf', keep=True); a.vm = []
    lo, hi = ('L_a_pre', 'L_b_pre') if AFIRST else ('L_b_pre', 'L_a_pre')
    a.I(f's_cmp_ge_u32 s2, 512\n s_cbranch_scc1 L_exit')
    if E('SEP', 0):
        a.I('s_bfe_u32 s4, s2, 0x10003\n s_bfe_u32 s5, s2, 0x10008\n s_and_b32 s2, s2, 0xf7\n s_lshl_b32 s4, s4, 8\n s_lshl_b32 s5, s5, 3\n s_or_b32 s2, s2, s4\n s_or_b32 s2, s2, s5')
    if E('SCRAMBLE', 0): a.I('s_lshr_b32 s58, s2, 3\n s_mul_i32 s58, s58, 37\n s_and_b32 s58, s58, 7\n s_xor_b32 s2, s2, s58\n s_bfe_u32 s58, s2, 0x10004\n s_lshl_b32 s58, s58, 8\n s_xor_b32 s2, s2, s58')
    a.I('s_cmp_lt_u32 s2, 256')
    A = RoleA()
    if E('BCODE', 2) == 2:
        a.I('s_cbranch_scc1 L_a_pre' if AFIRST else 's_cbranch_scc0 L_a_pre')
        def sp():
            a.reset(); a.lg = [('smem', {('s', i) for i in list(range(4, 22)) + list(range(48, 56))})]
            A.pre(a); A.body(a)
            a.label('L_exit'); a.I('s_endpgm')
        role_b(a, sp)
        nb = 0
    elif E('BCODE', 2):
        a.I('s_cbranch_scc1 L_a_pre' if AFIRST else 's_cbranch_scc0 L_a_pre')
        role_b(a)
        nb = a.ninst
        a.label('L_exit'); a.I('s_endpgm')
        a.reset(); a.lg = [('smem', {('s', i) for i in list(range(4, 22)) + list(range(48, 56))})]
        A.pre(a); A.body(a)
    else:
        a.I('s_cbranch_scc0 L_b_pre' if AFIRST else 's_cbranch_scc1 L_b_pre')
        A.pre(a)
        A.body(a)
        nb = a.ninst
        a.label('L_exit'); a.I('s_endpgm')
        role_b(a)
    a.raw('L_code_end:')
    nv = (a.maxv + 1 + 3) // 4 * 4
    print('vgpr', a.maxv + 1, 'sgpr', a.maxs + 1, 'ninst', nb, a.ninst - nb, 'lds', LDS_BYTES, file=sys.stderr)
    launch = f'; @launch kernel={NAME} grid=(512,1,1) block=(256,1,1) lds={LDS_BYTES}' if os.environ.get('LIST') else f'; @launch grid=(512,1,1) block=(256,1,1) lds={LDS_BYTES}'
    hdr = f'''; gated_mix( S4D causal conv , GFNet 2-D spectral filter ) -- one persistent launch, written by gen/gen29.py
{launch}
.amdgcn_target "amdgcn-amd-amdhsa--gfx950"
.text
'''
    kd = f'''.section .rodata,"a"
.p2align 6
.amdhsa_kernel {NAME}
  .amdhsa_next_free_vgpr {nv}
  .amdhsa_next_free_sgpr {a.maxs + 1}
  .amdhsa_accum_offset {nv}
  .amdhsa_group_segment_fixed_size 0
  .amdhsa_kernarg_size 112
  .amdhsa_user_sgpr_count 2
  .amdhsa_user_sgpr_kernarg_segment_ptr 1
  .amdhsa_system_sgpr_workgroup_id_x 1
.end_amdhsa_kernel
'''
    open(out, 'w').write(hdr + a.text() + kd)
```

```python
import sys, math, os
from asmlib import *
E = lambda k, d: int(os.environ.get(k, str(d)))
BS = 8192 + E('BSPAD', 256)
Y_OFF  = 0x000000
V_OFF  = 256*BS if E('COMPACT', 1) else 0x310000
AW_OFF = 2*V_OFF
UT_OFF = 3*V_OFF
YN_OFF = 0xC60000
VN_OFF = 0xC50000
EP_OFF = 0xC40000
WS_BYTES = 0x1000000
LOG2E = 1.4426950408889634
TOKC = 0x9E3779B9
SPIN = 30000
PROF = E('PROF', 0); PREFETCH = E('PREFETCH', 1); BPRIO = E('BPRIO', 2); WPOS = E('WPOS', 1); BACKOFF = E('BACKOFF', 4)
AFIRST = E('AFIRST', 1); WPF = E('WPF', 1)
NAME = 'gated_mix__ssm_conv_s4d__spectral_gfnet__prompt_kernel'
DBG_OFF = 0xFC0000
NST = 15
SKIP = ()
def stamp(a, i, wait=True):
    if PROF and i not in SKIP:
        if wait: a.I(f's_memrealtime s[{64+2*i}:{65+2*i}]\n s_waitcnt lgkmcnt(0)')
        else: a.I(f's_memrealtime s[{64+2*i}:{65+2*i}]')
def endpgm(a, srdb, last, role):
    if PROF:
        stamp(a, last)
        a.I('s_waitcnt vmcnt(0)')
        stamp(a, last + 1)
        a.I('s_mov_b64 exec, 1')
        for i in range(16): a.I(f'v_mov_b32 v{4+i}, s{64+2*i}' if i < NST else f'v_mov_b32 v{4+i}, s60')
        a.I(f's_and_b32 s61, s2, 255\n s_lshl_b32 s61, s61, 2\n s_add_u32 s61, s61, s3\n s_lshl_b32 s61, s61, 6\n s_add_u32 s61, s61, {DBG_OFF + role*65536}')
        a.I('v_mov_b32 v1, 0')
        for k in range(4): a.I(f'buffer_store_dwordx4 v[{4+4*k}:{7+4*k}], v1, s[{srdb}:{srdb+3}], s61 offen offset:{16*k}')
    a.I('s_endpgm')
def srd(a, d, b, nbytes):
    if nbytes == WS_BYTES and E('WSBASE', 0): a.I(f's_add_u32 s{b}, s{b}, {E("WSBASE", 0) << 20}\n s_addc_u32 s{b+1}, s{b+1}, 0')
    a.I(f's_mov_b32 s{d}, s{b}\n s_mov_b32 s{d+1}, s{b+1}\n s_mov_b32 s{d+2}, {nbytes}\n s_mov_b32 s{d+3}, 0x00020000')
def task_of(a, dst, tmp):
    a.I(f's_and_b32 s{dst}, s2, 7\n s_lshl_b32 s{dst}, s{dst}, 5\n s_bfe_u32 s{tmp}, s2, 0x50003\n s_or_b32 s{dst}, s{dst}, s{tmp}')
def lanes(a, V):
    n, q = V.get(), V.get()
    a.I(f'v_lshrrev_b32 {v(q)}, 6, v0')
    a.I(f'v_and_b32 {v(n)}, 15, v0')
    a.I(f'v_readfirstlane_b32 s3, {v(q)}')
    a.I(f'v_bfe_u32 {v(q)}, v0, 4, 2')
    return n, q
def cm1(a, re, im, c, s_, t1, t2, sign):
    a.I(f'v_mul_f32 {v(t1)}, {v(im)}, {v(s_)}\n v_mul_f32 {v(t2)}, {v(re)}, {v(s_)}')
    a.I(f'v_fma_f32 {v(re)}, {v(re)}, {v(c)}, {"-" if sign > 0 else ""}{v(t1)}')
    a.I(f'v_fma_f32 {v(im)}, {v(im)}, {v(c)}, {"-" if sign < 0 else ""}{v(t2)}')
def cmul_tw(a, re, im, c, s_, t1, t2, sign):
    cm1(a, re, im, c, s_, t1, t2, sign); cm1(a, re+1, im+1, c+1, s_+1, t1+1, t2+1, sign)
def mfma(a, d, A, B, c):
    a.I(f'v_mfma_f32_16x16x32_bf16 {v(d,4)}, {v(A,4)}, {v(B,4)}, {c if isinstance(c,str) else v(c,4)}')
def cvt(a, d, x, y, nx=False, ny=False):
    a.I(f'v_cvt_pk_bf16_f32 {v(d)}, {"-" if nx else ""}{v(x)}, {"-" if ny else ""}{v(y)}')
def chk(a, g, tok):
    a.I(f'v_add3_u32 {v(g+3)}, {v(g)}, {v(g+1)}, {v(g+2)}\n v_add_u32 {v(g+3)}, s{tok}, {v(g+3)}')
_lab = [0]
def poll_check(a, loads, R, tmp, tok, backoff=None, young=0):
    _lab[0] += 1
    L = f'L_poll{_lab[0]}'
    bo = BACKOFF if backoff is None else backoff
    Gs = R if isinstance(R, list) else [R, R+4, R+8]
    a.I(f's_mov_b32 s59, {SPIN}')
    a.label(L, keep=True)
    for k, g in enumerate(Gs):
        a.I(f's_waitcnt vmcnt({len(Gs)-1-k+young})')
        a.I(f'v_add3_u32 {v(tmp+1)}, {v(g)}, {v(g+1)}, {v(g+2)}\n v_sub_u32 {v(tmp+1)}, {v(g+3)}, {v(tmp+1)}')
        a.I(f'v_xor_b32 {v(tmp)}, s{tok}, {v(tmp+1)}' if k == 0 else f'v_xor_b32 {v(tmp+1)}, s{tok}, {v(tmp+1)}\n v_or_b32 {v(tmp)}, {v(tmp)}, {v(tmp+1)}')
    a.I(f'v_cmp_ne_u32 vcc, 0, {v(tmp)}\n s_cbranch_vccz {L}_out\n s_sub_u32 s59, s59, 1\n s_cbranch_scc1 {L}_out\n s_mov_b64 exec, vcc')
    if bo: a.I(f's_sleep {bo}')
    for x in loads: a.I(x)
    if young: a.I('s_waitcnt vmcnt(0)')
    a.I(f's_branch {L}')
    a.label(L + '_out', keep=True)
    a.vm = []
    a.I('s_mov_b64 exec, -1')
def mktok(a, tok, tmp):
    a.I(f's_xor_b32 s{tok}, s{tok}, 0xffff\n s_add_u32 s{tok}, s{tok}, 0x9e370000')
def tagregs(a, TG, t0, tok, sm, piece4=None, clean=True):
    a.I(piece4 or f'v_and_b32 {v(t0)}, 3, v0\n v_lshlrev_b32 {v(t0)}, 2, {v(t0)}')
    a.I(f's_mov_b32 s{sm}, 0x10001\n v_lshrrev_b32 {v(TG)}, {v(t0)}, s{tok}')
    for i in range(1, 4): a.I(f'v_lshrrev_b32 {v(TG+i)}, {i}, {v(TG)}')
    if clean:
        for i in range(4): a.I(f'v_and_b32 {v(TG+i)}, 0x10001, {v(TG+i)}')
def publish(a, img, R, vps, TG, vl16, srdb, soff, sm):
    for k in range(2): a.I(f'ds_read_b128 {v(R+4*k,4)}, {v(vps)} offset:{img+1536*k}')
    for k in range(2):
        for i in range(4): a.I(f'v_bfi_b32 {v(R+4*k+i)}, s{sm}, {v(TG+i)}, {v(R+4*k+i)}')
        a.I(f'buffer_store_dwordx4 {v(R+4*k,4)}, {v(vl16)}, s[{srdb}:{srdb+3}], s{soff} offen offset:{1024*k} sc1')
def tag_check(a, loads, R, TG, tmp, tok, extra=None, backoff=None, young=0):
    _lab[0] += 1
    L = f'L_tag{_lab[0]}'
    bo = BACKOFF if backoff is None else backoff
    nl = len(loads)
    a.I(f's_mov_b32 s59, {SPIN}')
    a.label(L, keep=True)
    for k in range(nl - (extra is not None)):
        g = R + 4*k
        a.I(f's_waitcnt vmcnt({nl-1-k+young})')
        for i in range(4): a.I(f'v_xor_b32 {v(g+i)}, {v(TG+i)}, {v(g+i)}')
        if k == 0: a.I(f'v_or3_b32 {v(tmp)}, {v(g)}, {v(g+1)}, {v(g+2)}\n v_or_b32 {v(tmp)}, {v(tmp)}, {v(g+3)}')
        else: a.I(f'v_or3_b32 {v(tmp)}, {v(tmp)}, {v(g)}, {v(g+1)}\n v_or3_b32 {v(tmp)}, {v(tmp)}, {v(g+2)}, {v(g+3)}')
    a.I(f'v_and_b32 {v(tmp)}, 0x10001, {v(tmp)}')
    if extra is not None:
        g = extra
        a.I(f's_waitcnt vmcnt(0)\n v_add3_u32 {v(tmp+1)}, {v(g)}, {v(g+1)}, {v(g+2)}\n v_sub_u32 {v(tmp+1)}, {v(g+3)}, {v(tmp+1)}\n v_xor_b32 {v(tmp+1)}, s{tok}, {v(tmp+1)}\n v_or_b32 {v(tmp)}, {v(tmp)}, {v(tmp+1)}')
    a.I(f'v_cmp_ne_u32 vcc, 0, {v(tmp)}\n s_cbranch_vccz {L}_out\n s_sub_u32 s59, s59, 1\n s_cbranch_scc1 {L}_out\n s_wqm_b64 exec, vcc')
    if bo: a.I(f's_sleep {bo}')
    for x in loads: a.I(x)
    if PROF: a.I('s_add_u32 s60, s60, 1')
    if young: a.I('s_waitcnt vmcnt(0)')
    a.I(f's_branch {L}')
    a.label(L + '_out', keep=True)
    a.vm = []
    a.I('s_mov_b64 exec, -1')
def unpack(a, img, R, vun, masked=False, st=768):
    if masked: a.I('s_mov_b64 exec, s[10:11]')
    for k in range(4): a.I(f'ds_write_b128 {v(vun)}, {v(R+4*k,4)} offset:{img+st*k}')
    if masked: a.I('s_mov_b64 exec, -1')

LX = 0; LI0 = 8704; LI1 = LI0 + 12288; LW = LI1 + 12288; LG = LW + 256*80; LDUM = LG + 64
VERB = E('VERB', 0)
def role_b(a, split=None):
    V = VAlloc(1, 255)
    a.label('L_b_pre'); a.lg = [('smem', {('s', i) for i in list(range(4, 22)) + list(range(48, 56))})]
    if E('ONLYA', 0): a.I('s_endpgm')
    def hi(p=3): a.I(f's_setprio {p}')
    def lo(): a.I(f's_setprio {E("LOPRIO", 1)}')
    a.I(f's_setprio {E("B0PRIO", 2)}')
    task_of(a, 22, 23)
    n, q = lanes(a, V)
    t0 = V.get(); t1 = V.get(); TM = V.get(3)
    vl16 = V.get(); a.I(f'v_and_b32 {v(vl16)}, 63, v0\n v_lshlrev_b32 {v(vl16)}, 4, {v(vl16)}')
    a.I(f's_lshl_b32 s24, s3, 9\n s_add_u32 s24, s24, s22\n s_lshl_b32 s24, s24, 10\n s_add_u32 s25, s24, {256*1024}')
    a.I(f's_mul_i32 s26, s3, 2112\n s_mov_b32 s30, 2097152\n s_mov_b32 s31, 0x00020000')
    WR = V.get(4, 4); WI = V.get(4, 4); WNR = V.get(2); GW = V.get(8, 4)
    XA = V.get(32, 4); ACC = V.get(32, 4); T = V.get(16)
    base = V.get(); fN = V.get()
    POOL = V.get(120, 4)
    C1 = POOL; TC = POOL + 16; TS = POOL + 32; C2 = POOL + 48; CN = POOL + 96; A2 = POOL + 100
    f1, kH, fF, fK, sgn = (ACC + i for i in range(5))
    b = Block(a, 'c1')
    b.I(f'v_lshrrev_b32 {v(f1)}, 3, {v(n)}\n s_lshl_b32 s56, s3, 1\n v_add_u32 {v(f1)}, s56, {v(f1)}\n v_and_b32 {v(kH)}, 7, {v(n)}')
    b.I(f'v_cvt_f32_u32 {v(fF)}, {v(f1)}\n v_cvt_f32_u32 {v(fK)}, {v(kH)}')
    b.I(f'v_and_b32 {v(t0)}, 1, {v(q)}\n v_lshlrev_b32 {v(t0)}, 2, {v(t0)}\n v_mul_u32_u24 {v(t0)}, {v(t0)}, {v(f1)}')
    b.I(f'v_and_b32 {v(t1)}, 2, {v(q)}\n v_mad_u32_u24 {v(t0)}, {v(t1)}, {v(kH)}, {v(t0)}')
    b.I(f'v_cvt_f32_u32 {v(base)}, {v(t0)}\n v_mul_f32 {v(base)}, 0.125, {v(base)}')
    b.I(f'v_and_b32 {v(sgn)}, 1, {v(kH)}\n v_mul_u32_u24 {v(sgn)}, 0x8000, {v(sgn)}\n v_lshl_or_b32 {v(sgn)}, {v(sgn)}, 16, {v(sgn)}')
    for h in range(2):
        if h == 1: b.I(f'v_fmamk_f32 {v(base)}, {v(fK)}, {f32(0.125)}, {v(base)}')
        for r in range(1, 4): b.I(f'v_fmamk_f32 {v(T+8+r)}, {v(fF)}, {f32(0.125*r)}, {v(base)}')
        for r in range(4):
            ang = base if r == 0 else T + 8 + r
            b.I(f'v_cos_f32 {v(T+r)}, {v(ang)}\n v_sin_f32 {v(T+4+r)}, {v(ang)}')
        cvt(b, C1+2*h, T, T+1); cvt(b, C1+2*h+1, T+2, T+3)
        cvt(b, C1+8+2*h, T+4, T+5, True, True); cvt(b, C1+8+2*h+1, T+6, T+7, True, True)
    for i in range(4):
        b.I(f'v_xor_b32 {v(C1+4+i)}, {v(sgn)}, {v(C1+i)}\n v_xor_b32 {v(C1+12+i)}, {v(sgn)}, {v(C1+8+i)}')
    if E('EARLYC', 1): b.emit(VERB)
    a.I('s_waitcnt lgkmcnt(0)'); stamp(a, 1)
    a.I('s_mov_b32 s28, s4\n s_mov_b32 s29, s5\n s_mov_b32 m0, s26')
    a.I(f'buffer_load_dwordx4 {v(vl16)}, s[28:31], s24 offen lds')
    a.I('s_add_u32 m0, s26, 1056')
    a.I(f'buffer_load_dwordx4 {v(vl16)}, s[28:31], s25 offen lds')
    a.I('s_mov_b32 s4, s16\n s_mov_b32 s5, s17')
    srd(a, 44, 20, WS_BYTES)
    a.I(f's_add_u32 s20, s20, {EP_OFF}\n s_addc_u32 s21, s21, 0\n s_load_dword s57, s[20:21], 0')
    srd(a, 32, 48, 1052672); srd(a, 36, 50, 1052672); srd(a, 40, 52, 1024); srd(a, 12, 54, 2097152)
    a.I(f's_and_b32 s27, s2, 7\n s_mul_i32 s61, s27, 514\n s_lshl_b32 s62, s23, 4\n s_add_u32 s62, s62, s61')
    a.I(f's_mul_i32 s6, s22, {BS}\n s_lshl_b32 s7, s3, 11\n s_add_u32 s6, s6, s7\n s_mul_i32 s7, s3, 3072\n s_add_u32 s8, s6, {V_OFF}')
    a.I(f's_mul_i32 s63, s23, {8*4112}\n s_add_u32 s63, s63, s61\n s_and_b32 s63, s63, -4')
    if split:
        a.I('s_branch L_b2'); st_ = (list(a.vm), list(a.lg)); split(); a.label('L_b2'); a.vm, a.lg = st_
    npt = 0
    if E('PT', 0):
        st = E('PTS', 17)
        a.I(f'v_and_b32 {v(t0)}, 63, v0\n v_lshlrev_b32 {v(t0)}, {st}, {v(t0)}\n s_mov_b32 s56, {0x2F0000 if st >= 21 else 0}')
        if E('PT', 0) == 2: a.I(f'v_mul_u32_u24 {v(t0)}, {BS}, v0\n s_mov_b32 s56, {V_OFF + 8192}')
        a.I(f'buffer_load_dword v255, {v(t0)}, s[44:47], s56 offen')
        npt = 1
    PRE = E('PRE', 0)
    def prest(sr):
        a.I(f'v_lshlrev_b32 {v(TM+2)}, 2, {v(vl16)}\n s_mov_b32 exec_hi, 0xffff')
        a.I(f'buffer_store_dword {v(TM+2)}, {v(TM+2)}, s[44:47], s{sr} offen sc1' if not E('PRELD', 0) else f's_mov_b32 exec_lo, 0x55555555\n s_mov_b32 exec_hi, 0x5555\n buffer_load_dword v255, {v(TM+2)}, s[44:47], s{sr} offen')
        a.I('s_mov_b64 exec, -1')
    npre = 0
    if PRE & 1: prest(6); npre += 1
    if PRE & 2: prest(8); npre += 1
    if not E('EARLYC', 1): b.emit(VERB)
    vw = V.get(); vj4 = V.get(); vpf = V.get(); vrow = V.get()
    a.I(f's_mul_i32 s58, s23, {E("WROT", 8)}\n v_mul_u32_u24 {v(vrow)}, {E("WMUL", 1)}, v0\n v_add_u32 {v(vrow)}, s58, {v(vrow)}\n v_and_b32 {v(vrow)}, 255, {v(vrow)}\n v_mul_u32_u24 {v(vw)}, 4112, {v(vrow)}')
    a.I(f'v_mov_b32 {v(WNR)}, 0\n v_mov_b32 {v(WNR+1)}, 0\n s_cmp_eq_u32 s23, 31\n s_cselect_b64 s[10:11], -1, 0')
    ndrip = [0]
    def drip(k):
        if E('WST', 1) != 3: return
        lo_, hi_ = ((0xffff, 0), (0xffff0000, 0), (0, 0xffff), (0, 0xffff0000))[k]
        a.I(f's_mov_b32 exec_lo, {lo_}\n s_mov_b32 exec_hi, {hi_}')
        for r, rn, sr in ((WR, WNR, 32), (WI, WNR+1, 36)):
            a.raw(f'    buffer_load_dwordx4 {v(r,4)}, {v(vw)}, s[{sr}:{sr+3}], s62 offen'); a.vm.append(set())
        a.I(f's_and_b64 exec, exec, s[10:11]\n s_cbranch_execz L_drip{k}')
        for r, rn, sr in ((WR, WNR, 32), (WI, WNR+1, 36)):
            a.raw(f'    buffer_load_short_d16_hi {v(rn)}, {v(vw)}, s[{sr}:{sr+3}], s62 offen offset:16')
        a.label(f'L_drip{k}', keep=True)
        a.I('s_mov_b64 exec, -1')
        ndrip[0] += 2
    DR = [int(x) for x in os.environ.get('DRIP', '0123')]
    def slot(i):
        for k, x in enumerate(DR):
            if x == i: drip(k)
    slot(0)
    b.I(f'v_mul_u32_u24 {v(t0)}, {v(kH)}, {v(q)}\n v_lshlrev_b32 {v(t0)}, 4, {v(t0)}\n v_mad_u32_u24 {v(t0)}, {v(f1)}, s22, {v(t0)}')
    b.I(f'v_cvt_f32_u32 {v(base)}, {v(t0)}\n v_mul_f32 {v(base)}, {f32(1/2048)}, {v(base)}')
    for t in range(4):
        for i in range(4):
            k = 16*t + i
            if k == 0: ang = base
            else:
                ang = T + 4*t + i
                b.I(f'v_fmamk_f32 {v(ang)}, {v(fK)}, {f32(k/512)}, {v(base)}')
            b.I(f'v_cos_f32 {v(TC+4*t+i)}, {v(ang)}\n v_sin_f32 {v(TS+4*t+i)}, {v(ang)}')
    b.I(f'v_lshrrev_b32 {v(vj4)}, 5, v0\n v_mul_u32_u24 {v(vpf)}, 4112, {v(vj4)}\n v_and_b32 {v(t1)}, 7, v0\n v_lshl_add_u32 {v(vpf)}, {v(t1)}, 7, {v(vpf)}\n v_lshlrev_b32 {v(vj4)}, 2, {v(vj4)}')
    b.emit(VERB)
    WST = E('WST', 1)
    def wstorm(parts=(0, 1)):
        a.I(f's_cmp_eq_u32 s23, 31\n s_cselect_b64 s[10:11], -1, 1')
        for k in parts:
            r, sr = ((WR, 32), (WI, 36))[k]
            a.I(f'v_mov_b32 {v(WNR+k)}, 0')
            a.I(f'buffer_load_dwordx4 {v(r,4)}, {v(vw)}, s[{sr}:{sr+3}], s62 offen')
            a.I('s_mov_b64 exec, s[10:11]')
            a.I(f'buffer_load_short_d16_hi {v(WNR+k)}, {v(vw)}, s[{sr}:{sr+3}], s62 offen offset:16')
            a.I('s_mov_b64 exec, -1')
    def wpf():
        a.I('s_mov_b32 exec_lo, 0x1f\n s_mov_b32 exec_hi, 0x1f')
        a.I(f'buffer_load_dword {v(TM)}, {v(vpf)}, s[32:35], s63 offen')
        a.I(f'buffer_load_dword {v(TM+1)}, {v(vpf)}, s[36:39], s63 offen')
        a.I('s_mov_b64 exec, -1')
    if WPF == 1: wpf()
    slot(1)
    b.I(f'v_cvt_f32_u32 {v(fN)}, {v(n)}\n v_mul_u32_u24 {v(t0)}, {v(n)}, {v(q)}\n v_cvt_f32_u32 {v(base)}, {v(t0)}\n v_mul_f32 {v(base)}, {f32(1/16)}, {v(base)}')
    for t in range(2):
        TT = XA + 12*t
        for i in range(4):
            k = 16*t + i
            if k == 0: ang = base
            else:
                ang = TT + 8 + i
                b.I(f'v_fmamk_f32 {v(ang)}, {v(fN)}, {f32(k/64)}, {v(base)}')
            b.I(f'v_cos_f32 {v(TT+i)}, {v(ang)}\n v_sin_f32 {v(TT+4+i)}, {v(ang)}')
        c = [TT+i for i in range(4)]; s_ = [TT+4+i for i in range(4)]
        b0 = C2 + 6*t; b1 = C2 + 24 + 6*t
        cvt(b, b0+0, s_[0], s_[1], True, True); cvt(b, b0+2, c[0], c[1]); cvt(b, b0+4, s_[0], s_[1])
        cvt(b, b1+0, s_[0], c[1], True, True); cvt(b, b1+2, c[0], s_[1], False, True); cvt(b, b1+4, s_[0], c[1])
        cvt(b, b0+3, c[2], c[3]); cvt(b, b1+1, s_[2], c[3]); cvt(b, b1+5, s_[2], c[3], True, True)
        cvt(b, b0+1, s_[2], s_[3], True, True); cvt(b, b0+5, s_[2], s_[3]); cvt(b, b1+3, c[2], s_[3], True, False)
        for ct in range(2):
            for i in range(6): b.I(f'v_xor_b32 {v(C2+24*ct+6*t+12+i)}, {v(sgn)}, {v(C2+24*ct+6*t+i)}')
    b.I(f'v_mov_b32 {v(T)}, 0xbf803f80')
    b.I(f'v_cmp_eq_u32 vcc, 0, {v(n)}\n v_cndmask_b32 {v(CN)}, 0, {v(T)}, vcc\n v_cndmask_b32 {v(CN+1)}, 0, {v(T)}, vcc')
    b.I(f'v_cmp_eq_u32 vcc, 1, {v(n)}\n v_cndmask_b32 {v(CN+2)}, 0, {v(T)}, vcc\n v_cndmask_b32 {v(CN+3)}, 0, {v(T)}, vcc')
    vtr = V.get(); vys = V.get(); vyn = V.get()
    b.I(f'v_bfe_u32 {v(T+1)}, v0, 2, 3\n v_mul_u32_u24 {v(vtr)}, 1056, {v(T+1)}')
    b.I(f'v_bfe_u32 {v(T+2)}, v0, 5, 1\n v_lshl_add_u32 {v(vtr)}, {v(T+2)}, 8, {v(vtr)}')
    b.I(f'v_and_b32 {v(T+3)}, 3, v0\n v_lshl_add_u32 {v(vtr)}, {v(T+3)}, 3, {v(vtr)}')
    b.emit(VERB)
    if WPF == 2: wpf()
    slot(2)
    V.put(vpf)
    stamp(a, 2)
    if WST == 2: wstorm()
    a.I(f's_waitcnt vmcnt({(2 if WPF else 0) + (4 if WST == 2 and not E("NOW", 0) else 0) + ndrip[0] + npre + npt})')
    hi(E('P1PRIO', 1))
    a.I('s_barrier'); stamp(a, 3)
    if WST == 0: wstorm()
    slot(3)
    mktok(a, 57, 56)
    if PRE & 16: prest(8)
    b = Block(a, 'phase1')
    for t in range(4):
        for g in range(2):
            for h in range(2):
                b.I(f'ds_read_b64_tr_b16 {v(XA+8*t+4*g+2*h,2)}, {v(vtr)} offset:{LX+512*g+128*h+32*t}')
    TG = V.get(4, 1); vps = V.get(); vun = V.get(); NG = V.get(4, 4)
    TY = GW
    tagregs(b, TY, GW+4, 57, 16, f'v_bfe_u32 {v(GW+4)}, v0, 2, 3\n v_and_b32 {v(GW+4)}, 4, {v(GW+4)}\n v_and_b32 {v(GW+5)}, 1, v0\n v_lshl_add_u32 {v(GW+4)}, {v(GW+5)}, 3, {v(GW+4)}', False)
    b.I(f'v_lshlrev_b32 {v(vys)}, 8, {v(vj4)}\n v_lshl_add_u32 {v(vys)}, {v(n)}, 5, {v(vys)}\n v_and_b32 {v(t0)}, 16, v0\n v_add_u32 {v(vys)}, {v(vys)}, {v(t0)}\n s_mul_i32 s18, s22, {BS}')
    b.I(f'v_lshlrev_b32 {v(vyn)}, 3, {v(vj4)}\n v_and_b32 {v(t0)}, 1, v0\n v_lshl_add_u32 {v(vyn)}, {v(t0)}, 4, {v(vyn)}\n v_and_b32 {v(t0)}, 30, v0\n v_lshl_add_u32 {v(vyn)}, {v(t0)}, 24, {v(vyn)}\n s_mul_i32 s17, s22, {BS}\n s_add_u32 s17, s17, 8192')
    b.I(f'v_mov_b32 {v(NG+1)}, 0\n v_mov_b32 {v(NG+2)}, 0')
    for t in range(4):
        for p in range(2): mfma(b, ACC+8*t+4*p, XA+8*t, C1+8*p, '0')
        for p in range(2): mfma(b, ACC+8*t+4*p, XA+8*t+4, C1+8*p+4, ACC+8*t+4*p)
    for t in range(4):
        re, im = ACC+8*t, ACC+8*t+4
        for i in range(4): cm1(b, re+i, im+i, TC+4*t+i, TS+4*t+i, T+8*(t&1)+2*i, T+8*(t&1)+2*i+1, -1)
        F = XA + 8*t
        cvt(b, F, re, re+1); cvt(b, F+2, im, im+1); cvt(b, F+1, re+2, re+3); cvt(b, F+3, im+2, im+3)
        mfma(b, A2+16, F, CN, '0' if t == 0 else A2+16)
        for ct in range(2):
            bb = C2 + 24*ct + 6*t
            mfma(b, A2+8*ct, F, bb+2, '0' if t == 0 else A2+8*ct)
            mfma(b, A2+8*ct+4, F, bb, '0' if t == 0 else A2+8*ct+4)
    for ct in range(2):
        O = XA + 4 + 8*ct
        for i in range(4): cvt(b, O+i, A2+8*ct+i, A2+8*ct+4+i)
        for i in range(4): b.I(f'v_bfi_b32 {v(O+i)}, s16, {v(TY+i)}, {v(O+i)}')
        b.I(f'buffer_store_dwordx4 {v(O,4)}, {v(vys)}, s[44:47], s18 offen offset:{512*ct} sc1 ;!200')
    if PRE & 1:
        b.emit(VERB); a.I(f's_waitcnt vmcnt({(2 if WPF else 0) + (1 if PRE & 2 else 0) + (1 if PRE & 16 else 0)})')
    b.I(f'v_mov_b32_dpp {v(T)}, {v(A2+16)} quad_perm:[1,1,1,1] row_mask:0xf bank_mask:0xf')
    cvt(b, NG, A2+16, T)
    b.I(f'v_add_u32 {v(NG+3)}, s57, {v(NG)}\n buffer_store_dwordx4 {v(NG,4)}, {v(vyn)}, s[44:47], s17 offen sc1')
    b.emit(VERB)
    stamp(a, 4)
    V.put(vtr); V.put(vys); V.put(vyn)
    if WST == 1: wstorm()
    if WST == 6: wstorm((0,))
    slot(4)
    if E('W1PRIO', -1) >= 0: hi(E('W1PRIO', -1))
    FR_, FI_, TC2, TS2 = POOL + 88, POOL + 92, GW, GW + 4
    b = Block(a, 'w1a')
    b.I(f'v_mul_f32 {v(base)}, {f32(1/4)}, {v(base)}')
    for i in range(4):
        ang = T + 4*i + 2
        if i == 0: ang = base
        else: b.I(f'v_fmamk_f32 {v(ang)}, {v(fN)}, {f32(i/256)}, {v(base)}')
        b.I(f'v_mul_f32 {v(T+4*i+3)}, {f32(16.0)}, {v(ang)}')
        b.I(f'v_cos_f32 {v(T+4*i)}, {v(T+4*i+3)}\n v_sin_f32 {v(T+4*i+1)}, {v(T+4*i+3)}')
        b.I(f'v_cos_f32 {v(TC2+i)}, {v(ang)}\n v_sin_f32 {v(TS2+i)}, {v(ang)}')
        cvt(b, FR_+i, T+4*i, T+4*i+1); cvt(b, FI_+i, T+4*i+1, T+4*i, True, False)
    tagregs(b, TG, t1, 57, 16)
    b.I(f'v_bfe_u32 {v(vps)}, v0, 1, 5\n v_mul_u32_u24 {v(vps)}, 48, {v(vps)}\n v_and_b32 {v(t0)}, 1, v0\n v_lshl_add_u32 {v(vps)}, {v(t0)}, 4, {v(vps)}\n v_add_u32 {v(vps)}, s7, {v(vps)}')
    GA = V.get(); vy = V.get(); vnn = V.get(); vnw = V.get(); vy1 = V.get(); vww = V.get(); vp16 = V.get()
    b.I(f'v_and_b32 {v(vp16)}, 3, v0\n v_lshlrev_b32 {v(vp16)}, 4, {v(vp16)}\n v_bfe_u32 {v(t1)}, v0, 2, 4\n v_mul_u32_u24 {v(GA)}, {BS}, {v(t1)}\n v_add_u32 {v(GA)}, {v(GA)}, {v(vp16)}')
    b.I(f'v_mul_u32_u24 {v(vun)}, 48, {v(t1)}\n v_and_b32 {v(t1)}, 16, {v(vp16)}\n v_add3_u32 {v(vun)}, {v(vun)}, {v(t1)}, s7')
    b.I(f'v_lshlrev_b32 {v(t0)}, 6, {v(q)}\n v_add_u32 {v(t0)}, {v(t0)}, {v(n)}\n v_mul_u32_u24 {v(vnn)}, 48, {v(t0)}\n v_mul_u32_u24 {v(vnw)}, 80, {v(t0)}')
    b.I(f's_lshl_b32 s56, s3, 3\n v_add_u32 {v(vy)}, s56, {v(vnn)}\n v_mul_u32_u24 {v(vnn)}, {BS}, {v(t0)}\n s_lshl_b32 s52, s27, 5\n s_add_u32 s52, s52, 8192\n s_add_u32 s53, s52, {16*BS}\n s_add_u32 s54, s52, {32*BS}\n s_add_u32 s55, s52, {48*BS}\n s_lshl_b32 s19, s23, 2\n s_add_u32 s19, s19, s3\n s_lshl_b32 s58, s3, 4\n v_add_u32 {v(vww)}, s58, {v(vnw)}')
    b.I(f's_lshr_b32 s24, s22, 1\n s_lshl_b32 s24, s24, 6\n s_mul_i32 s48, s3, {64*BS}\n s_add_u32 s48, s48, s24\n s_add_u32 s49, s48, {16*BS}\n s_add_u32 s50, s48, {32*BS}\n s_add_u32 s51, s48, {48*BS}')
    P1, PTC, PTS, P2 = POOL, POOL + 16, POOL + 32, POOL + 48
    fD = fN; b2 = V.get()
    def p3c_1(b):
        b.I(f'v_add_u32 {v(t1)}, s58, {v(n)}\n v_cvt_f32_u32 {v(fD)}, {v(t1)}')
        b.I(f'v_mul_u32_u24 {v(t1)}, {v(t1)}, {v(q)}\n v_cvt_f32_u32 {v(base)}, {v(t1)}\n v_mul_f32 {v(base)}, {f32(1/16)}, {v(base)}')
        for g in range(2):
            for i in range(4):
                k = 16*g + i
                if k: b.I(f'v_fmamk_f32 {v(T+8+i)}, {v(fD)}, {f32(k/64)}, {v(base)}')
            for i in range(4):
                ang = base if 16*g + i == 0 else T + 8 + i
                b.I(f'v_cos_f32 {v(T+i)}, {v(ang)}\n v_sin_f32 {v(T+4+i)}, {v(ang)}')
            for i in range(4):
                cvt(b, P1+8*g+i, T+i, T+4+i, False, True); cvt(b, P1+8*g+4+i, T+4+i, T+i)
    def p3c_2(b):
        b.I(f'v_mul_u32_u24 {v(t1)}, s22, {v(q)}\n v_cvt_f32_u32 {v(base)}, {v(t1)}\n v_mul_f32 {v(base)}, {f32(1/1024)}, {v(base)}')
        b.I(f'v_cvt_f32_u32 {v(b2)}, s22\n v_fmamk_f32 {v(b2)}, {v(b2)}, {f32(1/2048)}, {v(base)}')
        for t in range(4):
            for i in range(4):
                kH_ = 4*(i & 1) + t
                bb = base if i < 2 else b2
                ang = T + 4*t + i
                if kH_ == 0: ang = bb
                else: b.I(f'v_fmamk_f32 {v(ang)}, {v(fD)}, {f32(kH_/512)}, {v(bb)}')
                b.I(f'v_cos_f32 {v(PTC+4*t+i)}, {v(ang)}\n v_sin_f32 {v(PTS+4*t+i)}, {v(ang)}')
    def p3c_3(b):
        fB = fD
        b.I(f'v_and_b32 {v(t0)}, 7, {v(n)}\n v_cvt_f32_u32 {v(b2)}, {v(t0)}\n v_mul_u32_u24 {v(t0)}, {v(t0)}, {v(q)}\n v_cvt_f32_u32 {v(base)}, {v(t0)}\n v_mul_f32 {v(base)}, {f32(0.25)}, {v(base)}')
        b.I(f'v_fmamk_f32 {v(b2)}, {v(b2)}, {f32(0.125)}, {v(base)}')
        b.I(f'v_lshrrev_b32 {v(t0)}, 3, {v(n)}\n v_cvt_f32_u32 {v(fB)}, {v(t0)}')
        for t in range(4):
            TT = ACC + 8 + 12*(t & 1)
            for i in range(4):
                kH_ = 4*(i & 1) + t
                bb = base if i < 2 else b2
                ang = TT + 8 + i
                if kH_ == 0: ang = bb
                else: b.I(f'v_fmamk_f32 {v(ang)}, {v(fB)}, {f32(kH_/8)}, {v(bb)}')
                b.I(f'v_cos_f32 {v(TT+i)}, {v(ang)}\n v_sin_f32 {v(TT+4+i)}, {v(ang)}')
            d = P2 + 10*t
            cvt(b, d, TT, TT+1); cvt(b, d+1, TT+2, TT+3)
            cvt(b, d+2, TT+4, TT+5, True, True); cvt(b, d+3, TT+6, TT+7, True, True)
            if t > 0:
                cvt(b, d+4, TT, TT+1, True, True); cvt(b, d+5, TT+2, TT+3, True, True)
                cvt(b, d+6, TT+4, TT+5); cvt(b, d+7, TT+6, TT+7)
            if t in (1, 3):
                cvt(b, d+8, TT, TT+1); cvt(b, d+9, TT+2, TT+3)
    D1 = E('D1', 0)
    if D1 >= 1: p3c_1(b)
    if D1 >= 2: p3c_2(b)
    b.emit(VERB)
    if E('D1S', 0): a.I(f's_sleep {E("D1S", 0)}')
    stamp(a, 5)
    R = XA
    loads = [f'buffer_load_dwordx4 {v(R+4*k,4)}, {v(GA)}, s[44:47], s{48+k} offen sc1' for k in range(4)]
    for x in loads: a.I(x)
    def wstage(b):
        WO = ACC + 16
        for p in range(4):
            b.I(f'v_lshlrev_b32 {v(WO+4*p)}, 16, {v(WR+p)}\n v_lshlrev_b32 {v(WO+4*p+1)}, 16, {v(WI+p)}')
            b.I(f'v_and_b32 {v(WO+4*p+2)}, 0xffff0000, {v(WR+p)}\n v_and_b32 {v(WO+4*p+3)}, 0xffff0000, {v(WI+p)}')
        b.I(f's_cmp_eq_u32 s23, 0\n s_cselect_b32 s56, 0.5, 1.0')
        b.I(f'v_mul_f32 {v(WO)}, s56, {v(WO)}\n v_mul_f32 {v(WO+1)}, s56, {v(WO+1)}')
        b.I(f'v_mul_f32 {v(WNR)}, 0.5, {v(WNR)}\n v_mul_f32 {v(WNR+1)}, 0.5, {v(WNR+1)}')
        b.I(f'v_mul_u32_u24 {v(t1)}, 80, {v(vrow)}')
        for p in range(4): b.I(f'ds_write_b128 {v(t1)}, {v(WO+4*p,4)} offset:{LW+16*p}')
        b.I(f'ds_write_b64 {v(t1)}, {v(WNR,2)} offset:{LW+64}')
        b.emit(VERB)
        V.put(vrow)
    LATEW = WST in (5, 6)
    if WST == 5: wstorm()
    if WST == 6: wstorm((1,))
    if not LATEW:
        if E('W2PRIO', -1) >= 0: hi(E('W2PRIO', -1))
        if E('DBGH1', 0):
            stamp(a, 9); a.I('s_waitcnt vmcnt(8)'); stamp(a, 10); a.I('s_waitcnt vmcnt(4)'); stamp(a, 11)
            globals()['SKIP'] = (9, 10, 11)
        a.I('s_waitcnt vmcnt(4)'); wstage(b)
    a.I('s_bitcmp1_b32 s22, 0\n s_mov_b32 s10, 0x33333333\n s_cselect_b32 s10, 0xcccccccc, s10\n s_mov_b32 s11, s10')
    stamp(a, 12)
    hi(E('P2PRIO', 3))
    tag_check(a, loads, R, TG, TM, 57, young={5: 4, 6: 2}.get(WST, 0))
    stamp(a, 6)
    unpack(a, LI1, R, vun, E('MASKU', 1))
    a.I('s_waitcnt lgkmcnt(0)\n s_barrier'); stamp(a, 7)
    Y = XA; X = XA + 8
    D = ACC; WF = POOL + 48; T2 = POOL + 72; T3 = POOL + 80
    o = LI1 // 256
    def fft_cols(b, cols, hook=None):
        for c in cols:
            mfma(b, D+8*c, X+4*c, FR_, '0'); mfma(b, D+8*c+4, X+4*c, FI_, '0')
        def stage(tw, sign, swap):
            for c in cols:
                re, im = D+8*c, D+8*c+4
                tt = (T, T2, T3)[c]
                for i in range(4):
                    tc, ts = tw(c, i)
                    cm1(b, re+i, im+i, tc, ts, tt+2*i, tt+2*i+1, sign)
                for i in range(4):
                    if swap: cvt(b, X+4*c+i, im+i, re+i)
                    else: cvt(b, X+4*c+i, re+i, im+i)
                yield c
        for c in stage(lambda c, i: (TC2+i, TS2+i), -1, False):
            mfma(b, D+8*c, FR_, X+4*c, '0'); mfma(b, D+8*c+4, FI_, X+4*c, '0')
        if hook: hook()
        for c in stage(lambda c, i: (WF+4*i+2*c, WF+4*i+2*c+1) if c < 2 else (WF+16+2*i, WF+17+2*i), +1, True):
            mfma(b, D+8*c+4, X+4*c, FR_, '0'); mfma(b, D+8*c, X+4*c, FI_, '0')
        for c in stage(lambda c, i: (TC2+i, TS2+i), +1, True):
            mfma(b, D+8*c+4, FR_, X+4*c, '0'); mfma(b, D+8*c, FI_, X+4*c, '0')
    NY = POOL + 104
    nloads = [f'buffer_load_dwordx4 {v(NY+4*i,4)}, {v(vnn)}, s[44:47], s{52+i} offen sc1' for i in range(4)]
    def nyl():
        a.I('s_cmp_lg_u32 s19, 127\n s_cbranch_scc1 L_b_nn1')
        for x in nloads: a.I(x)
        a.label('L_b_nn1', keep=True)
    if not LATEW: nyl()
    b = Block(a, 'phase2')
    for i, slot_ in enumerate((0, 2, 1, 3)): b.I(f'ds_read_b64 {v(X+2*slot_,2)}, {v(vy)} offset:{LI1+768*i}')
    b.I(f'v_swap_b32 {v(X+1)}, {v(X+4)}\n v_swap_b32 {v(X+3)}, {v(X+6)}')
    def wread():
        for i in range(4): b.I(f'ds_read_b128 {v(WF+4*i,4)}, {v(vww)} offset:{LW+1280*i}')
    def hook():
        b.emit(VERB); a.I('s_waitcnt vmcnt(0)'); wstage(b); a.I('s_waitcnt lgkmcnt(0)\n s_barrier'); nyl(); wread()
    if not LATEW: wread()
    fft_cols(b, (0, 1), hook if LATEW else None)
    for i in range(4):
        b.I(f'v_cvt_pk_bf16_f32 {v(Y+2*i)}, {v(D+i)}, {v(D+4+i)} ;!{E("STAG", 60)}'); cvt(b, Y+2*i+1, D+8+i, D+12+i)
        b.I(f'ds_write_b64 {v(vy)}, {v(Y+2*i,2)} offset:{LI0+768*i}')
    b.emit(VERB)
    a.I('s_waitcnt lgkmcnt(0)\n s_barrier')
    publish(a, LI0, XA + 20, vps, TG, vl16, 44, 8, 16)
    a.I('s_cmp_lg_u32 s19, 127\n s_cbranch_scc1 L_b_nonyq')
    poll_check(a, nloads, [NY, NY+4, NY+8, NY+12], TM, 57, young=2)
    b = Block(a, 'nyq')
    for i in range(4): b.I(f'v_mov_b32 {v(X+8+i)}, {v(NY+4*i)}')
    for i in range(4): b.I(f'ds_read_b64 {v(WF+16+2*i,2)}, {v(vnw)} offset:{LW+64+1280*i}')
    fft_cols(b, (2,))
    b.I(f'v_lshlrev_b32 {v(t0)}, 10, {v(q)}\n v_lshl_add_u32 {v(t0)}, {v(n)}, 4, {v(t0)}\n s_lshl_b32 s56, s27, 12\n s_add_u32 s56, s56, {VN_OFF}')
    for i in range(4):
        g = D + 4*i
        cvt(b, g, D+16+i, D+20+i)
        b.I(f'v_mov_b32 {v(g+1)}, 0\n v_mov_b32 {v(g+2)}, 0\n v_add_u32 {v(g+3)}, s57, {v(g)}')
        b.I(f'buffer_store_dwordx4 {v(g,4)}, {v(t0)}, s[44:47], s56 offen offset:{256*i} sc1')
    b.emit(VERB)
    a.I('s_nop 1')
    a.label('L_b_nonyq', keep=True)
    stamp(a, 8)
    lo()
    for r in (vy, vnn, vnw, vw, vy1, vww): V.put(r)
    V.put(WNR, 2)
    vgw = V.get()
    GWL = POOL + 104; GX = POOL + 112
    a.I(f'v_and_b32 {v(vgw)}, 31, v0\n v_lshlrev_b32 {v(vgw)}, 5, {v(vgw)}')
    a.I(f'buffer_load_dwordx4 {v(GWL,4)}, {v(vgw)}, s[40:43], 0 offen')
    a.I(f'buffer_load_dwordx4 {v(GWL+4,4)}, {v(vgw)}, s[40:43], 0 offen offset:16')
    DK = XA + 16; vdk = V.get()
    srd(a, 28, 4, 1024)
    a.I(f'v_lshrrev_b32 {v(t0)}, 3, {v(n)}\n v_lshlrev_b32 {v(vdk)}, 7, {v(t0)}\n v_lshrrev_b32 {v(t0)}, 4, v0\n v_lshl_add_u32 {v(vdk)}, {v(t0)}, 3, {v(vdk)}')
    for ot in range(4): a.I(f'buffer_load_dwordx2 {v(DK+2*ot,2)}, {v(vdk)}, s[28:31], 0 offen offset:{256*ot}')
    b = Block(a, 'w2a')
    if D1 < 1: p3c_1(b)
    if D1 < 2: p3c_2(b)
    if E('D3', 1): p3c_3(b)
    G2 = V.get(2); vr = V.get(); vta = V.get(); vst = V.get(); sgn = V.get(); vn = V.get()
    AA_ = WR
    x0, x1 = WR + 1, WR + 2
    b.I(f'v_bfe_u32 {v(x0)}, v0, 2, 3\n v_bfe_u32 {v(x1)}, v0, 5, 1')
    b.I(f'v_lshl_add_u32 {v(GA)}, {v(x0)}, 5, {v(x1)}\n v_mul_u32_u24 {v(GA)}, {BS}, {v(GA)}\n v_add_u32 {v(GA)}, {v(GA)}, {v(vp16)}')
    b.I(f'v_lshl_add_u32 {v(AA_)}, {v(x1)}, 5, {v(x0)}\n v_mul_u32_u24 {v(AA_)}, {BS}, {v(AA_)}\n v_add_u32 {v(AA_)}, {v(AA_)}, {v(vp16)}')
    b.I(f's_mul_i32 s48, s3, {8*BS}\n s_add_u32 s48, s48, s24\n s_add_u32 s52, s48, {AW_OFF}\n s_add_u32 s48, s48, {V_OFF}')
    for k in range(1, 4): b.I(f's_add_u32 s{48+k}, s48, {2*k*BS}\n s_add_u32 s{52+k}, s52, {64*k*BS}')
    b.I(f'v_lshlrev_b32 {v(vr)}, 10, {v(q)}\n v_lshl_add_u32 {v(vr)}, {v(n)}, 4, {v(vr)}')
    b.I(f's_lshl_b32 s7, s3, 11\n v_bfe_u32 {v(t0)}, v0, 2, 4\n v_lshlrev_b32 {v(vun)}, 5, {v(t0)}\n v_and_b32 {v(t1)}, 1, v0\n v_lshl_add_u32 {v(vun)}, {v(t1)}, 4, {v(vun)}\n v_add_u32 {v(vun)}, s7, {v(vun)}')
    b.I(f'v_lshlrev_b32 {v(vta)}, 4, {v(t0)}\n v_lshl_add_u32 {v(vta)}, {v(t1)}, 3, {v(vta)}\n v_bfe_u32 {v(t0)}, v0, 1, 1\n v_lshl_add_u32 {v(vta)}, {v(t0)}, 8, {v(vta)}\n v_add_u32 {v(vta)}, s7, {v(vta)}')
    b.I(f'v_and_b32 {v(t0)}, 7, {v(n)}\n v_lshlrev_b32 {v(vst)}, 18, {v(t0)}\n v_lshlrev_b32 {v(t1)}, 2, {v(t0)}\n v_lshrrev_b32 {v(t0)}, 3, {v(n)}\n v_lshl_add_u32 {v(vst)}, {v(t0)}, 7, {v(vst)}')
    vgr = V.get(); b.I(f'v_mov_b32 {v(vgr)}, {v(t1)}')
    b.I(f'v_lshrrev_b32 {v(t0)}, 4, v0\n v_lshl_add_u32 {v(vst)}, {v(t0)}, 3, {v(vst)}\n s_lshl_b32 s9, s22, 10')
    NC, NS = WI, WI + 1
    b.I(f'v_bfe_u32 {v(vn)}, v0, 3, 3\n v_and_b32 {v(sgn)}, 7, v0\n v_lshlrev_b32 {v(sgn)}, 8, {v(sgn)}\n v_add_u32 {v(sgn)}, s22, {v(sgn)}\n v_mul_u32_u24 {v(sgn)}, {v(sgn)}, {v(vn)}')
    b.I(f'v_cvt_f32_u32 {v(sgn)}, {v(sgn)}\n v_mul_f32 {v(sgn)}, {f32(1/2048)}, {v(sgn)}\n v_cos_f32 {v(NC)}, {v(sgn)}\n v_sin_f32 {v(NS)}, {v(sgn)}')
    b.I(f'v_lshlrev_b32 {v(vn)}, 12, {v(vn)}\n s_lshl_b32 s62, s22, 4\n s_add_u32 s62, s62, {VN_OFF}')
    b.emit(VERB)
    if E('D2', 0): a.I(f's_sleep {E("D2", 0)}')
    stamp(a, 9)
    for x in loads: a.I(x)
    if not E('D3', 1): p3c_3(b)
    b.emit(VERB)
    a.I('s_waitcnt vmcnt(4)')
    b.I(f'v_mul_u32_u24 {v(t0)}, 264, {v(vj4)}\n v_add_u32 {v(t0)}, {v(t0)}, {v(vgw)}')
    b.I(f'ds_read_b128 {v(GX,4)}, {v(t0)} offset:{LX}\n ds_read_b128 {v(GX+4,4)}, {v(t0)} offset:{LX+16}')
    SKL = [P2+4+i for i in range(6)] + [P2+28, P2+29] + [GW+4+i for i in range(4)] + [NG+i for i in range(4)]; UX = XA + 24
    b.I(f'v_mul_u32_u24 {v(t1)}, 264, {v(vgr)}\n v_add_u32 {v(t1)}, {v(t1)}, {v(vdk)}')
    for ot in range(4): b.I(f'ds_read_b64 {v(UX+2*ot,2)}, {v(t1)} offset:{LX+256*ot}')
    for i in range(8):
        b.I(f'v_lshlrev_b32 {v(SKL[2*i])}, 16, {v(UX+i)}\n v_lshlrev_b32 {v(SKL[2*i+1])}, 16, {v(DK+i)}\n v_mul_f32 {v(SKL[2*i])}, {v(SKL[2*i])}, {v(SKL[2*i+1])}')
        b.I(f'v_and_b32 {v(UX+i)}, 0xffff0000, {v(UX+i)}\n v_and_b32 {v(DK+i)}, 0xffff0000, {v(DK+i)}\n v_mul_f32 {v(SKL[2*i+1])}, {v(UX+i)}, {v(DK+i)}')
    acc = T + 8; acc2 = T + 9
    for i in range(8):
        x, y = T + 2*(i % 4), T + 2*(i % 4) + 1
        b.I(f'v_lshlrev_b32 {v(x)}, 16, {v(GX+i)}\n v_lshlrev_b32 {v(y)}, 16, {v(GWL+i)}')
        b.I(f'v_mul_f32 {v(acc)}, {v(x)}, {v(y)}' if i == 0 else f'v_fmac_f32 {v(acc)}, {v(x)}, {v(y)}')
        b.I(f'v_and_b32 {v(GX+i)}, 0xffff0000, {v(GX+i)}\n v_and_b32 {v(GWL+i)}, 0xffff0000, {v(GWL+i)}')
        b.I(f'v_mul_f32 {v(acc2)}, {v(GX+i)}, {v(GWL+i)}' if i == 0 else f'v_fmac_f32 {v(acc2)}, {v(GX+i)}, {v(GWL+i)}')
    b.I(f'v_add_f32 {v(acc)}, {v(acc)}, {v(acc2)}')
    for m in ('quad_perm:[1,0,3,2]', 'quad_perm:[2,3,0,1]', 'row_half_mirror', 'row_mirror'):
        b.I(f'v_add_f32_dpp {v(acc)}, {v(acc)}, {v(acc)} {m} row_mask:0xf bank_mask:0xf')
    b.I(f'v_add_f32_dpp {v(acc)}, {v(acc)}, {v(acc)} row_bcast:15 row_mask:0xa bank_mask:0xf')
    b.I(f'v_mul_f32 {v(acc)}, {f32(-LOG2E)}, {v(acc)}\n v_exp_f32 {v(acc)}, {v(acc)}\n v_add_f32 {v(acc)}, 1.0, {v(acc)}\n v_rcp_f32 {v(acc)}, {v(acc)}')
    b.emit(VERB)
    a.I('s_mov_b32 exec_lo, 0x80000000\n s_mov_b32 exec_hi, 0x80000000')
    a.I(f'ds_write_b32 {v(vj4)}, {v(acc)} offset:{LG}')
    a.I('s_mov_b64 exec, -1')
    hi()
    tag_check(a, loads, R, TG, TM, 57)
    AL = POOL + 104; NQ = GW
    aloads = [f'buffer_load_dwordx4 {v(AL+4*k,4)}, {v(AA_)}, s[44:47], s{52+k} offen sc1' for k in range(4)] + [f'buffer_load_dwordx4 {v(NQ,4)}, {v(vn)}, s[44:47], s62 offen sc1']
    if E('APOS', 0) < 0:
        for x in aloads[:4]: a.I(x)
    unpack(a, LI1, R, vun, 1, 512)
    a.I('s_waitcnt lgkmcnt(0)\n s_barrier'); stamp(a, 10)
    X = POOL + 88
    b = Block(a, 'phase3')
    for g in range(2):
        for i in range(4): b.I(f'ds_read_b128 {v(R+16*g+4*i,4)}, {v(vr)} offset:{LI1+4096*g+256*i}')
    if not E('APOS', 0):
        for x in aloads: b.I(x)
    if E('APOS', 0) < 0: b.I(aloads[4])
    b.I(f'ds_read_b32 {v(G2)}, {v(vgr)} offset:{LG}')
    b.I(f'v_sub_f32 {v(G2+1)}, 1.0, {v(G2)}\n v_mul_f32 {v(G2+1)}, {f32(2.0**-19)}, {v(G2+1)}')
    for i in range(16): b.I(f'v_mul_f32 {v(SKL[i])}, {v(G2)}, {v(SKL[i])}')
    for g in range(2):
        for i in range(4):
            for t in range(i+1, 4): b.I(f'v_swap_b32 {v(R+16*g+4*i+t)}, {v(R+16*g+4*t+i)}')
        for t in range(4):
            for p in range(2):
                d = ACC+8*t+4*p
                mfma(b, d, R+16*g+4*t, P1+8*g+4*p, d if g == 1 else '0')
    vos = vr; vor = vgr; OS = E('OS', 1040)
    b.I(f'v_and_b32 {v(t0)}, 7, {v(n)}\n v_mul_u32_u24 {v(vos)}, {OS}, {v(t0)}\n v_and_b32 {v(t0)}, 0x3ff, {v(vst)}\n v_add_u32 {v(vos)}, {v(vos)}, {v(t0)}')
    b.I(f's_mul_i32 s26, s3, {2*OS}\n v_add_u32 {v(vor)}, s26, {v(vl16)}\n s_lshl_b32 s24, s3, 19\n s_add_u32 s24, s24, s9\n s_add_u32 s25, s24, {256*1024}')
    A2 = R
    for t in range(4):
        re, im = ACC+8*t, ACC+8*t+4
        for i in range(4): cm1(b, re+i, im+i, PTC+4*t+i, PTS+4*t+i, T+8*(t&1)+2*i, T+8*(t&1)+2*i+1, +1)
        F = X + 4*t
        cvt(b, F, re, re+1); cvt(b, F+2, im, im+1); cvt(b, F+1, re+2, re+3); cvt(b, F+3, im+2, im+3)
        for ot in range(4):
            rot = (t*ot) % 4
            mfma(b, A2+4*ot, F, P2+10*t+2*rot, '0' if t == 0 else A2+4*ot)
    if E('APOS', 0) > 1: emit_split(b, E('APOS', 0) / 100, lambda: [a.I(x) for x in aloads])
    b.emit(VERB)
    stamp(a, 11)
    if E('APOS', 0) == 1:
        for x in aloads: a.I(x)
    if E('ONLYB', 0) or E('NOA', 0): a.I('s_waitcnt vmcnt(0)')
    else: tag_check(a, aloads, AL, TG, TM, 57, NQ, E('ABACKOFF', 8))
    a.I('s_or_b32 s56, s22, s3\n s_cmp_lg_u32 s56, 0\n s_cbranch_scc1 L_b_end')
    a.I(f's_mov_b64 exec, 0xffffffff\n v_mov_b32 {v(t0)}, s57\n v_lshlrev_b32 {v(t1)}, 2, v0\n s_mov_b32 s56, {EP_OFF}')
    a.I(f'buffer_store_dword {v(t0)}, {v(t1)}, s[44:47], s56 offen sc1\n s_mov_b64 exec, -1')
    a.label('L_b_end', keep=True)
    OUTM = E('OUTM', 1)
    b = Block(a, 'final')
    unpack(a, LI0, AL, vun, 1, 512)
    AA = R + 16
    for ot in range(4): b.I(f'ds_read_b64_tr_b16 {v(AA+2*ot,2)}, {v(vta)} offset:{LI0+512*ot}')
    b.I(f'v_lshlrev_b32 {v(NQ+1)}, 16, {v(NQ)}\n v_and_b32 {v(NQ)}, 0xffff0000, {v(NQ)}\n v_mul_f32 {v(NQ+1)}, {v(NQ+1)}, {v(NC)}\n v_fma_f32 {v(NQ)}, -{v(NQ)}, {v(NS)}, {v(NQ+1)}')
    b.I(f'v_add_f32_dpp {v(NQ)}, {v(NQ)}, {v(NQ)} row_ror:8 row_mask:0xf bank_mask:0xf')
    b.I(f'v_mov_b32 {v(NQ+1)}, {v(NQ)}\n v_permlane16_swap_b32 {v(NQ)}, {v(NQ+1)}\n v_add_f32 {v(NQ)}, {v(NQ)}, {v(NQ+1)}')
    b.I(f'v_mov_b32 {v(NQ+1)}, {v(NQ)}\n v_permlane32_swap_b32 {v(NQ)}, {v(NQ+1)}\n v_add_f32 {v(NQ)}, {v(NQ)}, {v(NQ+1)}\n v_mul_f32 {v(NQ)}, {v(NQ)}, {v(G2+1)}')
    for i in range(16): b.I(f'v_fma_f32 {v(A2+i)}, {v(G2+1)}, {v(A2+i)}, {v(SKL[i])}\n v_{"sub" if i & 1 else "add"}_f32 {v(A2+i)}, {v(A2+i)}, {v(NQ)}')
    AF = ACC
    for ot in range(4):
        for p in range(2):
            b.I(f'v_lshlrev_b32 {v(AF+4*ot+2*p)}, 16, {v(AA+2*ot+p)}\n v_and_b32 {v(AF+4*ot+2*p+1)}, 0xffff0000, {v(AA+2*ot+p)}')
        for p in range(2):
            x = AF+4*ot+2*p; bb = A2+4*ot+2*p
            b.I(f'v_fmac_f32 {v(bb)}, {v(x)}, {v(G2)}\n v_fmac_f32 {v(bb+1)}, {v(x+1)}, {v(G2)}')
            cvt(b, X+2*ot+p, bb, bb+1)
        if OUTM == 0:
            b.I(f'buffer_store_dwordx2 {v(X+2*ot,2)}, {v(vst)}, s[12:15], s9 offen offset:{256*ot}')
        else: b.I(f'ds_write_b64 {v(vos)}, {v(X+2*ot,2)} offset:{LX+256*ot}')
    b.emit(VERB)
    if OUTM:
        fl = {1: 'sc1', 2: 'nt', 3: '', 4: 'sc0 sc1'}[OUTM]
        a.I('s_waitcnt lgkmcnt(0)\n s_barrier')
        a.I(f'ds_read_b128 {v(R,4)}, {v(vor)} offset:{LX}\n ds_read_b128 {v(R+4,4)}, {v(vor)} offset:{LX+OS}')
        a.I(f'buffer_store_dwordx4 {v(R,4)}, {v(vl16)}, s[12:15], s24 offen {fl}\n buffer_store_dwordx4 {v(R+4,4)}, {v(vl16)}, s[12:15], s25 offen {fl}')
    endpgm(a, 44, 13, 0)

RS = 544
TB_CH = 53 * RS
KF_OFF = 2 * TB_CH + 64
KF_CH = 2368 + 64
K8_OFF = KF_OFF + 2 * KF_CH
K8_CH = 512
LU = K8_OFF + 2 * K8_CH
U_CH = 4608
LDS_BYTES = LU + 2 * U_CH
LK = 0
KC = 2240
LRED = 4 * KC
LAO = LRED + 16384
def cmul(a, d, x, y, t):
    if E('PKCHAIN', 1):
        a.I(f'v_pk_mul_f32 {v(t,2)}, {v(x,2)}, {v(y,2)} op_sel_hi:[0,1]')
        a.I(f'v_pk_fma_f32 {v(d,2)}, {v(x,2)}, {v(y,2)}, {v(t,2)} op_sel:[1,1,0] op_sel_hi:[1,0,1] neg_lo:[1,0,0]')
    else:
        a.I(f'v_mul_f32 {v(t)}, {v(x)}, {v(y)}\n v_mul_f32 {v(t+1)}, {v(x)}, {v(y+1)}')
        a.I(f'v_fma_f32 {v(d)}, -{v(x+1)}, {v(y+1)}, {v(t)}\n v_fma_f32 {v(d+1)}, {v(x+1)}, {v(y)}, {v(t+1)}')

class RoleA:
  def pre(self, a):
    V = self.V = VAlloc(1, 128); W = self.W = VAlloc(128, 256)
    a.label('L_a_pre', keep=True)
    if E('ONLYB', 0): a.I('s_endpgm')
    a.I(f's_setprio {E("APRIO", 2)}')
    task_of(a, 22, 23)
    n, q = self.n, self.q = lanes(a, V)
    t0 = self.t0 = V.get(); t1 = self.t1 = V.get()
    vp = W.get(); a.I(f'v_lshlrev_b32 {v(vp)}, 1, v0')
    vch = self.vch = V.get(); a.I(f'v_lshrrev_b32 {v(vch)}, 7, v0')
    vd = W.get(); a.I(f'v_lshlrev_b32 {v(vd)}, 1, {v(vch)}')
    vut = W.get()
    a.I(f'v_and_b32 {v(t1)}, 0xc0, v0\n v_lshl_add_u32 {v(t1)}, {v(n)}, 2, {v(t1)}\n v_lshl_add_u32 {v(vut)}, {v(q)}, 13, {v(t1)}')
    a.I('s_lshl_b32 s24, s22, 9\n s_lshl_b32 s25, s22, 2\n s_lshr_b32 s26, s23, 2\n s_lshl_b32 s26, s26, 3\n s_and_b32 s27, s2, 7\n s_add_u32 s26, s26, s27\n s_and_b32 s27, s23, 3')
    a.I(f's_lshl_b32 s28, s26, 15\n s_lshl_b32 s29, s27, 8\n s_add_u32 s28, s28, s29\n s_add_u32 s29, s28, 4096')
    a.I('s_mov_b32 s34, 131072\n s_mov_b32 s35, 0x00020000\n s_mov_b32 s38, 131072\n s_mov_b32 s39, 0x00020000\n s_mov_b32 s42, 1024\n s_mov_b32 s43, 0x00020000\n s_mov_b32 s46, 2097152\n s_mov_b32 s47, 0x00020000')
    a.I('s_waitcnt lgkmcnt(0)'); stamp(a, 1)
    self.PR = LA, AI, CR, CI, LD, DS = tuple(V.get() for _ in range(6))
    a.I(f's_mov_b32 s40, s14\n s_mov_b32 s41, s15\n buffer_load_short_d16_hi {v(LD)}, {v(vd)}, s[40:43], s25 offen')
    for k, r in enumerate((LA, AI, CR, CI)):
        d = 32 + 4*(k & 1)
        a.I(f's_mov_b32 s{d}, s{6+2*k}\n s_mov_b32 s{d+1}, s{7+2*k}\n buffer_load_short_d16_hi {v(r)}, {v(vp)}, s[{d}:{d+3}], s24 offen')
    a.I('s_mov_b32 s44, s4\n s_mov_b32 s45, s5')
    UTL = self.UTL = W.get(8)
    for e in range(8):
        if not E('NOTILE', 0): a.I(f'buffer_load_dword {v(UTL+e)}, {v(vut)}, s[44:47], s{28 if e < 4 else 29} offen offset:{(e%4)*1024}')
    srd(a, 48, 20, WS_BYTES)
    a.I(f's_add_u32 s20, s20, {EP_OFF}\n s_addc_u32 s21, s21, 0\n s_load_dword s4, s[20:21], 0')
    stamp(a, 12, False)
    self.st = (list(a.vm), list(a.lg))
  def body(self, a):
    V, W, n, q, t0, t1, vch, UTL = self.V, self.W, self.n, self.q, self.t0, self.t1, self.vch, self.UTL
    LA, AI, CR, CI, LD, DS = self.PR
    TOK, CH, HR = 4, 6, 7
    b = Block(a, 'a_shadow')
    vt16 = V.get(); b.I(f'v_lshlrev_b32 {v(vt16)}, 4, v0')
    vuts = W.get()
    b.I(f'v_mul_u32_u24 {v(vuts)}, {BS//4}, {v(t1)}\n v_lshl_add_u32 {v(vuts)}, {v(q)}, 4, {v(vuts)}')
    b.I(f's_mul_i32 s27, s27, {64*BS}\n s_lshl_b32 s26, s26, 7\n s_add_u32 s26, s26, s27\n s_add_u32 s26, s26, {UT_OFF}\n s_add_u32 s27, s26, 4096\n s_add_u32 s28, s26, 8192')
    b.I('s_mov_b32 s8, 0x05040100\n s_mov_b32 s9, 0x07060302')
    b.I(f's_and_b32 s{CH}, s3, 1\n s_lshr_b32 s{HR}, s3, 1\n s_mul_i32 s10, s{HR}, {TB_CH}\n s_lshl_b32 s11, s{CH}, 8\n s_add_u32 m0, s10, s11')
    b.I(f's_mul_i32 s52, s22, {BS}\n s_add_u32 s52, s52, {UT_OFF}\n s_add_u32 s53, s52, 4096\n s_add_u32 s54, s52, 8192')
    U0 = V.get(12, 4); EG = V.get(9, 1); TM = V.get(3, 1)
    J0, sh, JM, cst, kfb, yy, y1, y2, y3, y4, y5, y6 = (W.get() for _ in range(12))
    zero = V.get(); vks = V.get(); veg = V.get(); vem = V.get()
    b.I(f'v_mul_u32_u24 {v(kfb)}, {KF_CH}, {v(vch)}\n v_mov_b32 {v(zero)}, 0\n ds_write_b32 {v(kfb)}, {v(zero)} offset:{KF_OFF-8}')
    b.I(f'v_and_b32 {v(y6)}, 31, v0\n v_lshlrev_b32 {v(y6)}, 2, {v(y6)}\n v_lshl_add_u32 {v(y6)}, {v(vch)}, 9, {v(y6)}\n ds_write_b32 {v(y6)}, {v(zero)} offset:{K8_OFF}')
    b.I(f'v_mul_u32_u24 {v(y1)}, {U_CH - 512}, {v(vch)}\n v_lshl_add_u32 {v(y1)}, v0, 2, {v(y1)}\n v_add_u32 {v(y1)}, {LU}, {v(y1)}\n ds_write_b32 {v(y1)}, {v(zero)}')
    b.I(f'v_mov_b32 {v(y2)}, 0x3f80\n ds_write_addtid_b32 {v(y2)} offset:{21*RS}')
    vra = V.get(); vrb = V.get(); KW = V.get(4, 1); kw1 = V.get(); kw2 = V.get(); va = V.get(); vb = V.get(3, 1); vkz = V.get(); vuw = V.get(); vk8 = V.get(2, 1); vf = V.get(2, 1); BND = V.get(8, 4)
    b.I(f's_mul_i32 s10, s{CH}, {TB_CH}\n s_mul_i32 s11, s{HR}, {16*RS}\n s_add_u32 s11, s11, {21*RS}')
    b.I(f'v_mul_u32_u24 {v(vra)}, {RS}, {v(n)}\n v_lshl_add_u32 {v(vra)}, {v(q)}, 4, {v(vra)}\n v_add_u32 {v(vra)}, s10, {v(vra)}\n v_add_u32 {v(vrb)}, s11, {v(vra)}')
    def mid():
        J0, sh, JM, cst, kfb, yy, y3, y4, y5, y6 = range(232, 242)
        b.I(f's_mul_i32 s12, s{CH}, {KF_CH}\n s_mul_i32 s13, s{HR}, 288\n s_add_u32 s12, s12, s13\n s_add_u32 s12, s12, {KF_OFF}')
        b.I(f'v_lshlrev_b32 {v(kw1)}, 4, {v(n)}\n v_lshrrev_b32 {v(y3)}, 1, {v(n)}\n v_lshl_add_u32 {v(kw1)}, {v(y3)}, 2, {v(kw1)}\n v_add_u32 {v(kw1)}, s12, {v(kw1)}')
        b.I(f'v_lshlrev_b32 {v(t0)}, 3, {v(q)}\n s_mov_b32 s14, 0x90480100\n s_mov_b32 s15, 0x08040202\n s_mov_b32 s16, 0x90020101')
        b.I(f'v_bfe_u32 {v(KW)}, s14, {v(t0)}, 8\n v_lshl_add_u32 {v(KW)}, {v(KW)}, 3, {v(kw1)}')
        b.I(f'v_bfe_u32 {v(y3)}, s15, {v(t0)}, 8\n v_add_u32 {v(KW+1)}, {v(KW)}, {v(y3)}')
        b.I(f'v_bfe_u32 {v(KW+2)}, s16, {v(t0)}, 8\n v_lshl_add_u32 {v(KW+2)}, {v(KW+2)}, 2, {v(KW)}\n v_add_u32 {v(KW+3)}, {v(KW+2)}, {v(y3)}')
        b.I(f's_lshl_b32 s19, s{CH}, 9\n s_add_u32 s19, s19, {K8_OFF}\n s_lshl_b32 s13, s{HR}, 5\n s_add_u32 s13, s13, s19\n s_add_u32 s13, s13, 126')
        b.I(f'v_add_u32 {v(y5)}, 2304, {v(kw1)}\n v_lshlrev_b32 {v(kw1)}, 1, {v(n)}\n v_add_u32 {v(kw1)}, s13, {v(kw1)}')
        b.I(f'v_mov_b32 {v(y4)}, {LU + 512}\n v_cmp_eq_u32 vcc, 0, {v(q)}\n v_cndmask_b32 {v(kw2)}, {v(y4)}, {v(kw1)}, vcc')
        b.I(f'v_add_u32 {v(y4)}, 256, {v(kw1)}\n v_cmp_eq_u32 vcc, 1, {v(q)}\n v_cndmask_b32 {v(kw1)}, {v(kw2)}, {v(y4)}, vcc')
        b.I(f'v_and_b32 {v(y4)}, 0xbf, v0\n v_cmp_eq_u32 vcc, 0, {v(y4)}\n v_cndmask_b32 {v(kw1)}, {v(kw1)}, {v(y5)}, vcc')
        b.I(f'v_and_b32 {v(yy)}, 127, v0\n v_lshlrev_b32 {v(J0)}, 3, {v(yy)}\n v_sub_u32 {v(J0)}, 1016, {v(J0)}')
        b.I(f'v_mul_u32_u24 {v(vks)}, {2*KC}, {v(vch)}\n v_lshl_add_u32 {v(vks)}, {v(yy)}, 4, {v(vks)}')
        b.I(f'v_or_b32 {v(sh)}, 1, {v(J0)}\n v_ffbh_u32 {v(sh)}, {v(sh)}\n v_sub_u32 {v(sh)}, 24, {v(sh)}\n v_max_i32 {v(sh)}, 0, {v(sh)}')
        b.I(f'v_add_u32 {v(JM)}, 150, {v(sh)}\n v_lshlrev_b32 {v(JM)}, 23, {v(JM)}')
        b.I(f'v_mul_u32_u24 {v(kfb)}, {KF_CH}, {v(vch)}\n v_add_u32 {v(kfb)}, {KF_OFF}, {v(kfb)}')
        b.I(f'v_lshrrev_b32 {v(yy)}, {v(sh)}, {v(J0)}\n v_add_u32 {v(sh)}, 1, {v(sh)}')
        b.I(f'v_add_u32 {v(JM)}, {v(JM)}, {v(yy)}\n v_lshlrev_b32 {v(cst)}, {v(sh)}, {v(JM)}')
        b.I(f'v_lshrrev_b32 {v(yy)}, 4, {v(J0)}\n v_lshl_add_u32 {v(yy)}, {v(yy)}, 2, {v(kfb)}\n v_lshl_add_u32 {v(EG+1)}, {v(J0)}, 1, {v(yy)}\n v_sub_u32 {v(cst)}, {v(EG+1)}, {v(cst)}')
        b.I(f'v_add_u32 {v(yy)}, 16, {v(EG+1)}\n v_bfe_u32 {v(y5)}, {v(J0)}, 3, 1\n v_lshlrev_b32 {v(y5)}, 2, {v(y5)}')
        for e in range(1, 8):
            b.I(f'v_add_f32 {v(EG+1+e)}, {f32(float(e))}, {v(JM)}')
            b.I(f'v_lshl_add_u32 {v(EG+1+e)}, {v(EG+1+e)}, {v(sh)}, {v(cst)}')
            if e >= 6: b.I(f'v_cmp_eq_u32 vcc, {v(EG+1+e)}, {v(yy)}\n v_cndmask_b32 {v(EG)}, 0, {v(y5)}, vcc\n v_add_u32 {v(EG+1+e)}, {v(EG+1+e)}, {v(EG)}')
        b.I(f'v_sub_u32 {v(y5)}, 6, {v(y5)}\n v_cmp_ge_u32 vcc, 256, {v(J0)}\n v_cndmask_b32 {v(yy)}, 0, {v(y5)}, vcc\n v_sub_u32 {v(EG)}, {v(EG+1)}, {v(yy)}')
        b.I(f'v_add_u32 {v(veg)}, 2304, {v(kfb)}')
        b.I(f'v_bfe_u32 {v(y6)}, v0, 6, 1\n v_lshl_add_u32 {v(y6)}, {v(n)}, 1, {v(y6)}\n v_and_b32 {v(yy)}, 16, v0\n v_cmp_ne_u32 vcc, 0, {v(yy)}\n v_cndmask_b32 {v(y6)}, {v(y6)}, 0, vcc')
        b.I(f'v_mov_b32 {v(vem)}, 0x10000\n v_cmp_le_u32 vcc, 26, {v(y6)}\n v_cndmask_b32 {v(vem)}, 0, {v(vem)}, vcc\n v_cmp_le_u32 vcc, 27, {v(y6)}\n v_cndmask_b32 {v(y6)}, 0, 1, vcc\n v_or_b32 {v(vem)}, {v(vem)}, {v(y6)}')
        b.I(f's_mul_i32 s18, s3, {KC}\n v_and_b32 {v(y3)}, 16, v0\n v_mul_u32_u24 {v(y3)}, 132, {v(y3)}\n v_lshl_add_u32 {v(vkz)}, {v(n)}, 2, {v(y3)}\n v_add_u32 {v(vkz)}, s18, {v(vkz)}\n v_lshrrev_b32 {v(vuw)}, 3, v0\n v_lshlrev_b32 {v(vuw)}, 6, {v(vuw)}\n v_and_b32 {v(y3)}, 48, {v(vt16)}\n v_add_u32 {v(vuw)}, {v(vuw)}, {v(y3)}\n v_bfe_u32 {v(y3)}, v0, 2, 1\n v_mul_u32_u24 {v(y3)}, {U_CH}, {v(y3)}\n v_add_u32 {v(vuw)}, {v(vuw)}, {v(y3)}\n v_add_u32 {v(vuw)}, {LU + 512}, {v(vuw)}')
    if not E('MID', 0): mid()
    np_ = V.get()
    def late():
        y3 = 246
        b.I(f'v_lshlrev_b32 {v(t0)}, 3, {v(q)}\n s_lshl_b32 s13, s{HR}, 1\n v_xor_b32 {v(np_)}, s13, {v(n)}')
        b.I(f's_lshl_b32 s13, s{HR}, 8\n s_mul_i32 s12, s{CH}, {U_CH}\n s_sub_u32 s12, s12, s13\n s_add_u32 s12, s12, {LU + 512 - 32 - 192}')
        b.I(f'v_lshlrev_b32 {v(va)}, 5, {v(np_)}\n v_lshl_add_u32 {v(va)}, {v(q)}, 4, {v(va)}\n v_add_u32 {v(va)}, s12, {v(va)}')
        b.I(f's_mul_i32 s17, s{CH}, {2*KC}\n s_sub_u32 s17, s17, s13\n s_add_u32 s17, s17, {LK - 192 - 512}')
        b.I(f'v_sub_u32 {v(t1)}, {v(t0)}, {v(n)}\n v_add_u32 {v(t1)}, 1039, {v(t1)}')
        b.I(f'v_and_b32 {v(y3)}, 1, {v(t1)}\n v_mul_u32_u24 {v(y3)}, {KC}, {v(y3)}\n v_lshrrev_b32 {v(t1)}, 1, {v(t1)}')
        b.I(f'v_lshl_add_u32 {v(vb)}, {v(t1)}, 2, {v(y3)}\n v_add_u32 {v(vb)}, s17, {v(vb)}\n v_add_u32 {v(vb+1)}, -1024, {v(vb)}')
        b.I(f'v_add_u32 {v(vb+2)}, {192 + 512 - 2048}, {v(vb)}\n v_mov_b32 {v(y3)}, {LU}\n s_cmp_eq_u32 s{HR}, 0\n s_cselect_b64 s[30:31], -1, 0\n v_cndmask_b32 {v(vb+2)}, {v(y3)}, {v(vb+2)}, s[30:31]')
    def late2(b):
        y4 = t1
        b.I(f'v_lshlrev_b32 {v(y4)}, 5, {v(n)}\n v_lshl_add_u32 {v(y4)}, {v(q)}, 4, {v(y4)}')
        b.I(f's_mul_i32 s29, s{HR}, 768\n s_add_u32 s29, s29, s12\n s_add_u32 s29, s29, {192 - 16}\n v_add_u32 {v(vf)}, s29, {v(y4)}\n s_sub_u32 s29, s12, s13\n s_add_u32 s29, s29, {192 - 16 + 1536}\n v_add_u32 {v(vf+1)}, s29, {v(y4)}')
        b.I(f'v_lshlrev_b32 {v(y4)}, 2, {v(q)}\n v_sub_u32 {v(y4)}, {v(np_)}, {v(y4)}\n v_lshlrev_b32 {v(y4)}, 2, {v(y4)}\n s_lshl_b32 s13, s{HR}, 6')
        b.I(f's_sub_u32 s29, s19, s13\n s_add_u32 s29, s29, {128 - 12}\n v_add_u32 {v(vk8)}, s29, {v(y4)}\n s_add_u32 s29, s19, s13\n s_sub_u32 s29, s29, {64 + 12}\n v_add_u32 {v(vk8+1)}, s29, {v(y4)}')
        for k, (w_, s0) in enumerate(((7, 5), (9, 4))):
            b.I(f'v_mov_b32 {v(y4)}, {((1 << w_) - 1) << s0}\n v_lshlrev_b32 {v(y4)}, {v(n)}, {v(y4)}\n v_lshrrev_b32 {v(y4)}, {v(t0)}, {v(y4)}')
            for i in range(4):
                d = BND + 4*k + i
                b.I(f'v_bfe_u32 {v(d)}, {v(y4)}, {2*i}, 2\n v_mul_u32_u24 {v(d)}, 0x8001, {v(d)}\n v_and_b32 {v(d)}, 0x10001, {v(d)}\n v_mul_u32_u24 {v(d)}, 0x3f80, {v(d)}')
    if not E('LATE', 1): late()
    b.emit(VERB)
    if E('PRE', 0) & 4:
        a.I(f'v_and_b32 {v(y1)}, 63, v0\n v_lshlrev_b32 {v(y1)}, 6, {v(y1)}\n s_mul_i32 s62, s22, {BS}\n s_mul_i32 s63, s3, 3072\n s_add_u32 s62, s62, s63\n s_add_u32 s62, s62, {AW_OFF}\n s_mov_b32 exec_hi, 0xffff')
        a.I(f'buffer_store_dword {v(y1)}, {v(y1)}, s[48:51], s62 offen sc1' if not E('PRELD', 0) else f's_mov_b32 exec_lo, 0x55555555\n s_mov_b32 exec_hi, 0x5555\n buffer_load_dword {v(y2)}, {v(y1)}, s[48:51], s62 offen')
        a.I('s_mov_b64 exec, -1')
    stamp(a, 2)
    def utpub():
        mktok(a, TOK, 5)
        TU = U0 + 8
        tagregs(b, TU, y1, TOK, 5, f'v_lshlrev_b32 {v(y1)}, 2, {v(q)}', False)
        for i in range(4):
            b.I(f'v_perm_b32 {v(U0+i)}, {v(UTL+2*i+1)}, {v(UTL+2*i)}, s8\n v_bfi_b32 {v(U0+i)}, s5, {v(TU+i)}, {v(U0+i)}')
            b.I(f'v_perm_b32 {v(U0+4+i)}, {v(UTL+2*i+1)}, {v(UTL+2*i)}, s9\n v_bfi_b32 {v(U0+4+i)}, s5, {v(TU+i)}, {v(U0+4+i)}')
        for k in range(2): b.I(f'buffer_store_dwordx4 {v(U0+4*k,4)}, {v(vuts)}, s[48:51], s26 offen offset:{64*k} sc1 ;!3000')
    TG = V.get(4, 1)
    dt = W.get(); ar_ = W.get(); rev = W.get()
    b = Block(a, 'a_chain')
    if E('UTPOS', 0) < 0:
        utpub(); b.emit(VERB); stamp(a, 4)
    b.I(f'v_mul_f32 {v(dt)}, {f32(LOG2E)}, {v(LD)}\n v_mul_f32 {v(ar_)}, {f32(LOG2E)}, {v(LA)}\n v_exp_f32 {v(dt)}, {v(dt)}\n v_exp_f32 {v(ar_)}, {v(ar_)}')
    cvt(b, t0, dt, ar_)
    b.I(f'v_lshlrev_b32 {v(dt)}, 16, {v(t0)}\n v_and_b32 {v(ar_)}, 0xffff0000, {v(t0)}')
    b.I(f'v_mul_f32 {v(ar_)}, {v(ar_)}, {v(dt)}\n v_mul_f32 {v(ar_)}, {f32(-LOG2E)}, {v(ar_)}')
    b.I(f'v_mul_f32 {v(rev)}, {v(AI)}, {v(dt)}\n v_mul_f32 {v(rev)}, 0.15915494, {v(rev)}')
    Z = {}
    mag = W.get(4); ang = W.get(4)
    for k, p in enumerate((8, 1, 128, 256)):
        Z[p] = W.get(2)
        b.I(f'v_mul_f32 {v(mag+k)}, {f32(float(p))}, {v(ar_)}\n v_mul_f32 {v(ang+k)}, {f32(float(p))}, {v(rev)}')
        b.I(f'v_fract_f32 {v(ang+k)}, {v(ang+k)}\n v_exp_f32 {v(mag+k)}, {v(mag+k)}')
        b.I(f'v_cos_f32 {v(Z[p])}, {v(ang+k)}\n v_sin_f32 {v(Z[p]+1)}, {v(ang+k)}')
    Ee = W.get(16)
    b.I(f'v_add_f32 {v(dt)}, {v(dt)}, {v(dt)}\n v_mul_f32 {v(Ee)}, {v(CR)}, {v(dt)}\n v_mul_f32 {v(Ee+1)}, {v(CI)}, {v(dt)}')
    for k, p in enumerate((8, 1, 128, 256)):
        b.I(f'v_mul_f32 {v(Z[p])}, {v(mag+k)}, {v(Z[p])}\n v_mul_f32 {v(Z[p]+1)}, {v(mag+k)}, {v(Z[p]+1)}')
    TT = W.get(8); PK = W.get(8); O = W.get(4); H = W.get(4)
    cnt = [0]
    def put(row, x, neg):
        r = PK + cnt[0] % 8; cnt[0] += 1
        cvt(b, r, x, x+1, False, neg)
        b.I(f'ds_write_addtid_b32 {v(r)} offset:{row*RS} ;@T{row}')
    offs_ops = []; cur = Z[8]
    offs_ops.append(lambda: (put(21+1, Z[8], False), put(21+16, Z[128], False)))
    offs_ops.append(lambda: (cmul(b, H, Z[8], Z[128], TT+2), put(21+17, H, False)))
    for i in range(2, 16):
        nxt = O + 2*(i % 2)
        def f(i=i, cur=cur, nxt=nxt):
            cmul(b, nxt, cur, Z[8], TT); cmul(b, H + 2*(i % 2), nxt, Z[128], TT+2)
            put(21+i, nxt, False); put(21+16+i, H + 2*(i % 2), False)
        offs_ops.append(f); cur = nxt
    base_ops = [lambda: put(0, Ee, True)]
    for e in range(1, 8): base_ops.append(lambda e=e: (cmul(b, Ee+2*e, Ee+2*e-2, Z[1], TT+4), put(e, Ee+2*e, True)))
    for k, e in enumerate((0, 2, 4, 6)): base_ops.append(lambda k=k, e=e: (cmul(b, Ee+2*e, Ee+2*e, Z[256], TT+4), put(8+k, Ee+2*e, True)))
    for i in range(2):
        for k, e in enumerate((0, 4)): base_ops.append(lambda i=i, k=k, e=e: (cmul(b, Ee+2*e, Ee+2*e, Z[256], TT+4), put(12+2*i+k, Ee+2*e, True)))
    for i in range(5): base_ops.append(lambda i=i: (cmul(b, Ee, Ee, Z[256], TT+4), put(16+i, Ee, True)))
    uloads = [f'buffer_load_dwordx4 {v(U0+4*k,4)}, {v(vt16)}, s[48:51], s{52+k} offen sc1' for k in range(2)]
    it = 0
    while offs_ops or base_ops:
        if E('UPOS', 1) == 3 and it == E('UIT', 12):
            b.emit(VERB)
            for x in uloads: a.I(x)
        if it == E('UTPOS', 0):
            b.emit(VERB); stamp(a, 4); utpub()
        it += 1
        if offs_ops: offs_ops.pop(0)()
        if base_ops: base_ops.pop(0)()
    ACCK = V.get(8, 4); PK = V.get(4)
    b.emit(VERB)
    if E('UPOS', 1) == 2:
        for x in uloads: a.I(x)
    if E('KPRIO', -1) >= 0: a.I(f's_setprio {E("KPRIO", -1)}')
    a.I('s_waitcnt lgkmcnt(0)\n s_barrier'); stamp(a, 5)
    S = [128, 192]; FR = 128
    if E('UPOS', 1) == 0:
        for x in uloads: a.I(x)
    b = Block(a, 'kmfma')
    for k in range(8):
        b.I(f'ds_read_b128 {v(FR+12*k,4)}, {v(vrb)} offset:{64*k} ;@T')
        b.I(f'ds_read_b128 {v(FR+12*k+4,4)}, {v(vra)} offset:{64*k} ;@T')
        b.I(f'ds_read_b128 {v(FR+12*k+8,4)}, {v(vra)} offset:{64*k+16*RS} ;@T')
    for k in range(8):
        mfma(b, ACCK, FR+12*k+4, FR+12*k, '0' if k == 0 else ACCK); mfma(b, ACCK+4, FR+12*k+8, FR+12*k, '0' if k == 0 else ACCK+4)
    if E('MID', 0): mid()
    if E('LATE', 1) == 2: late(); tagregs(b, TG, 245, TOK, 5)
    cvt(b, PK, ACCK, ACCK+1); cvt(b, PK+1, ACCK+2, ACCK+3); cvt(b, PK+2, ACCK+4, ACCK+5); cvt(b, PK+3, ACCK+6, ACCK+7)
    b.I(f'ds_write_b16 {v(KW)}, {v(PK)} ;@K0 ;!300\n ds_write_b16_d16_hi {v(KW+1)}, {v(PK)} ;@K1 ;!300\n ds_write_b16 {v(KW+2)}, {v(PK+1)} ;@K2 ;!300\n ds_write_b16_d16_hi {v(KW+3)}, {v(PK+1)} ;@K3 ;!300')
    b.I(f'ds_write_b16 {v(kw1)}, {v(PK+2)} ;@K4 ;!300\n ds_write_b16_d16_hi {v(kw2)}, {v(PK+2)} offset:64 ;@K5 ;!300')
    b.I(f'ds_write_b16 {v(kw2)}, {v(PK+3)} offset:128 ;@K6 ;!300\n ds_write_b16_d16_hi {v(kw2)}, {v(PK+3)} offset:192 ;@K7 ;!300')
    b.emit(VERB)
    if E('UPOS', 1) == 4:
        for x in uloads: a.I(x)
    a.I('s_waitcnt lgkmcnt(0)\n s_barrier'); stamp(a, 6)
    for e in range(8, -1, -1): a.I(f'ds_read_u16 {v(EG+e)}, {v(EG+e)}')
    a.I(f'ds_read_u16 {v(veg)}, {v(veg)}')
    if E('UPOS', 1) == 1 and not E('NOUT', 0):
        for x in uloads: a.I(x)
    EO = FR
    for bb in range(4):
        a.I(f'v_lshl_or_b32 {v(EO+bb)}, {v(EG+1+6-2*bb)}, 16, {v(EG+1+7-2*bb)}')
        a.I(f'v_lshl_or_b32 {v(EO+4+bb)}, {v(EG+1+5-2*bb)}, 16, {v(EG+1+6-2*bb)}')
    a.I(f'ds_write_b128 {v(vks)}, {v(EO,4)} offset:{LK+64}\n ds_write_b128 {v(vks)}, {v(EO+4,4)} offset:{LK+KC+64}')
    a.I(f'v_mul_u32_u24 {v(veg)}, {v(veg)}, {v(vem)}\n ds_write_b32 {v(vkz)}, {v(veg)} offset:{LK}')
    if E('LATE', 1) == 1: late()
    if E('LATE', 1) < 2:
        tagregs(b, TG, 245, TOK, 5); b.emit(VERB)
    stamp(a, 7)
    tag_check(a, uloads, U0, TG, TM, TOK)
    a.I(f'ds_write_b128 {v(vuw)}, {v(U0,4)}\n ds_write_b128 {v(vuw)}, {v(U0+4,4)} offset:2048')
    a.I(f's_setprio {E("CPRIO", 2)}')
    a.I('s_waitcnt lgkmcnt(0)\n s_barrier'); stamp(a, 8)
    V.put(EG, 9); V.put(ACCK, 8); V.put(KW, 4); V.put(PK, 4); V.put(U0, 12)
    ACC = V.get(32, 4)
    b = Block(a, 'conv')
    S = [128, 176]; X = 224
    def loads(rl):
        L = []
        for k in range(8):
            if k < 4:
                o = 16*(3-rl) + (128 if k % 2 == 0 else 0)
                r = S[rl%2] + 32 + 4*k
                L += [f'ds_read2_b32 {v(r,2)}, {v(vb+k//2)} offset0:{o} offset1:{o+1}', f'ds_read2_b32 {v(r+2,2)}, {v(vb+k//2)} offset0:{o+2} offset1:{o+3}']
            L.append(f'ds_read_b128 {v(S[rl%2]+4*k,4)}, {v(va)} offset:{64*(3-rl)+512*k}')
        return L
    def mf(d, A, B, c): return f'v_mfma_f32_16x16x32_bf16 {v(d,4)}, {v(A,4)}, {v(B,4)}, {c if isinstance(c, str) else v(c,4)}'
    SB = V.get(8, 4); SD = V.get(16, 4)
    for x in loads(0): a.I(x)
    a.I(f'ds_read2_b32 {v(X,2)}, {v(vb+2)} offset0:0 offset1:1\n ds_read2_b32 {v(X+2,2)}, {v(vb+2)} offset0:2 offset1:3')
    L2 = E('L2', 1)
    bb = Block(a); late2(bb); fill = bb.l
    if not L2:
        pass
    extra = {0: [], 1: [], 2: []}
    for k in range(2):
        extra[1] += [f'ds_read_b128 {v(X+4+8*k,4)}, {v(vf+k)} offset:16', f'ds_read_b128 {v(X+8+8*k,4)}, {v(vf+k)}']
    def k8(r, k, T):
        o = 16*(T-4)
        return [f'ds_read2_b32 {v(r,2)}, {v(vk8+k)} offset0:{o+3} offset1:{o+2}', f'ds_read2_b32 {v(r+2,2)}, {v(vk8+k)} offset0:{o+1} offset1:{o}']
    far = [(0, 4), (0, 5), (0, 6), (0, 7), (1, 6), (1, 7)]
    for j, (k, T) in enumerate(far): extra[2] += k8(X+4*j, k, T)
    for k in range(2):
        for i in range(4): extra[2].append(f'v_cvt_pk_bf16_f32 {v(SB+4*k+i)}, {v(SD+8*k+i)}, {v(SD+8*k+4+i)}')
    for _ in range(24): a.I(fill.pop(0))
    for rl in range(4):
        pairs = sorted([(i, g) for i in range(8) for g in range(4) if i + g <= 7], key=lambda p: (max(p), p[0]+p[1]))
        if rl == 3: pairs = sorted(pairs, key=lambda p: (p[0]+p[1]) // 2)
        M = []; seen = set()
        for (i, g) in pairs:
            d = ACC + 4*(i+g)
            first = (rl == 0 and (i+g) not in seen); seen.add(i+g)
            M.append(mf(d, S[rl%2]+4*i, S[rl%2]+32+4*g, '0' if first else d))
        if rl == 0: M += [mf(ACC+4*(i+4), S[0]+4*i, X, ACC+4*(i+4)) for i in range(4)]
        if rl == 1: M += [mf(SD+8*k+4*h, X+4+8*k+4*h, BND+4*h, '0') for k in range(2) for h in range(2)]
        if rl == 3:
            tailM = [mf(ACC+4*T, X+4*j, SB+4*k, ACC+4*T) for j, (k, T) in enumerate(far)] + M; break
        nxt = (extra[rl] + loads(rl+1)) if rl == 1 else (loads(rl+1) + extra[rl])
        for k, x in enumerate(M):
            a.I(x)
            if k >= (4 if rl == 0 else 0):
                for _ in range(2 if (rl == 2 and k % 2) else 1):
                    if nxt: a.I(nxt.pop(0))
            if fill and rl < 2:
                a.I(fill.pop(0))
        for x in nxt: a.I(x)
    assert not fill
    vps = V.get()
    b.I(f's_mul_i32 s56, s3, 3072\n v_bfe_u32 {v(vps)}, v0, 1, 5\n v_mul_u32_u24 {v(vps)}, 48, {v(vps)}\n v_and_b32 {v(t0)}, 1, v0\n v_lshl_add_u32 {v(vps)}, {v(t0)}, 4, {v(vps)}\n v_add_u32 {v(vps)}, s56, {v(vps)}\n s_lshl_b32 s56, s3, 11')
    vrw = V.get(); vrr = V.get(); vao = V.get(); vl16 = V.get()
    b.I(f'v_lshlrev_b32 {v(vrw)}, 3, v0\n v_xor_b32 {v(vrr)}, 1024, {v(vrw)}')
    b.I(f'v_lshlrev_b32 {v(vao)}, 6, {v(q)}\n v_add_u32 {v(vao)}, {v(vao)}, {v(n)}\n v_mul_u32_u24 {v(vao)}, 48, {v(vao)}\n s_mul_i32 s10, s{HR}, {32*48}\n s_lshl_b32 s11, s{CH}, 4\n s_add_u32 s10, s10, s11\n v_add_u32 {v(vao)}, s10, {v(vao)}')
    b.I(f'v_and_b32 {v(vl16)}, 1023, {v(vt16)}\n s_mul_i32 s62, s22, {BS}\n s_add_u32 s62, s62, s56\n s_add_u32 s62, s62, {AW_OFF}')
    R = S[0] + 16
    fl = b.l; b.l = []
    last = {}
    for k, x in enumerate(tailM): last[int(x.split('v[')[1].split(':')[0])] = k
    pend = []
    for k, x in enumerate(tailM):
        a.I(x)
        for _ in range(2):
            if fl: a.I(fl.pop(0))
        for i in range(8):
            if last[ACC+4*i] + 4 == k and not fl: a.I(f'ds_write_b64 {v(vrw)}, {v(ACC+4*i+2,2)} offset:{LRED+2048*i}'); pend.append(i)
    for i in range(8):
        if i not in pend: a.I(f'ds_write_b64 {v(vrw)}, {v(ACC+4*i+2,2)} offset:{LRED+2048*i}')
    stamp(a, 9)
    a.I(f's_setprio {E("EPRIO", 3)}')
    a.I('s_waitcnt lgkmcnt(0)\n s_barrier')
    for i in range(8): a.I(f'ds_read_b64 {v(R+2*i,2)}, {v(vrr)} offset:{LRED+2048*i}')
    for i in range(16): a.I(f'v_add_f32 {v(R+i)}, {v(R+i)}, {v(ACC+4*(i//2)+(i&1))}')
    Oo = X
    for jj in range(2):
        for i in range(4): cvt(a, Oo+4*jj+i, R+4*i+jj, R+4*i+2+jj)
        a.I(f'ds_write_b128 {v(vao)}, {v(Oo+4*jj,4)} offset:{LAO+768*jj}')
    a.I('s_waitcnt lgkmcnt(0)\n s_barrier')
    if not E('NOA', 0): publish(a, LAO, X + 8, vps, TG, vl16, 48, 62, 5)
    endpgm(a, 48, 10, 1)

if __name__ == '__main__':
    out = sys.argv[1]
    a = Asm()
    a.raw(f'.globl {NAME}\n.p2align 8\n.type {NAME},@function\n{NAME}:')
    if PROF:
        for i in range(NST): a.I(f's_mov_b32 s{64+2*i}, 0')
        a.I('s_mov_b32 s60, 0')
    stamp(a, 0)
    a.I('s_load_dwordx16 s[4:19], s[0:1], 0\n s_load_dwordx2 s[20:21], s[0:1], 104\n s_load_dwordx8 s[48:55], s[0:1], 64')
    if PREFETCH:
        a.I(f's_cmp_ge_u32 s2, {8*PREFETCH}\n s_cbranch_scc1 L_nopf')
        a.I('s_getpc_b64 s[62:63]')
        a.label('L_pc', keep=True)
        a.I(f'v_lshlrev_b32 v1, 7, v0\n v_cmp_gt_u32 vcc, L_code_end-L_pc, v1\n s_and_saveexec_b64 s[58:59], vcc\n s_cbranch_execz L_pf2')
        a.I(f'global_load_dword v255, v1, s[62:63]')
        a.label('L_pf2', keep=True)
        a.I('s_mov_b64 exec, -1')
        a.label('L_nopf', keep=True); a.vm = []
    lo, hi = ('L_a_pre', 'L_b_pre') if AFIRST else ('L_b_pre', 'L_a_pre')
    a.I(f's_cmp_ge_u32 s2, 512\n s_cbranch_scc1 L_exit')
    if E('SEP', 0):
        a.I('s_bfe_u32 s4, s2, 0x10003\n s_bfe_u32 s5, s2, 0x10008\n s_and_b32 s2, s2, 0xf7\n s_lshl_b32 s4, s4, 8\n s_lshl_b32 s5, s5, 3\n s_or_b32 s2, s2, s4\n s_or_b32 s2, s2, s5')
    if E('SCRAMBLE', 0): a.I('s_lshr_b32 s58, s2, 3\n s_mul_i32 s58, s58, 37\n s_and_b32 s58, s58, 7\n s_xor_b32 s2, s2, s58\n s_bfe_u32 s58, s2, 0x10004\n s_lshl_b32 s58, s58, 8\n s_xor_b32 s2, s2, s58')
    a.I('s_cmp_lt_u32 s2, 256')
    A = RoleA()
    if E('BCODE', 2) == 2:
        a.I('s_cbranch_scc1 L_a_pre' if AFIRST else 's_cbranch_scc0 L_a_pre')
        def sp():
            a.reset(); a.lg = [('smem', {('s', i) for i in list(range(4, 22)) + list(range(48, 56))})]
            A.pre(a); A.body(a)
            a.label('L_exit'); a.I('s_endpgm')
        role_b(a, sp)
        nb = 0
    elif E('BCODE', 2):
        a.I('s_cbranch_scc1 L_a_pre' if AFIRST else 's_cbranch_scc0 L_a_pre')
        role_b(a)
        nb = a.ninst
        a.label('L_exit'); a.I('s_endpgm')
        a.reset(); a.lg = [('smem', {('s', i) for i in list(range(4, 22)) + list(range(48, 56))})]
        A.pre(a); A.body(a)
    else:
        a.I('s_cbranch_scc0 L_b_pre' if AFIRST else 's_cbranch_scc1 L_b_pre')
        A.pre(a)
        A.body(a)
        nb = a.ninst
        a.label('L_exit'); a.I('s_endpgm')
        role_b(a)
    a.raw('L_code_end:')
    nv = (a.maxv + 1 + 3) // 4 * 4
    print('vgpr', a.maxv + 1, 'sgpr', a.maxs + 1, 'ninst', nb, a.ninst - nb, 'lds', LDS_BYTES, file=sys.stderr)
    launch = f'; @launch kernel={NAME} grid=(512,1,1) block=(256,1,1) lds={LDS_BYTES}' if os.environ.get('LIST') else f'; @launch grid=(512,1,1) block=(256,1,1) lds={LDS_BYTES}'
    hdr = f'''; gated_mix( S4D causal conv , GFNet 2-D spectral filter ) -- one persistent launch, written by gen/gen34.py
{launch}
.amdgcn_target "amdgcn-amd-amdhsa--gfx950"
.text
'''
    kd = f'''.section .rodata,"a"
.p2align 6
.amdhsa_kernel {NAME}
  .amdhsa_next_free_vgpr {nv}
  .amdhsa_next_free_sgpr {a.maxs + 1}
  .amdhsa_accum_offset {nv}
  .amdhsa_group_segment_fixed_size 0
  .amdhsa_kernarg_size 112
  .amdhsa_user_sgpr_count 2
  .amdhsa_user_sgpr_kernarg_segment_ptr 1
  .amdhsa_system_sgpr_workgroup_id_x 1
.end_amdhsa_kernel
'''
    open(out, 'w').write(hdr + a.text() + kd)
```

```python
import sys, math, os
from asmlib import *
E = lambda k, d: int(os.environ.get(k, str(d)))
BS = 8192 + E('BSPAD', 256)
Y_OFF  = 0x000000
V_OFF  = 256*BS if E('COMPACT', 1) else 0x310000
AW_OFF = 2*V_OFF
UT_OFF = 3*V_OFF
YN_OFF = 0xC60000
VN_OFF = 0xC50000
EP_OFF = 0xC40000
WS_BYTES = 0x1000000
LOG2E = 1.4426950408889634
TOKC = 0x9E3779B9
SPIN = 30000
PROF = E('PROF', 0); PREFETCH = E('PREFETCH', 1); BPRIO = E('BPRIO', 2); WPOS = E('WPOS', 1); BACKOFF = E('BACKOFF', 4)
AFIRST = E('AFIRST', 1); WPF = E('WPF', 1)
NAME = 'gated_mix__ssm_conv_s4d__spectral_gfnet__prompt_kernel'
DBG_OFF = 0xFC0000
NST = 15
SKIP = ()
KEEP = [int(x) for x in os.environ.get('KEEP', '0,4,8,10,13,14').split(',')]
def stamp(a, i, wait=True):
    if PROF == 3:
        if i in KEEP: a.raw(f'    s_memrealtime s[{64+2*i}:{65+2*i}]')
        return
    if PROF and i not in SKIP:
        if wait: a.I(f's_memrealtime s[{64+2*i}:{65+2*i}]\n s_waitcnt lgkmcnt(0)')
        else: a.I(f's_memrealtime s[{64+2*i}:{65+2*i}]')
def endpgm(a, srdb, last, role):
    if PROF:
        stamp(a, last)
        a.I('s_waitcnt vmcnt(0)')
        stamp(a, last + 1)
        a.I('s_waitcnt lgkmcnt(0)\n s_mov_b64 exec, 1')
        for i in range(16): a.I(f'v_mov_b32 v{4+i}, s{64+2*i}' if i < NST else f'v_mov_b32 v{4+i}, s60')
        a.I(f's_and_b32 s61, s2, 255\n s_lshl_b32 s61, s61, 2\n s_add_u32 s61, s61, s3\n s_lshl_b32 s61, s61, 6\n s_add_u32 s61, s61, {DBG_OFF + role*65536}')
        a.I('v_mov_b32 v1, 0')
        for k in range(4): a.I(f'buffer_store_dwordx4 v[{4+4*k}:{7+4*k}], v1, s[{srdb}:{srdb+3}], s61 offen offset:{16*k}')
    a.I('s_endpgm')
def srd(a, d, b, nbytes):
    if nbytes == WS_BYTES and E('WSBASE', 0): a.I(f's_add_u32 s{b}, s{b}, {E("WSBASE", 0) << 20}\n s_addc_u32 s{b+1}, s{b+1}, 0')
    a.I(f's_mov_b32 s{d}, s{b}\n s_mov_b32 s{d+1}, s{b+1}\n s_mov_b32 s{d+2}, {nbytes}\n s_mov_b32 s{d+3}, 0x00020000')
def task_of(a, dst, tmp):
    a.I(f's_and_b32 s{dst}, s2, 7\n s_lshl_b32 s{dst}, s{dst}, 5\n s_bfe_u32 s{tmp}, s2, 0x50003\n s_or_b32 s{dst}, s{dst}, s{tmp}')
def lanes(a, V):
    n, q = V.get(), V.get()
    a.I(f'v_lshrrev_b32 {v(q)}, 6, v0')
    a.I(f'v_and_b32 {v(n)}, 15, v0')
    a.I(f'v_readfirstlane_b32 s3, {v(q)}')
    a.I(f'v_bfe_u32 {v(q)}, v0, 4, 2')
    return n, q
def cm1(a, re, im, c, s_, t1, t2, sign):
    a.I(f'v_mul_f32 {v(t1)}, {v(im)}, {v(s_)}\n v_mul_f32 {v(t2)}, {v(re)}, {v(s_)}')
    a.I(f'v_fma_f32 {v(re)}, {v(re)}, {v(c)}, {"-" if sign > 0 else ""}{v(t1)}')
    a.I(f'v_fma_f32 {v(im)}, {v(im)}, {v(c)}, {"-" if sign < 0 else ""}{v(t2)}')
def cmul_tw(a, re, im, c, s_, t1, t2, sign):
    cm1(a, re, im, c, s_, t1, t2, sign); cm1(a, re+1, im+1, c+1, s_+1, t1+1, t2+1, sign)
def mfma(a, d, A, B, c):
    a.I(f'v_mfma_f32_16x16x32_bf16 {v(d,4)}, {v(A,4)}, {v(B,4)}, {c if isinstance(c,str) else v(c,4)}')
def cvt(a, d, x, y, nx=False, ny=False):
    a.I(f'v_cvt_pk_bf16_f32 {v(d)}, {"-" if nx else ""}{v(x)}, {"-" if ny else ""}{v(y)}')
def chk(a, g, tok):
    a.I(f'v_add3_u32 {v(g+3)}, {v(g)}, {v(g+1)}, {v(g+2)}\n v_add_u32 {v(g+3)}, s{tok}, {v(g+3)}')
_lab = [0]
def poll_check(a, loads, R, tmp, tok, backoff=None, young=0):
    _lab[0] += 1
    L = f'L_poll{_lab[0]}'
    bo = BACKOFF if backoff is None else backoff
    Gs = R if isinstance(R, list) else [R, R+4, R+8]
    a.I(f's_mov_b32 s59, {SPIN}')
    a.label(L, keep=True)
    for k, g in enumerate(Gs):
        a.I(f's_waitcnt vmcnt({len(Gs)-1-k+young})')
        a.I(f'v_add3_u32 {v(tmp+1)}, {v(g)}, {v(g+1)}, {v(g+2)}\n v_sub_u32 {v(tmp+1)}, {v(g+3)}, {v(tmp+1)}')
        a.I(f'v_xor_b32 {v(tmp)}, s{tok}, {v(tmp+1)}' if k == 0 else f'v_xor_b32 {v(tmp+1)}, s{tok}, {v(tmp+1)}\n v_or_b32 {v(tmp)}, {v(tmp)}, {v(tmp+1)}')
    a.I(f'v_cmp_ne_u32 vcc, 0, {v(tmp)}\n s_cbranch_vccz {L}_out\n s_sub_u32 s59, s59, 1\n s_cbranch_scc1 {L}_out\n s_mov_b64 exec, vcc')
    if bo: a.I(f's_sleep {bo}')
    for x in loads: a.I(x)
    if young: a.I('s_waitcnt vmcnt(0)')
    a.I(f's_branch {L}')
    a.label(L + '_out', keep=True)
    a.vm = []
    a.I('s_mov_b64 exec, -1')
def mktok(a, tok, tmp):
    a.I(f's_xor_b32 s{tok}, s{tok}, 0xffff\n s_add_u32 s{tok}, s{tok}, 0x9e370000')
def tagregs(a, TG, t0, tok, sm, piece4=None, clean=True):
    a.I(piece4 or f'v_and_b32 {v(t0)}, 3, v0\n v_lshlrev_b32 {v(t0)}, 2, {v(t0)}')
    a.I(f's_mov_b32 s{sm}, 0x10001\n v_lshrrev_b32 {v(TG)}, {v(t0)}, s{tok}')
    for i in range(1, 4): a.I(f'v_lshrrev_b32 {v(TG+i)}, {i}, {v(TG)}')
    if clean:
        for i in range(4): a.I(f'v_and_b32 {v(TG+i)}, 0x10001, {v(TG+i)}')
def publish(a, img, R, vps, TG, vl16, srdb, soff, sm):
    for k in range(2): a.I(f'ds_read_b128 {v(R+4*k,4)}, {v(vps)} offset:{img+1536*k}')
    for k in range(2):
        for i in range(4): a.I(f'v_bfi_b32 {v(R+4*k+i)}, s{sm}, {v(TG+i)}, {v(R+4*k+i)}')
        a.I(f'buffer_store_dwordx4 {v(R+4*k,4)}, {v(vl16)}, s[{srdb}:{srdb+3}], s{soff} offen offset:{1024*k} sc1')
def tag_check(a, loads, R, TG, tmp, tok, extra=None, backoff=None, young=0):
    _lab[0] += 1
    L = f'L_tag{_lab[0]}'
    bo = BACKOFF if backoff is None else backoff
    nl = len(loads)
    a.I(f's_mov_b32 s59, {SPIN}')
    a.label(L, keep=True)
    for k in range(nl - (extra is not None)):
        g = R + 4*k
        a.I(f's_waitcnt vmcnt({nl-1-k+young})')
        for i in range(4): a.I(f'v_xor_b32 {v(g+i)}, {v(TG+i)}, {v(g+i)}')
        if k == 0: a.I(f'v_or3_b32 {v(tmp)}, {v(g)}, {v(g+1)}, {v(g+2)}\n v_or_b32 {v(tmp)}, {v(tmp)}, {v(g+3)}')
        else: a.I(f'v_or3_b32 {v(tmp)}, {v(tmp)}, {v(g)}, {v(g+1)}\n v_or3_b32 {v(tmp)}, {v(tmp)}, {v(g+2)}, {v(g+3)}')
    a.I(f'v_and_b32 {v(tmp)}, 0x10001, {v(tmp)}')
    if extra is not None:
        g = extra
        a.I(f's_waitcnt vmcnt(0)\n v_add3_u32 {v(tmp+1)}, {v(g)}, {v(g+1)}, {v(g+2)}\n v_sub_u32 {v(tmp+1)}, {v(g+3)}, {v(tmp+1)}\n v_xor_b32 {v(tmp+1)}, s{tok}, {v(tmp+1)}\n v_or_b32 {v(tmp)}, {v(tmp)}, {v(tmp+1)}')
    a.I(f'v_cmp_ne_u32 vcc, 0, {v(tmp)}\n s_cbranch_vccz {L}_out\n s_sub_u32 s59, s59, 1\n s_cbranch_scc1 {L}_out\n s_wqm_b64 exec, vcc')
    if bo: a.I(f's_sleep {bo}')
    for x in loads: a.I(x)
    if PROF: a.I(f's_add_u32 s60, s60, {1 << (4 * (_lab[0] - 1))}')
    if young: a.I('s_waitcnt vmcnt(0)')
    a.I(f's_branch {L}')
    a.label(L + '_out', keep=True)
    a.vm = []
    a.I('s_mov_b64 exec, -1')
def unpack(a, img, R, vun, masked=False, st=768):
    if masked: a.I('s_mov_b64 exec, s[10:11]')
    for k in range(4): a.I(f'ds_write_b128 {v(vun)}, {v(R+4*k,4)} offset:{img+st*k}')
    if masked: a.I('s_mov_b64 exec, -1')

LX = 0; LI0 = 8704; LI1 = LI0 + 12288; LW = LI1 + 12288; LG = LW + 256*80; LGW = LG + 64; LDK = LGW + 1024; LDUM = LDK + 1024
VERB = E('VERB', 0)
def role_b(a, split=None):
    V = VAlloc(1, 255)
    a.label('L_b_pre'); a.lg = [('smem', {('s', i) for i in list(range(4, 22)) + list(range(48, 56))})]
    if E('ONLYA', 0): a.I('s_endpgm')
    def hi(p=3): a.I(f's_setprio {p}')
    def lo(): a.I(f's_setprio {E("LOPRIO", 1)}')
    a.I(f's_setprio {E("B0PRIO", 2)}')
    task_of(a, 22, 23)
    n, q = lanes(a, V)
    t0 = V.get(); t1 = V.get(); TM = V.get(3)
    vl16 = V.get(); a.I(f'v_and_b32 {v(vl16)}, 63, v0\n v_lshlrev_b32 {v(vl16)}, 4, {v(vl16)}')
    a.I(f's_lshl_b32 s24, s3, 9\n s_add_u32 s24, s24, s22\n s_lshl_b32 s24, s24, 10\n s_add_u32 s25, s24, {256*1024}')
    a.I(f's_mul_i32 s26, s3, 2112\n s_mov_b32 s30, 2097152\n s_mov_b32 s31, 0x00020000')
    WR = V.get(4, 4); WI = V.get(4, 4); WNR = V.get(2); GW = V.get(8, 4)
    XA = V.get(32, 4); ACC = V.get(32, 4); T = V.get(16)
    base = V.get(); fN = V.get()
    POOL = V.get(120, 4)
    C1 = POOL; TC = POOL + 16; TS = POOL + 32; C2 = POOL + 48; CN = POOL + 96; A2 = POOL + 100
    f1, kH, fF, fK, sgn = (ACC + i for i in range(5))
    b = Block(a, 'c1')
    b.I(f'v_lshrrev_b32 {v(f1)}, 3, {v(n)}\n s_lshl_b32 s56, s3, 1\n v_add_u32 {v(f1)}, s56, {v(f1)}\n v_and_b32 {v(kH)}, 7, {v(n)}')
    b.I(f'v_cvt_f32_u32 {v(fF)}, {v(f1)}\n v_cvt_f32_u32 {v(fK)}, {v(kH)}')
    b.I(f'v_and_b32 {v(t0)}, 1, {v(q)}\n v_lshlrev_b32 {v(t0)}, 2, {v(t0)}\n v_mul_u32_u24 {v(t0)}, {v(t0)}, {v(f1)}')
    b.I(f'v_and_b32 {v(t1)}, 2, {v(q)}\n v_mad_u32_u24 {v(t0)}, {v(t1)}, {v(kH)}, {v(t0)}')
    b.I(f'v_cvt_f32_u32 {v(base)}, {v(t0)}\n v_mul_f32 {v(base)}, 0.125, {v(base)}')
    b.I(f'v_and_b32 {v(sgn)}, 1, {v(kH)}\n v_mul_u32_u24 {v(sgn)}, 0x8000, {v(sgn)}\n v_lshl_or_b32 {v(sgn)}, {v(sgn)}, 16, {v(sgn)}')
    for h in range(2):
        if h == 1: b.I(f'v_fmamk_f32 {v(base)}, {v(fK)}, {f32(0.125)}, {v(base)}')
        for r in range(1, 4): b.I(f'v_fmamk_f32 {v(T+8+r)}, {v(fF)}, {f32(0.125*r)}, {v(base)}')
        for r in range(4):
            ang = base if r == 0 else T + 8 + r
            b.I(f'v_cos_f32 {v(T+r)}, {v(ang)}\n v_sin_f32 {v(T+4+r)}, {v(ang)}')
        cvt(b, C1+2*h, T, T+1); cvt(b, C1+2*h+1, T+2, T+3)
        cvt(b, C1+8+2*h, T+4, T+5, True, True); cvt(b, C1+8+2*h+1, T+6, T+7, True, True)
    for i in range(4):
        b.I(f'v_xor_b32 {v(C1+4+i)}, {v(sgn)}, {v(C1+i)}\n v_xor_b32 {v(C1+12+i)}, {v(sgn)}, {v(C1+8+i)}')
    if E('EARLYC', 1): b.emit(VERB)
    a.I('s_waitcnt lgkmcnt(0)'); stamp(a, 1)
    a.I('s_mov_b32 s28, s4\n s_mov_b32 s29, s5\n s_mov_b32 m0, s26')
    a.I(f'buffer_load_dwordx4 {v(vl16)}, s[28:31], s24 offen lds')
    a.I('s_add_u32 m0, s26, 1056')
    a.I(f'buffer_load_dwordx4 {v(vl16)}, s[28:31], s25 offen lds')
    a.I(f's_bitcmp1_b32 s3, 0\n s_cselect_b32 s40, s16, s52\n s_cselect_b32 s41, s17, s53\n s_mov_b32 s42, 1024\n s_mov_b32 s43, 0x00020000\n s_cselect_b32 s56, 1024, 0\n s_add_u32 m0, s56, {LGW}')
    a.I(f'buffer_load_dwordx4 {v(vl16)}, s[40:43], 0 offen lds')
    srd(a, 44, 20, WS_BYTES)
    a.I(f's_add_u32 s20, s20, {EP_OFF}\n s_addc_u32 s21, s21, 0\n s_load_dword s57, s[20:21], 0')
    srd(a, 32, 48, 1052672); srd(a, 36, 50, 1052672); srd(a, 12, 54, 2097152)
    a.I(f's_and_b32 s27, s2, 7\n s_mul_i32 s61, s27, 514\n s_lshl_b32 s62, s23, 4\n s_add_u32 s62, s62, s61')
    a.I(f's_mul_i32 s6, s22, {BS}\n s_lshl_b32 s7, s3, 11\n s_add_u32 s6, s6, s7\n s_mul_i32 s7, s3, 3072\n s_add_u32 s8, s6, {V_OFF}')
    a.I(f's_mul_i32 s63, s23, {8*4112}\n s_add_u32 s63, s63, s61\n s_and_b32 s63, s63, -4')
    if split:
        a.I('s_branch L_b2'); st_ = (list(a.vm), list(a.lg)); split(); a.label('L_b2'); a.vm, a.lg = st_
    npt = 0
    if E('PT', 0):
        st = E('PTS', 17)
        a.I(f'v_and_b32 {v(t0)}, 63, v0\n v_lshlrev_b32 {v(t0)}, {st}, {v(t0)}\n s_mov_b32 s56, {0x2F0000 if st >= 21 else 0}')
        if E('PT', 0) == 2: a.I(f'v_mul_u32_u24 {v(t0)}, {BS}, v0\n s_mov_b32 s56, {V_OFF + 8192}')
        a.I(f'buffer_load_dword v255, {v(t0)}, s[44:47], s56 offen')
        npt = 1
    PRE = E('PRE', 0)
    def prest(sr):
        a.I(f'v_lshlrev_b32 {v(TM+2)}, 3, {v(vl16)}\n s_mov_b64 exec, 0xffff')
        a.raw(f'    buffer_load_dword v255, {v(TM+2)}, s[44:47], s{sr} offen'); a.vm.append(set())
        a.I('s_mov_b64 exec, -1')
    npre = 0
    if PRE & 1: prest(6); npre += 1
    if PRE & 2: prest(8); npre += 1
    if not E('EARLYC', 1): b.emit(VERB)
    vw = V.get(); vj4 = V.get(); vpf = V.get(); vrow = V.get()
    a.I(f's_mul_i32 s58, s23, {E("WROT", 8)}\n v_mul_u32_u24 {v(vrow)}, {E("WMUL", 1)}, v0\n v_add_u32 {v(vrow)}, s58, {v(vrow)}\n v_and_b32 {v(vrow)}, 255, {v(vrow)}\n v_mul_u32_u24 {v(vw)}, 4112, {v(vrow)}')
    a.I(f'v_mov_b32 {v(WNR)}, 0\n v_mov_b32 {v(WNR+1)}, 0\n s_cmp_eq_u32 s23, 31\n s_cselect_b64 s[10:11], -1, 0')
    ndrip = [0]
    def drip(k):
        if E('WST', 7) != 3: return
        lo_, hi_ = ((0xffff, 0), (0xffff0000, 0), (0, 0xffff), (0, 0xffff0000))[k]
        a.I(f's_mov_b32 exec_lo, {lo_}\n s_mov_b32 exec_hi, {hi_}')
        for r, rn, sr in ((WR, WNR, 32), (WI, WNR+1, 36)):
            a.raw(f'    buffer_load_dwordx4 {v(r,4)}, {v(vw)}, s[{sr}:{sr+3}], s62 offen'); a.vm.append(set())
        a.I(f's_and_b64 exec, exec, s[10:11]\n s_cbranch_execz L_drip{k}')
        for r, rn, sr in ((WR, WNR, 32), (WI, WNR+1, 36)):
            a.raw(f'    buffer_load_short_d16_hi {v(rn)}, {v(vw)}, s[{sr}:{sr+3}], s62 offen offset:16')
        a.label(f'L_drip{k}', keep=True)
        a.I('s_mov_b64 exec, -1')
        ndrip[0] += 2
    DR = [int(x) for x in os.environ.get('DRIP', '0123')]
    def slot(i):
        for k, x in enumerate(DR):
            if x == i: drip(k)
    slot(0)
    b.I(f'v_mul_u32_u24 {v(t0)}, {v(kH)}, {v(q)}\n v_lshlrev_b32 {v(t0)}, 4, {v(t0)}\n v_mad_u32_u24 {v(t0)}, {v(f1)}, s22, {v(t0)}')
    b.I(f'v_cvt_f32_u32 {v(base)}, {v(t0)}\n v_mul_f32 {v(base)}, {f32(1/2048)}, {v(base)}')
    for t in range(4):
        for i in range(4):
            k = 16*t + i
            if k == 0: ang = base
            else:
                ang = T + 4*t + i
                b.I(f'v_fmamk_f32 {v(ang)}, {v(fK)}, {f32(k/512)}, {v(base)}')
            b.I(f'v_cos_f32 {v(TC+4*t+i)}, {v(ang)}\n v_sin_f32 {v(TS+4*t+i)}, {v(ang)}')
    b.I(f'v_lshrrev_b32 {v(vj4)}, 5, v0\n v_mul_u32_u24 {v(vpf)}, 4112, {v(vj4)}\n v_and_b32 {v(t1)}, 7, v0\n v_lshl_add_u32 {v(vpf)}, {v(t1)}, 7, {v(vpf)}\n v_lshlrev_b32 {v(vj4)}, 2, {v(vj4)}')
    b.emit(VERB)
    WST = E('WST', 7)
    def wstorm(parts=(0, 1)):
        a.I(f's_cmp_eq_u32 s23, 31\n s_cselect_b64 s[10:11], -1, 1')
        for k in parts:
            r, sr = ((WR, 32), (WI, 36))[k]
            a.I(f'v_mov_b32 {v(WNR+k)}, 0')
            a.I(f'buffer_load_dwordx4 {v(r,4)}, {v(vw)}, s[{sr}:{sr+3}], s62 offen')
            a.I('s_mov_b64 exec, s[10:11]')
            a.I(f'buffer_load_short_d16_hi {v(WNR+k)}, {v(vw)}, s[{sr}:{sr+3}], s62 offen offset:16')
            a.I('s_mov_b64 exec, -1')
    def wpf():
        a.I('s_mov_b32 exec_lo, 0x1f\n s_mov_b32 exec_hi, 0x1f')
        a.I(f'buffer_load_dword {v(TM)}, {v(vpf)}, s[32:35], s63 offen')
        a.I(f'buffer_load_dword {v(TM+1)}, {v(vpf)}, s[36:39], s63 offen')
        a.I('s_mov_b64 exec, -1')
    if WPF == 1: wpf()
    slot(1)
    b.I(f'v_cvt_f32_u32 {v(fN)}, {v(n)}\n v_mul_u32_u24 {v(t0)}, {v(n)}, {v(q)}\n v_cvt_f32_u32 {v(base)}, {v(t0)}\n v_mul_f32 {v(base)}, {f32(1/16)}, {v(base)}')
    for t in range(2):
        TT = XA + 12*t
        for i in range(4):
            k = 16*t + i
            if k == 0: ang = base
            else:
                ang = TT + 8 + i
                b.I(f'v_fmamk_f32 {v(ang)}, {v(fN)}, {f32(k/64)}, {v(base)}')
            b.I(f'v_cos_f32 {v(TT+i)}, {v(ang)}\n v_sin_f32 {v(TT+4+i)}, {v(ang)}')
        c = [TT+i for i in range(4)]; s_ = [TT+4+i for i in range(4)]
        b0 = C2 + 6*t; b1 = C2 + 24 + 6*t
        cvt(b, b0+0, s_[0], s_[1], True, True); cvt(b, b0+2, c[0], c[1]); cvt(b, b0+4, s_[0], s_[1])
        cvt(b, b1+0, s_[0], c[1], True, True); cvt(b, b1+2, c[0], s_[1], False, True); cvt(b, b1+4, s_[0], c[1])
        cvt(b, b0+3, c[2], c[3]); cvt(b, b1+1, s_[2], c[3]); cvt(b, b1+5, s_[2], c[3], True, True)
        cvt(b, b0+1, s_[2], s_[3], True, True); cvt(b, b0+5, s_[2], s_[3]); cvt(b, b1+3, c[2], s_[3], True, False)
        for ct in range(2):
            for i in range(6): b.I(f'v_xor_b32 {v(C2+24*ct+6*t+12+i)}, {v(sgn)}, {v(C2+24*ct+6*t+i)}')
    b.I(f'v_mov_b32 {v(T)}, 0xbf803f80')
    b.I(f'v_cmp_eq_u32 vcc, 0, {v(n)}\n v_cndmask_b32 {v(CN)}, 0, {v(T)}, vcc\n v_cndmask_b32 {v(CN+1)}, 0, {v(T)}, vcc')
    b.I(f'v_cmp_eq_u32 vcc, 1, {v(n)}\n v_cndmask_b32 {v(CN+2)}, 0, {v(T)}, vcc\n v_cndmask_b32 {v(CN+3)}, 0, {v(T)}, vcc')
    vtr = V.get(); vys = V.get(); vyn = V.get()
    b.I(f'v_bfe_u32 {v(T+1)}, v0, 2, 3\n v_mul_u32_u24 {v(vtr)}, 1056, {v(T+1)}')
    b.I(f'v_bfe_u32 {v(T+2)}, v0, 5, 1\n v_lshl_add_u32 {v(vtr)}, {v(T+2)}, 8, {v(vtr)}')
    b.I(f'v_and_b32 {v(T+3)}, 3, v0\n v_lshl_add_u32 {v(vtr)}, {v(T+3)}, 3, {v(vtr)}')
    b.emit(VERB)
    if WPF == 2: wpf()
    slot(2)
    V.put(vpf)
    stamp(a, 2)
    if WST == 2: wstorm()
    a.I(f's_waitcnt vmcnt({(2 if WPF else 0) + (4 if WST == 2 and not E("NOW", 0) else 0) + ndrip[0] + npre + npt})')
    hi(E('P1PRIO', 1))
    a.I('s_barrier'); stamp(a, 3)
    if WST == 0: wstorm()
    slot(3)
    def gate(b, GX, GWL, Z):
        z0, z1, acc, acc2 = Z + 8, Z + 9, Z + 10, Z + 11
        b.I(f'v_and_b32 {v(z0)}, 31, v0\n v_lshlrev_b32 {v(z0)}, 5, {v(z0)}\n v_mul_u32_u24 {v(z1)}, 264, {v(vj4)}\n v_add_u32 {v(z1)}, {v(z1)}, {v(z0)}')
        b.I(f'ds_read_b128 {v(GX,4)}, {v(z1)} offset:{LX} ;@X\n ds_read_b128 {v(GX+4,4)}, {v(z1)} offset:{LX+16} ;@X')
        b.I(f'ds_read_b128 {v(GWL,4)}, {v(z0)} offset:{LGW} ;@X\n ds_read_b128 {v(GWL+4,4)}, {v(z0)} offset:{LGW+16} ;@X')
        for i in range(8):
            x, y = Z + 2*(i % 4), Z + 2*(i % 4) + 1
            b.I(f'v_lshlrev_b32 {v(x)}, 16, {v(GX+i)}\n v_lshlrev_b32 {v(y)}, 16, {v(GWL+i)}')
            b.I(f'v_mul_f32 {v(acc)}, {v(x)}, {v(y)}' if i == 0 else f'v_fmac_f32 {v(acc)}, {v(x)}, {v(y)}')
            b.I(f'v_and_b32 {v(GX+i)}, 0xffff0000, {v(GX+i)}\n v_and_b32 {v(GWL+i)}, 0xffff0000, {v(GWL+i)}')
            b.I(f'v_mul_f32 {v(acc2)}, {v(GX+i)}, {v(GWL+i)}' if i == 0 else f'v_fmac_f32 {v(acc2)}, {v(GX+i)}, {v(GWL+i)}')
        b.I(f'v_add_f32 {v(acc)}, {v(acc)}, {v(acc2)}')
        for m in ('quad_perm:[1,0,3,2]', 'quad_perm:[2,3,0,1]', 'row_half_mirror', 'row_mirror'):
            b.I(f'v_add_f32_dpp {v(acc)}, {v(acc)}, {v(acc)} {m} row_mask:0xf bank_mask:0xf')
        b.I(f'v_mov_b32 {v(acc2)}, {v(acc)}\n v_permlane16_swap_b32 {v(acc)}, {v(acc2)}\n v_add_f32 {v(acc)}, {v(acc)}, {v(acc2)}')
        b.I(f'v_mul_f32 {v(acc)}, {f32(-LOG2E)}, {v(acc)}\n v_exp_f32 {v(acc)}, {v(acc)}\n v_add_f32 {v(acc)}, 1.0, {v(acc)}\n v_rcp_f32 {v(acc)}, {v(acc)}')
        b.I(f'ds_write_b32 {v(vj4)}, {v(acc)} offset:{LG} ;@G')
    GPOS = E('GPOS', -1)
    if GPOS == -1:
        gate(b, XA + 16, XA + 24, ACC); b.emit(VERB)
    mktok(a, 57, 56)
    if PRE & 16: prest(8)
    b = Block(a, 'phase1')
    for t in range(4):
        for g in range(2):
            for h in range(2):
                b.I(f'ds_read_b64_tr_b16 {v(XA+8*t+4*g+2*h,2)}, {v(vtr)} offset:{LX+512*g+128*h+32*t}')
    TG = V.get(4, 1); vps = V.get(); vun = V.get(); NG = V.get(4, 4)
    TY = GW
    tagregs(b, TY, GW+4, 57, 16, f'v_bfe_u32 {v(GW+4)}, v0, 2, 3\n v_and_b32 {v(GW+4)}, 4, {v(GW+4)}\n v_and_b32 {v(GW+5)}, 1, v0\n v_lshl_add_u32 {v(GW+4)}, {v(GW+5)}, 3, {v(GW+4)}', False)
    b.I(f'v_lshlrev_b32 {v(vys)}, 8, {v(vj4)}\n v_lshl_add_u32 {v(vys)}, {v(n)}, 5, {v(vys)}\n v_and_b32 {v(t0)}, 16, v0\n v_add_u32 {v(vys)}, {v(vys)}, {v(t0)}\n s_mul_i32 s18, s22, {BS}')
    b.I(f'v_lshlrev_b32 {v(vyn)}, 3, {v(vj4)}\n v_and_b32 {v(t0)}, 1, v0\n v_lshl_add_u32 {v(vyn)}, {v(t0)}, 4, {v(vyn)}\n v_and_b32 {v(t0)}, 30, v0\n v_lshl_add_u32 {v(vyn)}, {v(t0)}, 24, {v(vyn)}\n s_mul_i32 s17, s22, {BS}\n s_add_u32 s17, s17, 8192')
    b.I(f'v_mov_b32 {v(NG+1)}, 0\n v_mov_b32 {v(NG+2)}, 0')
    for t in range(4):
        for p in range(2): mfma(b, ACC+8*t+4*p, XA+8*t, C1+8*p, '0')
        for p in range(2): mfma(b, ACC+8*t+4*p, XA+8*t+4, C1+8*p+4, ACC+8*t+4*p)
    for t in range(4):
        re, im = ACC+8*t, ACC+8*t+4
        for i in range(4): cm1(b, re+i, im+i, TC+4*t+i, TS+4*t+i, T+8*(t&1)+2*i, T+8*(t&1)+2*i+1, -1)
        F = XA + 8*t
        cvt(b, F, re, re+1); cvt(b, F+2, im, im+1); cvt(b, F+1, re+2, re+3); cvt(b, F+3, im+2, im+3)
        mfma(b, A2+16, F, CN, '0' if t == 0 else A2+16)
        for ct in range(2):
            bb = C2 + 24*ct + 6*t
            mfma(b, A2+8*ct, F, bb+2, '0' if t == 0 else A2+8*ct)
            mfma(b, A2+8*ct+4, F, bb, '0' if t == 0 else A2+8*ct+4)
    for ct in range(2):
        O = XA + 4 + 8*ct
        for i in range(4): cvt(b, O+i, A2+8*ct+i, A2+8*ct+4+i)
        for i in range(4): b.I(f'v_bfi_b32 {v(O+i)}, s16, {v(TY+i)}, {v(O+i)}')
        b.I(f'buffer_store_dwordx4 {v(O,4)}, {v(vys)}, s[44:47], s18 offen offset:{512*ct} sc1 ;!200')
    b.I(f'v_mov_b32_dpp {v(T)}, {v(A2+16)} quad_perm:[1,1,1,1] row_mask:0xf bank_mask:0xf')
    cvt(b, NG, A2+16, T)
    b.I(f'v_add_u32 {v(NG+3)}, s57, {v(NG)}\n buffer_store_dwordx4 {v(NG,4)}, {v(vyn)}, s[44:47], s17 offen sc1')
    b.emit(VERB)
    stamp(a, 4)
    V.put(vtr); V.put(vys); V.put(vyn)
    if WST == 1: wstorm()
    if WST == 6: wstorm((0,))
    slot(4)
    if E('W1PRIO', -1) >= 0: hi(E('W1PRIO', -1))
    FR_, FI_, TC2, TS2 = POOL + 88, POOL + 92, GW, GW + 4
    b = Block(a, 'w1a')
    b.I(f'v_mul_f32 {v(base)}, {f32(1/4)}, {v(base)}')
    for i in range(4):
        ang = T + 4*i + 2
        if i == 0: ang = base
        else: b.I(f'v_fmamk_f32 {v(ang)}, {v(fN)}, {f32(i/256)}, {v(base)}')
        b.I(f'v_mul_f32 {v(T+4*i+3)}, {f32(16.0)}, {v(ang)}')
        b.I(f'v_cos_f32 {v(T+4*i)}, {v(T+4*i+3)}\n v_sin_f32 {v(T+4*i+1)}, {v(T+4*i+3)}')
        b.I(f'v_cos_f32 {v(TC2+i)}, {v(ang)}\n v_sin_f32 {v(TS2+i)}, {v(ang)}')
        cvt(b, FR_+i, T+4*i, T+4*i+1); cvt(b, FI_+i, T+4*i+1, T+4*i, True, False)
    tagregs(b, TG, t1, 57, 16)
    b.I(f'v_bfe_u32 {v(vps)}, v0, 1, 5\n v_mul_u32_u24 {v(vps)}, 48, {v(vps)}\n v_and_b32 {v(t0)}, 1, v0\n v_lshl_add_u32 {v(vps)}, {v(t0)}, 4, {v(vps)}\n v_add_u32 {v(vps)}, s7, {v(vps)}')
    GA = V.get(); vy = V.get(); vnn = V.get(); vnw = V.get(); vy1 = V.get(); vww = V.get(); vp16 = V.get()
    b.I(f'v_and_b32 {v(vp16)}, 3, v0\n v_lshlrev_b32 {v(vp16)}, 4, {v(vp16)}\n v_bfe_u32 {v(t1)}, v0, 2, 4\n v_mul_u32_u24 {v(GA)}, {BS}, {v(t1)}\n v_add_u32 {v(GA)}, {v(GA)}, {v(vp16)}')
    b.I(f'v_mul_u32_u24 {v(vun)}, 48, {v(t1)}\n v_and_b32 {v(t1)}, 16, {v(vp16)}\n v_add3_u32 {v(vun)}, {v(vun)}, {v(t1)}, s7')
    b.I(f'v_lshlrev_b32 {v(t0)}, 6, {v(q)}\n v_add_u32 {v(t0)}, {v(t0)}, {v(n)}\n v_mul_u32_u24 {v(vnn)}, 48, {v(t0)}\n v_mul_u32_u24 {v(vnw)}, 80, {v(t0)}')
    b.I(f's_lshl_b32 s56, s3, 3\n v_add_u32 {v(vy)}, s56, {v(vnn)}\n v_mul_u32_u24 {v(vnn)}, {BS}, {v(t0)}\n s_lshl_b32 s52, s27, 5\n s_add_u32 s52, s52, 8192\n s_add_u32 s53, s52, {16*BS}\n s_add_u32 s54, s52, {32*BS}\n s_add_u32 s55, s52, {48*BS}\n s_lshl_b32 s19, s23, 2\n s_add_u32 s19, s19, s3\n s_lshl_b32 s58, s3, 4\n v_add_u32 {v(vww)}, s58, {v(vnw)}')
    b.I(f's_lshr_b32 s24, s22, 1\n s_lshl_b32 s24, s24, 6\n s_mul_i32 s48, s3, {64*BS}\n s_add_u32 s48, s48, s24\n s_add_u32 s49, s48, {16*BS}\n s_add_u32 s50, s48, {32*BS}\n s_add_u32 s51, s48, {48*BS}')
    P1, PTC, PTS, P2 = POOL, POOL + 16, POOL + 32, POOL + 48
    fD = fN; b2 = V.get()
    def p3c_1(b):
        b.I(f'v_add_u32 {v(t1)}, s58, {v(n)}\n v_cvt_f32_u32 {v(fD)}, {v(t1)}')
        b.I(f'v_mul_u32_u24 {v(t1)}, {v(t1)}, {v(q)}\n v_cvt_f32_u32 {v(base)}, {v(t1)}\n v_mul_f32 {v(base)}, {f32(1/16)}, {v(base)}')
        for g in range(2):
            for i in range(4):
                k = 16*g + i
                if k: b.I(f'v_fmamk_f32 {v(T+8+i)}, {v(fD)}, {f32(k/64)}, {v(base)}')
            for i in range(4):
                ang = base if 16*g + i == 0 else T + 8 + i
                b.I(f'v_cos_f32 {v(T+i)}, {v(ang)}\n v_sin_f32 {v(T+4+i)}, {v(ang)}')
            for i in range(4):
                cvt(b, P1+8*g+i, T+i, T+4+i, False, True); cvt(b, P1+8*g+4+i, T+4+i, T+i)
    def p3c_2(b):
        b.I(f'v_mul_u32_u24 {v(t1)}, s22, {v(q)}\n v_cvt_f32_u32 {v(base)}, {v(t1)}\n v_mul_f32 {v(base)}, {f32(1/1024)}, {v(base)}')
        b.I(f'v_cvt_f32_u32 {v(b2)}, s22\n v_fmamk_f32 {v(b2)}, {v(b2)}, {f32(1/2048)}, {v(base)}')
        for t in range(4):
            for i in range(4):
                kH_ = 4*(i & 1) + t
                bb = base if i < 2 else b2
                ang = T + 4*t + i
                if kH_ == 0: ang = bb
                else: b.I(f'v_fmamk_f32 {v(ang)}, {v(fD)}, {f32(kH_/512)}, {v(bb)}')
                b.I(f'v_cos_f32 {v(PTC+4*t+i)}, {v(ang)}\n v_sin_f32 {v(PTS+4*t+i)}, {v(ang)}')
    def p3c_3(b):
        fB = fD
        b.I(f'v_and_b32 {v(t0)}, 7, {v(n)}\n v_cvt_f32_u32 {v(b2)}, {v(t0)}\n v_mul_u32_u24 {v(t0)}, {v(t0)}, {v(q)}\n v_cvt_f32_u32 {v(base)}, {v(t0)}\n v_mul_f32 {v(base)}, {f32(0.25)}, {v(base)}')
        b.I(f'v_fmamk_f32 {v(b2)}, {v(b2)}, {f32(0.125)}, {v(base)}')
        b.I(f'v_lshrrev_b32 {v(t0)}, 3, {v(n)}\n v_cvt_f32_u32 {v(fB)}, {v(t0)}')
        for t in range(4):
            TT = ACC + 8 + 12*(t & 1)
            for i in range(4):
                kH_ = 4*(i & 1) + t
                bb = base if i < 2 else b2
                ang = TT + 8 + i
                if kH_ == 0: ang = bb
                else: b.I(f'v_fmamk_f32 {v(ang)}, {v(fB)}, {f32(kH_/8)}, {v(bb)}')
                b.I(f'v_cos_f32 {v(TT+i)}, {v(ang)}\n v_sin_f32 {v(TT+4+i)}, {v(ang)}')
            d = P2 + 10*t
            cvt(b, d, TT, TT+1); cvt(b, d+1, TT+2, TT+3)
            cvt(b, d+2, TT+4, TT+5, True, True); cvt(b, d+3, TT+6, TT+7, True, True)
            if t > 0:
                cvt(b, d+4, TT, TT+1, True, True); cvt(b, d+5, TT+2, TT+3, True, True)
                cvt(b, d+6, TT+4, TT+5); cvt(b, d+7, TT+6, TT+7)
            if t in (1, 3):
                cvt(b, d+8, TT, TT+1); cvt(b, d+9, TT+2, TT+3)
    if GPOS == 0: gate(b, XA + 16, XA + 24, ACC)
    D1 = E('D1', 0)
    if D1 >= 1: p3c_1(b)
    if D1 >= 2: p3c_2(b)
    b.emit(VERB)
    if E('D1S', 0): a.I(f's_sleep {E("D1S", 0)}')
    if WST == 8: a.I('s_waitcnt vmcnt(0)')
    if WST in (7, 8): wstorm()
    stamp(a, 5)
    R = XA
    loads = [f'buffer_load_dwordx4 {v(R+4*k,4)}, {v(GA)}, s[44:47], s{48+k} offen sc1' for k in range(4)]
    for x in loads: a.I(x)
    def wstage(b):
        WO = ACC + 16
        for p in range(4):
            b.I(f'v_lshlrev_b32 {v(WO+4*p)}, 16, {v(WR+p)}\n v_lshlrev_b32 {v(WO+4*p+1)}, 16, {v(WI+p)}')
            b.I(f'v_and_b32 {v(WO+4*p+2)}, 0xffff0000, {v(WR+p)}\n v_and_b32 {v(WO+4*p+3)}, 0xffff0000, {v(WI+p)}')
        b.I(f's_cmp_eq_u32 s23, 0\n s_cselect_b32 s56, 0.5, 1.0')
        b.I(f'v_mul_f32 {v(WO)}, s56, {v(WO)}\n v_mul_f32 {v(WO+1)}, s56, {v(WO+1)}')
        b.I(f'v_mul_f32 {v(WNR)}, 0.5, {v(WNR)}\n v_mul_f32 {v(WNR+1)}, 0.5, {v(WNR+1)}')
        b.I(f'v_mul_u32_u24 {v(t1)}, 80, {v(vrow)}')
        for p in range(4): b.I(f'ds_write_b128 {v(t1)}, {v(WO+4*p,4)} offset:{LW+16*p}')
        b.I(f'ds_write_b64 {v(t1)}, {v(WNR,2)} offset:{LW+64}')
        b.emit(VERB)
        V.put(vrow)
    LATEW = WST in (5, 6)
    if WST == 5: wstorm()
    if WST == 6: wstorm((1,))
    if not LATEW:
        if E('W2PRIO', 3) >= 0: hi(E('W2PRIO', 3))
        if E('DBGH1', 0):
            stamp(a, 9); a.I('s_waitcnt vmcnt(8)'); stamp(a, 10); a.I('s_waitcnt vmcnt(4)'); stamp(a, 11)
            globals()['SKIP'] = (9, 10, 11)
        a.I('s_waitcnt vmcnt(4)'); wstage(b)
    a.I('s_bitcmp1_b32 s22, 0\n s_mov_b32 s10, 0x33333333\n s_cselect_b32 s10, 0xcccccccc, s10\n s_mov_b32 s11, s10')
    stamp(a, 12)
    hi(E('P2PRIO', 3))
    tag_check(a, loads, R, TG, TM, 57, young={5: 4, 6: 2}.get(WST, 0))
    if PRE & 32: prest(8)
    stamp(a, 6)
    unpack(a, LI1, R, vun, E('MASKU', 1))
    a.I('s_waitcnt lgkmcnt(0)\n s_barrier'); stamp(a, 7)
    Y = XA; X = XA + 8
    D = ACC; WF = POOL + 48; T2 = POOL + 72; T3 = POOL + 80
    o = LI1 // 256
    def fft_cols(b, cols, hook=None):
        for c in cols:
            mfma(b, D+8*c, X+4*c, FR_, '0'); mfma(b, D+8*c+4, X+4*c, FI_, '0')
        def stage(tw, sign, swap):
            for c in cols:
                re, im = D+8*c, D+8*c+4
                tt = (T, T2, T3)[c]
                for i in range(4):
                    tc, ts = tw(c, i)
                    cm1(b, re+i, im+i, tc, ts, tt+2*i, tt+2*i+1, sign)
                for i in range(4):
                    if swap: cvt(b, X+4*c+i, im+i, re+i)
                    else: cvt(b, X+4*c+i, re+i, im+i)
                yield c
        for c in stage(lambda c, i: (TC2+i, TS2+i), -1, False):
            mfma(b, D+8*c, FR_, X+4*c, '0'); mfma(b, D+8*c+4, FI_, X+4*c, '0')
        if hook: hook()
        for c in stage(lambda c, i: (WF+4*i+2*c, WF+4*i+2*c+1) if c < 2 else (WF+16+2*i, WF+17+2*i), +1, True):
            mfma(b, D+8*c+4, X+4*c, FR_, '0'); mfma(b, D+8*c, X+4*c, FI_, '0')
        for c in stage(lambda c, i: (TC2+i, TS2+i), +1, True):
            mfma(b, D+8*c+4, FR_, X+4*c, '0'); mfma(b, D+8*c, FI_, X+4*c, '0')
    NY = POOL + 104
    nloads = [f'buffer_load_dwordx4 {v(NY+4*i,4)}, {v(vnn)}, s[44:47], s{52+i} offen sc1' for i in range(4)]
    def nyl():
        a.I('s_cmp_lg_u32 s19, 127\n s_cbranch_scc1 L_b_nn1')
        for x in nloads: a.I(x)
        a.label('L_b_nn1', keep=True)
    if not LATEW: nyl()
    b = Block(a, 'phase2')
    for i, slot_ in enumerate((0, 2, 1, 3)): b.I(f'ds_read_b64 {v(X+2*slot_,2)}, {v(vy)} offset:{LI1+768*i}')
    b.I(f'v_swap_b32 {v(X+1)}, {v(X+4)}\n v_swap_b32 {v(X+3)}, {v(X+6)}')
    def wread():
        for i in range(4): b.I(f'ds_read_b128 {v(WF+4*i,4)}, {v(vww)} offset:{LW+1280*i}')
    def hook():
        b.emit(VERB); a.I('s_waitcnt vmcnt(0)'); wstage(b); a.I('s_waitcnt lgkmcnt(0)\n s_barrier'); nyl(); wread()
    if not LATEW: wread()
    fft_cols(b, (0, 1), hook if LATEW else None)
    for i in range(4):
        b.I(f'v_cvt_pk_bf16_f32 {v(Y+2*i)}, {v(D+i)}, {v(D+4+i)} ;!{E("STAG", 60)}'); cvt(b, Y+2*i+1, D+8+i, D+12+i)
        b.I(f'ds_write_b64 {v(vy)}, {v(Y+2*i,2)} offset:{LI0+768*i}')
    b.emit(VERB)
    a.I('s_waitcnt lgkmcnt(0)\n s_barrier')
    publish(a, LI0, XA + 20, vps, TG, vl16, 44, 8, 16)
    a.I('s_cmp_lg_u32 s19, 127\n s_cbranch_scc1 L_b_nonyq')
    poll_check(a, nloads, [NY, NY+4, NY+8, NY+12], TM, 57, young=2)
    b = Block(a, 'nyq')
    for i in range(4): b.I(f'v_mov_b32 {v(X+8+i)}, {v(NY+4*i)}')
    for i in range(4): b.I(f'ds_read_b64 {v(WF+16+2*i,2)}, {v(vnw)} offset:{LW+64+1280*i}')
    fft_cols(b, (2,))
    b.I(f'v_lshlrev_b32 {v(t0)}, 10, {v(q)}\n v_lshl_add_u32 {v(t0)}, {v(n)}, 4, {v(t0)}\n s_lshl_b32 s56, s27, 12\n s_add_u32 s56, s56, {VN_OFF}')
    for i in range(4):
        g = D + 4*i
        cvt(b, g, D+16+i, D+20+i)
        b.I(f'v_mov_b32 {v(g+1)}, 0\n v_mov_b32 {v(g+2)}, 0\n v_add_u32 {v(g+3)}, s57, {v(g)}')
        b.I(f'buffer_store_dwordx4 {v(g,4)}, {v(t0)}, s[44:47], s56 offen offset:{256*i} sc1')
    b.emit(VERB)
    a.I('s_nop 1')
    a.label('L_b_nonyq', keep=True)
    stamp(a, 8)
    lo()
    for r in (vy, vnn, vnw, vw, vy1, vww): V.put(r)
    V.put(WNR, 2)
    b = Block(a, 'w2a')
    if D1 < 1: p3c_1(b)
    if D1 < 2: p3c_2(b)
    if E('D3', 0): p3c_3(b)
    G2 = V.get(2); vr = V.get(); vta = V.get(); vst = V.get(); sgn = V.get(); vn = V.get()
    AA_ = WR
    x0, x1 = WR + 1, WR + 2
    b.I(f'v_bfe_u32 {v(x0)}, v0, 2, 3\n v_bfe_u32 {v(x1)}, v0, 5, 1')
    b.I(f'v_lshl_add_u32 {v(GA)}, {v(x0)}, 5, {v(x1)}\n v_mul_u32_u24 {v(GA)}, {BS}, {v(GA)}\n v_add_u32 {v(GA)}, {v(GA)}, {v(vp16)}')
    b.I(f'v_lshl_add_u32 {v(AA_)}, {v(x1)}, 5, {v(x0)}\n v_mul_u32_u24 {v(AA_)}, {BS}, {v(AA_)}\n v_add_u32 {v(AA_)}, {v(AA_)}, {v(vp16)}')
    b.I(f's_mul_i32 s48, s3, {8*BS}\n s_add_u32 s48, s48, s24\n s_add_u32 s52, s48, {AW_OFF}\n s_add_u32 s48, s48, {V_OFF}')
    for k in range(1, 4): b.I(f's_add_u32 s{48+k}, s48, {2*k*BS}\n s_add_u32 s{52+k}, s52, {64*k*BS}')
    b.I(f'v_lshlrev_b32 {v(vr)}, 10, {v(q)}\n v_lshl_add_u32 {v(vr)}, {v(n)}, 4, {v(vr)}')
    b.I(f's_lshl_b32 s7, s3, 11\n v_bfe_u32 {v(t0)}, v0, 2, 4\n v_lshlrev_b32 {v(vun)}, 5, {v(t0)}\n v_and_b32 {v(t1)}, 1, v0\n v_lshl_add_u32 {v(vun)}, {v(t1)}, 4, {v(vun)}\n v_add_u32 {v(vun)}, s7, {v(vun)}')
    b.I(f'v_lshlrev_b32 {v(vta)}, 4, {v(t0)}\n v_lshl_add_u32 {v(vta)}, {v(t1)}, 3, {v(vta)}\n v_bfe_u32 {v(t0)}, v0, 1, 1\n v_lshl_add_u32 {v(vta)}, {v(t0)}, 8, {v(vta)}\n v_add_u32 {v(vta)}, s7, {v(vta)}')
    b.I(f'v_and_b32 {v(t0)}, 7, {v(n)}\n v_lshlrev_b32 {v(vst)}, 18, {v(t0)}\n v_lshlrev_b32 {v(t1)}, 2, {v(t0)}\n v_lshrrev_b32 {v(t0)}, 3, {v(n)}\n v_lshl_add_u32 {v(vst)}, {v(t0)}, 7, {v(vst)}')
    vgr = V.get(); b.I(f'v_mov_b32 {v(vgr)}, {v(t1)}')
    b.I(f'v_lshrrev_b32 {v(t0)}, 4, v0\n v_lshl_add_u32 {v(vst)}, {v(t0)}, 3, {v(vst)}\n s_lshl_b32 s9, s22, 10')
    NC, NS = WI, WI + 1
    b.I(f'v_bfe_u32 {v(vn)}, v0, 3, 3\n v_and_b32 {v(sgn)}, 7, v0\n v_lshlrev_b32 {v(sgn)}, 8, {v(sgn)}\n v_add_u32 {v(sgn)}, s22, {v(sgn)}\n v_mul_u32_u24 {v(sgn)}, {v(sgn)}, {v(vn)}')
    b.I(f'v_cvt_f32_u32 {v(sgn)}, {v(sgn)}\n v_mul_f32 {v(sgn)}, {f32(1/2048)}, {v(sgn)}\n v_cos_f32 {v(NC)}, {v(sgn)}\n v_sin_f32 {v(NS)}, {v(sgn)}')
    b.I(f'v_lshlrev_b32 {v(vn)}, 12, {v(vn)}\n s_lshl_b32 s62, s22, 4\n s_add_u32 s62, s62, {VN_OFF}')
    b.emit(VERB)
    if E('D2', 0): a.I(f's_sleep {E("D2", 0)}')
    stamp(a, 9)
    for x in loads: a.I(x)
    if not E('D3', 0): p3c_3(b)
    b.emit(VERB)
    SKL = [P2+4+i for i in range(6)] + [P2+28, P2+29] + [GW+4+i for i in range(4)] + [NG+i for i in range(4)]; UX = XA + 24; DK = XA + 16
    b.I(f'v_and_b32 {v(t0)}, 0x3ff, {v(vst)}\n v_mul_u32_u24 {v(t1)}, 264, {v(vgr)}\n v_add_u32 {v(t1)}, {v(t1)}, {v(t0)}')
    for ot in range(4): b.I(f'ds_read_b64 {v(UX+2*ot,2)}, {v(t1)} offset:{LX+256*ot} ;@X\n ds_read_b64 {v(DK+2*ot,2)}, {v(t0)} offset:{LDK+256*ot} ;@X')
    for i in range(8):
        b.I(f'v_lshlrev_b32 {v(SKL[2*i])}, 16, {v(UX+i)}\n v_lshlrev_b32 {v(SKL[2*i+1])}, 16, {v(DK+i)}\n v_mul_f32 {v(SKL[2*i])}, {v(SKL[2*i])}, {v(SKL[2*i+1])}')
        b.I(f'v_and_b32 {v(UX+i)}, 0xffff0000, {v(UX+i)}\n v_and_b32 {v(DK+i)}, 0xffff0000, {v(DK+i)}\n v_mul_f32 {v(SKL[2*i+1])}, {v(UX+i)}, {v(DK+i)}')
    if GPOS == 2: gate(b, POOL + 104, POOL + 112, T)
    else:
        b.I(f'ds_read_b32 {v(G2)}, {v(vgr)} offset:{LG} ;@G')
        b.I(f'v_sub_f32 {v(G2+1)}, 1.0, {v(G2)}\n v_mul_f32 {v(G2+1)}, {f32(2.0**-19)}, {v(G2+1)}')
        for i in range(16): b.I(f'v_mul_f32 {v(SKL[i])}, {v(G2)}, {v(SKL[i])}')
    b.emit(VERB)
    hi()
    tag_check(a, loads, R, TG, TM, 57)
    AL = POOL + 104; NQ = GW
    aloads = [f'buffer_load_dwordx4 {v(AL+4*k,4)}, {v(AA_)}, s[44:47], s{52+k} offen sc1' for k in range(4)] + [f'buffer_load_dwordx4 {v(NQ,4)}, {v(vn)}, s[44:47], s62 offen sc1']
    if E('APOS', 0) < 0:
        for x in aloads[:4]: a.I(x)
    unpack(a, LI1, R, vun, 1, 512)
    a.I('s_waitcnt lgkmcnt(0)\n s_barrier'); stamp(a, 10)
    X = POOL + 88
    b = Block(a, 'phase3')
    for g in range(2):
        for i in range(4): b.I(f'ds_read_b128 {v(R+16*g+4*i,4)}, {v(vr)} offset:{LI1+4096*g+256*i}')
    if not E('APOS', 0):
        for x in aloads: b.I(x)
    if E('APOS', 0) < 0: b.I(aloads[4])
    if GPOS == 2:
        b.I(f'ds_read_b32 {v(G2)}, {v(vgr)} offset:{LG}')
        b.I(f'v_sub_f32 {v(G2+1)}, 1.0, {v(G2)}\n v_mul_f32 {v(G2+1)}, {f32(2.0**-19)}, {v(G2+1)}')
        for i in range(16): b.I(f'v_mul_f32 {v(SKL[i])}, {v(G2)}, {v(SKL[i])}')
    for g in range(2):
        for i in range(4):
            for t in range(i+1, 4): b.I(f'v_swap_b32 {v(R+16*g+4*i+t)}, {v(R+16*g+4*t+i)}')
        for t in range(4):
            for p in range(2):
                d = ACC+8*t+4*p
                mfma(b, d, R+16*g+4*t, P1+8*g+4*p, d if g == 1 else '0')
    vos = vr; vor = vgr; OS = E('OS', 1040)
    b.I(f'v_and_b32 {v(t0)}, 7, {v(n)}\n v_mul_u32_u24 {v(vos)}, {OS}, {v(t0)}\n v_and_b32 {v(t0)}, 0x3ff, {v(vst)}\n v_add_u32 {v(vos)}, {v(vos)}, {v(t0)}')
    b.I(f's_mul_i32 s26, s3, {2*OS}\n v_add_u32 {v(vor)}, s26, {v(vl16)}\n s_lshl_b32 s24, s3, 19\n s_add_u32 s24, s24, s9\n s_add_u32 s25, s24, {256*1024}')
    A2 = R
    for t in range(4):
        re, im = ACC+8*t, ACC+8*t+4
        for i in range(4): cm1(b, re+i, im+i, PTC+4*t+i, PTS+4*t+i, T+8*(t&1)+2*i, T+8*(t&1)+2*i+1, +1)
        F = X + 4*t
        cvt(b, F, re, re+1); cvt(b, F+2, im, im+1); cvt(b, F+1, re+2, re+3); cvt(b, F+3, im+2, im+3)
        for ot in range(4):
            rot = (t*ot) % 4
            mfma(b, A2+4*ot, F, P2+10*t+2*rot, '0' if t == 0 else A2+4*ot)
    if E('APOS', 0) > 1: emit_split(b, E('APOS', 0) / 100, lambda: [a.I(x) for x in aloads])
    b.emit(VERB)
    stamp(a, 11)
    if E('APOS', 0) == 1:
        for x in aloads: a.I(x)
    if E('ONLYB', 0) or E('NOA', 0): a.I('s_waitcnt vmcnt(0)')
    else: tag_check(a, aloads, AL, TG, TM, 57, NQ, E('ABACKOFF', 8))
    a.I('s_or_b32 s56, s22, s3\n s_cmp_lg_u32 s56, 0\n s_cbranch_scc1 L_b_end')
    a.I(f's_mov_b64 exec, 0xffffffff\n v_mov_b32 {v(t0)}, s57\n v_lshlrev_b32 {v(t1)}, 2, v0\n s_mov_b32 s56, {EP_OFF}')
    a.I(f'buffer_store_dword {v(t0)}, {v(t1)}, s[44:47], s56 offen sc1\n s_mov_b64 exec, -1')
    a.label('L_b_end', keep=True)
    OUTM = E('OUTM', 1)
    b = Block(a, 'final')
    unpack(a, LI0, AL, vun, 1, 512)
    AA = R + 16
    for ot in range(4): b.I(f'ds_read_b64_tr_b16 {v(AA+2*ot,2)}, {v(vta)} offset:{LI0+512*ot}')
    b.I(f'v_lshlrev_b32 {v(NQ+1)}, 16, {v(NQ)}\n v_and_b32 {v(NQ)}, 0xffff0000, {v(NQ)}\n v_mul_f32 {v(NQ+1)}, {v(NQ+1)}, {v(NC)}\n v_fma_f32 {v(NQ)}, -{v(NQ)}, {v(NS)}, {v(NQ+1)}')
    b.I(f'v_add_f32_dpp {v(NQ)}, {v(NQ)}, {v(NQ)} row_ror:8 row_mask:0xf bank_mask:0xf')
    b.I(f'v_mov_b32 {v(NQ+1)}, {v(NQ)}\n v_permlane16_swap_b32 {v(NQ)}, {v(NQ+1)}\n v_add_f32 {v(NQ)}, {v(NQ)}, {v(NQ+1)}')
    b.I(f'v_mov_b32 {v(NQ+1)}, {v(NQ)}\n v_permlane32_swap_b32 {v(NQ)}, {v(NQ+1)}\n v_add_f32 {v(NQ)}, {v(NQ)}, {v(NQ+1)}\n v_mul_f32 {v(NQ)}, {v(NQ)}, {v(G2+1)}')
    for i in range(16): b.I(f'v_fma_f32 {v(A2+i)}, {v(G2+1)}, {v(A2+i)}, {v(SKL[i])}\n v_{"sub" if i & 1 else "add"}_f32 {v(A2+i)}, {v(A2+i)}, {v(NQ)}')
    AF = ACC
    for ot in range(4):
        for p in range(2):
            b.I(f'v_lshlrev_b32 {v(AF+4*ot+2*p)}, 16, {v(AA+2*ot+p)}\n v_and_b32 {v(AF+4*ot+2*p+1)}, 0xffff0000, {v(AA+2*ot+p)}')
        for p in range(2):
            x = AF+4*ot+2*p; bb = A2+4*ot+2*p
            b.I(f'v_fmac_f32 {v(bb)}, {v(x)}, {v(G2)}\n v_fmac_f32 {v(bb+1)}, {v(x+1)}, {v(G2)}')
            cvt(b, X+2*ot+p, bb, bb+1)
        if OUTM == 0:
            b.I(f'buffer_store_dwordx2 {v(X+2*ot,2)}, {v(vst)}, s[12:15], s9 offen offset:{256*ot}')
        else: b.I(f'ds_write_b64 {v(vos)}, {v(X+2*ot,2)} offset:{LX+256*ot}')
    b.emit(VERB)
    if OUTM:
        fl = {1: 'sc1', 2: 'nt', 3: '', 4: 'sc0 sc1'}[OUTM]
        a.I('s_waitcnt lgkmcnt(0)\n s_barrier')
        a.I(f'ds_read_b128 {v(R,4)}, {v(vor)} offset:{LX}\n ds_read_b128 {v(R+4,4)}, {v(vor)} offset:{LX+OS}')
        a.I(f'buffer_store_dwordx4 {v(R,4)}, {v(vl16)}, s[12:15], s24 offen {fl}\n buffer_store_dwordx4 {v(R+4,4)}, {v(vl16)}, s[12:15], s25 offen {fl}')
    endpgm(a, 44, 13, 0)

RS = 544
TB_CH = 53 * RS
KF_OFF = 2 * TB_CH + 64
KF_CH = 2368 + 64
K8_OFF = KF_OFF + 2 * KF_CH
K8_CH = 512
LU = K8_OFF + 2 * K8_CH
U_CH = 4608
LDS_BYTES = LU + 2 * U_CH
LK = 0
KC = 2240
LRED = 4 * KC
LAO = LRED + 16384
def cmul(a, d, x, y, t):
    if E('PKCHAIN', 1):
        a.I(f'v_pk_mul_f32 {v(t,2)}, {v(x,2)}, {v(y,2)} op_sel_hi:[0,1]')
        a.I(f'v_pk_fma_f32 {v(d,2)}, {v(x,2)}, {v(y,2)}, {v(t,2)} op_sel:[1,1,0] op_sel_hi:[1,0,1] neg_lo:[1,0,0]')
    else:
        a.I(f'v_mul_f32 {v(t)}, {v(x)}, {v(y)}\n v_mul_f32 {v(t+1)}, {v(x)}, {v(y+1)}')
        a.I(f'v_fma_f32 {v(d)}, -{v(x+1)}, {v(y+1)}, {v(t)}\n v_fma_f32 {v(d+1)}, {v(x+1)}, {v(y)}, {v(t+1)}')

class RoleA:
  def pre(self, a):
    V = self.V = VAlloc(1, 128); W = self.W = VAlloc(128, 256)
    a.label('L_a_pre', keep=True)
    if E('ONLYB', 0): a.I('s_endpgm')
    a.I(f's_setprio {E("APRIO", 2)}')
    task_of(a, 22, 23)
    n, q = self.n, self.q = lanes(a, V)
    t0 = self.t0 = V.get(); t1 = self.t1 = V.get()
    vp = W.get(); a.I(f'v_lshlrev_b32 {v(vp)}, 1, v0')
    vch = self.vch = V.get(); a.I(f'v_lshrrev_b32 {v(vch)}, 7, v0')
    vd = W.get(); a.I(f'v_lshlrev_b32 {v(vd)}, 1, {v(vch)}')
    vut = W.get()
    a.I(f'v_and_b32 {v(t1)}, 0xc0, v0\n v_lshl_add_u32 {v(t1)}, {v(n)}, 2, {v(t1)}\n v_lshl_add_u32 {v(vut)}, {v(q)}, 13, {v(t1)}')
    a.I('s_lshl_b32 s24, s22, 9\n s_lshl_b32 s25, s22, 2\n s_lshr_b32 s26, s23, 2\n s_lshl_b32 s26, s26, 3\n s_and_b32 s27, s2, 7\n s_add_u32 s26, s26, s27\n s_and_b32 s27, s23, 3')
    a.I(f's_lshl_b32 s28, s26, 15\n s_lshl_b32 s29, s27, 8\n s_add_u32 s28, s28, s29\n s_add_u32 s29, s28, 4096')
    a.I('s_mov_b32 s34, 131072\n s_mov_b32 s35, 0x00020000\n s_mov_b32 s38, 131072\n s_mov_b32 s39, 0x00020000\n s_mov_b32 s42, 1024\n s_mov_b32 s43, 0x00020000\n s_mov_b32 s46, 2097152\n s_mov_b32 s47, 0x00020000')
    a.I('s_waitcnt lgkmcnt(0)'); stamp(a, 1)
    self.PR = LA, AI, CR, CI, LD, DS = tuple(V.get() for _ in range(6))
    a.I(f's_mov_b32 s40, s14\n s_mov_b32 s41, s15\n buffer_load_short_d16_hi {v(LD)}, {v(vd)}, s[40:43], s25 offen')
    for k, r in enumerate((LA, AI, CR, CI)):
        d = 32 + 4*(k & 1)
        a.I(f's_mov_b32 s{d}, s{6+2*k}\n s_mov_b32 s{d+1}, s{7+2*k}\n buffer_load_short_d16_hi {v(r)}, {v(vp)}, s[{d}:{d+3}], s24 offen')
    a.I('s_mov_b32 s44, s4\n s_mov_b32 s45, s5')
    UTL = self.UTL = W.get(8)
    for e in range(8):
        if not E('NOTILE', 0): a.I(f'buffer_load_dword {v(UTL+e)}, {v(vut)}, s[44:47], s{28 if e < 4 else 29} offen offset:{(e%4)*1024}')
    srd(a, 48, 20, WS_BYTES)
    a.I(f's_add_u32 s20, s20, {EP_OFF}\n s_addc_u32 s21, s21, 0\n s_load_dword s4, s[20:21], 0')
    stamp(a, 12, False)
    self.st = (list(a.vm), list(a.lg))
  def body(self, a):
    V, W, n, q, t0, t1, vch, UTL = self.V, self.W, self.n, self.q, self.t0, self.t1, self.vch, self.UTL
    LA, AI, CR, CI, LD, DS = self.PR
    TOK, CH, HR = 4, 6, 7
    b = Block(a, 'a_shadow')
    vt16 = V.get(); b.I(f'v_lshlrev_b32 {v(vt16)}, 4, v0')
    vuts = W.get()
    b.I(f'v_mul_u32_u24 {v(vuts)}, {BS//4}, {v(t1)}\n v_lshl_add_u32 {v(vuts)}, {v(q)}, 4, {v(vuts)}')
    b.I(f's_mul_i32 s27, s27, {64*BS}\n s_lshl_b32 s26, s26, 7\n s_add_u32 s26, s26, s27\n s_add_u32 s26, s26, {UT_OFF}\n s_add_u32 s27, s26, 4096\n s_add_u32 s28, s26, 8192')
    if E('PRE', 0) & 8:
        b.emit(VERB)
        a.I(f's_mov_b64 exec, 0xffff\n buffer_load_dword v253, {v(vuts)}, s[48:51], s26 offen\n s_mov_b64 exec, -1')
    b.I('s_mov_b32 s8, 0x05040100\n s_mov_b32 s9, 0x07060302')
    b.I(f's_and_b32 s{CH}, s3, 1\n s_lshr_b32 s{HR}, s3, 1\n s_mul_i32 s10, s{HR}, {TB_CH}\n s_lshl_b32 s11, s{CH}, 8\n s_add_u32 m0, s10, s11')
    b.I(f's_mul_i32 s52, s22, {BS}\n s_add_u32 s52, s52, {UT_OFF}\n s_add_u32 s53, s52, 4096\n s_add_u32 s54, s52, 8192')
    U0 = V.get(12, 4); EG = V.get(9, 1); TM = V.get(3, 1)
    J0, sh, JM, cst, kfb, yy, y1, y2, y3, y4, y5, y6 = (W.get() for _ in range(12))
    zero = V.get(); vks = V.get(); veg = V.get(); vem = V.get()
    b.I(f'v_mul_u32_u24 {v(kfb)}, {KF_CH}, {v(vch)}\n v_mov_b32 {v(zero)}, 0\n ds_write_b32 {v(kfb)}, {v(zero)} offset:{KF_OFF-8}')
    b.I(f'v_and_b32 {v(y6)}, 31, v0\n v_lshlrev_b32 {v(y6)}, 2, {v(y6)}\n v_lshl_add_u32 {v(y6)}, {v(vch)}, 9, {v(y6)}\n ds_write_b32 {v(y6)}, {v(zero)} offset:{K8_OFF}')
    b.I(f'v_mul_u32_u24 {v(y1)}, {U_CH - 512}, {v(vch)}\n v_lshl_add_u32 {v(y1)}, v0, 2, {v(y1)}\n v_add_u32 {v(y1)}, {LU}, {v(y1)}\n ds_write_b32 {v(y1)}, {v(zero)}')
    b.I(f'v_mov_b32 {v(y2)}, 0x3f80\n ds_write_addtid_b32 {v(y2)} offset:{21*RS}')
    vra = V.get(); vrb = V.get(); KW = V.get(4, 1); kw1 = V.get(); kw2 = V.get(); va = V.get(); vb = V.get(3, 1); vkz = V.get(); vuw = V.get(); vk8 = V.get(2, 1); vf = V.get(2, 1); BND = V.get(8, 4)
    b.I(f's_mul_i32 s10, s{CH}, {TB_CH}\n s_mul_i32 s11, s{HR}, {16*RS}\n s_add_u32 s11, s11, {21*RS}')
    b.I(f'v_mul_u32_u24 {v(vra)}, {RS}, {v(n)}\n v_lshl_add_u32 {v(vra)}, {v(q)}, 4, {v(vra)}\n v_add_u32 {v(vra)}, s10, {v(vra)}\n v_add_u32 {v(vrb)}, s11, {v(vra)}')
    def mid():
        J0, sh, JM, cst, kfb, yy, y3, y4, y5, y6 = range(232, 242)
        b.I(f's_mul_i32 s12, s{CH}, {KF_CH}\n s_mul_i32 s13, s{HR}, 288\n s_add_u32 s12, s12, s13\n s_add_u32 s12, s12, {KF_OFF}')
        b.I(f'v_lshlrev_b32 {v(kw1)}, 4, {v(n)}\n v_lshrrev_b32 {v(y3)}, 1, {v(n)}\n v_lshl_add_u32 {v(kw1)}, {v(y3)}, 2, {v(kw1)}\n v_add_u32 {v(kw1)}, s12, {v(kw1)}')
        b.I(f'v_lshlrev_b32 {v(t0)}, 3, {v(q)}\n s_mov_b32 s14, 0x90480100\n s_mov_b32 s15, 0x08040202\n s_mov_b32 s16, 0x90020101')
        b.I(f'v_bfe_u32 {v(KW)}, s14, {v(t0)}, 8\n v_lshl_add_u32 {v(KW)}, {v(KW)}, 3, {v(kw1)}')
        b.I(f'v_bfe_u32 {v(y3)}, s15, {v(t0)}, 8\n v_add_u32 {v(KW+1)}, {v(KW)}, {v(y3)}')
        b.I(f'v_bfe_u32 {v(KW+2)}, s16, {v(t0)}, 8\n v_lshl_add_u32 {v(KW+2)}, {v(KW+2)}, 2, {v(KW)}\n v_add_u32 {v(KW+3)}, {v(KW+2)}, {v(y3)}')
        b.I(f's_lshl_b32 s19, s{CH}, 9\n s_add_u32 s19, s19, {K8_OFF}\n s_lshl_b32 s13, s{HR}, 5\n s_add_u32 s13, s13, s19\n s_add_u32 s13, s13, 126')
        b.I(f'v_add_u32 {v(y5)}, 2304, {v(kw1)}\n v_lshlrev_b32 {v(kw1)}, 1, {v(n)}\n v_add_u32 {v(kw1)}, s13, {v(kw1)}')
        b.I(f'v_mov_b32 {v(y4)}, {LU + 512}\n v_cmp_eq_u32 vcc, 0, {v(q)}\n v_cndmask_b32 {v(kw2)}, {v(y4)}, {v(kw1)}, vcc')
        b.I(f'v_add_u32 {v(y4)}, 256, {v(kw1)}\n v_cmp_eq_u32 vcc, 1, {v(q)}\n v_cndmask_b32 {v(kw1)}, {v(kw2)}, {v(y4)}, vcc')
        b.I(f'v_and_b32 {v(y4)}, 0xbf, v0\n v_cmp_eq_u32 vcc, 0, {v(y4)}\n v_cndmask_b32 {v(kw1)}, {v(kw1)}, {v(y5)}, vcc')
        b.I(f'v_and_b32 {v(yy)}, 127, v0\n v_lshlrev_b32 {v(J0)}, 3, {v(yy)}\n v_sub_u32 {v(J0)}, 1016, {v(J0)}')
        b.I(f'v_mul_u32_u24 {v(vks)}, {2*KC}, {v(vch)}\n v_lshl_add_u32 {v(vks)}, {v(yy)}, 4, {v(vks)}')
        b.I(f'v_or_b32 {v(sh)}, 1, {v(J0)}\n v_ffbh_u32 {v(sh)}, {v(sh)}\n v_sub_u32 {v(sh)}, 24, {v(sh)}\n v_max_i32 {v(sh)}, 0, {v(sh)}')
        b.I(f'v_add_u32 {v(JM)}, 150, {v(sh)}\n v_lshlrev_b32 {v(JM)}, 23, {v(JM)}')
        b.I(f'v_mul_u32_u24 {v(kfb)}, {KF_CH}, {v(vch)}\n v_add_u32 {v(kfb)}, {KF_OFF}, {v(kfb)}')
        b.I(f'v_lshrrev_b32 {v(yy)}, {v(sh)}, {v(J0)}\n v_add_u32 {v(sh)}, 1, {v(sh)}')
        b.I(f'v_add_u32 {v(JM)}, {v(JM)}, {v(yy)}\n v_lshlrev_b32 {v(cst)}, {v(sh)}, {v(JM)}')
        b.I(f'v_lshrrev_b32 {v(yy)}, 4, {v(J0)}\n v_lshl_add_u32 {v(yy)}, {v(yy)}, 2, {v(kfb)}\n v_lshl_add_u32 {v(EG+1)}, {v(J0)}, 1, {v(yy)}\n v_sub_u32 {v(cst)}, {v(EG+1)}, {v(cst)}')
        b.I(f'v_add_u32 {v(yy)}, 16, {v(EG+1)}\n v_bfe_u32 {v(y5)}, {v(J0)}, 3, 1\n v_lshlrev_b32 {v(y5)}, 2, {v(y5)}')
        for e in range(1, 8):
            b.I(f'v_add_f32 {v(EG+1+e)}, {f32(float(e))}, {v(JM)}')
            b.I(f'v_lshl_add_u32 {v(EG+1+e)}, {v(EG+1+e)}, {v(sh)}, {v(cst)}')
            if e >= 6: b.I(f'v_cmp_eq_u32 vcc, {v(EG+1+e)}, {v(yy)}\n v_cndmask_b32 {v(EG)}, 0, {v(y5)}, vcc\n v_add_u32 {v(EG+1+e)}, {v(EG+1+e)}, {v(EG)}')
        b.I(f'v_sub_u32 {v(y5)}, 6, {v(y5)}\n v_cmp_ge_u32 vcc, 256, {v(J0)}\n v_cndmask_b32 {v(yy)}, 0, {v(y5)}, vcc\n v_sub_u32 {v(EG)}, {v(EG+1)}, {v(yy)}')
        b.I(f'v_add_u32 {v(veg)}, 2304, {v(kfb)}')
        b.I(f'v_bfe_u32 {v(y6)}, v0, 6, 1\n v_lshl_add_u32 {v(y6)}, {v(n)}, 1, {v(y6)}\n v_and_b32 {v(yy)}, 16, v0\n v_cmp_ne_u32 vcc, 0, {v(yy)}\n v_cndmask_b32 {v(y6)}, {v(y6)}, 0, vcc')
        b.I(f'v_mov_b32 {v(vem)}, 0x10000\n v_cmp_le_u32 vcc, 26, {v(y6)}\n v_cndmask_b32 {v(vem)}, 0, {v(vem)}, vcc\n v_cmp_le_u32 vcc, 27, {v(y6)}\n v_cndmask_b32 {v(y6)}, 0, 1, vcc\n v_or_b32 {v(vem)}, {v(vem)}, {v(y6)}')
        b.I(f's_mul_i32 s18, s3, {KC}\n v_and_b32 {v(y3)}, 16, v0\n v_mul_u32_u24 {v(y3)}, 132, {v(y3)}\n v_lshl_add_u32 {v(vkz)}, {v(n)}, 2, {v(y3)}\n v_add_u32 {v(vkz)}, s18, {v(vkz)}\n v_lshrrev_b32 {v(vuw)}, 3, v0\n v_lshlrev_b32 {v(vuw)}, 6, {v(vuw)}\n v_and_b32 {v(y3)}, 48, {v(vt16)}\n v_add_u32 {v(vuw)}, {v(vuw)}, {v(y3)}\n v_bfe_u32 {v(y3)}, v0, 2, 1\n v_mul_u32_u24 {v(y3)}, {U_CH}, {v(y3)}\n v_add_u32 {v(vuw)}, {v(vuw)}, {v(y3)}\n v_add_u32 {v(vuw)}, {LU + 512}, {v(vuw)}')
    if not E('MID', 0): mid()
    np_ = V.get()
    def late():
        y3 = 246
        b.I(f'v_lshlrev_b32 {v(t0)}, 3, {v(q)}\n s_lshl_b32 s13, s{HR}, 1\n v_xor_b32 {v(np_)}, s13, {v(n)}')
        b.I(f's_lshl_b32 s13, s{HR}, 8\n s_mul_i32 s12, s{CH}, {U_CH}\n s_sub_u32 s12, s12, s13\n s_add_u32 s12, s12, {LU + 512 - 32 - 192}')
        b.I(f'v_lshlrev_b32 {v(va)}, 5, {v(np_)}\n v_lshl_add_u32 {v(va)}, {v(q)}, 4, {v(va)}\n v_add_u32 {v(va)}, s12, {v(va)}')
        b.I(f's_mul_i32 s17, s{CH}, {2*KC}\n s_sub_u32 s17, s17, s13\n s_add_u32 s17, s17, {LK - 192 - 512}')
        b.I(f'v_sub_u32 {v(t1)}, {v(t0)}, {v(n)}\n v_add_u32 {v(t1)}, 1039, {v(t1)}')
        b.I(f'v_and_b32 {v(y3)}, 1, {v(t1)}\n v_mul_u32_u24 {v(y3)}, {KC}, {v(y3)}\n v_lshrrev_b32 {v(t1)}, 1, {v(t1)}')
        b.I(f'v_lshl_add_u32 {v(vb)}, {v(t1)}, 2, {v(y3)}\n v_add_u32 {v(vb)}, s17, {v(vb)}\n v_add_u32 {v(vb+1)}, -1024, {v(vb)}')
        b.I(f'v_add_u32 {v(vb+2)}, {192 + 512 - 2048}, {v(vb)}\n v_mov_b32 {v(y3)}, {LU}\n s_cmp_eq_u32 s{HR}, 0\n s_cselect_b64 s[30:31], -1, 0\n v_cndmask_b32 {v(vb+2)}, {v(y3)}, {v(vb+2)}, s[30:31]')
    def late2(b):
        y4 = t1
        b.I(f'v_lshlrev_b32 {v(y4)}, 5, {v(n)}\n v_lshl_add_u32 {v(y4)}, {v(q)}, 4, {v(y4)}')
        b.I(f's_mul_i32 s29, s{HR}, 768\n s_add_u32 s29, s29, s12\n s_add_u32 s29, s29, {192 - 16}\n v_add_u32 {v(vf)}, s29, {v(y4)}\n s_sub_u32 s29, s12, s13\n s_add_u32 s29, s29, {192 - 16 + 1536}\n v_add_u32 {v(vf+1)}, s29, {v(y4)}')
        b.I(f'v_lshlrev_b32 {v(y4)}, 2, {v(q)}\n v_sub_u32 {v(y4)}, {v(np_)}, {v(y4)}\n v_lshlrev_b32 {v(y4)}, 2, {v(y4)}\n s_lshl_b32 s13, s{HR}, 6')
        b.I(f's_sub_u32 s29, s19, s13\n s_add_u32 s29, s29, {128 - 12}\n v_add_u32 {v(vk8)}, s29, {v(y4)}\n s_add_u32 s29, s19, s13\n s_sub_u32 s29, s29, {64 + 12}\n v_add_u32 {v(vk8+1)}, s29, {v(y4)}')
        for k, (w_, s0) in enumerate(((7, 5), (9, 4))):
            b.I(f'v_mov_b32 {v(y4)}, {((1 << w_) - 1) << s0}\n v_lshlrev_b32 {v(y4)}, {v(n)}, {v(y4)}\n v_lshrrev_b32 {v(y4)}, {v(t0)}, {v(y4)}')
            for i in range(4):
                d = BND + 4*k + i
                b.I(f'v_bfe_u32 {v(d)}, {v(y4)}, {2*i}, 2\n v_mul_u32_u24 {v(d)}, 0x8001, {v(d)}\n v_and_b32 {v(d)}, 0x10001, {v(d)}\n v_mul_u32_u24 {v(d)}, 0x3f80, {v(d)}')
    if not E('LATE', 1): late()
    b.emit(VERB)
    if E('PRE', 0) & 4:
        a.I(f'v_lshlrev_b32 {v(y1)}, 7, {v(n)}\n s_mul_i32 s62, s22, {BS}\n s_lshl_b32 s63, s3, 11\n s_add_u32 s62, s62, s63\n s_add_u32 s62, s62, {AW_OFF}\n s_mov_b64 exec, 0xffff')
        a.I(f'buffer_load_dword v254, {v(y1)}, s[48:51], s62 offen\n s_mov_b64 exec, -1')
    stamp(a, 2)
    def utpub():
        mktok(a, TOK, 5)
        TU = U0 + 8
        tagregs(b, TU, y1, TOK, 5, f'v_lshlrev_b32 {v(y1)}, 2, {v(q)}', False)
        for i in range(4):
            b.I(f'v_perm_b32 {v(U0+i)}, {v(UTL+2*i+1)}, {v(UTL+2*i)}, s8\n v_bfi_b32 {v(U0+i)}, s5, {v(TU+i)}, {v(U0+i)}')
            b.I(f'v_perm_b32 {v(U0+4+i)}, {v(UTL+2*i+1)}, {v(UTL+2*i)}, s9\n v_bfi_b32 {v(U0+4+i)}, s5, {v(TU+i)}, {v(U0+4+i)}')
        for k in range(2): b.I(f'buffer_store_dwordx4 {v(U0+4*k,4)}, {v(vuts)}, s[48:51], s26 offen offset:{64*k} sc1 ;!3000')
    TG = V.get(4, 1)
    dt = W.get(); ar_ = W.get(); rev = W.get()
    b = Block(a, 'a_chain')
    if E('UTPOS', 0) < 0:
        utpub(); b.emit(VERB); stamp(a, 4)
    b.I(f'v_mul_f32 {v(dt)}, {f32(LOG2E)}, {v(LD)}\n v_mul_f32 {v(ar_)}, {f32(LOG2E)}, {v(LA)}\n v_exp_f32 {v(dt)}, {v(dt)}\n v_exp_f32 {v(ar_)}, {v(ar_)}')
    cvt(b, t0, dt, ar_)
    b.I(f'v_lshlrev_b32 {v(dt)}, 16, {v(t0)}\n v_and_b32 {v(ar_)}, 0xffff0000, {v(t0)}')
    b.I(f'v_mul_f32 {v(ar_)}, {v(ar_)}, {v(dt)}\n v_mul_f32 {v(ar_)}, {f32(-LOG2E)}, {v(ar_)}')
    b.I(f'v_mul_f32 {v(rev)}, {v(AI)}, {v(dt)}\n v_mul_f32 {v(rev)}, 0.15915494, {v(rev)}')
    Z = {}
    mag = W.get(4); ang = W.get(4)
    for k, p in enumerate((8, 1, 128, 256)):
        Z[p] = W.get(2)
        b.I(f'v_mul_f32 {v(mag+k)}, {f32(float(p))}, {v(ar_)}\n v_mul_f32 {v(ang+k)}, {f32(float(p))}, {v(rev)}')
        b.I(f'v_fract_f32 {v(ang+k)}, {v(ang+k)}\n v_exp_f32 {v(mag+k)}, {v(mag+k)}')
        b.I(f'v_cos_f32 {v(Z[p])}, {v(ang+k)}\n v_sin_f32 {v(Z[p]+1)}, {v(ang+k)}')
    Ee = W.get(16)
    b.I(f'v_add_f32 {v(dt)}, {v(dt)}, {v(dt)}\n v_mul_f32 {v(Ee)}, {v(CR)}, {v(dt)}\n v_mul_f32 {v(Ee+1)}, {v(CI)}, {v(dt)}')
    for k, p in enumerate((8, 1, 128, 256)):
        b.I(f'v_mul_f32 {v(Z[p])}, {v(mag+k)}, {v(Z[p])}\n v_mul_f32 {v(Z[p]+1)}, {v(mag+k)}, {v(Z[p]+1)}')
    TT = W.get(8); PK = W.get(8); O = W.get(4); H = W.get(4)
    cnt = [0]
    def put(row, x, neg):
        r = PK + cnt[0] % 8; cnt[0] += 1
        cvt(b, r, x, x+1, False, neg)
        b.I(f'ds_write_addtid_b32 {v(r)} offset:{row*RS} ;@T{row}')
    offs_ops = []; cur = Z[8]
    offs_ops.append(lambda: (put(21+1, Z[8], False), put(21+16, Z[128], False)))
    offs_ops.append(lambda: (cmul(b, H, Z[8], Z[128], TT+2), put(21+17, H, False)))
    for i in range(2, 16):
        nxt = O + 2*(i % 2)
        def f(i=i, cur=cur, nxt=nxt):
            cmul(b, nxt, cur, Z[8], TT); cmul(b, H + 2*(i % 2), nxt, Z[128], TT+2)
            put(21+i, nxt, False); put(21+16+i, H + 2*(i % 2), False)
        offs_ops.append(f); cur = nxt
    base_ops = [lambda: put(0, Ee, True)]
    for e in range(1, 8): base_ops.append(lambda e=e: (cmul(b, Ee+2*e, Ee+2*e-2, Z[1], TT+4), put(e, Ee+2*e, True)))
    for k, e in enumerate((0, 2, 4, 6)): base_ops.append(lambda k=k, e=e: (cmul(b, Ee+2*e, Ee+2*e, Z[256], TT+4), put(8+k, Ee+2*e, True)))
    for i in range(2):
        for k, e in enumerate((0, 4)): base_ops.append(lambda i=i, k=k, e=e: (cmul(b, Ee+2*e, Ee+2*e, Z[256], TT+4), put(12+2*i+k, Ee+2*e, True)))
    for i in range(5): base_ops.append(lambda i=i: (cmul(b, Ee, Ee, Z[256], TT+4), put(16+i, Ee, True)))
    uloads = [f'buffer_load_dwordx4 {v(U0+4*k,4)}, {v(vt16)}, s[48:51], s{52+k} offen sc1' for k in range(2)]
    it = 0
    while offs_ops or base_ops:
        if E('UPOS', 1) == 3 and it == E('UIT', 12):
            b.emit(VERB)
            for x in uloads: a.I(x)
        if it == E('UTPOS', 0):
            b.emit(VERB); stamp(a, 4); utpub()
        it += 1
        if offs_ops: offs_ops.pop(0)()
        if base_ops: base_ops.pop(0)()
    ACCK = V.get(8, 4); PK = V.get(4)
    b.emit(VERB)
    if E('UPOS', 1) == 2:
        for x in uloads: a.I(x)
    if E('KPRIO', -1) >= 0: a.I(f's_setprio {E("KPRIO", -1)}')
    a.I('s_waitcnt lgkmcnt(0)\n s_barrier'); stamp(a, 5)
    S = [128, 192]; FR = 128
    if E('UPOS', 1) == 0:
        for x in uloads: a.I(x)
    b = Block(a, 'kmfma')
    for k in range(8):
        b.I(f'ds_read_b128 {v(FR+12*k,4)}, {v(vrb)} offset:{64*k} ;@T')
        b.I(f'ds_read_b128 {v(FR+12*k+4,4)}, {v(vra)} offset:{64*k} ;@T')
        b.I(f'ds_read_b128 {v(FR+12*k+8,4)}, {v(vra)} offset:{64*k+16*RS} ;@T')
    for k in range(8):
        mfma(b, ACCK, FR+12*k+4, FR+12*k, '0' if k == 0 else ACCK); mfma(b, ACCK+4, FR+12*k+8, FR+12*k, '0' if k == 0 else ACCK+4)
    if E('MID', 0): mid()
    if E('LATE', 1) == 2: late(); tagregs(b, TG, 245, TOK, 5)
    cvt(b, PK, ACCK, ACCK+1); cvt(b, PK+1, ACCK+2, ACCK+3); cvt(b, PK+2, ACCK+4, ACCK+5); cvt(b, PK+3, ACCK+6, ACCK+7)
    b.I(f'ds_write_b16 {v(KW)}, {v(PK)} ;@K0 ;!300\n ds_write_b16_d16_hi {v(KW+1)}, {v(PK)} ;@K1 ;!300\n ds_write_b16 {v(KW+2)}, {v(PK+1)} ;@K2 ;!300\n ds_write_b16_d16_hi {v(KW+3)}, {v(PK+1)} ;@K3 ;!300')
    b.I(f'ds_write_b16 {v(kw1)}, {v(PK+2)} ;@K4 ;!300\n ds_write_b16_d16_hi {v(kw2)}, {v(PK+2)} offset:64 ;@K5 ;!300')
    b.I(f'ds_write_b16 {v(kw2)}, {v(PK+3)} offset:128 ;@K6 ;!300\n ds_write_b16_d16_hi {v(kw2)}, {v(PK+3)} offset:192 ;@K7 ;!300')
    b.emit(VERB)
    if E('UPOS', 1) == 4:
        for x in uloads: a.I(x)
    a.I('s_waitcnt lgkmcnt(0)\n s_barrier'); stamp(a, 6)
    for e in range(8, -1, -1): a.I(f'ds_read_u16 {v(EG+e)}, {v(EG+e)}')
    a.I(f'ds_read_u16 {v(veg)}, {v(veg)}')
    if E('UPOS', 1) == 1 and not E('NOUT', 0):
        for x in uloads: a.I(x)
    EO = FR
    for bb in range(4):
        a.I(f'v_lshl_or_b32 {v(EO+bb)}, {v(EG+1+6-2*bb)}, 16, {v(EG+1+7-2*bb)}')
        a.I(f'v_lshl_or_b32 {v(EO+4+bb)}, {v(EG+1+5-2*bb)}, 16, {v(EG+1+6-2*bb)}')
    a.I(f'ds_write_b128 {v(vks)}, {v(EO,4)} offset:{LK+64}\n ds_write_b128 {v(vks)}, {v(EO+4,4)} offset:{LK+KC+64}')
    a.I(f'v_mul_u32_u24 {v(veg)}, {v(veg)}, {v(vem)}\n ds_write_b32 {v(vkz)}, {v(veg)} offset:{LK}')
    if E('LATE', 1) == 1: late()
    if E('LATE', 1) < 2:
        tagregs(b, TG, 245, TOK, 5); b.emit(VERB)
    stamp(a, 7)
    tag_check(a, uloads, U0, TG, TM, TOK)
    a.I(f'ds_write_b128 {v(vuw)}, {v(U0,4)}\n ds_write_b128 {v(vuw)}, {v(U0+4,4)} offset:2048')
    a.I(f's_setprio {E("CPRIO", 2)}')
    a.I('s_waitcnt lgkmcnt(0)\n s_barrier'); stamp(a, 8)
    V.put(EG, 9); V.put(ACCK, 8); V.put(KW, 4); V.put(PK, 4); V.put(U0, 12)
    ACC = V.get(32, 4)
    b = Block(a, 'conv')
    S = [128, 176]; X = 224
    def loads(rl):
        L = []
        for k in range(8):
            if k < 4:
                o = 16*(3-rl) + (128 if k % 2 == 0 else 0)
                r = S[rl%2] + 32 + 4*k
                L += [f'ds_read2_b32 {v(r,2)}, {v(vb+k//2)} offset0:{o} offset1:{o+1}', f'ds_read2_b32 {v(r+2,2)}, {v(vb+k//2)} offset0:{o+2} offset1:{o+3}']
            L.append(f'ds_read_b128 {v(S[rl%2]+4*k,4)}, {v(va)} offset:{64*(3-rl)+512*k}')
        return L
    def mf(d, A, B, c): return f'v_mfma_f32_16x16x32_bf16 {v(d,4)}, {v(A,4)}, {v(B,4)}, {c if isinstance(c, str) else v(c,4)}'
    SB = V.get(8, 4); SD = V.get(16, 4)
    for x in loads(0): a.I(x)
    a.I(f'ds_read2_b32 {v(X,2)}, {v(vb+2)} offset0:0 offset1:1\n ds_read2_b32 {v(X+2,2)}, {v(vb+2)} offset0:2 offset1:3')
    L2 = E('L2', 1)
    bb = Block(a); late2(bb); fill = bb.l
    if not L2:
        pass
    extra = {0: [], 1: [], 2: []}
    for k in range(2):
        extra[1] += [f'ds_read_b128 {v(X+4+8*k,4)}, {v(vf+k)} offset:16', f'ds_read_b128 {v(X+8+8*k,4)}, {v(vf+k)}']
    def k8(r, k, T):
        o = 16*(T-4)
        return [f'ds_read2_b32 {v(r,2)}, {v(vk8+k)} offset0:{o+3} offset1:{o+2}', f'ds_read2_b32 {v(r+2,2)}, {v(vk8+k)} offset0:{o+1} offset1:{o}']
    far = [(0, 4), (0, 5), (0, 6), (0, 7), (1, 6), (1, 7)]
    for j, (k, T) in enumerate(far): extra[2] += k8(X+4*j, k, T)
    for k in range(2):
        for i in range(4): extra[2].append(f'v_cvt_pk_bf16_f32 {v(SB+4*k+i)}, {v(SD+8*k+i)}, {v(SD+8*k+4+i)}')
    for _ in range(24): a.I(fill.pop(0))
    for rl in range(4):
        pairs = sorted([(i, g) for i in range(8) for g in range(4) if i + g <= 7], key=lambda p: (max(p), p[0]+p[1]))
        if rl == 3: pairs = sorted(pairs, key=lambda p: (p[0]+p[1]) // 2)
        M = []; seen = set()
        for (i, g) in pairs:
            d = ACC + 4*(i+g)
            first = (rl == 0 and (i+g) not in seen); seen.add(i+g)
            M.append(mf(d, S[rl%2]+4*i, S[rl%2]+32+4*g, '0' if first else d))
        if rl == 0: M += [mf(ACC+4*(i+4), S[0]+4*i, X, ACC+4*(i+4)) for i in range(4)]
        if rl == 1: M += [mf(SD+8*k+4*h, X+4+8*k+4*h, BND+4*h, '0') for k in range(2) for h in range(2)]
        if rl == 3:
            tailM = [mf(ACC+4*T, X+4*j, SB+4*k, ACC+4*T) for j, (k, T) in enumerate(far)] + M; break
        nxt = (extra[rl] + loads(rl+1)) if rl == 1 else (loads(rl+1) + extra[rl])
        for k, x in enumerate(M):
            a.I(x)
            if k >= (4 if rl == 0 else 0):
                for _ in range(2 if (rl == 2 and k % 2) else 1):
                    if nxt: a.I(nxt.pop(0))
            if fill and rl < 2:
                a.I(fill.pop(0))
        for x in nxt: a.I(x)
    assert not fill
    vps = V.get()
    b.I(f's_mul_i32 s56, s3, 3072\n v_bfe_u32 {v(vps)}, v0, 1, 5\n v_mul_u32_u24 {v(vps)}, 48, {v(vps)}\n v_and_b32 {v(t0)}, 1, v0\n v_lshl_add_u32 {v(vps)}, {v(t0)}, 4, {v(vps)}\n v_add_u32 {v(vps)}, s56, {v(vps)}\n s_lshl_b32 s56, s3, 11')
    vrw = V.get(); vrr = V.get(); vao = V.get(); vl16 = V.get()
    b.I(f'v_lshlrev_b32 {v(vrw)}, 3, v0\n v_xor_b32 {v(vrr)}, 1024, {v(vrw)}')
    b.I(f'v_lshlrev_b32 {v(vao)}, 6, {v(q)}\n v_add_u32 {v(vao)}, {v(vao)}, {v(n)}\n v_mul_u32_u24 {v(vao)}, 48, {v(vao)}\n s_mul_i32 s10, s{HR}, {32*48}\n s_lshl_b32 s11, s{CH}, 4\n s_add_u32 s10, s10, s11\n v_add_u32 {v(vao)}, s10, {v(vao)}')
    b.I(f'v_and_b32 {v(vl16)}, 1023, {v(vt16)}\n s_mul_i32 s62, s22, {BS}\n s_add_u32 s62, s62, s56\n s_add_u32 s62, s62, {AW_OFF}')
    R = S[0] + 16
    fl = b.l; b.l = []
    last = {}
    for k, x in enumerate(tailM): last[int(x.split('v[')[1].split(':')[0])] = k
    pend = []
    for k, x in enumerate(tailM):
        a.I(x)
        for _ in range(2):
            if fl: a.I(fl.pop(0))
        for i in range(8):
            if last[ACC+4*i] + 4 == k and not fl: a.I(f'ds_write_b64 {v(vrw)}, {v(ACC+4*i+2,2)} offset:{LRED+2048*i}'); pend.append(i)
    for i in range(8):
        if i not in pend: a.I(f'ds_write_b64 {v(vrw)}, {v(ACC+4*i+2,2)} offset:{LRED+2048*i}')
    stamp(a, 9)
    a.I(f's_setprio {E("EPRIO", 3)}')
    a.I('s_waitcnt lgkmcnt(0)\n s_barrier')
    for i in range(8): a.I(f'ds_read_b64 {v(R+2*i,2)}, {v(vrr)} offset:{LRED+2048*i}')
    for i in range(16): a.I(f'v_add_f32 {v(R+i)}, {v(R+i)}, {v(ACC+4*(i//2)+(i&1))}')
    Oo = X
    for jj in range(2):
        for i in range(4): cvt(a, Oo+4*jj+i, R+4*i+jj, R+4*i+2+jj)
        a.I(f'ds_write_b128 {v(vao)}, {v(Oo+4*jj,4)} offset:{LAO+768*jj}')
    a.I('s_waitcnt lgkmcnt(0)\n s_barrier')
    if not E('NOA', 0): publish(a, LAO, X + 8, vps, TG, vl16, 48, 62, 5)
    endpgm(a, 48, 10, 1)

if __name__ == '__main__':
    out = sys.argv[1]
    a = Asm()
    a.raw(f'.globl {NAME}\n.p2align 8\n.type {NAME},@function\n{NAME}:')
    if PROF:
        for i in range(NST): a.I(f's_mov_b32 s{64+2*i}, 0')
        a.I('s_mov_b32 s60, 0')
    stamp(a, 0)
    a.I('s_load_dwordx16 s[4:19], s[0:1], 0\n s_load_dwordx2 s[20:21], s[0:1], 104\n s_load_dwordx8 s[48:55], s[0:1], 64')
    if PREFETCH:
        a.I(f's_cmp_ge_u32 s2, {8*PREFETCH}\n s_cbranch_scc1 L_nopf')
        a.I('s_getpc_b64 s[62:63]')
        a.label('L_pc', keep=True)
        a.I(f'v_lshlrev_b32 v1, 7, v0\n v_cmp_gt_u32 vcc, L_code_end-L_pc, v1\n s_and_saveexec_b64 s[58:59], vcc\n s_cbranch_execz L_pf2')
        a.I(f'global_load_dword v255, v1, s[62:63]')
        a.label('L_pf2', keep=True)
        a.I('s_mov_b64 exec, -1')
        a.label('L_nopf', keep=True); a.vm = []
    lo, hi = ('L_a_pre', 'L_b_pre') if AFIRST else ('L_b_pre', 'L_a_pre')
    a.I(f's_cmp_ge_u32 s2, 512\n s_cbranch_scc1 L_exit')
    if E('SEP', 0):
        a.I('s_bfe_u32 s4, s2, 0x10003\n s_bfe_u32 s5, s2, 0x10008\n s_and_b32 s2, s2, 0xf7\n s_lshl_b32 s4, s4, 8\n s_lshl_b32 s5, s5, 3\n s_or_b32 s2, s2, s4\n s_or_b32 s2, s2, s5')
    if E('SCRAMBLE', 0): a.I('s_lshr_b32 s58, s2, 3\n s_mul_i32 s58, s58, 37\n s_and_b32 s58, s58, 7\n s_xor_b32 s2, s2, s58\n s_bfe_u32 s58, s2, 0x10004\n s_lshl_b32 s58, s58, 8\n s_xor_b32 s2, s2, s58')
    a.I('s_cmp_lt_u32 s2, 256')
    A = RoleA()
    if E('BCODE', 2) == 2:
        a.I('s_cbranch_scc1 L_a_pre' if AFIRST else 's_cbranch_scc0 L_a_pre')
        def sp():
            a.reset(); a.lg = [('smem', {('s', i) for i in list(range(4, 22)) + list(range(48, 56))})]
            A.pre(a); A.body(a)
            a.label('L_exit'); a.I('s_endpgm')
        role_b(a, sp)
        nb = 0
    elif E('BCODE', 2):
        a.I('s_cbranch_scc1 L_a_pre' if AFIRST else 's_cbranch_scc0 L_a_pre')
        role_b(a)
        nb = a.ninst
        a.label('L_exit'); a.I('s_endpgm')
        a.reset(); a.lg = [('smem', {('s', i) for i in list(range(4, 22)) + list(range(48, 56))})]
        A.pre(a); A.body(a)
    else:
        a.I('s_cbranch_scc0 L_b_pre' if AFIRST else 's_cbranch_scc1 L_b_pre')
        A.pre(a)
        A.body(a)
        nb = a.ninst
        a.label('L_exit'); a.I('s_endpgm')
        role_b(a)
    a.raw('L_code_end:')
    nv = (a.maxv + 1 + 3) // 4 * 4
    print('vgpr', a.maxv + 1, 'sgpr', a.maxs + 1, 'ninst', nb, a.ninst - nb, 'lds', LDS_BYTES, file=sys.stderr)
    launch = f'; @launch kernel={NAME} grid=(512,1,1) block=(256,1,1) lds={LDS_BYTES}' if os.environ.get('LIST') else f'; @launch grid=(512,1,1) block=(256,1,1) lds={LDS_BYTES}'
    hdr = f'''; gated_mix( S4D causal conv , GFNet 2-D spectral filter ) -- one persistent launch, written by gen/gen35.py
{launch}
.amdgcn_target "amdgcn-amd-amdhsa--gfx950"
.text
'''
    kd = f'''.section .rodata,"a"
.p2align 6
.amdhsa_kernel {NAME}
  .amdhsa_next_free_vgpr {nv}
  .amdhsa_next_free_sgpr {a.maxs + 1}
  .amdhsa_accum_offset {nv}
  .amdhsa_group_segment_fixed_size 0
  .amdhsa_kernarg_size 112
  .amdhsa_user_sgpr_count 2
  .amdhsa_user_sgpr_kernarg_segment_ptr 1
  .amdhsa_system_sgpr_workgroup_id_x 1
.end_amdhsa_kernel
'''
    open(out, 'w').write(hdr + a.text() + kd)
```

```python
import sys, math, os
from asmlib import *
E = lambda k, d: int(os.environ.get(k, str(d)))
BS = 8192 + E('BSPAD', 256)
Y_OFF  = 0x000000
V_OFF  = 256*BS if E('COMPACT', 1) else 0x310000
AW_OFF = 2*V_OFF
UT_OFF = 3*V_OFF
YN_OFF = 0xC60000
VN_OFF = 0xC50000
EP_OFF = 0xC40000
WS_BYTES = 0x1000000
LOG2E = 1.4426950408889634
TOKC = 0x9E3779B9
SPIN = 30000
PROF = E('PROF', 0); PREFETCH = E('PREFETCH', 1); BPRIO = E('BPRIO', 2); WPOS = E('WPOS', 1); BACKOFF = E('BACKOFF', 4)
AFIRST = E('AFIRST', 1); WPF = E('WPF', 1)
NAME = 'gated_mix__ssm_conv_s4d__spectral_gfnet__prompt_kernel'
DBG_OFF = 0xFC0000
NST = 15
SKIP = ()
KEEP = [int(x) for x in os.environ.get('KEEP', '0,4,8,10,13,14').split(',')]
def stamp(a, i, wait=True):
    if PROF == 3:
        if i in KEEP: a.raw(f'    s_memrealtime s[{64+2*i}:{65+2*i}]')
        return
    if PROF and i not in SKIP:
        if wait: a.I(f's_memrealtime s[{64+2*i}:{65+2*i}]\n s_waitcnt lgkmcnt(0)')
        else: a.I(f's_memrealtime s[{64+2*i}:{65+2*i}]')
def endpgm(a, srdb, last, role):
    if PROF:
        stamp(a, last)
        a.I('s_waitcnt vmcnt(0)')
        stamp(a, last + 1)
        a.I('s_waitcnt lgkmcnt(0)\n s_mov_b64 exec, 1')
        for i in range(16): a.I(f'v_mov_b32 v{4+i}, s{64+2*i}' if i < NST else f'v_mov_b32 v{4+i}, s60')
        a.I(f's_and_b32 s61, s2, 255\n s_lshl_b32 s61, s61, 2\n s_add_u32 s61, s61, s3\n s_lshl_b32 s61, s61, 6\n s_add_u32 s61, s61, {DBG_OFF + role*65536}')
        a.I('v_mov_b32 v1, 0')
        for k in range(4): a.I(f'buffer_store_dwordx4 v[{4+4*k}:{7+4*k}], v1, s[{srdb}:{srdb+3}], s61 offen offset:{16*k}')
    a.I('s_endpgm')
def srd(a, d, b, nbytes):
    if nbytes == WS_BYTES and E('WSBASE', 0): a.I(f's_add_u32 s{b}, s{b}, {E("WSBASE", 0) << 20}\n s_addc_u32 s{b+1}, s{b+1}, 0')
    a.I(f's_mov_b32 s{d}, s{b}\n s_mov_b32 s{d+1}, s{b+1}\n s_mov_b32 s{d+2}, {nbytes}\n s_mov_b32 s{d+3}, 0x00020000')
def task_of(a, dst, tmp):
    a.I(f's_and_b32 s{dst}, s2, 7\n s_lshl_b32 s{dst}, s{dst}, 5\n s_bfe_u32 s{tmp}, s2, 0x50003\n s_or_b32 s{dst}, s{dst}, s{tmp}')
def lanes(a, V):
    n, q = V.get(), V.get()
    a.I(f'v_lshrrev_b32 {v(q)}, 6, v0')
    a.I(f'v_and_b32 {v(n)}, 15, v0')
    a.I(f'v_readfirstlane_b32 s3, {v(q)}')
    a.I(f'v_bfe_u32 {v(q)}, v0, 4, 2')
    return n, q
def cm1(a, re, im, c, s_, t1, t2, sign):
    a.I(f'v_mul_f32 {v(t1)}, {v(im)}, {v(s_)}\n v_mul_f32 {v(t2)}, {v(re)}, {v(s_)}')
    a.I(f'v_fma_f32 {v(re)}, {v(re)}, {v(c)}, {"-" if sign > 0 else ""}{v(t1)}')
    a.I(f'v_fma_f32 {v(im)}, {v(im)}, {v(c)}, {"-" if sign < 0 else ""}{v(t2)}')
def cmul_tw(a, re, im, c, s_, t1, t2, sign):
    cm1(a, re, im, c, s_, t1, t2, sign); cm1(a, re+1, im+1, c+1, s_+1, t1+1, t2+1, sign)
def mfma(a, d, A, B, c):
    a.I(f'v_mfma_f32_16x16x32_bf16 {v(d,4)}, {v(A,4)}, {v(B,4)}, {c if isinstance(c,str) else v(c,4)}')
def cvt(a, d, x, y, nx=False, ny=False):
    a.I(f'v_cvt_pk_bf16_f32 {v(d)}, {"-" if nx else ""}{v(x)}, {"-" if ny else ""}{v(y)}')
def chk(a, g, tok):
    a.I(f'v_add3_u32 {v(g+3)}, {v(g)}, {v(g+1)}, {v(g+2)}\n v_add_u32 {v(g+3)}, s{tok}, {v(g+3)}')
_lab = [0]
def poll_check(a, loads, R, tmp, tok, backoff=None, young=0):
    _lab[0] += 1
    L = f'L_poll{_lab[0]}'
    bo = BACKOFF if backoff is None else backoff
    Gs = R if isinstance(R, list) else [R, R+4, R+8]
    a.I(f's_mov_b32 s59, {SPIN}')
    a.label(L, keep=True)
    for k, g in enumerate(Gs):
        a.I(f's_waitcnt vmcnt({len(Gs)-1-k+young})')
        a.I(f'v_add3_u32 {v(tmp+1)}, {v(g)}, {v(g+1)}, {v(g+2)}\n v_sub_u32 {v(tmp+1)}, {v(g+3)}, {v(tmp+1)}')
        a.I(f'v_xor_b32 {v(tmp)}, s{tok}, {v(tmp+1)}' if k == 0 else f'v_xor_b32 {v(tmp+1)}, s{tok}, {v(tmp+1)}\n v_or_b32 {v(tmp)}, {v(tmp)}, {v(tmp+1)}')
    a.I(f'v_cmp_ne_u32 vcc, 0, {v(tmp)}\n s_cbranch_vccz {L}_out\n s_sub_u32 s59, s59, 1\n s_cbranch_scc1 {L}_out\n s_mov_b64 exec, vcc')
    if bo: a.I(f's_sleep {bo}')
    for x in loads: a.I(x)
    if young: a.I('s_waitcnt vmcnt(0)')
    a.I(f's_branch {L}')
    a.label(L + '_out', keep=True)
    a.vm = []
    a.I('s_mov_b64 exec, -1')
def mktok(a, tok, tmp):
    a.I(f's_xor_b32 s{tok}, s{tok}, 0xffff\n s_add_u32 s{tok}, s{tok}, 0x9e370000')
def tagregs(a, TG, t0, tok, sm, piece4=None, clean=True):
    a.I(piece4 or f'v_and_b32 {v(t0)}, 3, v0\n v_lshlrev_b32 {v(t0)}, 2, {v(t0)}')
    a.I(f's_mov_b32 s{sm}, 0x10001\n v_lshrrev_b32 {v(TG)}, {v(t0)}, s{tok}')
    for i in range(1, 4): a.I(f'v_lshrrev_b32 {v(TG+i)}, {i}, {v(TG)}')
    if clean:
        for i in range(4): a.I(f'v_and_b32 {v(TG+i)}, 0x10001, {v(TG+i)}')
def publish(a, img, R, vps, TG, vl16, srdb, soff, sm):
    for k in range(2): a.I(f'ds_read_b128 {v(R+4*k,4)}, {v(vps)} offset:{img+1536*k}')
    for k in range(2):
        for i in range(4): a.I(f'v_bfi_b32 {v(R+4*k+i)}, s{sm}, {v(TG+i)}, {v(R+4*k+i)}')
        a.I(f'buffer_store_dwordx4 {v(R+4*k,4)}, {v(vl16)}, s[{srdb}:{srdb+3}], s{soff} offen offset:{1024*k} sc1')
def tag_check(a, loads, R, TG, tmp, tok, extra=None, backoff=None, young=0):
    _lab[0] += 1
    L = f'L_tag{_lab[0]}'
    bo = BACKOFF if backoff is None else backoff
    nl = len(loads)
    a.I(f's_mov_b32 s59, {SPIN}')
    a.label(L, keep=True)
    for k in range(nl - (extra is not None)):
        g = R + 4*k
        a.I(f's_waitcnt vmcnt({nl-1-k+young})')
        for i in range(4): a.I(f'v_xor_b32 {v(g+i)}, {v(TG+i)}, {v(g+i)}')
        if k == 0: a.I(f'v_or3_b32 {v(tmp)}, {v(g)}, {v(g+1)}, {v(g+2)}\n v_or_b32 {v(tmp)}, {v(tmp)}, {v(g+3)}')
        else: a.I(f'v_or3_b32 {v(tmp)}, {v(tmp)}, {v(g)}, {v(g+1)}\n v_or3_b32 {v(tmp)}, {v(tmp)}, {v(g+2)}, {v(g+3)}')
    a.I(f'v_and_b32 {v(tmp)}, 0x10001, {v(tmp)}')
    if extra is not None:
        g = extra
        a.I(f's_waitcnt vmcnt(0)\n v_add3_u32 {v(tmp+1)}, {v(g)}, {v(g+1)}, {v(g+2)}\n v_sub_u32 {v(tmp+1)}, {v(g+3)}, {v(tmp+1)}\n v_xor_b32 {v(tmp+1)}, s{tok}, {v(tmp+1)}\n v_or_b32 {v(tmp)}, {v(tmp)}, {v(tmp+1)}')
    a.I(f'v_cmp_ne_u32 vcc, 0, {v(tmp)}\n s_cbranch_vccz {L}_out\n s_sub_u32 s59, s59, 1\n s_cbranch_scc1 {L}_out\n s_wqm_b64 exec, vcc')
    if bo: a.I(f's_sleep {bo}')
    for x in loads: a.I(x)
    if PROF: a.I(f's_add_u32 s60, s60, {1 << (4 * (_lab[0] - 1))}')
    if young: a.I('s_waitcnt vmcnt(0)')
    a.I(f's_branch {L}')
    a.label(L + '_out', keep=True)
    a.vm = []
    a.I('s_mov_b64 exec, -1')
def unpack(a, img, R, vun, masked=False, st=768):
    if masked: a.I('s_mov_b64 exec, s[10:11]')
    for k in range(4): a.I(f'ds_write_b128 {v(vun)}, {v(R+4*k,4)} offset:{img+st*k}')
    if masked: a.I('s_mov_b64 exec, -1')

LX = 0; LI0 = 8704; LI1 = LI0 + 12288; LW = LI1 + 12288; LG = LW + 256*80; LGW = LG + 64; LDK = LGW + 1024; LDUM = LDK + 1024
VERB = E('VERB', 0)
def role_b(a, split=None):
    V = VAlloc(1, 255)
    a.label('L_b_pre'); a.lg = [('smem', {('s', i) for i in list(range(4, 22)) + list(range(48, 56))})]
    if E('ONLYA', 0): a.I('s_endpgm')
    def hi(p=3): a.I(f's_setprio {p}')
    def lo(): a.I(f's_setprio {E("LOPRIO", 1)}')
    a.I(f's_setprio {E("B0PRIO", 2)}')
    task_of(a, 22, 23)
    n, q = lanes(a, V)
    t0 = V.get(); t1 = V.get(); TM = V.get(3)
    vl16 = V.get(); a.I(f'v_and_b32 {v(vl16)}, 63, v0\n v_lshlrev_b32 {v(vl16)}, 4, {v(vl16)}')
    a.I(f's_lshl_b32 s24, s3, 9\n s_add_u32 s24, s24, s22\n s_lshl_b32 s24, s24, 10\n s_add_u32 s25, s24, {256*1024}')
    a.I(f's_mul_i32 s26, s3, 2112\n s_mov_b32 s30, 2097152\n s_mov_b32 s31, 0x00020000')
    WR = V.get(4, 4); WI = V.get(4, 4); WNR = V.get(2); GW = V.get(8, 4)
    XA = V.get(32, 4); ACC = V.get(32, 4); T = V.get(16)
    base = V.get(); fN = V.get()
    POOL = V.get(120, 4)
    C1 = POOL; TC = POOL + 16; TS = POOL + 32; C2 = POOL + 48; CN = POOL + 96; A2 = POOL + 100
    f1, kH, fF, fK, sgn = (ACC + i for i in range(5))
    b = Block(a, 'c1')
    b.I(f'v_lshrrev_b32 {v(f1)}, 3, {v(n)}\n s_lshl_b32 s56, s3, 1\n v_add_u32 {v(f1)}, s56, {v(f1)}\n v_and_b32 {v(kH)}, 7, {v(n)}')
    b.I(f'v_cvt_f32_u32 {v(fF)}, {v(f1)}\n v_cvt_f32_u32 {v(fK)}, {v(kH)}')
    b.I(f'v_and_b32 {v(t0)}, 1, {v(q)}\n v_lshlrev_b32 {v(t0)}, 2, {v(t0)}\n v_mul_u32_u24 {v(t0)}, {v(t0)}, {v(f1)}')
    b.I(f'v_and_b32 {v(t1)}, 2, {v(q)}\n v_mad_u32_u24 {v(t0)}, {v(t1)}, {v(kH)}, {v(t0)}')
    b.I(f'v_cvt_f32_u32 {v(base)}, {v(t0)}\n v_mul_f32 {v(base)}, 0.125, {v(base)}')
    b.I(f'v_and_b32 {v(sgn)}, 1, {v(kH)}\n v_mul_u32_u24 {v(sgn)}, 0x8000, {v(sgn)}\n v_lshl_or_b32 {v(sgn)}, {v(sgn)}, 16, {v(sgn)}')
    for h in range(2):
        if h == 1: b.I(f'v_fmamk_f32 {v(base)}, {v(fK)}, {f32(0.125)}, {v(base)}')
        for r in range(1, 4): b.I(f'v_fmamk_f32 {v(T+8+r)}, {v(fF)}, {f32(0.125*r)}, {v(base)}')
        for r in range(4):
            ang = base if r == 0 else T + 8 + r
            b.I(f'v_cos_f32 {v(T+r)}, {v(ang)}\n v_sin_f32 {v(T+4+r)}, {v(ang)}')
        cvt(b, C1+2*h, T, T+1); cvt(b, C1+2*h+1, T+2, T+3)
        cvt(b, C1+8+2*h, T+4, T+5, True, True); cvt(b, C1+8+2*h+1, T+6, T+7, True, True)
    for i in range(4):
        b.I(f'v_xor_b32 {v(C1+4+i)}, {v(sgn)}, {v(C1+i)}\n v_xor_b32 {v(C1+12+i)}, {v(sgn)}, {v(C1+8+i)}')
    if E('EARLYC', 1): b.emit(VERB)
    a.I('s_waitcnt lgkmcnt(0)'); stamp(a, 1)
    a.I('s_mov_b32 s28, s4\n s_mov_b32 s29, s5\n s_mov_b32 m0, s26')
    a.I(f'buffer_load_dwordx4 {v(vl16)}, s[28:31], s24 offen lds')
    a.I('s_add_u32 m0, s26, 1056')
    a.I(f'buffer_load_dwordx4 {v(vl16)}, s[28:31], s25 offen lds')
    a.I(f's_bitcmp1_b32 s3, 0\n s_cselect_b32 s40, s16, s52\n s_cselect_b32 s41, s17, s53\n s_mov_b32 s42, 1024\n s_mov_b32 s43, 0x00020000\n s_cselect_b32 s56, 1024, 0\n s_add_u32 m0, s56, {LGW}')
    a.I(f'buffer_load_dwordx4 {v(vl16)}, s[40:43], 0 offen lds')
    srd(a, 44, 20, WS_BYTES)
    a.I(f's_add_u32 s20, s20, {EP_OFF}\n s_addc_u32 s21, s21, 0\n s_load_dword s57, s[20:21], 0')
    srd(a, 32, 48, 1052672); srd(a, 36, 50, 1052672); srd(a, 12, 54, 2097152)
    a.I(f's_and_b32 s27, s2, 7\n s_mul_i32 s61, s27, 514\n s_lshl_b32 s62, s23, 4\n s_add_u32 s62, s62, s61')
    a.I(f's_mul_i32 s6, s22, {BS}\n s_lshl_b32 s7, s3, 11\n s_add_u32 s6, s6, s7\n s_mul_i32 s7, s3, 3072\n s_add_u32 s8, s6, {V_OFF}')
    a.I(f's_mul_i32 s63, s23, {8*4112}\n s_add_u32 s63, s63, s61\n s_and_b32 s63, s63, -4')
    if split:
        a.I('s_branch L_b2'); st_ = (list(a.vm), list(a.lg)); split(); a.label('L_b2'); a.vm, a.lg = st_
    npt = 0
    if E('PT', 0):
        st = E('PTS', 17)
        a.I(f'v_and_b32 {v(t0)}, 63, v0\n v_lshlrev_b32 {v(t0)}, {st}, {v(t0)}\n s_mov_b32 s56, {0x2F0000 if st >= 21 else 0}')
        if E('PT', 0) == 2: a.I(f'v_mul_u32_u24 {v(t0)}, {BS}, v0\n s_mov_b32 s56, {V_OFF + 8192}')
        a.I(f'buffer_load_dword v255, {v(t0)}, s[44:47], s56 offen')
        npt = 1
    PRE = E('PRE', 0)
    def prest(sr):
        a.I(f'v_lshlrev_b32 {v(TM+2)}, 3, {v(vl16)}\n s_mov_b64 exec, 0xffff')
        a.raw(f'    buffer_load_dword v255, {v(TM+2)}, s[44:47], s{sr} offen'); a.vm.append(set())
        a.I('s_mov_b64 exec, -1')
    npre = 0
    if PRE & 1: prest(6); npre += 1
    if PRE & 2: prest(8); npre += 1
    if not E('EARLYC', 1): b.emit(VERB)
    vw = V.get(); vj4 = V.get(); vpf = V.get(); vrow = V.get()
    a.I(f's_mul_i32 s58, s23, {E("WROT", 8)}\n v_mul_u32_u24 {v(vrow)}, {E("WMUL", 1)}, v0\n v_add_u32 {v(vrow)}, s58, {v(vrow)}\n v_and_b32 {v(vrow)}, 255, {v(vrow)}\n v_mul_u32_u24 {v(vw)}, 4112, {v(vrow)}')
    a.I(f'v_mov_b32 {v(WNR)}, 0\n v_mov_b32 {v(WNR+1)}, 0\n s_cmp_eq_u32 s23, 31\n s_cselect_b64 s[10:11], -1, 0')
    ndrip = [0]
    def drip(k):
        if E('WST', 7) != 3: return
        lo_, hi_ = ((0xffff, 0), (0xffff0000, 0), (0, 0xffff), (0, 0xffff0000))[k]
        a.I(f's_mov_b32 exec_lo, {lo_}\n s_mov_b32 exec_hi, {hi_}')
        for r, rn, sr in ((WR, WNR, 32), (WI, WNR+1, 36)):
            a.raw(f'    buffer_load_dwordx4 {v(r,4)}, {v(vw)}, s[{sr}:{sr+3}], s62 offen'); a.vm.append(set())
        a.I(f's_and_b64 exec, exec, s[10:11]\n s_cbranch_execz L_drip{k}')
        for r, rn, sr in ((WR, WNR, 32), (WI, WNR+1, 36)):
            a.raw(f'    buffer_load_short_d16_hi {v(rn)}, {v(vw)}, s[{sr}:{sr+3}], s62 offen offset:16')
        a.label(f'L_drip{k}', keep=True)
        a.I('s_mov_b64 exec, -1')
        ndrip[0] += 2
    DR = [int(x) for x in os.environ.get('DRIP', '0123')]
    def slot(i):
        for k, x in enumerate(DR):
            if x == i: drip(k)
    slot(0)
    b.I(f'v_mul_u32_u24 {v(t0)}, {v(kH)}, {v(q)}\n v_lshlrev_b32 {v(t0)}, 4, {v(t0)}\n v_mad_u32_u24 {v(t0)}, {v(f1)}, s22, {v(t0)}')
    b.I(f'v_cvt_f32_u32 {v(base)}, {v(t0)}\n v_mul_f32 {v(base)}, {f32(1/2048)}, {v(base)}')
    for t in range(4):
        for i in range(4):
            k = 16*t + i
            if k == 0: ang = base
            else:
                ang = T + 4*t + i
                b.I(f'v_fmamk_f32 {v(ang)}, {v(fK)}, {f32(k/512)}, {v(base)}')
            b.I(f'v_cos_f32 {v(TC+4*t+i)}, {v(ang)}\n v_sin_f32 {v(TS+4*t+i)}, {v(ang)}')
    b.I(f'v_lshrrev_b32 {v(vj4)}, 5, v0\n v_mul_u32_u24 {v(vpf)}, 4112, {v(vj4)}\n v_and_b32 {v(t1)}, 7, v0\n v_lshl_add_u32 {v(vpf)}, {v(t1)}, 7, {v(vpf)}\n v_lshlrev_b32 {v(vj4)}, 2, {v(vj4)}')
    b.emit(VERB)
    WST = E('WST', 7)
    def wstorm(parts=(0, 1)):
        a.I(f's_cmp_eq_u32 s23, 31\n s_cselect_b64 s[10:11], -1, 1')
        for k in parts:
            r, sr = ((WR, 32), (WI, 36))[k]
            a.I(f'v_mov_b32 {v(WNR+k)}, 0')
            a.I(f'buffer_load_dwordx4 {v(r,4)}, {v(vw)}, s[{sr}:{sr+3}], s62 offen')
            a.I('s_mov_b64 exec, s[10:11]')
            a.I(f'buffer_load_short_d16_hi {v(WNR+k)}, {v(vw)}, s[{sr}:{sr+3}], s62 offen offset:16')
            a.I('s_mov_b64 exec, -1')
    def wpf():
        a.I('s_mov_b32 exec_lo, 0x1f\n s_mov_b32 exec_hi, 0x1f')
        a.I(f'buffer_load_dword {v(TM)}, {v(vpf)}, s[32:35], s63 offen')
        a.I(f'buffer_load_dword {v(TM+1)}, {v(vpf)}, s[36:39], s63 offen')
        a.I('s_mov_b64 exec, -1')
    if WPF == 1: wpf()
    slot(1)
    b.I(f'v_cvt_f32_u32 {v(fN)}, {v(n)}\n v_mul_u32_u24 {v(t0)}, {v(n)}, {v(q)}\n v_cvt_f32_u32 {v(base)}, {v(t0)}\n v_mul_f32 {v(base)}, {f32(1/16)}, {v(base)}')
    for t in range(2):
        TT = XA + 12*t
        for i in range(4):
            k = 16*t + i
            if k == 0: ang = base
            else:
                ang = TT + 8 + i
                b.I(f'v_fmamk_f32 {v(ang)}, {v(fN)}, {f32(k/64)}, {v(base)}')
            b.I(f'v_cos_f32 {v(TT+i)}, {v(ang)}\n v_sin_f32 {v(TT+4+i)}, {v(ang)}')
        c = [TT+i for i in range(4)]; s_ = [TT+4+i for i in range(4)]
        b0 = C2 + 6*t; b1 = C2 + 24 + 6*t
        cvt(b, b0+0, s_[0], s_[1], True, True); cvt(b, b0+2, c[0], c[1]); cvt(b, b0+4, s_[0], s_[1])
        cvt(b, b1+0, s_[0], c[1], True, True); cvt(b, b1+2, c[0], s_[1], False, True); cvt(b, b1+4, s_[0], c[1])
        cvt(b, b0+3, c[2], c[3]); cvt(b, b1+1, s_[2], c[3]); cvt(b, b1+5, s_[2], c[3], True, True)
        cvt(b, b0+1, s_[2], s_[3], True, True); cvt(b, b0+5, s_[2], s_[3]); cvt(b, b1+3, c[2], s_[3], True, False)
        for ct in range(2):
            for i in range(6): b.I(f'v_xor_b32 {v(C2+24*ct+6*t+12+i)}, {v(sgn)}, {v(C2+24*ct+6*t+i)}')
    b.I(f'v_mov_b32 {v(T)}, 0xbf803f80')
    b.I(f'v_cmp_eq_u32 vcc, 0, {v(n)}\n v_cndmask_b32 {v(CN)}, 0, {v(T)}, vcc\n v_cndmask_b32 {v(CN+1)}, 0, {v(T)}, vcc')
    b.I(f'v_cmp_eq_u32 vcc, 1, {v(n)}\n v_cndmask_b32 {v(CN+2)}, 0, {v(T)}, vcc\n v_cndmask_b32 {v(CN+3)}, 0, {v(T)}, vcc')
    vtr = V.get(); vys = V.get(); vyn = V.get()
    b.I(f'v_bfe_u32 {v(T+1)}, v0, 2, 3\n v_mul_u32_u24 {v(vtr)}, 1056, {v(T+1)}')
    b.I(f'v_bfe_u32 {v(T+2)}, v0, 5, 1\n v_lshl_add_u32 {v(vtr)}, {v(T+2)}, 8, {v(vtr)}')
    b.I(f'v_and_b32 {v(T+3)}, 3, v0\n v_lshl_add_u32 {v(vtr)}, {v(T+3)}, 3, {v(vtr)}')
    b.emit(VERB)
    if WPF == 2: wpf()
    slot(2)
    V.put(vpf)
    stamp(a, 2)
    if WST == 2: wstorm()
    a.I(f's_waitcnt vmcnt({(2 if WPF else 0) + (4 if WST == 2 and not E("NOW", 0) else 0) + ndrip[0] + npre + npt})')
    hi(E('P1PRIO', 1))
    a.I('s_barrier'); stamp(a, 3)
    if WST == 0: wstorm()
    slot(3)
    def gate(b, GX, GWL, Z):
        z0, z1, acc, acc2 = Z + 8, Z + 9, Z + 10, Z + 11
        b.I(f'v_and_b32 {v(z0)}, 31, v0\n v_lshlrev_b32 {v(z0)}, 5, {v(z0)}\n v_mul_u32_u24 {v(z1)}, 264, {v(vj4)}\n v_add_u32 {v(z1)}, {v(z1)}, {v(z0)}')
        b.I(f'ds_read_b128 {v(GX,4)}, {v(z1)} offset:{LX} ;@X\n ds_read_b128 {v(GX+4,4)}, {v(z1)} offset:{LX+16} ;@X')
        b.I(f'ds_read_b128 {v(GWL,4)}, {v(z0)} offset:{LGW} ;@X\n ds_read_b128 {v(GWL+4,4)}, {v(z0)} offset:{LGW+16} ;@X')
        for i in range(8):
            x, y = Z + 2*(i % 4), Z + 2*(i % 4) + 1
            b.I(f'v_lshlrev_b32 {v(x)}, 16, {v(GX+i)}\n v_lshlrev_b32 {v(y)}, 16, {v(GWL+i)}')
            b.I(f'v_mul_f32 {v(acc)}, {v(x)}, {v(y)}' if i == 0 else f'v_fmac_f32 {v(acc)}, {v(x)}, {v(y)}')
            b.I(f'v_and_b32 {v(GX+i)}, 0xffff0000, {v(GX+i)}\n v_and_b32 {v(GWL+i)}, 0xffff0000, {v(GWL+i)}')
            b.I(f'v_mul_f32 {v(acc2)}, {v(GX+i)}, {v(GWL+i)}' if i == 0 else f'v_fmac_f32 {v(acc2)}, {v(GX+i)}, {v(GWL+i)}')
        b.I(f'v_add_f32 {v(acc)}, {v(acc)}, {v(acc2)}')
        for m in ('quad_perm:[1,0,3,2]', 'quad_perm:[2,3,0,1]', 'row_half_mirror', 'row_mirror'):
            b.I(f'v_add_f32_dpp {v(acc)}, {v(acc)}, {v(acc)} {m} row_mask:0xf bank_mask:0xf')
        b.I(f'v_mov_b32 {v(acc2)}, {v(acc)}\n v_permlane16_swap_b32 {v(acc)}, {v(acc2)}\n v_add_f32 {v(acc)}, {v(acc)}, {v(acc2)}')
        b.I(f'v_mul_f32 {v(acc)}, {f32(-LOG2E)}, {v(acc)}\n v_exp_f32 {v(acc)}, {v(acc)}\n v_add_f32 {v(acc)}, 1.0, {v(acc)}\n v_rcp_f32 {v(acc)}, {v(acc)}')
        b.I(f'ds_write_b32 {v(vj4)}, {v(acc)} offset:{LG} ;@G')
    GPOS = E('GPOS', -1)
    if GPOS == -1:
        gate(b, XA + 16, XA + 24, ACC); b.emit(VERB)
    mktok(a, 57, 56)
    if PRE & 16: prest(8)
    b = Block(a, 'phase1')
    for t in range(4):
        for g in range(2):
            for h in range(2):
                b.I(f'ds_read_b64_tr_b16 {v(XA+8*t+4*g+2*h,2)}, {v(vtr)} offset:{LX+512*g+128*h+32*t}')
    TG = V.get(4, 1); vps = V.get(); vun = V.get(); NG = V.get(4, 4)
    TY = GW
    tagregs(b, TY, GW+4, 57, 16, f'v_bfe_u32 {v(GW+4)}, v0, 2, 3\n v_and_b32 {v(GW+4)}, 4, {v(GW+4)}\n v_and_b32 {v(GW+5)}, 1, v0\n v_lshl_add_u32 {v(GW+4)}, {v(GW+5)}, 3, {v(GW+4)}', False)
    b.I(f'v_lshlrev_b32 {v(vys)}, 8, {v(vj4)}\n v_lshl_add_u32 {v(vys)}, {v(n)}, 5, {v(vys)}\n v_and_b32 {v(t0)}, 16, v0\n v_add_u32 {v(vys)}, {v(vys)}, {v(t0)}\n s_mul_i32 s18, s22, {BS}')
    b.I(f'v_lshlrev_b32 {v(vyn)}, 3, {v(vj4)}\n v_and_b32 {v(t0)}, 1, v0\n v_lshl_add_u32 {v(vyn)}, {v(t0)}, 4, {v(vyn)}\n v_and_b32 {v(t0)}, 30, v0\n v_lshl_add_u32 {v(vyn)}, {v(t0)}, 24, {v(vyn)}\n s_mul_i32 s17, s22, {BS}\n s_add_u32 s17, s17, 8192')
    b.I(f'v_mov_b32 {v(NG+1)}, 0\n v_mov_b32 {v(NG+2)}, 0')
    for t in range(4):
        for p in range(2): mfma(b, ACC+8*t+4*p, XA+8*t, C1+8*p, '0')
        for p in range(2): mfma(b, ACC+8*t+4*p, XA+8*t+4, C1+8*p+4, ACC+8*t+4*p)
    for t in range(4):
        re, im = ACC+8*t, ACC+8*t+4
        for i in range(4): cm1(b, re+i, im+i, TC+4*t+i, TS+4*t+i, T+8*(t&1)+2*i, T+8*(t&1)+2*i+1, -1)
        F = XA + 8*t
        cvt(b, F, re, re+1); cvt(b, F+2, im, im+1); cvt(b, F+1, re+2, re+3); cvt(b, F+3, im+2, im+3)
        mfma(b, A2+16, F, CN, '0' if t == 0 else A2+16)
        for ct in range(2):
            bb = C2 + 24*ct + 6*t
            mfma(b, A2+8*ct, F, bb+2, '0' if t == 0 else A2+8*ct)
            mfma(b, A2+8*ct+4, F, bb, '0' if t == 0 else A2+8*ct+4)
    for ct in range(2):
        O = XA + 4 + 8*ct
        for i in range(4): cvt(b, O+i, A2+8*ct+i, A2+8*ct+4+i)
        for i in range(4): b.I(f'v_bfi_b32 {v(O+i)}, s16, {v(TY+i)}, {v(O+i)}')
        b.I(f'buffer_store_dwordx4 {v(O,4)}, {v(vys)}, s[44:47], s18 offen offset:{512*ct} sc1 ;!200')
    b.I(f'v_mov_b32_dpp {v(T)}, {v(A2+16)} quad_perm:[1,1,1,1] row_mask:0xf bank_mask:0xf')
    cvt(b, NG, A2+16, T)
    b.I(f'v_add_u32 {v(NG+3)}, s57, {v(NG)}\n buffer_store_dwordx4 {v(NG,4)}, {v(vyn)}, s[44:47], s17 offen sc1')
    b.emit(VERB)
    stamp(a, 4)
    V.put(vtr); V.put(vys); V.put(vyn)
    if WST == 1: wstorm()
    if WST == 6: wstorm((0,))
    slot(4)
    if E('W1PRIO', -1) >= 0: hi(E('W1PRIO', -1))
    FR_, FI_, TC2, TS2 = POOL + 88, POOL + 92, GW, GW + 4
    b = Block(a, 'w1a')
    b.I(f'v_mul_f32 {v(base)}, {f32(1/4)}, {v(base)}')
    for i in range(4):
        ang = T + 4*i + 2
        if i == 0: ang = base
        else: b.I(f'v_fmamk_f32 {v(ang)}, {v(fN)}, {f32(i/256)}, {v(base)}')
        b.I(f'v_mul_f32 {v(T+4*i+3)}, {f32(16.0)}, {v(ang)}')
        b.I(f'v_cos_f32 {v(T+4*i)}, {v(T+4*i+3)}\n v_sin_f32 {v(T+4*i+1)}, {v(T+4*i+3)}')
        b.I(f'v_cos_f32 {v(TC2+i)}, {v(ang)}\n v_sin_f32 {v(TS2+i)}, {v(ang)}')
        cvt(b, FR_+i, T+4*i, T+4*i+1); cvt(b, FI_+i, T+4*i+1, T+4*i, True, False)
    tagregs(b, TG, t1, 57, 16)
    b.I(f'v_bfe_u32 {v(vps)}, v0, 1, 5\n v_mul_u32_u24 {v(vps)}, 48, {v(vps)}\n v_and_b32 {v(t0)}, 1, v0\n v_lshl_add_u32 {v(vps)}, {v(t0)}, 4, {v(vps)}\n v_add_u32 {v(vps)}, s7, {v(vps)}')
    GA = V.get(); vy = V.get(); vnn = V.get(); vnw = V.get(); vy1 = V.get(); vww = V.get(); vp16 = V.get()
    b.I(f'v_and_b32 {v(vp16)}, 3, v0\n v_lshlrev_b32 {v(vp16)}, 4, {v(vp16)}\n v_bfe_u32 {v(t1)}, v0, 2, 4\n v_mul_u32_u24 {v(GA)}, {BS}, {v(t1)}\n v_add_u32 {v(GA)}, {v(GA)}, {v(vp16)}')
    b.I(f'v_mul_u32_u24 {v(vun)}, 48, {v(t1)}\n v_and_b32 {v(t1)}, 16, {v(vp16)}\n v_add3_u32 {v(vun)}, {v(vun)}, {v(t1)}, s7')
    b.I(f'v_lshlrev_b32 {v(t0)}, 6, {v(q)}\n v_add_u32 {v(t0)}, {v(t0)}, {v(n)}\n v_mul_u32_u24 {v(vnn)}, 48, {v(t0)}\n v_mul_u32_u24 {v(vnw)}, 80, {v(t0)}')
    b.I(f's_lshl_b32 s56, s3, 3\n v_add_u32 {v(vy)}, s56, {v(vnn)}\n v_mul_u32_u24 {v(vnn)}, {BS}, {v(t0)}\n s_lshl_b32 s52, s27, 5\n s_add_u32 s52, s52, 8192\n s_add_u32 s53, s52, {16*BS}\n s_add_u32 s54, s52, {32*BS}\n s_add_u32 s55, s52, {48*BS}\n s_lshl_b32 s19, s23, 2\n s_add_u32 s19, s19, s3\n s_lshl_b32 s58, s3, 4\n v_add_u32 {v(vww)}, s58, {v(vnw)}')
    b.I(f's_lshr_b32 s24, s22, 1\n s_lshl_b32 s24, s24, 6\n s_mul_i32 s48, s3, {64*BS}\n s_add_u32 s48, s48, s24\n s_add_u32 s49, s48, {16*BS}\n s_add_u32 s50, s48, {32*BS}\n s_add_u32 s51, s48, {48*BS}')
    P1, PTC, PTS, P2 = POOL, POOL + 16, POOL + 32, POOL + 48
    fD = fN; b2 = V.get()
    def p3c_1(b):
        b.I(f'v_add_u32 {v(t1)}, s58, {v(n)}\n v_cvt_f32_u32 {v(fD)}, {v(t1)}')
        b.I(f'v_mul_u32_u24 {v(t1)}, {v(t1)}, {v(q)}\n v_cvt_f32_u32 {v(base)}, {v(t1)}\n v_mul_f32 {v(base)}, {f32(1/16)}, {v(base)}')
        for g in range(2):
            for i in range(4):
                k = 16*g + i
                if k: b.I(f'v_fmamk_f32 {v(T+8+i)}, {v(fD)}, {f32(k/64)}, {v(base)}')
            for i in range(4):
                ang = base if 16*g + i == 0 else T + 8 + i
                b.I(f'v_cos_f32 {v(T+i)}, {v(ang)}\n v_sin_f32 {v(T+4+i)}, {v(ang)}')
            for i in range(4):
                cvt(b, P1+8*g+i, T+i, T+4+i, False, True); cvt(b, P1+8*g+4+i, T+4+i, T+i)
    def p3c_2(b):
        b.I(f'v_mul_u32_u24 {v(t1)}, s22, {v(q)}\n v_cvt_f32_u32 {v(base)}, {v(t1)}\n v_mul_f32 {v(base)}, {f32(1/1024)}, {v(base)}')
        b.I(f'v_cvt_f32_u32 {v(b2)}, s22\n v_fmamk_f32 {v(b2)}, {v(b2)}, {f32(1/2048)}, {v(base)}')
        for t in range(4):
            for i in range(4):
                kH_ = 4*(i & 1) + t
                bb = base if i < 2 else b2
                ang = T + 4*t + i
                if kH_ == 0: ang = bb
                else: b.I(f'v_fmamk_f32 {v(ang)}, {v(fD)}, {f32(kH_/512)}, {v(bb)}')
                b.I(f'v_cos_f32 {v(PTC+4*t+i)}, {v(ang)}\n v_sin_f32 {v(PTS+4*t+i)}, {v(ang)}')
    def p3c_3(b):
        fB = fD
        b.I(f'v_and_b32 {v(t0)}, 7, {v(n)}\n v_cvt_f32_u32 {v(b2)}, {v(t0)}\n v_mul_u32_u24 {v(t0)}, {v(t0)}, {v(q)}\n v_cvt_f32_u32 {v(base)}, {v(t0)}\n v_mul_f32 {v(base)}, {f32(0.25)}, {v(base)}')
        b.I(f'v_fmamk_f32 {v(b2)}, {v(b2)}, {f32(0.125)}, {v(base)}')
        b.I(f'v_lshrrev_b32 {v(t0)}, 3, {v(n)}\n v_cvt_f32_u32 {v(fB)}, {v(t0)}')
        for t in range(4):
            TT = ACC + 8 + 12*(t & 1)
            for i in range(4):
                kH_ = 4*(i & 1) + t
                bb = base if i < 2 else b2
                ang = TT + 8 + i
                if kH_ == 0: ang = bb
                else: b.I(f'v_fmamk_f32 {v(ang)}, {v(fB)}, {f32(kH_/8)}, {v(bb)}')
                b.I(f'v_cos_f32 {v(TT+i)}, {v(ang)}\n v_sin_f32 {v(TT+4+i)}, {v(ang)}')
            d = P2 + 10*t
            cvt(b, d, TT, TT+1); cvt(b, d+1, TT+2, TT+3)
            cvt(b, d+2, TT+4, TT+5, True, True); cvt(b, d+3, TT+6, TT+7, True, True)
            if t > 0:
                cvt(b, d+4, TT, TT+1, True, True); cvt(b, d+5, TT+2, TT+3, True, True)
                cvt(b, d+6, TT+4, TT+5); cvt(b, d+7, TT+6, TT+7)
            if t in (1, 3):
                cvt(b, d+8, TT, TT+1); cvt(b, d+9, TT+2, TT+3)
    if GPOS == 0: gate(b, XA + 16, XA + 24, ACC)
    D1 = E('D1', 0)
    if D1 >= 1: p3c_1(b)
    if D1 >= 2: p3c_2(b)
    b.emit(VERB)
    if E('D1S', 0): a.I(f's_sleep {E("D1S", 0)}')
    if WST == 8: a.I('s_waitcnt vmcnt(0)')
    if WST in (7, 8): wstorm()
    stamp(a, 5)
    R = XA
    loads = [f'buffer_load_dwordx4 {v(R+4*k,4)}, {v(GA)}, s[44:47], s{48+k} offen sc1' for k in range(4)]
    for x in loads: a.I(x)
    def wstage(b):
        WO = ACC + 16
        for p in range(4):
            b.I(f'v_lshlrev_b32 {v(WO+4*p)}, 16, {v(WR+p)}\n v_lshlrev_b32 {v(WO+4*p+1)}, 16, {v(WI+p)}')
            b.I(f'v_and_b32 {v(WO+4*p+2)}, 0xffff0000, {v(WR+p)}\n v_and_b32 {v(WO+4*p+3)}, 0xffff0000, {v(WI+p)}')
        b.I(f's_cmp_eq_u32 s23, 0\n s_cselect_b32 s56, 0.5, 1.0')
        b.I(f'v_mul_f32 {v(WO)}, s56, {v(WO)}\n v_mul_f32 {v(WO+1)}, s56, {v(WO+1)}')
        b.I(f'v_mul_f32 {v(WNR)}, 0.5, {v(WNR)}\n v_mul_f32 {v(WNR+1)}, 0.5, {v(WNR+1)}')
        b.I(f'v_mul_u32_u24 {v(t1)}, 80, {v(vrow)}')
        for p in range(4): b.I(f'ds_write_b128 {v(t1)}, {v(WO+4*p,4)} offset:{LW+16*p}')
        b.I(f'ds_write_b64 {v(t1)}, {v(WNR,2)} offset:{LW+64}')
        b.emit(VERB)
        V.put(vrow)
    LATEW = WST in (5, 6)
    if WST == 5: wstorm()
    if WST == 6: wstorm((1,))
    if not LATEW:
        if E('W2PRIO', 3) >= 0: hi(E('W2PRIO', 3))
        if E('DBGH1', 0):
            stamp(a, 9); a.I('s_waitcnt vmcnt(8)'); stamp(a, 10); a.I('s_waitcnt vmcnt(4)'); stamp(a, 11)
            globals()['SKIP'] = (9, 10, 11)
        a.I('s_waitcnt vmcnt(4)'); wstage(b)
    a.I('s_bitcmp1_b32 s22, 0\n s_mov_b32 s10, 0x33333333\n s_cselect_b32 s10, 0xcccccccc, s10\n s_mov_b32 s11, s10')
    stamp(a, 12)
    hi(E('P2PRIO', 3))
    tag_check(a, loads, R, TG, TM, 57, young={5: 4, 6: 2}.get(WST, 0))
    if PRE & 32: prest(8)
    stamp(a, 6)
    unpack(a, LI1, R, vun, E('MASKU', 1))
    a.I('s_waitcnt lgkmcnt(0)\n s_barrier'); stamp(a, 7)
    Y = XA; X = XA + 8
    D = ACC; WF = POOL + 48; T2 = POOL + 72; T3 = POOL + 80
    o = LI1 // 256
    def fft_cols(b, cols, hook=None):
        for c in cols:
            mfma(b, D+8*c, X+4*c, FR_, '0'); mfma(b, D+8*c+4, X+4*c, FI_, '0')
        def stage(tw, sign, swap):
            for c in cols:
                re, im = D+8*c, D+8*c+4
                tt = (T, T2, T3)[c]
                for i in range(4):
                    tc, ts = tw(c, i)
                    cm1(b, re+i, im+i, tc, ts, tt+2*i, tt+2*i+1, sign)
                for i in range(4):
                    if swap: cvt(b, X+4*c+i, im+i, re+i)
                    else: cvt(b, X+4*c+i, re+i, im+i)
                yield c
        for c in stage(lambda c, i: (TC2+i, TS2+i), -1, False):
            mfma(b, D+8*c, FR_, X+4*c, '0'); mfma(b, D+8*c+4, FI_, X+4*c, '0')
        if hook: hook()
        for c in stage(lambda c, i: (WF+4*i+2*c, WF+4*i+2*c+1) if c < 2 else (WF+16+2*i, WF+17+2*i), +1, True):
            mfma(b, D+8*c+4, X+4*c, FR_, '0'); mfma(b, D+8*c, X+4*c, FI_, '0')
        for c in stage(lambda c, i: (TC2+i, TS2+i), +1, True):
            mfma(b, D+8*c+4, FR_, X+4*c, '0'); mfma(b, D+8*c, FI_, X+4*c, '0')
    NY = POOL + 104
    nloads = [f'buffer_load_dwordx4 {v(NY+4*i,4)}, {v(vnn)}, s[44:47], s{52+i} offen sc1' for i in range(4)]
    def nyl():
        a.I('s_cmp_lg_u32 s19, 127\n s_cbranch_scc1 L_b_nn1')
        for x in nloads: a.I(x)
        a.label('L_b_nn1', keep=True)
    if not LATEW: nyl()
    b = Block(a, 'phase2')
    for i, slot_ in enumerate((0, 2, 1, 3)): b.I(f'ds_read_b64 {v(X+2*slot_,2)}, {v(vy)} offset:{LI1+768*i}')
    b.I(f'v_swap_b32 {v(X+1)}, {v(X+4)}\n v_swap_b32 {v(X+3)}, {v(X+6)}')
    def wread():
        for i in range(4): b.I(f'ds_read_b128 {v(WF+4*i,4)}, {v(vww)} offset:{LW+1280*i}')
    def hook():
        b.emit(VERB); a.I('s_waitcnt vmcnt(0)'); wstage(b); a.I('s_waitcnt lgkmcnt(0)\n s_barrier'); nyl(); wread()
    if not LATEW: wread()
    fft_cols(b, (0, 1), hook if LATEW else None)
    for i in range(4):
        b.I(f'v_cvt_pk_bf16_f32 {v(Y+2*i)}, {v(D+i)}, {v(D+4+i)} ;!{E("STAG", 60)}'); cvt(b, Y+2*i+1, D+8+i, D+12+i)
        b.I(f'ds_write_b64 {v(vy)}, {v(Y+2*i,2)} offset:{LI0+768*i}')
    b.emit(VERB)
    a.I('s_waitcnt lgkmcnt(0)\n s_barrier')
    publish(a, LI0, XA + 20, vps, TG, vl16, 44, 8, 16)
    a.I('s_cmp_lg_u32 s19, 127\n s_cbranch_scc1 L_b_nonyq')
    poll_check(a, nloads, [NY, NY+4, NY+8, NY+12], TM, 57, young=2)
    b = Block(a, 'nyq')
    for i in range(4): b.I(f'v_mov_b32 {v(X+8+i)}, {v(NY+4*i)}')
    for i in range(4): b.I(f'ds_read_b64 {v(WF+16+2*i,2)}, {v(vnw)} offset:{LW+64+1280*i}')
    fft_cols(b, (2,))
    b.I(f'v_lshlrev_b32 {v(t0)}, 10, {v(q)}\n v_lshl_add_u32 {v(t0)}, {v(n)}, 4, {v(t0)}\n s_lshl_b32 s56, s27, 12\n s_add_u32 s56, s56, {VN_OFF}')
    for i in range(4):
        g = D + 4*i
        cvt(b, g, D+16+i, D+20+i)
        b.I(f'v_mov_b32 {v(g+1)}, 0\n v_mov_b32 {v(g+2)}, 0\n v_add_u32 {v(g+3)}, s57, {v(g)}')
        b.I(f'buffer_store_dwordx4 {v(g,4)}, {v(t0)}, s[44:47], s56 offen offset:{256*i} sc1')
    b.emit(VERB)
    a.I('s_nop 1')
    a.label('L_b_nonyq', keep=True)
    stamp(a, 8)
    lo()
    for r in (vy, vnn, vnw, vw, vy1, vww): V.put(r)
    V.put(WNR, 2)
    b = Block(a, 'w2a')
    if D1 < 1: p3c_1(b)
    if D1 < 2: p3c_2(b)
    if E('D3', 0): p3c_3(b)
    G2 = V.get(2); vr = V.get(); vta = V.get(); vst = V.get(); sgn = V.get(); vn = V.get()
    AA_ = WR
    x0, x1 = WR + 1, WR + 2
    b.I(f'v_bfe_u32 {v(x0)}, v0, 2, 3\n v_bfe_u32 {v(x1)}, v0, 5, 1')
    b.I(f'v_lshl_add_u32 {v(GA)}, {v(x0)}, 5, {v(x1)}\n v_mul_u32_u24 {v(GA)}, {BS}, {v(GA)}\n v_add_u32 {v(GA)}, {v(GA)}, {v(vp16)}')
    b.I(f'v_lshl_add_u32 {v(AA_)}, {v(x1)}, 5, {v(x0)}\n v_mul_u32_u24 {v(AA_)}, {BS}, {v(AA_)}\n v_add_u32 {v(AA_)}, {v(AA_)}, {v(vp16)}')
    b.I(f's_mul_i32 s48, s3, {8*BS}\n s_add_u32 s48, s48, s24\n s_add_u32 s52, s48, {AW_OFF}\n s_add_u32 s48, s48, {V_OFF}')
    for k in range(1, 4): b.I(f's_add_u32 s{48+k}, s48, {2*k*BS}\n s_add_u32 s{52+k}, s52, {64*k*BS}')
    b.I(f'v_lshlrev_b32 {v(vr)}, 10, {v(q)}\n v_lshl_add_u32 {v(vr)}, {v(n)}, 4, {v(vr)}')
    b.I(f's_lshl_b32 s7, s3, 11\n v_bfe_u32 {v(t0)}, v0, 2, 4\n v_lshlrev_b32 {v(vun)}, 5, {v(t0)}\n v_and_b32 {v(t1)}, 1, v0\n v_lshl_add_u32 {v(vun)}, {v(t1)}, 4, {v(vun)}\n v_add_u32 {v(vun)}, s7, {v(vun)}')
    b.I(f'v_lshlrev_b32 {v(vta)}, 4, {v(t0)}\n v_lshl_add_u32 {v(vta)}, {v(t1)}, 3, {v(vta)}\n v_bfe_u32 {v(t0)}, v0, 1, 1\n v_lshl_add_u32 {v(vta)}, {v(t0)}, 8, {v(vta)}\n v_add_u32 {v(vta)}, s7, {v(vta)}')
    b.I(f'v_and_b32 {v(t0)}, 7, {v(n)}\n v_lshlrev_b32 {v(vst)}, 18, {v(t0)}\n v_lshlrev_b32 {v(t1)}, 2, {v(t0)}\n v_lshrrev_b32 {v(t0)}, 3, {v(n)}\n v_lshl_add_u32 {v(vst)}, {v(t0)}, 7, {v(vst)}')
    vgr = V.get(); b.I(f'v_mov_b32 {v(vgr)}, {v(t1)}')
    b.I(f'v_lshrrev_b32 {v(t0)}, 4, v0\n v_lshl_add_u32 {v(vst)}, {v(t0)}, 3, {v(vst)}\n s_lshl_b32 s9, s22, 10')
    NC, NS = WI, WI + 1
    b.I(f'v_bfe_u32 {v(vn)}, v0, 3, 3\n v_and_b32 {v(sgn)}, 7, v0\n v_lshlrev_b32 {v(sgn)}, 8, {v(sgn)}\n v_add_u32 {v(sgn)}, s22, {v(sgn)}\n v_mul_u32_u24 {v(sgn)}, {v(sgn)}, {v(vn)}')
    b.I(f'v_cvt_f32_u32 {v(sgn)}, {v(sgn)}\n v_mul_f32 {v(sgn)}, {f32(1/2048)}, {v(sgn)}\n v_cos_f32 {v(NC)}, {v(sgn)}\n v_sin_f32 {v(NS)}, {v(sgn)}')
    b.I(f'v_lshlrev_b32 {v(vn)}, 12, {v(vn)}\n s_lshl_b32 s62, s22, 4\n s_add_u32 s62, s62, {VN_OFF}')
    b.emit(VERB)
    if E('D2', 0): a.I(f's_sleep {E("D2", 0)}')
    stamp(a, 9)
    for x in loads: a.I(x)
    if not E('D3', 0): p3c_3(b)
    b.emit(VERB)
    SKL = [P2+4+i for i in range(6)] + [P2+28, P2+29] + [GW+4+i for i in range(4)] + [NG+i for i in range(4)]; UX = XA + 24; DK = XA + 16
    b.I(f'v_and_b32 {v(t0)}, 0x3ff, {v(vst)}\n v_mul_u32_u24 {v(t1)}, 264, {v(vgr)}\n v_add_u32 {v(t1)}, {v(t1)}, {v(t0)}')
    for ot in range(4): b.I(f'ds_read_b64 {v(UX+2*ot,2)}, {v(t1)} offset:{LX+256*ot} ;@X\n ds_read_b64 {v(DK+2*ot,2)}, {v(t0)} offset:{LDK+256*ot} ;@X')
    for i in range(8):
        b.I(f'v_lshlrev_b32 {v(SKL[2*i])}, 16, {v(UX+i)}\n v_lshlrev_b32 {v(SKL[2*i+1])}, 16, {v(DK+i)}\n v_mul_f32 {v(SKL[2*i])}, {v(SKL[2*i])}, {v(SKL[2*i+1])}')
        b.I(f'v_and_b32 {v(UX+i)}, 0xffff0000, {v(UX+i)}\n v_and_b32 {v(DK+i)}, 0xffff0000, {v(DK+i)}\n v_mul_f32 {v(SKL[2*i+1])}, {v(UX+i)}, {v(DK+i)}')
    if GPOS == 2: gate(b, POOL + 104, POOL + 112, T)
    else:
        b.I(f'ds_read_b32 {v(G2)}, {v(vgr)} offset:{LG} ;@G')
        b.I(f'v_sub_f32 {v(G2+1)}, 1.0, {v(G2)}\n v_mul_f32 {v(G2+1)}, {f32(2.0**-19)}, {v(G2+1)}')
        for i in range(16): b.I(f'v_mul_f32 {v(SKL[i])}, {v(G2)}, {v(SKL[i])}')
    b.emit(VERB)
    hi()
    tag_check(a, loads, R, TG, TM, 57)
    AL = POOL + 104; NQ = GW
    aloads = [f'buffer_load_dwordx4 {v(AL+4*k,4)}, {v(AA_)}, s[44:47], s{52+k} offen sc1' for k in range(4)] + [f'buffer_load_dwordx4 {v(NQ,4)}, {v(vn)}, s[44:47], s62 offen sc1']
    if E('APOS', 0) < 0:
        for x in aloads[:4]: a.I(x)
    unpack(a, LI1, R, vun, 1, 512)
    a.I('s_waitcnt lgkmcnt(0)\n s_barrier'); stamp(a, 10)
    X = POOL + 88
    b = Block(a, 'phase3')
    for g in range(2):
        for i in range(4): b.I(f'ds_read_b128 {v(R+16*g+4*i,4)}, {v(vr)} offset:{LI1+4096*g+256*i}')
    if not E('APOS', 0):
        for x in aloads: b.I(x)
    if E('APOS', 0) < 0: b.I(aloads[4])
    if GPOS == 2:
        b.I(f'ds_read_b32 {v(G2)}, {v(vgr)} offset:{LG}')
        b.I(f'v_sub_f32 {v(G2+1)}, 1.0, {v(G2)}\n v_mul_f32 {v(G2+1)}, {f32(2.0**-19)}, {v(G2+1)}')
        for i in range(16): b.I(f'v_mul_f32 {v(SKL[i])}, {v(G2)}, {v(SKL[i])}')
    for g in range(2):
        for i in range(4):
            for t in range(i+1, 4): b.I(f'v_swap_b32 {v(R+16*g+4*i+t)}, {v(R+16*g+4*t+i)}')
        for t in range(4):
            for p in range(2):
                d = ACC+8*t+4*p
                mfma(b, d, R+16*g+4*t, P1+8*g+4*p, d if g == 1 else '0')
    vos = vr; vor = vgr; OS = E('OS', 1040)
    b.I(f'v_and_b32 {v(t0)}, 7, {v(n)}\n v_mul_u32_u24 {v(vos)}, {OS}, {v(t0)}\n v_and_b32 {v(t0)}, 0x3ff, {v(vst)}\n v_add_u32 {v(vos)}, {v(vos)}, {v(t0)}')
    b.I(f's_mul_i32 s26, s3, {2*OS}\n v_add_u32 {v(vor)}, s26, {v(vl16)}\n s_lshl_b32 s24, s3, 19\n s_add_u32 s24, s24, s9\n s_add_u32 s25, s24, {256*1024}')
    A2 = R
    for t in range(4):
        re, im = ACC+8*t, ACC+8*t+4
        for i in range(4): cm1(b, re+i, im+i, PTC+4*t+i, PTS+4*t+i, T+8*(t&1)+2*i, T+8*(t&1)+2*i+1, +1)
        F = X + 4*t
        cvt(b, F, re, re+1); cvt(b, F+2, im, im+1); cvt(b, F+1, re+2, re+3); cvt(b, F+3, im+2, im+3)
        for ot in range(4):
            rot = (t*ot) % 4
            mfma(b, A2+4*ot, F, P2+10*t+2*rot, '0' if t == 0 else A2+4*ot)
    if E('APOS', 0) > 1: emit_split(b, E('APOS', 0) / 100, lambda: [a.I(x) for x in aloads])
    b.emit(VERB)
    stamp(a, 11)
    if E('APOS', 0) == 1:
        for x in aloads: a.I(x)
    if E('ONLYB', 0) or E('NOA', 0): a.I('s_waitcnt vmcnt(0)')
    else: tag_check(a, aloads, AL, TG, TM, 57, NQ, E('ABACKOFF', 8))
    a.I('s_or_b32 s56, s22, s3\n s_cmp_lg_u32 s56, 0\n s_cbranch_scc1 L_b_end')
    a.I(f's_mov_b64 exec, 0xffffffff\n v_mov_b32 {v(t0)}, s57\n v_lshlrev_b32 {v(t1)}, 2, v0\n s_mov_b32 s56, {EP_OFF}')
    a.I(f'buffer_store_dword {v(t0)}, {v(t1)}, s[44:47], s56 offen sc1\n s_mov_b64 exec, -1')
    a.label('L_b_end', keep=True)
    OUTM = E('OUTM', 1)
    b = Block(a, 'final')
    unpack(a, LI0, AL, vun, 1, 512)
    AA = R + 16
    for ot in range(4): b.I(f'ds_read_b64_tr_b16 {v(AA+2*ot,2)}, {v(vta)} offset:{LI0+512*ot}')
    b.I(f'v_lshlrev_b32 {v(NQ+1)}, 16, {v(NQ)}\n v_and_b32 {v(NQ)}, 0xffff0000, {v(NQ)}\n v_mul_f32 {v(NQ+1)}, {v(NQ+1)}, {v(NC)}\n v_fma_f32 {v(NQ)}, -{v(NQ)}, {v(NS)}, {v(NQ+1)}')
    b.I(f'v_add_f32_dpp {v(NQ)}, {v(NQ)}, {v(NQ)} row_ror:8 row_mask:0xf bank_mask:0xf')
    b.I(f'v_mov_b32 {v(NQ+1)}, {v(NQ)}\n v_permlane16_swap_b32 {v(NQ)}, {v(NQ+1)}\n v_add_f32 {v(NQ)}, {v(NQ)}, {v(NQ+1)}')
    b.I(f'v_mov_b32 {v(NQ+1)}, {v(NQ)}\n v_permlane32_swap_b32 {v(NQ)}, {v(NQ+1)}\n v_add_f32 {v(NQ)}, {v(NQ)}, {v(NQ+1)}\n v_mul_f32 {v(NQ)}, {v(NQ)}, {v(G2+1)}')
    for i in range(16): b.I(f'v_fma_f32 {v(A2+i)}, {v(G2+1)}, {v(A2+i)}, {v(SKL[i])}\n v_{"sub" if i & 1 else "add"}_f32 {v(A2+i)}, {v(A2+i)}, {v(NQ)}')
    AF = ACC
    for ot in range(4):
        for p in range(2):
            b.I(f'v_lshlrev_b32 {v(AF+4*ot+2*p)}, 16, {v(AA+2*ot+p)}\n v_and_b32 {v(AF+4*ot+2*p+1)}, 0xffff0000, {v(AA+2*ot+p)}')
        for p in range(2):
            x = AF+4*ot+2*p; bb = A2+4*ot+2*p
            b.I(f'v_fmac_f32 {v(bb)}, {v(x)}, {v(G2)}\n v_fmac_f32 {v(bb+1)}, {v(x+1)}, {v(G2)}')
            cvt(b, X+2*ot+p, bb, bb+1)
        if OUTM == 0:
            b.I(f'buffer_store_dwordx2 {v(X+2*ot,2)}, {v(vst)}, s[12:15], s9 offen offset:{256*ot}')
        else: b.I(f'ds_write_b64 {v(vos)}, {v(X+2*ot,2)} offset:{LX+256*ot}')
    b.emit(VERB)
    if OUTM:
        fl = {1: 'sc1', 2: 'nt', 3: '', 4: 'sc0 sc1'}[OUTM]
        a.I('s_waitcnt lgkmcnt(0)\n s_barrier')
        a.I(f'ds_read_b128 {v(R,4)}, {v(vor)} offset:{LX}\n ds_read_b128 {v(R+4,4)}, {v(vor)} offset:{LX+OS}')
        a.I(f'buffer_store_dwordx4 {v(R,4)}, {v(vl16)}, s[12:15], s24 offen {fl}\n buffer_store_dwordx4 {v(R+4,4)}, {v(vl16)}, s[12:15], s25 offen {fl}')
    endpgm(a, 44, 13, 0)

RS = 544
TB_CH = 53 * RS
KF_OFF = 2 * TB_CH + 64
KF_CH = 2368 + 64
K8_OFF = KF_OFF + 2 * KF_CH
K8_CH = 512
LU = K8_OFF + 2 * K8_CH
U_CH = 4608
LDS_BYTES = LU + 2 * U_CH
LK = 0
KC = 2240
LRED = 4 * KC
LAO = LRED + 16384
def cmul(a, d, x, y, t):
    if E('PKCHAIN', 1):
        a.I(f'v_pk_mul_f32 {v(t,2)}, {v(x,2)}, {v(y,2)} op_sel_hi:[0,1]')
        a.I(f'v_pk_fma_f32 {v(d,2)}, {v(x,2)}, {v(y,2)}, {v(t,2)} op_sel:[1,1,0] op_sel_hi:[1,0,1] neg_lo:[1,0,0]')
    else:
        a.I(f'v_mul_f32 {v(t)}, {v(x)}, {v(y)}\n v_mul_f32 {v(t+1)}, {v(x)}, {v(y+1)}')
        a.I(f'v_fma_f32 {v(d)}, -{v(x+1)}, {v(y+1)}, {v(t)}\n v_fma_f32 {v(d+1)}, {v(x+1)}, {v(y)}, {v(t+1)}')

class RoleA:
  def pre(self, a):
    V = self.V = VAlloc(1, 128); W = self.W = VAlloc(128, 256)
    a.label('L_a_pre', keep=True)
    if E('ONLYB', 0): a.I('s_endpgm')
    a.I(f's_setprio {E("APRIO", 2)}')
    task_of(a, 22, 23)
    n, q = self.n, self.q = lanes(a, V)
    t0 = self.t0 = V.get(); t1 = self.t1 = V.get()
    vp = W.get(); a.I(f'v_lshlrev_b32 {v(vp)}, 1, v0')
    vch = self.vch = V.get(); a.I(f'v_lshrrev_b32 {v(vch)}, 7, v0')
    vd = W.get(); a.I(f'v_lshlrev_b32 {v(vd)}, 1, {v(vch)}')
    vut = W.get()
    a.I(f'v_and_b32 {v(t1)}, 0xc0, v0\n v_lshl_add_u32 {v(t1)}, {v(n)}, 2, {v(t1)}\n v_lshl_add_u32 {v(vut)}, {v(q)}, 13, {v(t1)}')
    a.I('s_lshl_b32 s24, s22, 9\n s_lshl_b32 s25, s22, 2\n s_lshr_b32 s26, s23, 2\n s_lshl_b32 s26, s26, 3\n s_and_b32 s27, s2, 7\n s_add_u32 s26, s26, s27\n s_and_b32 s27, s23, 3')
    a.I(f's_lshl_b32 s28, s26, 15\n s_lshl_b32 s29, s27, 8\n s_add_u32 s28, s28, s29\n s_add_u32 s29, s28, 4096')
    a.I('s_mov_b32 s34, 131072\n s_mov_b32 s35, 0x00020000\n s_mov_b32 s38, 131072\n s_mov_b32 s39, 0x00020000\n s_mov_b32 s42, 1024\n s_mov_b32 s43, 0x00020000\n s_mov_b32 s46, 2097152\n s_mov_b32 s47, 0x00020000')
    a.I('s_waitcnt lgkmcnt(0)'); stamp(a, 1)
    self.PR = LA, AI, CR, CI, LD, DS = tuple(V.get() for _ in range(6))
    if E('TF', 0):
        a.I('s_mov_b32 s44, s4\n s_mov_b32 s45, s5')
        UTL = self.UTL = W.get(8)
        for e in range(8):
            if not E('NOTILE', 0): a.I(f'buffer_load_dword {v(UTL+e)}, {v(vut)}, s[44:47], s{28 if e < 4 else 29} offen offset:{(e%4)*1024}')
        srd(a, 48, 20, WS_BYTES)
        a.I(f's_add_u32 s20, s20, {EP_OFF}\n s_addc_u32 s21, s21, 0\n s_load_dword s4, s[20:21], 0')
    a.I(f's_mov_b32 s40, s14\n s_mov_b32 s41, s15\n buffer_load_short_d16_hi {v(LD)}, {v(vd)}, s[40:43], s25 offen')
    for k, r in enumerate((LA, AI, CR, CI)):
        d = 32 + 4*(k & 1)
        a.I(f's_mov_b32 s{d}, s{6+2*k}\n s_mov_b32 s{d+1}, s{7+2*k}\n buffer_load_short_d16_hi {v(r)}, {v(vp)}, s[{d}:{d+3}], s24 offen')
    if not E('TF', 0):
        a.I('s_mov_b32 s44, s4\n s_mov_b32 s45, s5')
        UTL = self.UTL = W.get(8)
        for e in range(8):
            if not E('NOTILE', 0): a.I(f'buffer_load_dword {v(UTL+e)}, {v(vut)}, s[44:47], s{28 if e < 4 else 29} offen offset:{(e%4)*1024}')
        srd(a, 48, 20, WS_BYTES)
        a.I(f's_add_u32 s20, s20, {EP_OFF}\n s_addc_u32 s21, s21, 0\n s_load_dword s4, s[20:21], 0')
    stamp(a, 12, False)
    self.st = (list(a.vm), list(a.lg))
  def body(self, a):
    V, W, n, q, t0, t1, vch, UTL = self.V, self.W, self.n, self.q, self.t0, self.t1, self.vch, self.UTL
    LA, AI, CR, CI, LD, DS = self.PR
    TOK, CH, HR = 4, 6, 7
    b = Block(a, 'a_shadow')
    vt16 = V.get(); b.I(f'v_lshlrev_b32 {v(vt16)}, 4, v0')
    vuts = W.get()
    UTC = E('UTC', 0)
    vul = vt16
    if not UTC:
        b.I(f'v_mul_u32_u24 {v(vuts)}, {BS//4}, {v(t1)}\n v_lshl_add_u32 {v(vuts)}, {v(q)}, 4, {v(vuts)}')
        b.I(f's_mul_i32 s27, s27, {64*BS}\n s_lshl_b32 s26, s26, 7\n s_add_u32 s26, s26, s27\n s_add_u32 s26, s26, {UT_OFF}\n s_add_u32 s27, s26, 4096\n s_add_u32 s28, s26, 8192')
    else:
        vul = V.get()
        b.I(f'v_lshlrev_b32 {v(vuts)}, 5, {v(t1)}\n v_lshl_add_u32 {v(vuts)}, {v(q)}, 4, {v(vuts)}\n s_mul_i32 s26, s22, {BS}\n s_add_u32 s26, s26, {UT_OFF}')
        b.I(f'v_bfe_u32 {v(vul)}, v0, 3, 3\n v_mul_u32_u24 {v(vul)}, {32*BS}, {v(vul)}\n v_and_b32 {v(t0)}, 0x70, {v(vt16)}\n v_add_u32 {v(vul)}, {v(vul)}, {v(t0)}')
    if E('PRE', 0) & 8:
        b.emit(VERB)
        a.I(f's_mov_b64 exec, 0xffff\n buffer_load_dword v253, {v(vuts)}, s[48:51], s26 offen\n s_mov_b64 exec, -1')
    b.I('s_mov_b32 s8, 0x05040100\n s_mov_b32 s9, 0x07060302')
    b.I(f's_and_b32 s{CH}, s3, 1\n s_lshr_b32 s{HR}, s3, 1\n s_mul_i32 s10, s{HR}, {TB_CH}\n s_lshl_b32 s11, s{CH}, 8\n s_add_u32 m0, s10, s11')
    if not UTC: b.I(f's_mul_i32 s52, s22, {BS}\n s_add_u32 s52, s52, {UT_OFF}\n s_add_u32 s53, s52, 4096')
    else: b.I(f's_lshr_b32 s52, s22, 6\n s_lshl_b32 s53, s3, 2\n s_add_u32 s52, s52, s53\n s_mul_i32 s52, s52, {BS}\n s_and_b32 s53, s22, 63\n s_lshl_b32 s53, s53, 7\n s_add_u32 s52, s52, s53\n s_add_u32 s52, s52, {UT_OFF}\n s_add_u32 s53, s52, {16*BS}')
    U0 = V.get(12, 4); EG = V.get(9, 1); TM = V.get(3, 1)
    J0, sh, JM, cst, kfb, yy, y1, y2, y3, y4, y5, y6 = (W.get() for _ in range(12))
    zero = V.get(); vks = V.get(); veg = V.get(); vem = V.get()
    b.I(f'v_mul_u32_u24 {v(kfb)}, {KF_CH}, {v(vch)}\n v_mov_b32 {v(zero)}, 0\n ds_write_b32 {v(kfb)}, {v(zero)} offset:{KF_OFF-8}')
    b.I(f'v_and_b32 {v(y6)}, 31, v0\n v_lshlrev_b32 {v(y6)}, 2, {v(y6)}\n v_lshl_add_u32 {v(y6)}, {v(vch)}, 9, {v(y6)}\n ds_write_b32 {v(y6)}, {v(zero)} offset:{K8_OFF}')
    b.I(f'v_mul_u32_u24 {v(y1)}, {U_CH - 512}, {v(vch)}\n v_lshl_add_u32 {v(y1)}, v0, 2, {v(y1)}\n v_add_u32 {v(y1)}, {LU}, {v(y1)}\n ds_write_b32 {v(y1)}, {v(zero)}')
    b.I(f'v_mov_b32 {v(y2)}, 0x3f80\n ds_write_addtid_b32 {v(y2)} offset:{21*RS}')
    vra = V.get(); vrb = V.get(); KW = V.get(4, 1); kw1 = V.get(); kw2 = V.get(); va = V.get(); vb = V.get(3, 1); vkz = V.get(); vuw = V.get(); vk8 = V.get(2, 1); vf = V.get(2, 1); BND = V.get(8, 4)
    b.I(f's_mul_i32 s10, s{CH}, {TB_CH}\n s_mul_i32 s11, s{HR}, {16*RS}\n s_add_u32 s11, s11, {21*RS}')
    b.I(f'v_mul_u32_u24 {v(vra)}, {RS}, {v(n)}\n v_lshl_add_u32 {v(vra)}, {v(q)}, 4, {v(vra)}\n v_add_u32 {v(vra)}, s10, {v(vra)}\n v_add_u32 {v(vrb)}, s11, {v(vra)}')
    def mid():
        J0, sh, JM, cst, kfb, yy, y3, y4, y5, y6 = range(232, 242)
        b.I(f's_mul_i32 s12, s{CH}, {KF_CH}\n s_mul_i32 s13, s{HR}, 288\n s_add_u32 s12, s12, s13\n s_add_u32 s12, s12, {KF_OFF}')
        b.I(f'v_lshlrev_b32 {v(kw1)}, 4, {v(n)}\n v_lshrrev_b32 {v(y3)}, 1, {v(n)}\n v_lshl_add_u32 {v(kw1)}, {v(y3)}, 2, {v(kw1)}\n v_add_u32 {v(kw1)}, s12, {v(kw1)}')
        b.I(f'v_lshlrev_b32 {v(t0)}, 3, {v(q)}\n s_mov_b32 s14, 0x90480100\n s_mov_b32 s15, 0x08040202\n s_mov_b32 s16, 0x90020101')
        b.I(f'v_bfe_u32 {v(KW)}, s14, {v(t0)}, 8\n v_lshl_add_u32 {v(KW)}, {v(KW)}, 3, {v(kw1)}')
        b.I(f'v_bfe_u32 {v(y3)}, s15, {v(t0)}, 8\n v_add_u32 {v(KW+1)}, {v(KW)}, {v(y3)}')
        b.I(f'v_bfe_u32 {v(KW+2)}, s16, {v(t0)}, 8\n v_lshl_add_u32 {v(KW+2)}, {v(KW+2)}, 2, {v(KW)}\n v_add_u32 {v(KW+3)}, {v(KW+2)}, {v(y3)}')
        b.I(f's_lshl_b32 s19, s{CH}, 9\n s_add_u32 s19, s19, {K8_OFF}\n s_lshl_b32 s13, s{HR}, 5\n s_add_u32 s13, s13, s19\n s_add_u32 s13, s13, 126')
        b.I(f'v_add_u32 {v(y5)}, 2304, {v(kw1)}\n v_lshlrev_b32 {v(kw1)}, 1, {v(n)}\n v_add_u32 {v(kw1)}, s13, {v(kw1)}')
        b.I(f'v_mov_b32 {v(y4)}, {LU + 512}\n v_cmp_eq_u32 vcc, 0, {v(q)}\n v_cndmask_b32 {v(kw2)}, {v(y4)}, {v(kw1)}, vcc')
        b.I(f'v_add_u32 {v(y4)}, 256, {v(kw1)}\n v_cmp_eq_u32 vcc, 1, {v(q)}\n v_cndmask_b32 {v(kw1)}, {v(kw2)}, {v(y4)}, vcc')
        b.I(f'v_and_b32 {v(y4)}, 0xbf, v0\n v_cmp_eq_u32 vcc, 0, {v(y4)}\n v_cndmask_b32 {v(kw1)}, {v(kw1)}, {v(y5)}, vcc')
        b.I(f'v_and_b32 {v(yy)}, 127, v0\n v_lshlrev_b32 {v(J0)}, 3, {v(yy)}\n v_sub_u32 {v(J0)}, 1016, {v(J0)}')
        b.I(f'v_mul_u32_u24 {v(vks)}, {2*KC}, {v(vch)}\n v_lshl_add_u32 {v(vks)}, {v(yy)}, 4, {v(vks)}')
        b.I(f'v_or_b32 {v(sh)}, 1, {v(J0)}\n v_ffbh_u32 {v(sh)}, {v(sh)}\n v_sub_u32 {v(sh)}, 24, {v(sh)}\n v_max_i32 {v(sh)}, 0, {v(sh)}')
        b.I(f'v_add_u32 {v(JM)}, 150, {v(sh)}\n v_lshlrev_b32 {v(JM)}, 23, {v(JM)}')
        b.I(f'v_mul_u32_u24 {v(kfb)}, {KF_CH}, {v(vch)}\n v_add_u32 {v(kfb)}, {KF_OFF}, {v(kfb)}')
        b.I(f'v_lshrrev_b32 {v(yy)}, {v(sh)}, {v(J0)}\n v_add_u32 {v(sh)}, 1, {v(sh)}')
        b.I(f'v_add_u32 {v(JM)}, {v(JM)}, {v(yy)}\n v_lshlrev_b32 {v(cst)}, {v(sh)}, {v(JM)}')
        b.I(f'v_lshrrev_b32 {v(yy)}, 4, {v(J0)}\n v_lshl_add_u32 {v(yy)}, {v(yy)}, 2, {v(kfb)}\n v_lshl_add_u32 {v(EG+1)}, {v(J0)}, 1, {v(yy)}\n v_sub_u32 {v(cst)}, {v(EG+1)}, {v(cst)}')
        b.I(f'v_add_u32 {v(yy)}, 16, {v(EG+1)}\n v_bfe_u32 {v(y5)}, {v(J0)}, 3, 1\n v_lshlrev_b32 {v(y5)}, 2, {v(y5)}')
        for e in range(1, 8):
            b.I(f'v_add_f32 {v(EG+1+e)}, {f32(float(e))}, {v(JM)}')
            b.I(f'v_lshl_add_u32 {v(EG+1+e)}, {v(EG+1+e)}, {v(sh)}, {v(cst)}')
            if e >= 6: b.I(f'v_cmp_eq_u32 vcc, {v(EG+1+e)}, {v(yy)}\n v_cndmask_b32 {v(EG)}, 0, {v(y5)}, vcc\n v_add_u32 {v(EG+1+e)}, {v(EG+1+e)}, {v(EG)}')
        b.I(f'v_sub_u32 {v(y5)}, 6, {v(y5)}\n v_cmp_ge_u32 vcc, 256, {v(J0)}\n v_cndmask_b32 {v(yy)}, 0, {v(y5)}, vcc\n v_sub_u32 {v(EG)}, {v(EG+1)}, {v(yy)}')
        b.I(f'v_add_u32 {v(veg)}, 2304, {v(kfb)}')
        b.I(f'v_bfe_u32 {v(y6)}, v0, 6, 1\n v_lshl_add_u32 {v(y6)}, {v(n)}, 1, {v(y6)}\n v_and_b32 {v(yy)}, 16, v0\n v_cmp_ne_u32 vcc, 0, {v(yy)}\n v_cndmask_b32 {v(y6)}, {v(y6)}, 0, vcc')
        b.I(f'v_mov_b32 {v(vem)}, 0x10000\n v_cmp_le_u32 vcc, 26, {v(y6)}\n v_cndmask_b32 {v(vem)}, 0, {v(vem)}, vcc\n v_cmp_le_u32 vcc, 27, {v(y6)}\n v_cndmask_b32 {v(y6)}, 0, 1, vcc\n v_or_b32 {v(vem)}, {v(vem)}, {v(y6)}')
        b.I(f's_mul_i32 s18, s3, {KC}\n v_and_b32 {v(y3)}, 16, v0\n v_mul_u32_u24 {v(y3)}, 132, {v(y3)}\n v_lshl_add_u32 {v(vkz)}, {v(n)}, 2, {v(y3)}\n v_add_u32 {v(vkz)}, s18, {v(vkz)}\n v_lshrrev_b32 {v(vuw)}, 3, v0\n v_lshlrev_b32 {v(vuw)}, 6, {v(vuw)}\n v_and_b32 {v(y3)}, 48, {v(vt16)}\n v_add_u32 {v(vuw)}, {v(vuw)}, {v(y3)}\n v_bfe_u32 {v(y3)}, v0, 2, 1\n v_mul_u32_u24 {v(y3)}, {U_CH}, {v(y3)}\n v_add_u32 {v(vuw)}, {v(vuw)}, {v(y3)}\n v_add_u32 {v(vuw)}, {LU + 512}, {v(vuw)}')
    if not E('MID', 0): mid()
    np_ = V.get()
    def late():
        y3 = 246
        b.I(f'v_lshlrev_b32 {v(t0)}, 3, {v(q)}\n s_lshl_b32 s13, s{HR}, 1\n v_xor_b32 {v(np_)}, s13, {v(n)}')
        b.I(f's_lshl_b32 s13, s{HR}, 8\n s_mul_i32 s12, s{CH}, {U_CH}\n s_sub_u32 s12, s12, s13\n s_add_u32 s12, s12, {LU + 512 - 32 - 192}')
        b.I(f'v_lshlrev_b32 {v(va)}, 5, {v(np_)}\n v_lshl_add_u32 {v(va)}, {v(q)}, 4, {v(va)}\n v_add_u32 {v(va)}, s12, {v(va)}')
        b.I(f's_mul_i32 s17, s{CH}, {2*KC}\n s_sub_u32 s17, s17, s13\n s_add_u32 s17, s17, {LK - 192 - 512}')
        b.I(f'v_sub_u32 {v(t1)}, {v(t0)}, {v(n)}\n v_add_u32 {v(t1)}, 1039, {v(t1)}')
        b.I(f'v_and_b32 {v(y3)}, 1, {v(t1)}\n v_mul_u32_u24 {v(y3)}, {KC}, {v(y3)}\n v_lshrrev_b32 {v(t1)}, 1, {v(t1)}')
        b.I(f'v_lshl_add_u32 {v(vb)}, {v(t1)}, 2, {v(y3)}\n v_add_u32 {v(vb)}, s17, {v(vb)}\n v_add_u32 {v(vb+1)}, -1024, {v(vb)}')
        b.I(f'v_add_u32 {v(vb+2)}, {192 + 512 - 2048}, {v(vb)}\n v_mov_b32 {v(y3)}, {LU}\n s_cmp_eq_u32 s{HR}, 0\n s_cselect_b64 s[30:31], -1, 0\n v_cndmask_b32 {v(vb+2)}, {v(y3)}, {v(vb+2)}, s[30:31]')
    def late2(b):
        y4 = t1
        b.I(f'v_lshlrev_b32 {v(y4)}, 5, {v(n)}\n v_lshl_add_u32 {v(y4)}, {v(q)}, 4, {v(y4)}')
        b.I(f's_mul_i32 s29, s{HR}, 768\n s_add_u32 s29, s29, s12\n s_add_u32 s29, s29, {192 - 16}\n v_add_u32 {v(vf)}, s29, {v(y4)}\n s_sub_u32 s29, s12, s13\n s_add_u32 s29, s29, {192 - 16 + 1536}\n v_add_u32 {v(vf+1)}, s29, {v(y4)}')
        b.I(f'v_lshlrev_b32 {v(y4)}, 2, {v(q)}\n v_sub_u32 {v(y4)}, {v(np_)}, {v(y4)}\n v_lshlrev_b32 {v(y4)}, 2, {v(y4)}\n s_lshl_b32 s13, s{HR}, 6')
        b.I(f's_sub_u32 s29, s19, s13\n s_add_u32 s29, s29, {128 - 12}\n v_add_u32 {v(vk8)}, s29, {v(y4)}\n s_add_u32 s29, s19, s13\n s_sub_u32 s29, s29, {64 + 12}\n v_add_u32 {v(vk8+1)}, s29, {v(y4)}')
        for k, (w_, s0) in enumerate(((7, 5), (9, 4))):
            b.I(f'v_mov_b32 {v(y4)}, {((1 << w_) - 1) << s0}\n v_lshlrev_b32 {v(y4)}, {v(n)}, {v(y4)}\n v_lshrrev_b32 {v(y4)}, {v(t0)}, {v(y4)}')
            for i in range(4):
                d = BND + 4*k + i
                b.I(f'v_bfe_u32 {v(d)}, {v(y4)}, {2*i}, 2\n v_mul_u32_u24 {v(d)}, 0x8001, {v(d)}\n v_and_b32 {v(d)}, 0x10001, {v(d)}\n v_mul_u32_u24 {v(d)}, 0x3f80, {v(d)}')
    if not E('LATE', 1): late()
    b.emit(VERB)
    if E('PRE', 0) & 4:
        a.I(f'v_lshlrev_b32 {v(y1)}, 7, {v(n)}\n s_mul_i32 s62, s22, {BS}\n s_lshl_b32 s63, s3, 11\n s_add_u32 s62, s62, s63\n s_add_u32 s62, s62, {AW_OFF}\n s_mov_b64 exec, 0xffff')
        a.I(f'buffer_load_dword v254, {v(y1)}, s[48:51], s62 offen\n s_mov_b64 exec, -1')
    stamp(a, 2)
    def utpub():
        mktok(a, TOK, 5)
        TU = U0 + 8
        tagregs(b, TU, y1, TOK, 5, f'v_lshlrev_b32 {v(y1)}, 2, {v(q)}', False)
        for i in range(4):
            b.I(f'v_perm_b32 {v(U0+i)}, {v(UTL+2*i+1)}, {v(UTL+2*i)}, s8\n v_bfi_b32 {v(U0+i)}, s5, {v(TU+i)}, {v(U0+i)}')
            b.I(f'v_perm_b32 {v(U0+4+i)}, {v(UTL+2*i+1)}, {v(UTL+2*i)}, s9\n v_bfi_b32 {v(U0+4+i)}, s5, {v(TU+i)}, {v(U0+4+i)}')
        for k in range(2): b.I(f'buffer_store_dwordx4 {v(U0+4*k,4)}, {v(vuts)}, s[48:51], s26 offen offset:{64*k} sc1 ;!3000')
    TG = V.get(4, 1)
    dt = W.get(); ar_ = W.get(); rev = W.get()
    b = Block(a, 'a_chain')
    if E('UTPOS', 0) < 0:
        utpub(); b.emit(VERB); stamp(a, 4)
    b.I(f'v_mul_f32 {v(dt)}, {f32(LOG2E)}, {v(LD)}\n v_mul_f32 {v(ar_)}, {f32(LOG2E)}, {v(LA)}\n v_exp_f32 {v(dt)}, {v(dt)}\n v_exp_f32 {v(ar_)}, {v(ar_)}')
    cvt(b, t0, dt, ar_)
    b.I(f'v_lshlrev_b32 {v(dt)}, 16, {v(t0)}\n v_and_b32 {v(ar_)}, 0xffff0000, {v(t0)}')
    b.I(f'v_mul_f32 {v(ar_)}, {v(ar_)}, {v(dt)}\n v_mul_f32 {v(ar_)}, {f32(-LOG2E)}, {v(ar_)}')
    b.I(f'v_mul_f32 {v(rev)}, {v(AI)}, {v(dt)}\n v_mul_f32 {v(rev)}, 0.15915494, {v(rev)}')
    Z = {}
    mag = W.get(4); ang = W.get(4)
    for k, p in enumerate((8, 1, 128, 256)):
        Z[p] = W.get(2)
        b.I(f'v_mul_f32 {v(mag+k)}, {f32(float(p))}, {v(ar_)}\n v_mul_f32 {v(ang+k)}, {f32(float(p))}, {v(rev)}')
        b.I(f'v_fract_f32 {v(ang+k)}, {v(ang+k)}\n v_exp_f32 {v(mag+k)}, {v(mag+k)}')
        b.I(f'v_cos_f32 {v(Z[p])}, {v(ang+k)}\n v_sin_f32 {v(Z[p]+1)}, {v(ang+k)}')
    Ee = W.get(16)
    b.I(f'v_add_f32 {v(dt)}, {v(dt)}, {v(dt)}\n v_mul_f32 {v(Ee)}, {v(CR)}, {v(dt)}\n v_mul_f32 {v(Ee+1)}, {v(CI)}, {v(dt)}')
    for k, p in enumerate((8, 1, 128, 256)):
        b.I(f'v_mul_f32 {v(Z[p])}, {v(mag+k)}, {v(Z[p])}\n v_mul_f32 {v(Z[p]+1)}, {v(mag+k)}, {v(Z[p]+1)}')
    TT = W.get(8); PK = W.get(8); O = W.get(4); H = W.get(4)
    cnt = [0]
    def put(row, x, neg):
        r = PK + cnt[0] % 8; cnt[0] += 1
        cvt(b, r, x, x+1, False, neg)
        b.I(f'ds_write_addtid_b32 {v(r)} offset:{row*RS} ;@T{row}')
    offs_ops = []; cur = Z[8]
    offs_ops.append(lambda: (put(21+1, Z[8], False), put(21+16, Z[128], False)))
    offs_ops.append(lambda: (cmul(b, H, Z[8], Z[128], TT+2), put(21+17, H, False)))
    for i in range(2, 16):
        nxt = O + 2*(i % 2)
        def f(i=i, cur=cur, nxt=nxt):
            cmul(b, nxt, cur, Z[8], TT); cmul(b, H + 2*(i % 2), nxt, Z[128], TT+2)
            put(21+i, nxt, False); put(21+16+i, H + 2*(i % 2), False)
        offs_ops.append(f); cur = nxt
    base_ops = [lambda: put(0, Ee, True)]
    for e in range(1, 8): base_ops.append(lambda e=e: (cmul(b, Ee+2*e, Ee+2*e-2, Z[1], TT+4), put(e, Ee+2*e, True)))
    for k, e in enumerate((0, 2, 4, 6)): base_ops.append(lambda k=k, e=e: (cmul(b, Ee+2*e, Ee+2*e, Z[256], TT+4), put(8+k, Ee+2*e, True)))
    for i in range(2):
        for k, e in enumerate((0, 4)): base_ops.append(lambda i=i, k=k, e=e: (cmul(b, Ee+2*e, Ee+2*e, Z[256], TT+4), put(12+2*i+k, Ee+2*e, True)))
    for i in range(5): base_ops.append(lambda i=i: (cmul(b, Ee, Ee, Z[256], TT+4), put(16+i, Ee, True)))
    uloads = [f'buffer_load_dwordx4 {v(U0+4*k,4)}, {v(vul)}, s[48:51], s{52+k} offen sc1' for k in range(2)]
    it = 0
    while offs_ops or base_ops:
        if E('UPOS', 1) == 3 and it == E('UIT', 12):
            b.emit(VERB)
            for x in uloads: a.I(x)
        if it == E('UTPOS', 0):
            b.emit(VERB); stamp(a, 4); utpub()
        it += 1
        if offs_ops: offs_ops.pop(0)()
        if base_ops: base_ops.pop(0)()
    ACCK = V.get(8, 4); PK = V.get(4)
    b.emit(VERB)
    if E('UPOS', 1) == 2:
        for x in uloads: a.I(x)
    if E('KPRIO', -1) >= 0: a.I(f's_setprio {E("KPRIO", -1)}')
    a.I('s_waitcnt lgkmcnt(0)\n s_barrier'); stamp(a, 5)
    S = [128, 192]; FR = 128
    if E('UPOS', 1) == 0:
        for x in uloads: a.I(x)
    b = Block(a, 'kmfma')
    for k in range(8):
        b.I(f'ds_read_b128 {v(FR+12*k,4)}, {v(vrb)} offset:{64*k} ;@T')
        b.I(f'ds_read_b128 {v(FR+12*k+4,4)}, {v(vra)} offset:{64*k} ;@T')
        b.I(f'ds_read_b128 {v(FR+12*k+8,4)}, {v(vra)} offset:{64*k+16*RS} ;@T')
    for k in range(8):
        mfma(b, ACCK, FR+12*k+4, FR+12*k, '0' if k == 0 else ACCK); mfma(b, ACCK+4, FR+12*k+8, FR+12*k, '0' if k == 0 else ACCK+4)
    if E('MID', 0): mid()
    if E('LATE', 1) == 2: late(); tagregs(b, TG, 245, TOK, 5)
    cvt(b, PK, ACCK, ACCK+1); cvt(b, PK+1, ACCK+2, ACCK+3); cvt(b, PK+2, ACCK+4, ACCK+5); cvt(b, PK+3, ACCK+6, ACCK+7)
    b.I(f'ds_write_b16 {v(KW)}, {v(PK)} ;@K0 ;!300\n ds_write_b16_d16_hi {v(KW+1)}, {v(PK)} ;@K1 ;!300\n ds_write_b16 {v(KW+2)}, {v(PK+1)} ;@K2 ;!300\n ds_write_b16_d16_hi {v(KW+3)}, {v(PK+1)} ;@K3 ;!300')
    b.I(f'ds_write_b16 {v(kw1)}, {v(PK+2)} ;@K4 ;!300\n ds_write_b16_d16_hi {v(kw2)}, {v(PK+2)} offset:64 ;@K5 ;!300')
    b.I(f'ds_write_b16 {v(kw2)}, {v(PK+3)} offset:128 ;@K6 ;!300\n ds_write_b16_d16_hi {v(kw2)}, {v(PK+3)} offset:192 ;@K7 ;!300')
    b.emit(VERB)
    if E('UPOS', 1) == 4:
        for x in uloads: a.I(x)
    a.I('s_waitcnt lgkmcnt(0)\n s_barrier'); stamp(a, 6)
    for e in range(8, -1, -1): a.I(f'ds_read_u16 {v(EG+e)}, {v(EG+e)}')
    a.I(f'ds_read_u16 {v(veg)}, {v(veg)}')
    if E('UPOS', 1) == 1 and not E('NOUT', 0):
        for x in uloads: a.I(x)
    EO = FR
    for bb in range(4):
        a.I(f'v_lshl_or_b32 {v(EO+bb)}, {v(EG+1+6-2*bb)}, 16, {v(EG+1+7-2*bb)}')
        a.I(f'v_lshl_or_b32 {v(EO+4+bb)}, {v(EG+1+5-2*bb)}, 16, {v(EG+1+6-2*bb)}')
    a.I(f'ds_write_b128 {v(vks)}, {v(EO,4)} offset:{LK+64}\n ds_write_b128 {v(vks)}, {v(EO+4,4)} offset:{LK+KC+64}')
    a.I(f'v_mul_u32_u24 {v(veg)}, {v(veg)}, {v(vem)}\n ds_write_b32 {v(vkz)}, {v(veg)} offset:{LK}')
    if E('LATE', 1) == 1: late()
    if E('LATE', 1) < 2:
        tagregs(b, TG, 245, TOK, 5); b.emit(VERB)
    if E('UPOS', 1) == 5:
        for x in uloads: a.I(x)
    stamp(a, 7)
    tag_check(a, uloads, U0, TG, TM, TOK)
    a.I(f'ds_write_b128 {v(vuw)}, {v(U0,4)}\n ds_write_b128 {v(vuw)}, {v(U0+4,4)} offset:2048')
    a.I(f's_setprio {E("CPRIO", 2)}')
    a.I('s_waitcnt lgkmcnt(0)\n s_barrier'); stamp(a, 8)
    V.put(EG, 9); V.put(ACCK, 8); V.put(KW, 4); V.put(PK, 4); V.put(U0, 12)
    ACC = V.get(32, 4)
    b = Block(a, 'conv')
    S = [128, 176]; X = 224
    def loads(rl):
        L = []
        for k in range(8):
            if k < 4:
                o = 16*(3-rl) + (128 if k % 2 == 0 else 0)
                r = S[rl%2] + 32 + 4*k
                L += [f'ds_read2_b32 {v(r,2)}, {v(vb+k//2)} offset0:{o} offset1:{o+1}', f'ds_read2_b32 {v(r+2,2)}, {v(vb+k//2)} offset0:{o+2} offset1:{o+3}']
            L.append(f'ds_read_b128 {v(S[rl%2]+4*k,4)}, {v(va)} offset:{64*(3-rl)+512*k}')
        return L
    def mf(d, A, B, c): return f'v_mfma_f32_16x16x32_bf16 {v(d,4)}, {v(A,4)}, {v(B,4)}, {c if isinstance(c, str) else v(c,4)}'
    SB = V.get(8, 4); SD = V.get(16, 4)
    for x in loads(0): a.I(x)
    a.I(f'ds_read2_b32 {v(X,2)}, {v(vb+2)} offset0:0 offset1:1\n ds_read2_b32 {v(X+2,2)}, {v(vb+2)} offset0:2 offset1:3')
    L2 = E('L2', 1)
    bb = Block(a); late2(bb); fill = bb.l
    if not L2:
        pass
    extra = {0: [], 1: [], 2: []}
    for k in range(2):
        extra[1] += [f'ds_read_b128 {v(X+4+8*k,4)}, {v(vf+k)} offset:16', f'ds_read_b128 {v(X+8+8*k,4)}, {v(vf+k)}']
    def k8(r, k, T):
        o = 16*(T-4)
        return [f'ds_read2_b32 {v(r,2)}, {v(vk8+k)} offset0:{o+3} offset1:{o+2}', f'ds_read2_b32 {v(r+2,2)}, {v(vk8+k)} offset0:{o+1} offset1:{o}']
    far = [(0, 4), (0, 5), (0, 6), (0, 7), (1, 6), (1, 7)]
    for j, (k, T) in enumerate(far): extra[2] += k8(X+4*j, k, T)
    for k in range(2):
        for i in range(4): extra[2].append(f'v_cvt_pk_bf16_f32 {v(SB+4*k+i)}, {v(SD+8*k+i)}, {v(SD+8*k+4+i)}')
    for _ in range(24): a.I(fill.pop(0))
    for rl in range(4):
        pairs = sorted([(i, g) for i in range(8) for g in range(4) if i + g <= 7], key=lambda p: (max(p), p[0]+p[1]))
        if rl == 3: pairs = sorted(pairs, key=lambda p: (p[0]+p[1]) // 2)
        M = []; seen = set()
        for (i, g) in pairs:
            d = ACC + 4*(i+g)
            first = (rl == 0 and (i+g) not in seen); seen.add(i+g)
            M.append(mf(d, S[rl%2]+4*i, S[rl%2]+32+4*g, '0' if first else d))
        if rl == 0: M += [mf(ACC+4*(i+4), S[0]+4*i, X, ACC+4*(i+4)) for i in range(4)]
        if rl == 1: M += [mf(SD+8*k+4*h, X+4+8*k+4*h, BND+4*h, '0') for k in range(2) for h in range(2)]
        if rl == 3:
            tailM = [mf(ACC+4*T, X+4*j, SB+4*k, ACC+4*T) for j, (k, T) in enumerate(far)] + M; break
        nxt = (extra[rl] + loads(rl+1)) if rl == 1 else (loads(rl+1) + extra[rl])
        for k, x in enumerate(M):
            a.I(x)
            if k >= (4 if rl == 0 else 0):
                for _ in range(2 if (rl == 2 and k % 2) else 1):
                    if nxt: a.I(nxt.pop(0))
            if fill and rl < 2:
                a.I(fill.pop(0))
        for x in nxt: a.I(x)
    assert not fill
    vps = V.get()
    b.I(f's_mul_i32 s56, s3, 3072\n v_bfe_u32 {v(vps)}, v0, 1, 5\n v_mul_u32_u24 {v(vps)}, 48, {v(vps)}\n v_and_b32 {v(t0)}, 1, v0\n v_lshl_add_u32 {v(vps)}, {v(t0)}, 4, {v(vps)}\n v_add_u32 {v(vps)}, s56, {v(vps)}\n s_lshl_b32 s56, s3, 11')
    vrw = V.get(); vrr = V.get(); vao = V.get(); vl16 = V.get()
    b.I(f'v_lshlrev_b32 {v(vrw)}, 3, v0\n v_xor_b32 {v(vrr)}, 1024, {v(vrw)}')
    b.I(f'v_lshlrev_b32 {v(vao)}, 6, {v(q)}\n v_add_u32 {v(vao)}, {v(vao)}, {v(n)}\n v_mul_u32_u24 {v(vao)}, 48, {v(vao)}\n s_mul_i32 s10, s{HR}, {32*48}\n s_lshl_b32 s11, s{CH}, 4\n s_add_u32 s10, s10, s11\n v_add_u32 {v(vao)}, s10, {v(vao)}')
    b.I(f'v_and_b32 {v(vl16)}, 1023, {v(vt16)}\n s_mul_i32 s62, s22, {BS}\n s_add_u32 s62, s62, s56\n s_add_u32 s62, s62, {AW_OFF}')
    R = S[0] + 16
    fl = b.l; b.l = []
    last = {}
    for k, x in enumerate(tailM): last[int(x.split('v[')[1].split(':')[0])] = k
    pend = []
    for k, x in enumerate(tailM):
        a.I(x)
        for _ in range(2):
            if fl: a.I(fl.pop(0))
        for i in range(8):
            if last[ACC+4*i] + 4 == k and not fl: a.I(f'ds_write_b64 {v(vrw)}, {v(ACC+4*i+2,2)} offset:{LRED+2048*i}'); pend.append(i)
    for i in range(8):
        if i not in pend: a.I(f'ds_write_b64 {v(vrw)}, {v(ACC+4*i+2,2)} offset:{LRED+2048*i}')
    stamp(a, 9)
    a.I(f's_setprio {E("EPRIO", 3)}')
    a.I('s_waitcnt lgkmcnt(0)\n s_barrier')
    for i in range(8): a.I(f'ds_read_b64 {v(R+2*i,2)}, {v(vrr)} offset:{LRED+2048*i}')
    for i in range(16): a.I(f'v_add_f32 {v(R+i)}, {v(R+i)}, {v(ACC+4*(i//2)+(i&1))}')
    Oo = X
    for jj in range(2):
        for i in range(4): cvt(a, Oo+4*jj+i, R+4*i+jj, R+4*i+2+jj)
        a.I(f'ds_write_b128 {v(vao)}, {v(Oo+4*jj,4)} offset:{LAO+768*jj}')
    a.I('s_waitcnt lgkmcnt(0)\n s_barrier')
    if not E('NOA', 0): publish(a, LAO, X + 8, vps, TG, vl16, 48, 62, 5)
    endpgm(a, 48, 10, 1)

if __name__ == '__main__':
    out = sys.argv[1]
    a = Asm()
    a.raw(f'.globl {NAME}\n.p2align 8\n.type {NAME},@function\n{NAME}:')
    if PROF:
        for i in range(NST): a.I(f's_mov_b32 s{64+2*i}, 0')
        a.I('s_mov_b32 s60, 0')
    stamp(a, 0)
    a.I('s_load_dwordx16 s[4:19], s[0:1], 0\n s_load_dwordx2 s[20:21], s[0:1], 104\n s_load_dwordx8 s[48:55], s[0:1], 64')
    if PREFETCH:
        a.I(f's_cmp_ge_u32 s2, {8*PREFETCH}\n s_cbranch_scc1 L_nopf')
        a.I('s_getpc_b64 s[62:63]')
        a.label('L_pc', keep=True)
        a.I(f'v_lshlrev_b32 v1, 7, v0\n v_cmp_gt_u32 vcc, L_code_end-L_pc, v1\n s_and_saveexec_b64 s[58:59], vcc\n s_cbranch_execz L_pf2')
        a.I(f'global_load_dword v255, v1, s[62:63]')
        a.label('L_pf2', keep=True)
        a.I('s_mov_b64 exec, -1')
        a.label('L_nopf', keep=True); a.vm = []
    lo, hi = ('L_a_pre', 'L_b_pre') if AFIRST else ('L_b_pre', 'L_a_pre')
    a.I(f's_cmp_ge_u32 s2, 512\n s_cbranch_scc1 L_exit')
    if E('SEP', 0):
        a.I('s_bfe_u32 s4, s2, 0x10003\n s_bfe_u32 s5, s2, 0x10008\n s_and_b32 s2, s2, 0xf7\n s_lshl_b32 s4, s4, 8\n s_lshl_b32 s5, s5, 3\n s_or_b32 s2, s2, s4\n s_or_b32 s2, s2, s5')
    if E('SCRAMBLE', 0): a.I('s_lshr_b32 s58, s2, 3\n s_mul_i32 s58, s58, 37\n s_and_b32 s58, s58, 7\n s_xor_b32 s2, s2, s58\n s_bfe_u32 s58, s2, 0x10004\n s_lshl_b32 s58, s58, 8\n s_xor_b32 s2, s2, s58')
    a.I('s_cmp_lt_u32 s2, 256')
    A = RoleA()
    if E('BCODE', 2) == 2:
        a.I('s_cbranch_scc1 L_a_pre' if AFIRST else 's_cbranch_scc0 L_a_pre')
        def sp():
            a.reset(); a.lg = [('smem', {('s', i) for i in list(range(4, 22)) + list(range(48, 56))})]
            A.pre(a); A.body(a)
            a.label('L_exit'); a.I('s_endpgm')
        role_b(a, sp)
        nb = 0
    elif E('BCODE', 2):
        a.I('s_cbranch_scc1 L_a_pre' if AFIRST else 's_cbranch_scc0 L_a_pre')
        role_b(a)
        nb = a.ninst
        a.label('L_exit'); a.I('s_endpgm')
        a.reset(); a.lg = [('smem', {('s', i) for i in list(range(4, 22)) + list(range(48, 56))})]
        A.pre(a); A.body(a)
    else:
        a.I('s_cbranch_scc0 L_b_pre' if AFIRST else 's_cbranch_scc1 L_b_pre')
        A.pre(a)
        A.body(a)
        nb = a.ninst
        a.label('L_exit'); a.I('s_endpgm')
        role_b(a)
    a.raw('L_code_end:')
    nv = (a.maxv + 1 + 3) // 4 * 4
    print('vgpr', a.maxv + 1, 'sgpr', a.maxs + 1, 'ninst', nb, a.ninst - nb, 'lds', LDS_BYTES, file=sys.stderr)
    launch = f'; @launch kernel={NAME} grid=(512,1,1) block=(256,1,1) lds={LDS_BYTES}' if os.environ.get('LIST') else f'; @launch grid=(512,1,1) block=(256,1,1) lds={LDS_BYTES}'
    hdr = f'''; gated_mix( S4D causal conv , GFNet 2-D spectral filter ) -- one persistent launch, written by gen/gen35.py
{launch}
.amdgcn_target "amdgcn-amd-amdhsa--gfx950"
.text
'''
    kd = f'''.section .rodata,"a"
.p2align 6
.amdhsa_kernel {NAME}
  .amdhsa_next_free_vgpr {nv}
  .amdhsa_next_free_sgpr {a.maxs + 1}
  .amdhsa_accum_offset {nv}
  .amdhsa_group_segment_fixed_size 0
  .amdhsa_kernarg_size 112
  .amdhsa_user_sgpr_count 2
  .amdhsa_user_sgpr_kernarg_segment_ptr 1
  .amdhsa_system_sgpr_workgroup_id_x 1
.end_amdhsa_kernel
'''
    open(out, 'w').write(hdr + a.text() + kd)
```

```python
import sys, math, os
from asmlib import *
E = lambda k, d: int(os.environ.get(k, str(d)))
BS = 8192 + E('BSPAD', 256)
Y_OFF  = 0x000000
V_OFF  = 256*BS if E('COMPACT', 1) else 0x310000
AW_OFF = 2*V_OFF
UT_OFF = 3*V_OFF
YN_OFF = 0xC60000
VN_OFF = 0xC50000
EP_OFF = 0xC40000
WS_BYTES = 0x1000000
LOG2E = 1.4426950408889634
BC = 1.0 + E('BCP', 28) * 1e-4
TOKC = 0x9E3779B9
SPIN = 30000
PROF = E('PROF', 0); PREFETCH = E('PREFETCH', 1); BPRIO = E('BPRIO', 2); WPOS = E('WPOS', 1); BACKOFF = E('BACKOFF', 4)
AFIRST = E('AFIRST', 1); WPF = E('WPF', 1)
NAME = 'gated_mix__ssm_conv_s4d__spectral_gfnet__prompt_kernel'
DBG_OFF = 0xFC0000
NST = 15
SKIP = ()
KEEP = [int(x) for x in os.environ.get('KEEP', '0,4,8,10,13,14').split(',')]
def stamp(a, i, wait=True):
    if PROF == 3:
        if i in KEEP: a.raw(f'    s_memrealtime s[{64+2*i}:{65+2*i}]')
        return
    if PROF and i not in SKIP:
        if wait: a.I(f's_memrealtime s[{64+2*i}:{65+2*i}]\n s_waitcnt lgkmcnt(0)')
        else: a.I(f's_memrealtime s[{64+2*i}:{65+2*i}]')
def endpgm(a, srdb, last, role):
    if PROF:
        stamp(a, last)
        a.I('s_waitcnt vmcnt(0)')
        stamp(a, last + 1)
        a.I('s_waitcnt lgkmcnt(0)\n s_mov_b64 exec, 1')
        for i in range(16): a.I(f'v_mov_b32 v{4+i}, s{64+2*i}' if i < NST else f'v_mov_b32 v{4+i}, s60')
        a.I(f's_and_b32 s61, s2, 255\n s_lshl_b32 s61, s61, 2\n s_add_u32 s61, s61, s3\n s_lshl_b32 s61, s61, 6\n s_add_u32 s61, s61, {DBG_OFF + role*65536}')
        a.I('v_mov_b32 v1, 0')
        for k in range(4): a.I(f'buffer_store_dwordx4 v[{4+4*k}:{7+4*k}], v1, s[{srdb}:{srdb+3}], s61 offen offset:{16*k}')
    a.I('s_endpgm')
def srd(a, d, b, nbytes):
    if nbytes == WS_BYTES and E('WSBASE', 0): a.I(f's_add_u32 s{b}, s{b}, {E("WSBASE", 0) << 20}\n s_addc_u32 s{b+1}, s{b+1}, 0')
    a.I(f's_mov_b32 s{d}, s{b}\n s_mov_b32 s{d+1}, s{b+1}\n s_mov_b32 s{d+2}, {nbytes}\n s_mov_b32 s{d+3}, 0x00020000')
def task_of(a, dst, tmp):
    a.I(f's_and_b32 s{dst}, s2, 7\n s_lshl_b32 s{dst}, s{dst}, 5\n s_bfe_u32 s{tmp}, s2, 0x50003\n s_or_b32 s{dst}, s{dst}, s{tmp}')
def lanes(a, V):
    n, q = V.get(), V.get()
    a.I(f'v_lshrrev_b32 {v(q)}, 6, v0')
    a.I(f'v_and_b32 {v(n)}, 15, v0')
    a.I(f'v_readfirstlane_b32 s3, {v(q)}')
    a.I(f'v_bfe_u32 {v(q)}, v0, 4, 2')
    return n, q
def cm1(a, re, im, c, s_, t1, t2, sign):
    a.I(f'v_mul_f32 {v(t1)}, {v(im)}, {v(s_)}\n v_mul_f32 {v(t2)}, {v(re)}, {v(s_)}')
    a.I(f'v_fma_f32 {v(re)}, {v(re)}, {v(c)}, {"-" if sign > 0 else ""}{v(t1)}')
    a.I(f'v_fma_f32 {v(im)}, {v(im)}, {v(c)}, {"-" if sign < 0 else ""}{v(t2)}')
def cmul_tw(a, re, im, c, s_, t1, t2, sign):
    cm1(a, re, im, c, s_, t1, t2, sign); cm1(a, re+1, im+1, c+1, s_+1, t1+1, t2+1, sign)
def mfma(a, d, A, B, c):
    a.I(f'v_mfma_f32_16x16x32_bf16 {v(d,4)}, {v(A,4)}, {v(B,4)}, {c if isinstance(c,str) else v(c,4)}')
def cvt(a, d, x, y, nx=False, ny=False):
    a.I(f'v_cvt_pk_bf16_f32 {v(d)}, {"-" if nx else ""}{v(x)}, {"-" if ny else ""}{v(y)}')
def chk(a, g, tok):
    a.I(f'v_add3_u32 {v(g+3)}, {v(g)}, {v(g+1)}, {v(g+2)}\n v_add_u32 {v(g+3)}, s{tok}, {v(g+3)}')
_lab = [0]
def poll_check(a, loads, R, tmp, tok, backoff=None, young=0):
    _lab[0] += 1
    L = f'L_poll{_lab[0]}'
    bo = BACKOFF if backoff is None else backoff
    Gs = R if isinstance(R, list) else [R, R+4, R+8]
    a.I(f's_mov_b32 s59, {SPIN}')
    a.label(L, keep=True)
    for k, g in enumerate(Gs):
        a.I(f's_waitcnt vmcnt({len(Gs)-1-k+young})')
        a.I(f'v_add3_u32 {v(tmp+1)}, {v(g)}, {v(g+1)}, {v(g+2)}\n v_sub_u32 {v(tmp+1)}, {v(g+3)}, {v(tmp+1)}')
        a.I(f'v_xor_b32 {v(tmp)}, s{tok}, {v(tmp+1)}' if k == 0 else f'v_xor_b32 {v(tmp+1)}, s{tok}, {v(tmp+1)}\n v_or_b32 {v(tmp)}, {v(tmp)}, {v(tmp+1)}')
    a.I(f'v_cmp_ne_u32 vcc, 0, {v(tmp)}\n s_cbranch_vccz {L}_out\n s_sub_u32 s59, s59, 1\n s_cbranch_scc1 {L}_out\n s_mov_b64 exec, vcc')
    if bo: a.I(f's_sleep {bo}')
    for x in loads: a.I(x)
    if young: a.I('s_waitcnt vmcnt(0)')
    a.I(f's_branch {L}')
    a.label(L + '_out', keep=True)
    a.vm = []
    a.I('s_mov_b64 exec, -1')
def mktok(a, tok, tmp):
    a.I(f's_xor_b32 s{tok}, s{tok}, 0xffff\n s_add_u32 s{tok}, s{tok}, 0x9e370000')
def tagregs(a, TG, t0, tok, sm, piece4=None, clean=True):
    a.I(piece4 or f'v_and_b32 {v(t0)}, 3, v0\n v_lshlrev_b32 {v(t0)}, 2, {v(t0)}')
    a.I(f's_mov_b32 s{sm}, 0x10001\n v_lshrrev_b32 {v(TG)}, {v(t0)}, s{tok}')
    for i in range(1, 4): a.I(f'v_lshrrev_b32 {v(TG+i)}, {i}, {v(TG)}')
    if clean:
        for i in range(4): a.I(f'v_and_b32 {v(TG+i)}, 0x10001, {v(TG+i)}')
def publish(a, img, R, vps, TG, vl16, srdb, soff, sm):
    for k in range(2): a.I(f'ds_read_b128 {v(R+4*k,4)}, {v(vps)} offset:{img+1536*k}')
    for k in range(2):
        for i in range(4): a.I(f'v_bfi_b32 {v(R+4*k+i)}, s{sm}, {v(TG+i)}, {v(R+4*k+i)}')
        a.I(f'buffer_store_dwordx4 {v(R+4*k,4)}, {v(vl16)}, s[{srdb}:{srdb+3}], s{soff} offen offset:{1024*k} sc1')
def tag_check(a, loads, R, TG, tmp, tok, extra=None, backoff=None, young=0):
    _lab[0] += 1
    L = f'L_tag{_lab[0]}'
    bo = BACKOFF if backoff is None else backoff
    nl = len(loads)
    a.I(f's_mov_b32 s59, {SPIN}')
    a.label(L, keep=True)
    for k in range(nl - (extra is not None)):
        g = R + 4*k
        a.I(f's_waitcnt vmcnt({nl-1-k+young})')
        for i in range(4): a.I(f'v_xor_b32 {v(g+i)}, {v(TG+i)}, {v(g+i)}')
        if k == 0: a.I(f'v_or3_b32 {v(tmp)}, {v(g)}, {v(g+1)}, {v(g+2)}\n v_or_b32 {v(tmp)}, {v(tmp)}, {v(g+3)}')
        else: a.I(f'v_or3_b32 {v(tmp)}, {v(tmp)}, {v(g)}, {v(g+1)}\n v_or3_b32 {v(tmp)}, {v(tmp)}, {v(g+2)}, {v(g+3)}')
    a.I(f'v_and_b32 {v(tmp)}, 0x10001, {v(tmp)}')
    if extra is not None:
        g = extra
        a.I(f's_waitcnt vmcnt(0)\n v_add3_u32 {v(tmp+1)}, {v(g)}, {v(g+1)}, {v(g+2)}\n v_sub_u32 {v(tmp+1)}, {v(g+3)}, {v(tmp+1)}\n v_xor_b32 {v(tmp+1)}, s{tok}, {v(tmp+1)}\n v_or_b32 {v(tmp)}, {v(tmp)}, {v(tmp+1)}')
    a.I(f'v_cmp_ne_u32 vcc, 0, {v(tmp)}\n s_cbranch_vccz {L}_out\n s_sub_u32 s59, s59, 1\n s_cbranch_scc1 {L}_out\n s_wqm_b64 exec, vcc')
    if bo: a.I(f's_sleep {bo}')
    for x in loads: a.I(x)
    if PROF: a.I(f's_add_u32 s60, s60, {1 << (4 * (_lab[0] - 1))}')
    if young: a.I('s_waitcnt vmcnt(0)')
    a.I(f's_branch {L}')
    a.label(L + '_out', keep=True)
    a.vm = []
    a.I('s_mov_b64 exec, -1')
def unpack(a, img, R, vun, masked=False, st=768):
    if masked: a.I('s_mov_b64 exec, s[10:11]')
    for k in range(4): a.I(f'ds_write_b128 {v(vun)}, {v(R+4*k,4)} offset:{img+st*k}')
    if masked: a.I('s_mov_b64 exec, -1')

LX = 0; LI0 = 8704; LI1 = LI0 + 12288; LW = LI1 + 12288; LG = LW + 256*80; LGW = LG + 64; LDK = LGW + 1024; LDUM = LDK + 1024
VERB = E('VERB', 0)
def role_b(a, split=None):
    V = VAlloc(1, 255)
    a.label('L_b_pre'); a.lg = [('smem', {('s', i) for i in list(range(4, 22)) + list(range(48, 56))})]
    if E('ONLYA', 0): a.I('s_endpgm')
    def hi(p=3): a.I(f's_setprio {p}')
    def lo(): a.I(f's_setprio {E("LOPRIO", 1)}')
    a.I(f's_setprio {E("B0PRIO", 2)}')
    task_of(a, 22, 23)
    n, q = lanes(a, V)
    t0 = V.get(); t1 = V.get(); TM = V.get(3)
    vl16 = V.get(); a.I(f'v_and_b32 {v(vl16)}, 63, v0\n v_lshlrev_b32 {v(vl16)}, 4, {v(vl16)}')
    a.I(f's_lshl_b32 s24, s3, 9\n s_add_u32 s24, s24, s22\n s_lshl_b32 s24, s24, 10\n s_add_u32 s25, s24, {256*1024}')
    a.I(f's_mul_i32 s26, s3, 2112\n s_mov_b32 s30, 2097152\n s_mov_b32 s31, 0x00020000')
    WR = V.get(4, 4); WI = V.get(4, 4); WNR = V.get(2); GW = V.get(8, 4)
    XA = V.get(32, 4); ACC = V.get(32, 4); T = V.get(16)
    base = V.get(); fN = V.get()
    POOL = V.get(120, 4)
    C1 = POOL; TC = POOL + 16; TS = POOL + 32; C2 = POOL + 48; CN = POOL + 96; A2 = POOL + 100
    f1, kH, fF, fK, sgn = (ACC + i for i in range(5))
    b = Block(a, 'c1')
    b.I(f'v_lshrrev_b32 {v(f1)}, 3, {v(n)}\n s_lshl_b32 s56, s3, 1\n v_add_u32 {v(f1)}, s56, {v(f1)}\n v_and_b32 {v(kH)}, 7, {v(n)}')
    b.I(f'v_cvt_f32_u32 {v(fF)}, {v(f1)}\n v_cvt_f32_u32 {v(fK)}, {v(kH)}')
    b.I(f'v_and_b32 {v(t0)}, 1, {v(q)}\n v_lshlrev_b32 {v(t0)}, 2, {v(t0)}\n v_mul_u32_u24 {v(t0)}, {v(t0)}, {v(f1)}')
    b.I(f'v_and_b32 {v(t1)}, 2, {v(q)}\n v_mad_u32_u24 {v(t0)}, {v(t1)}, {v(kH)}, {v(t0)}')
    b.I(f'v_cvt_f32_u32 {v(base)}, {v(t0)}\n v_mul_f32 {v(base)}, 0.125, {v(base)}')
    b.I(f'v_and_b32 {v(sgn)}, 1, {v(kH)}\n v_mul_u32_u24 {v(sgn)}, 0x8000, {v(sgn)}\n v_lshl_or_b32 {v(sgn)}, {v(sgn)}, 16, {v(sgn)}')
    for h in range(2):
        if h == 1: b.I(f'v_fmamk_f32 {v(base)}, {v(fK)}, {f32(0.125)}, {v(base)}')
        for r in range(1, 4): b.I(f'v_fmamk_f32 {v(T+8+r)}, {v(fF)}, {f32(0.125*r)}, {v(base)}')
        for r in range(4):
            ang = base if r == 0 else T + 8 + r
            b.I(f'v_cos_f32 {v(T+r)}, {v(ang)}\n v_sin_f32 {v(T+4+r)}, {v(ang)}')
        cvt(b, C1+2*h, T, T+1); cvt(b, C1+2*h+1, T+2, T+3)
        cvt(b, C1+8+2*h, T+4, T+5, True, True); cvt(b, C1+8+2*h+1, T+6, T+7, True, True)
    for i in range(4):
        b.I(f'v_xor_b32 {v(C1+4+i)}, {v(sgn)}, {v(C1+i)}\n v_xor_b32 {v(C1+12+i)}, {v(sgn)}, {v(C1+8+i)}')
    if E('EARLYC', 1): b.emit(VERB)
    a.I('s_waitcnt lgkmcnt(0)'); stamp(a, 1)
    a.I('s_mov_b32 s28, s4\n s_mov_b32 s29, s5\n s_mov_b32 m0, s26')
    a.I(f'buffer_load_dwordx4 {v(vl16)}, s[28:31], s24 offen lds')
    a.I('s_add_u32 m0, s26, 1056')
    a.I(f'buffer_load_dwordx4 {v(vl16)}, s[28:31], s25 offen lds')
    a.I(f's_bitcmp1_b32 s3, 0\n s_cselect_b32 s40, s16, s52\n s_cselect_b32 s41, s17, s53\n s_mov_b32 s42, 1024\n s_mov_b32 s43, 0x00020000\n s_cselect_b32 s56, 1024, 0\n s_add_u32 m0, s56, {LGW}')
    a.I(f'buffer_load_dwordx4 {v(vl16)}, s[40:43], 0 offen lds')
    srd(a, 44, 20, WS_BYTES)
    a.I(f's_add_u32 s20, s20, {EP_OFF}\n s_addc_u32 s21, s21, 0\n s_load_dword s57, s[20:21], 0')
    srd(a, 32, 48, 1052672); srd(a, 36, 50, 1052672); srd(a, 12, 54, 2097152)
    a.I(f's_and_b32 s27, s2, 7\n s_mul_i32 s61, s27, 514\n s_lshl_b32 s62, s23, 4\n s_add_u32 s62, s62, s61')
    a.I(f's_mul_i32 s6, s22, {BS}\n s_lshl_b32 s7, s3, 11\n s_add_u32 s6, s6, s7\n s_mul_i32 s7, s3, 3072\n s_add_u32 s8, s6, {V_OFF}')
    a.I(f's_mul_i32 s63, s23, {8*4112}\n s_add_u32 s63, s63, s61\n s_and_b32 s63, s63, -4')
    if split:
        a.I('s_branch L_b2'); st_ = (list(a.vm), list(a.lg)); split(); a.label('L_b2'); a.vm, a.lg = st_
    npt = 0
    if E('PT', 0):
        st = E('PTS', 17)
        a.I(f'v_and_b32 {v(t0)}, 63, v0\n v_lshlrev_b32 {v(t0)}, {st}, {v(t0)}\n s_mov_b32 s56, {0x2F0000 if st >= 21 else 0}')
        if E('PT', 0) == 2: a.I(f'v_mul_u32_u24 {v(t0)}, {BS}, v0\n s_mov_b32 s56, {V_OFF + 8192}')
        a.I(f'buffer_load_dword v255, {v(t0)}, s[44:47], s56 offen')
        npt = 1
    PRE = E('PRE', 0)
    def prest(sr):
        a.I(f'v_lshlrev_b32 {v(TM+2)}, 3, {v(vl16)}\n s_mov_b64 exec, 0xffff')
        a.raw(f'    buffer_load_dword v255, {v(TM+2)}, s[44:47], s{sr} offen'); a.vm.append(set())
        a.I('s_mov_b64 exec, -1')
    npre = 0
    if PRE & 1: prest(6); npre += 1
    if PRE & 2: prest(8); npre += 1
    if not E('EARLYC', 1): b.emit(VERB)
    vw = V.get(); vj4 = V.get(); vpf = V.get(); vrow = V.get()
    a.I(f's_mul_i32 s58, s23, {E("WROT", 8)}\n v_mul_u32_u24 {v(vrow)}, {E("WMUL", 1)}, v0\n v_add_u32 {v(vrow)}, s58, {v(vrow)}\n v_and_b32 {v(vrow)}, 255, {v(vrow)}\n v_mul_u32_u24 {v(vw)}, 4112, {v(vrow)}')
    a.I(f'v_mov_b32 {v(WNR)}, 0\n v_mov_b32 {v(WNR+1)}, 0\n s_cmp_eq_u32 s23, 31\n s_cselect_b64 s[10:11], -1, 0')
    ndrip = [0]
    def drip(k):
        if E('WST', 7) != 3: return
        lo_, hi_ = ((0xffff, 0), (0xffff0000, 0), (0, 0xffff), (0, 0xffff0000))[k]
        a.I(f's_mov_b32 exec_lo, {lo_}\n s_mov_b32 exec_hi, {hi_}')
        for r, rn, sr in ((WR, WNR, 32), (WI, WNR+1, 36)):
            a.raw(f'    buffer_load_dwordx4 {v(r,4)}, {v(vw)}, s[{sr}:{sr+3}], s62 offen'); a.vm.append(set())
        a.I(f's_and_b64 exec, exec, s[10:11]\n s_cbranch_execz L_drip{k}')
        for r, rn, sr in ((WR, WNR, 32), (WI, WNR+1, 36)):
            a.raw(f'    buffer_load_short_d16_hi {v(rn)}, {v(vw)}, s[{sr}:{sr+3}], s62 offen offset:16')
        a.label(f'L_drip{k}', keep=True)
        a.I('s_mov_b64 exec, -1')
        ndrip[0] += 2
    DR = [int(x) for x in os.environ.get('DRIP', '0123')]
    def slot(i):
        for k, x in enumerate(DR):
            if x == i: drip(k)
    slot(0)
    b.I(f'v_mul_u32_u24 {v(t0)}, {v(kH)}, {v(q)}\n v_lshlrev_b32 {v(t0)}, 4, {v(t0)}\n v_mad_u32_u24 {v(t0)}, {v(f1)}, s22, {v(t0)}')
    b.I(f'v_cvt_f32_u32 {v(base)}, {v(t0)}\n v_mul_f32 {v(base)}, {f32(1/2048)}, {v(base)}')
    for t in range(4):
        for i in range(4):
            k = 16*t + i
            if k == 0: ang = base
            else:
                ang = T + 4*t + i
                b.I(f'v_fmamk_f32 {v(ang)}, {v(fK)}, {f32(k/512)}, {v(base)}')
            b.I(f'v_cos_f32 {v(TC+4*t+i)}, {v(ang)}\n v_sin_f32 {v(TS+4*t+i)}, {v(ang)}')
    b.I(f'v_lshrrev_b32 {v(vj4)}, 5, v0\n v_mul_u32_u24 {v(vpf)}, 4112, {v(vj4)}\n v_and_b32 {v(t1)}, 7, v0\n v_lshl_add_u32 {v(vpf)}, {v(t1)}, 7, {v(vpf)}\n v_lshlrev_b32 {v(vj4)}, 2, {v(vj4)}')
    b.emit(VERB)
    WST = E('WST', 7)
    def wstorm(parts=(0, 1)):
        a.I(f's_cmp_eq_u32 s23, 31\n s_cselect_b64 s[10:11], -1, 1')
        for k in parts:
            r, sr = ((WR, 32), (WI, 36))[k]
            a.I(f'v_mov_b32 {v(WNR+k)}, 0')
            a.I(f'buffer_load_dwordx4 {v(r,4)}, {v(vw)}, s[{sr}:{sr+3}], s62 offen')
            a.I('s_mov_b64 exec, s[10:11]')
            a.I(f'buffer_load_short_d16_hi {v(WNR+k)}, {v(vw)}, s[{sr}:{sr+3}], s62 offen offset:16')
            a.I('s_mov_b64 exec, -1')
    def wpf():
        a.I('s_mov_b32 exec_lo, 0x1f\n s_mov_b32 exec_hi, 0x1f')
        a.I(f'buffer_load_dword {v(TM)}, {v(vpf)}, s[32:35], s63 offen')
        a.I(f'buffer_load_dword {v(TM+1)}, {v(vpf)}, s[36:39], s63 offen')
        a.I('s_mov_b64 exec, -1')
    if WPF == 1: wpf()
    slot(1)
    b.I(f'v_cvt_f32_u32 {v(fN)}, {v(n)}\n v_mul_u32_u24 {v(t0)}, {v(n)}, {v(q)}\n v_cvt_f32_u32 {v(base)}, {v(t0)}\n v_mul_f32 {v(base)}, {f32(1/16)}, {v(base)}')
    for t in range(2):
        TT = XA + 12*t
        for i in range(4):
            k = 16*t + i
            if k == 0: ang = base
            else:
                ang = TT + 8 + i
                b.I(f'v_fmamk_f32 {v(ang)}, {v(fN)}, {f32(k/64)}, {v(base)}')
            b.I(f'v_cos_f32 {v(TT+i)}, {v(ang)}\n v_sin_f32 {v(TT+4+i)}, {v(ang)}')
        c = [TT+i for i in range(4)]; s_ = [TT+4+i for i in range(4)]
        b0 = C2 + 6*t; b1 = C2 + 24 + 6*t
        cvt(b, b0+0, s_[0], s_[1], True, True); cvt(b, b0+2, c[0], c[1]); cvt(b, b0+4, s_[0], s_[1])
        cvt(b, b1+0, s_[0], c[1], True, True); cvt(b, b1+2, c[0], s_[1], False, True); cvt(b, b1+4, s_[0], c[1])
        cvt(b, b0+3, c[2], c[3]); cvt(b, b1+1, s_[2], c[3]); cvt(b, b1+5, s_[2], c[3], True, True)
        cvt(b, b0+1, s_[2], s_[3], True, True); cvt(b, b0+5, s_[2], s_[3]); cvt(b, b1+3, c[2], s_[3], True, False)
        for ct in range(2):
            for i in range(6): b.I(f'v_xor_b32 {v(C2+24*ct+6*t+12+i)}, {v(sgn)}, {v(C2+24*ct+6*t+i)}')
    b.I(f'v_mov_b32 {v(T)}, 0xbf803f80')
    b.I(f'v_cmp_eq_u32 vcc, 0, {v(n)}\n v_cndmask_b32 {v(CN)}, 0, {v(T)}, vcc\n v_cndmask_b32 {v(CN+1)}, 0, {v(T)}, vcc')
    b.I(f'v_cmp_eq_u32 vcc, 1, {v(n)}\n v_cndmask_b32 {v(CN+2)}, 0, {v(T)}, vcc\n v_cndmask_b32 {v(CN+3)}, 0, {v(T)}, vcc')
    vtr = V.get(); vys = V.get(); vyn = V.get()
    b.I(f'v_bfe_u32 {v(T+1)}, v0, 2, 3\n v_mul_u32_u24 {v(vtr)}, 1056, {v(T+1)}')
    b.I(f'v_bfe_u32 {v(T+2)}, v0, 5, 1\n v_lshl_add_u32 {v(vtr)}, {v(T+2)}, 8, {v(vtr)}')
    b.I(f'v_and_b32 {v(T+3)}, 3, v0\n v_lshl_add_u32 {v(vtr)}, {v(T+3)}, 3, {v(vtr)}')
    b.emit(VERB)
    if WPF == 2: wpf()
    slot(2)
    V.put(vpf)
    stamp(a, 2)
    if WST == 2: wstorm()
    a.I(f's_waitcnt vmcnt({(2 if WPF else 0) + (4 if WST == 2 and not E("NOW", 0) else 0) + ndrip[0] + npre + npt})')
    hi(E('P1PRIO', 1))
    a.I('s_barrier'); stamp(a, 3)
    if WST == 0: wstorm()
    slot(3)
    def gate(b, GX, GWL, Z):
        z0, z1, acc, acc2 = Z + 8, Z + 9, Z + 10, Z + 11
        b.I(f'v_and_b32 {v(z0)}, 31, v0\n v_lshlrev_b32 {v(z0)}, 5, {v(z0)}\n v_mul_u32_u24 {v(z1)}, 264, {v(vj4)}\n v_add_u32 {v(z1)}, {v(z1)}, {v(z0)}')
        b.I(f'ds_read_b128 {v(GX,4)}, {v(z1)} offset:{LX} ;@X\n ds_read_b128 {v(GX+4,4)}, {v(z1)} offset:{LX+16} ;@X')
        b.I(f'ds_read_b128 {v(GWL,4)}, {v(z0)} offset:{LGW} ;@X\n ds_read_b128 {v(GWL+4,4)}, {v(z0)} offset:{LGW+16} ;@X')
        for i in range(8):
            x, y = Z + 2*(i % 4), Z + 2*(i % 4) + 1
            b.I(f'v_lshlrev_b32 {v(x)}, 16, {v(GX+i)}\n v_lshlrev_b32 {v(y)}, 16, {v(GWL+i)}')
            b.I(f'v_mul_f32 {v(acc)}, {v(x)}, {v(y)}' if i == 0 else f'v_fmac_f32 {v(acc)}, {v(x)}, {v(y)}')
            b.I(f'v_and_b32 {v(GX+i)}, 0xffff0000, {v(GX+i)}\n v_and_b32 {v(GWL+i)}, 0xffff0000, {v(GWL+i)}')
            b.I(f'v_mul_f32 {v(acc2)}, {v(GX+i)}, {v(GWL+i)}' if i == 0 else f'v_fmac_f32 {v(acc2)}, {v(GX+i)}, {v(GWL+i)}')
        b.I(f'v_add_f32 {v(acc)}, {v(acc)}, {v(acc2)}')
        for m in ('quad_perm:[1,0,3,2]', 'quad_perm:[2,3,0,1]', 'row_half_mirror', 'row_mirror'):
            b.I(f'v_add_f32_dpp {v(acc)}, {v(acc)}, {v(acc)} {m} row_mask:0xf bank_mask:0xf')
        b.I(f'v_mov_b32 {v(acc2)}, {v(acc)}\n v_permlane16_swap_b32 {v(acc)}, {v(acc2)}\n v_add_f32 {v(acc)}, {v(acc)}, {v(acc2)}')
        b.I(f'v_mul_f32 {v(acc)}, {f32(-LOG2E)}, {v(acc)}\n v_exp_f32 {v(acc)}, {v(acc)}\n v_add_f32 {v(acc)}, 1.0, {v(acc)}\n v_rcp_f32 {v(acc)}, {v(acc)}')
        b.I(f'ds_write_b32 {v(vj4)}, {v(acc)} offset:{LG} ;@G')
    GPOS = E('GPOS', -1)
    if GPOS == -1:
        gate(b, XA + 16, XA + 24, ACC); b.emit(VERB)
    mktok(a, 57, 56)
    if PRE & 16: prest(8)
    b = Block(a, 'phase1')
    for t in range(4):
        for g in range(2):
            for h in range(2):
                b.I(f'ds_read_b64_tr_b16 {v(XA+8*t+4*g+2*h,2)}, {v(vtr)} offset:{LX+512*g+128*h+32*t}')
    TG = V.get(4, 1); vps = V.get(); vun = V.get(); NG = V.get(4, 4)
    TY = GW
    tagregs(b, TY, GW+4, 57, 16, f'v_bfe_u32 {v(GW+4)}, v0, 2, 3\n v_and_b32 {v(GW+4)}, 4, {v(GW+4)}\n v_and_b32 {v(GW+5)}, 1, v0\n v_lshl_add_u32 {v(GW+4)}, {v(GW+5)}, 3, {v(GW+4)}', False)
    b.I(f'v_lshlrev_b32 {v(vys)}, 8, {v(vj4)}\n v_lshl_add_u32 {v(vys)}, {v(n)}, 5, {v(vys)}\n v_and_b32 {v(t0)}, 16, v0\n v_add_u32 {v(vys)}, {v(vys)}, {v(t0)}\n s_mul_i32 s18, s22, {BS}')
    b.I(f'v_lshlrev_b32 {v(vyn)}, 3, {v(vj4)}\n v_and_b32 {v(t0)}, 1, v0\n v_lshl_add_u32 {v(vyn)}, {v(t0)}, 4, {v(vyn)}\n v_and_b32 {v(t0)}, 30, v0\n v_lshl_add_u32 {v(vyn)}, {v(t0)}, 24, {v(vyn)}\n s_mul_i32 s17, s22, {BS}\n s_add_u32 s17, s17, 8192')
    b.I(f'v_mov_b32 {v(NG+1)}, 0\n v_mov_b32 {v(NG+2)}, 0')
    for t in range(4):
        for p in range(2): mfma(b, ACC+8*t+4*p, XA+8*t, C1+8*p, '0')
        for p in range(2): mfma(b, ACC+8*t+4*p, XA+8*t+4, C1+8*p+4, ACC+8*t+4*p)
    for t in range(4):
        re, im = ACC+8*t, ACC+8*t+4
        for i in range(4): cm1(b, re+i, im+i, TC+4*t+i, TS+4*t+i, T+8*(t&1)+2*i, T+8*(t&1)+2*i+1, -1)
        F = XA + 8*t
        cvt(b, F, re, re+1); cvt(b, F+2, im, im+1); cvt(b, F+1, re+2, re+3); cvt(b, F+3, im+2, im+3)
        mfma(b, A2+16, F, CN, '0' if t == 0 else A2+16)
        for ct in range(2):
            bb = C2 + 24*ct + 6*t
            mfma(b, A2+8*ct, F, bb+2, '0' if t == 0 else A2+8*ct)
            mfma(b, A2+8*ct+4, F, bb, '0' if t == 0 else A2+8*ct+4)
    for ct in range(2):
        O = XA + 4 + 8*ct
        for i in range(4): cvt(b, O+i, A2+8*ct+i, A2+8*ct+4+i)
        for i in range(4): b.I(f'v_bfi_b32 {v(O+i)}, s16, {v(TY+i)}, {v(O+i)}')
        b.I(f'buffer_store_dwordx4 {v(O,4)}, {v(vys)}, s[44:47], s18 offen offset:{512*ct} sc1 ;!200')
    b.I(f'v_mov_b32_dpp {v(T)}, {v(A2+16)} quad_perm:[1,1,1,1] row_mask:0xf bank_mask:0xf')
    cvt(b, NG, A2+16, T)
    b.I(f'v_add_u32 {v(NG+3)}, s57, {v(NG)}\n buffer_store_dwordx4 {v(NG,4)}, {v(vyn)}, s[44:47], s17 offen sc1')
    b.emit(VERB)
    stamp(a, 4)
    V.put(vtr); V.put(vys); V.put(vyn)
    if WST == 1: wstorm()
    if WST == 6: wstorm((0,))
    slot(4)
    if E('W1PRIO', -1) >= 0: hi(E('W1PRIO', -1))
    FR_, FI_, TC2, TS2 = POOL + 88, POOL + 92, GW, GW + 4
    b = Block(a, 'w1a')
    b.I(f'v_mul_f32 {v(base)}, {f32(1/4)}, {v(base)}')
    for i in range(4):
        ang = T + 4*i + 2
        if i == 0: ang = base
        else: b.I(f'v_fmamk_f32 {v(ang)}, {v(fN)}, {f32(i/256)}, {v(base)}')
        b.I(f'v_mul_f32 {v(T+4*i+3)}, {f32(16.0)}, {v(ang)}')
        b.I(f'v_cos_f32 {v(T+4*i)}, {v(T+4*i+3)}\n v_sin_f32 {v(T+4*i+1)}, {v(T+4*i+3)}')
        b.I(f'v_cos_f32 {v(TC2+i)}, {v(ang)}\n v_sin_f32 {v(TS2+i)}, {v(ang)}')
        cvt(b, FR_+i, T+4*i, T+4*i+1); cvt(b, FI_+i, T+4*i+1, T+4*i, True, False)
    tagregs(b, TG, t1, 57, 16)
    b.I(f'v_bfe_u32 {v(vps)}, v0, 1, 5\n v_mul_u32_u24 {v(vps)}, 48, {v(vps)}\n v_and_b32 {v(t0)}, 1, v0\n v_lshl_add_u32 {v(vps)}, {v(t0)}, 4, {v(vps)}\n v_add_u32 {v(vps)}, s7, {v(vps)}')
    GA = V.get(); vy = V.get(); vnn = V.get(); vnw = V.get(); vy1 = V.get(); vww = V.get(); vp16 = V.get()
    b.I(f'v_and_b32 {v(vp16)}, 3, v0\n v_lshlrev_b32 {v(vp16)}, 4, {v(vp16)}\n v_bfe_u32 {v(t1)}, v0, 2, 4\n v_mul_u32_u24 {v(GA)}, {BS}, {v(t1)}\n v_add_u32 {v(GA)}, {v(GA)}, {v(vp16)}')
    b.I(f'v_mul_u32_u24 {v(vun)}, 48, {v(t1)}\n v_and_b32 {v(t1)}, 16, {v(vp16)}\n v_add3_u32 {v(vun)}, {v(vun)}, {v(t1)}, s7')
    b.I(f'v_lshlrev_b32 {v(t0)}, 6, {v(q)}\n v_add_u32 {v(t0)}, {v(t0)}, {v(n)}\n v_mul_u32_u24 {v(vnn)}, 48, {v(t0)}\n v_mul_u32_u24 {v(vnw)}, 80, {v(t0)}')
    b.I(f's_lshl_b32 s56, s3, 3\n v_add_u32 {v(vy)}, s56, {v(vnn)}\n v_mul_u32_u24 {v(vnn)}, {BS}, {v(t0)}\n s_lshl_b32 s52, s27, 5\n s_add_u32 s52, s52, 8192\n s_add_u32 s53, s52, {16*BS}\n s_add_u32 s54, s52, {32*BS}\n s_add_u32 s55, s52, {48*BS}\n s_lshl_b32 s19, s23, 2\n s_add_u32 s19, s19, s3\n s_lshl_b32 s58, s3, 4\n v_add_u32 {v(vww)}, s58, {v(vnw)}')
    b.I(f's_lshr_b32 s24, s22, 1\n s_lshl_b32 s24, s24, 6\n s_mul_i32 s48, s3, {64*BS}\n s_add_u32 s48, s48, s24\n s_add_u32 s49, s48, {16*BS}\n s_add_u32 s50, s48, {32*BS}\n s_add_u32 s51, s48, {48*BS}')
    P1, PTC, PTS, P2 = POOL, POOL + 16, POOL + 32, POOL + 48
    fD = fN; b2 = V.get()
    def p3c_1(b):
        b.I(f'v_add_u32 {v(t1)}, s58, {v(n)}\n v_cvt_f32_u32 {v(fD)}, {v(t1)}')
        b.I(f'v_mul_u32_u24 {v(t1)}, {v(t1)}, {v(q)}\n v_cvt_f32_u32 {v(base)}, {v(t1)}\n v_mul_f32 {v(base)}, {f32(1/16)}, {v(base)}')
        for g in range(2):
            for i in range(4):
                k = 16*g + i
                if k: b.I(f'v_fmamk_f32 {v(T+8+i)}, {v(fD)}, {f32(k/64)}, {v(base)}')
            for i in range(4):
                ang = base if 16*g + i == 0 else T + 8 + i
                b.I(f'v_cos_f32 {v(T+i)}, {v(ang)}\n v_sin_f32 {v(T+4+i)}, {v(ang)}')
            for i in range(4):
                cvt(b, P1+8*g+i, T+i, T+4+i, False, True); cvt(b, P1+8*g+4+i, T+4+i, T+i)
    def p3c_2(b):
        b.I(f'v_mul_u32_u24 {v(t1)}, s22, {v(q)}\n v_cvt_f32_u32 {v(base)}, {v(t1)}\n v_mul_f32 {v(base)}, {f32(1/1024)}, {v(base)}')
        b.I(f'v_cvt_f32_u32 {v(b2)}, s22\n v_fmamk_f32 {v(b2)}, {v(b2)}, {f32(1/2048)}, {v(base)}')
        for t in range(4):
            for i in range(4):
                kH_ = 4*(i & 1) + t
                bb = base if i < 2 else b2
                ang = T + 4*t + i
                if kH_ == 0: ang = bb
                else: b.I(f'v_fmamk_f32 {v(ang)}, {v(fD)}, {f32(kH_/512)}, {v(bb)}')
                b.I(f'v_cos_f32 {v(PTC+4*t+i)}, {v(ang)}\n v_sin_f32 {v(PTS+4*t+i)}, {v(ang)}')
    def p3c_3(b):
        fB = fD
        b.I(f'v_and_b32 {v(t0)}, 7, {v(n)}\n v_cvt_f32_u32 {v(b2)}, {v(t0)}\n v_mul_u32_u24 {v(t0)}, {v(t0)}, {v(q)}\n v_cvt_f32_u32 {v(base)}, {v(t0)}\n v_mul_f32 {v(base)}, {f32(0.25)}, {v(base)}')
        b.I(f'v_fmamk_f32 {v(b2)}, {v(b2)}, {f32(0.125)}, {v(base)}')
        b.I(f'v_lshrrev_b32 {v(t0)}, 3, {v(n)}\n v_cvt_f32_u32 {v(fB)}, {v(t0)}')
        for t in range(4):
            TT = ACC + 8 + 12*(t & 1)
            for i in range(4):
                kH_ = 4*(i & 1) + t
                bb = base if i < 2 else b2
                ang = TT + 8 + i
                if kH_ == 0: ang = bb
                else: b.I(f'v_fmamk_f32 {v(ang)}, {v(fB)}, {f32(kH_/8)}, {v(bb)}')
                b.I(f'v_cos_f32 {v(TT+i)}, {v(ang)}\n v_sin_f32 {v(TT+4+i)}, {v(ang)}')
            d = P2 + 10*t
            cvt(b, d, TT, TT+1); cvt(b, d+1, TT+2, TT+3)
            cvt(b, d+2, TT+4, TT+5, True, True); cvt(b, d+3, TT+6, TT+7, True, True)
            if t > 0:
                cvt(b, d+4, TT, TT+1, True, True); cvt(b, d+5, TT+2, TT+3, True, True)
                cvt(b, d+6, TT+4, TT+5); cvt(b, d+7, TT+6, TT+7)
            if t in (1, 3):
                cvt(b, d+8, TT, TT+1); cvt(b, d+9, TT+2, TT+3)
    if GPOS == 0: gate(b, XA + 16, XA + 24, ACC)
    D1 = E('D1', 0)
    if D1 >= 1: p3c_1(b)
    if D1 >= 2: p3c_2(b)
    b.emit(VERB)
    if E('D1S', 0): a.I(f's_sleep {E("D1S", 0)}')
    if WST == 8: a.I('s_waitcnt vmcnt(0)')
    if WST in (7, 8): wstorm()
    stamp(a, 5)
    R = XA
    loads = [f'buffer_load_dwordx4 {v(R+4*k,4)}, {v(GA)}, s[44:47], s{48+k} offen sc1' for k in range(4)]
    for x in loads: a.I(x)
    def wstage(b):
        WO = ACC + 16
        for p in range(4):
            b.I(f'v_lshlrev_b32 {v(WO+4*p)}, 16, {v(WR+p)}\n v_lshlrev_b32 {v(WO+4*p+1)}, 16, {v(WI+p)}')
            b.I(f'v_and_b32 {v(WO+4*p+2)}, 0xffff0000, {v(WR+p)}\n v_and_b32 {v(WO+4*p+3)}, 0xffff0000, {v(WI+p)}')
        b.I(f's_cmp_eq_u32 s23, 0\n s_cselect_b32 s56, 0.5, 1.0')
        b.I(f'v_mul_f32 {v(WO)}, s56, {v(WO)}\n v_mul_f32 {v(WO+1)}, s56, {v(WO+1)}')
        b.I(f'v_mul_f32 {v(WNR)}, 0.5, {v(WNR)}\n v_mul_f32 {v(WNR+1)}, 0.5, {v(WNR+1)}')
        b.I(f'v_mul_u32_u24 {v(t1)}, 80, {v(vrow)}')
        for p in range(4): b.I(f'ds_write_b128 {v(t1)}, {v(WO+4*p,4)} offset:{LW+16*p}')
        b.I(f'ds_write_b64 {v(t1)}, {v(WNR,2)} offset:{LW+64}')
        b.emit(VERB)
        V.put(vrow)
    LATEW = WST in (5, 6)
    if WST == 5: wstorm()
    if WST == 6: wstorm((1,))
    if not LATEW:
        if E('W2PRIO', 3) >= 0: hi(E('W2PRIO', 3))
        if E('DBGH1', 0):
            stamp(a, 9); a.I('s_waitcnt vmcnt(8)'); stamp(a, 10); a.I('s_waitcnt vmcnt(4)'); stamp(a, 11)
            globals()['SKIP'] = (9, 10, 11)
        a.I('s_waitcnt vmcnt(4)'); wstage(b)
    a.I('s_bitcmp1_b32 s22, 0\n s_mov_b32 s10, 0x33333333\n s_cselect_b32 s10, 0xcccccccc, s10\n s_mov_b32 s11, s10')
    stamp(a, 12)
    hi(E('P2PRIO', 3))
    tag_check(a, loads, R, TG, TM, 57, young={5: 4, 6: 2}.get(WST, 0))
    if PRE & 32: prest(8)
    stamp(a, 6)
    unpack(a, LI1, R, vun, E('MASKU', 1))
    a.I('s_waitcnt lgkmcnt(0)\n s_barrier'); stamp(a, 7)
    Y = XA; X = XA + 8
    D = ACC; WF = POOL + 48; T2 = POOL + 72; T3 = POOL + 80
    o = LI1 // 256
    def fft_cols(b, cols, hook=None):
        for c in cols:
            mfma(b, D+8*c, X+4*c, FR_, '0'); mfma(b, D+8*c+4, X+4*c, FI_, '0')
        def stage(tw, sign, swap):
            for c in cols:
                re, im = D+8*c, D+8*c+4
                tt = (T, T2, T3)[c]
                for i in range(4):
                    tc, ts = tw(c, i)
                    cm1(b, re+i, im+i, tc, ts, tt+2*i, tt+2*i+1, sign)
                for i in range(4):
                    if swap: cvt(b, X+4*c+i, im+i, re+i)
                    else: cvt(b, X+4*c+i, re+i, im+i)
                yield c
        for c in stage(lambda c, i: (TC2+i, TS2+i), -1, False):
            mfma(b, D+8*c, FR_, X+4*c, '0'); mfma(b, D+8*c+4, FI_, X+4*c, '0')
        if hook: hook()
        for c in stage(lambda c, i: (WF+4*i+2*c, WF+4*i+2*c+1) if c < 2 else (WF+16+2*i, WF+17+2*i), +1, True):
            mfma(b, D+8*c+4, X+4*c, FR_, '0'); mfma(b, D+8*c, X+4*c, FI_, '0')
        for c in stage(lambda c, i: (TC2+i, TS2+i), +1, True):
            mfma(b, D+8*c+4, FR_, X+4*c, '0'); mfma(b, D+8*c, FI_, X+4*c, '0')
    NY = POOL + 104
    nloads = [f'buffer_load_dwordx4 {v(NY+4*i,4)}, {v(vnn)}, s[44:47], s{52+i} offen sc1' for i in range(4)]
    def nyl():
        a.I('s_cmp_lg_u32 s19, 127\n s_cbranch_scc1 L_b_nn1')
        for x in nloads: a.I(x)
        a.label('L_b_nn1', keep=True)
    if not LATEW: nyl()
    b = Block(a, 'phase2')
    for i, slot_ in enumerate((0, 2, 1, 3)): b.I(f'ds_read_b64 {v(X+2*slot_,2)}, {v(vy)} offset:{LI1+768*i}')
    b.I(f'v_swap_b32 {v(X+1)}, {v(X+4)}\n v_swap_b32 {v(X+3)}, {v(X+6)}')
    def wread():
        for i in range(4): b.I(f'ds_read_b128 {v(WF+4*i,4)}, {v(vww)} offset:{LW+1280*i}')
    def hook():
        b.emit(VERB); a.I('s_waitcnt vmcnt(0)'); wstage(b); a.I('s_waitcnt lgkmcnt(0)\n s_barrier'); nyl(); wread()
    if not LATEW: wread()
    fft_cols(b, (0, 1), hook if LATEW else None)
    for i in range(4):
        b.I(f'v_cvt_pk_bf16_f32 {v(Y+2*i)}, {v(D+i)}, {v(D+4+i)} ;!{E("STAG", 60)}'); cvt(b, Y+2*i+1, D+8+i, D+12+i)
        b.I(f'ds_write_b64 {v(vy)}, {v(Y+2*i,2)} offset:{LI0+768*i}')
    b.emit(VERB)
    a.I('s_waitcnt lgkmcnt(0)\n s_barrier')
    publish(a, LI0, XA + 20, vps, TG, vl16, 44, 8, 16)
    a.I('s_cmp_lg_u32 s19, 127\n s_cbranch_scc1 L_b_nonyq')
    poll_check(a, nloads, [NY, NY+4, NY+8, NY+12], TM, 57, young=2)
    b = Block(a, 'nyq')
    for i in range(4): b.I(f'v_mov_b32 {v(X+8+i)}, {v(NY+4*i)}')
    for i in range(4): b.I(f'ds_read_b64 {v(WF+16+2*i,2)}, {v(vnw)} offset:{LW+64+1280*i}')
    fft_cols(b, (2,))
    b.I(f'v_lshlrev_b32 {v(t0)}, 10, {v(q)}\n v_lshl_add_u32 {v(t0)}, {v(n)}, 4, {v(t0)}\n s_lshl_b32 s56, s27, 12\n s_add_u32 s56, s56, {VN_OFF}')
    for i in range(4):
        g = D + 4*i
        cvt(b, g, D+16+i, D+20+i)
        b.I(f'v_mov_b32 {v(g+1)}, 0\n v_mov_b32 {v(g+2)}, 0\n v_add_u32 {v(g+3)}, s57, {v(g)}')
        b.I(f'buffer_store_dwordx4 {v(g,4)}, {v(t0)}, s[44:47], s56 offen offset:{256*i} sc1')
    b.emit(VERB)
    a.I('s_nop 1')
    a.label('L_b_nonyq', keep=True)
    stamp(a, 8)
    lo()
    for r in (vy, vnn, vnw, vw, vy1, vww): V.put(r)
    V.put(WNR, 2)
    b = Block(a, 'w2a')
    if D1 < 1: p3c_1(b)
    if D1 < 2: p3c_2(b)
    if E('D3', 0): p3c_3(b)
    G2 = V.get(2); vr = V.get(); vta = V.get(); vst = V.get(); sgn = V.get(); vn = V.get()
    AA_ = WR
    x0, x1 = WR + 1, WR + 2
    b.I(f'v_bfe_u32 {v(x0)}, v0, 2, 3\n v_bfe_u32 {v(x1)}, v0, 5, 1')
    b.I(f'v_lshl_add_u32 {v(GA)}, {v(x0)}, 5, {v(x1)}\n v_mul_u32_u24 {v(GA)}, {BS}, {v(GA)}\n v_add_u32 {v(GA)}, {v(GA)}, {v(vp16)}')
    b.I(f'v_lshl_add_u32 {v(AA_)}, {v(x1)}, 5, {v(x0)}\n v_mul_u32_u24 {v(AA_)}, {BS}, {v(AA_)}\n v_add_u32 {v(AA_)}, {v(AA_)}, {v(vp16)}')
    b.I(f's_mul_i32 s48, s3, {8*BS}\n s_add_u32 s48, s48, s24\n s_add_u32 s52, s48, {AW_OFF}\n s_add_u32 s48, s48, {V_OFF}')
    for k in range(1, 4): b.I(f's_add_u32 s{48+k}, s48, {2*k*BS}\n s_add_u32 s{52+k}, s52, {64*k*BS}')
    b.I(f'v_lshlrev_b32 {v(vr)}, 10, {v(q)}\n v_lshl_add_u32 {v(vr)}, {v(n)}, 4, {v(vr)}')
    b.I(f's_lshl_b32 s7, s3, 11\n v_bfe_u32 {v(t0)}, v0, 2, 4\n v_lshlrev_b32 {v(vun)}, 5, {v(t0)}\n v_and_b32 {v(t1)}, 1, v0\n v_lshl_add_u32 {v(vun)}, {v(t1)}, 4, {v(vun)}\n v_add_u32 {v(vun)}, s7, {v(vun)}')
    b.I(f'v_lshlrev_b32 {v(vta)}, 4, {v(t0)}\n v_lshl_add_u32 {v(vta)}, {v(t1)}, 3, {v(vta)}\n v_bfe_u32 {v(t0)}, v0, 1, 1\n v_lshl_add_u32 {v(vta)}, {v(t0)}, 8, {v(vta)}\n v_add_u32 {v(vta)}, s7, {v(vta)}')
    b.I(f'v_and_b32 {v(t0)}, 7, {v(n)}\n v_lshlrev_b32 {v(vst)}, 18, {v(t0)}\n v_lshlrev_b32 {v(t1)}, 2, {v(t0)}\n v_lshrrev_b32 {v(t0)}, 3, {v(n)}\n v_lshl_add_u32 {v(vst)}, {v(t0)}, 7, {v(vst)}')
    vgr = V.get(); b.I(f'v_mov_b32 {v(vgr)}, {v(t1)}')
    b.I(f'v_lshrrev_b32 {v(t0)}, 4, v0\n v_lshl_add_u32 {v(vst)}, {v(t0)}, 3, {v(vst)}\n s_lshl_b32 s9, s22, 10')
    NC, NS = WI, WI + 1
    b.I(f'v_bfe_u32 {v(vn)}, v0, 3, 3\n v_and_b32 {v(sgn)}, 7, v0\n v_lshlrev_b32 {v(sgn)}, 8, {v(sgn)}\n v_add_u32 {v(sgn)}, s22, {v(sgn)}\n v_mul_u32_u24 {v(sgn)}, {v(sgn)}, {v(vn)}')
    b.I(f'v_cvt_f32_u32 {v(sgn)}, {v(sgn)}\n v_mul_f32 {v(sgn)}, {f32(1/2048)}, {v(sgn)}\n v_cos_f32 {v(NC)}, {v(sgn)}\n v_sin_f32 {v(NS)}, {v(sgn)}')
    b.I(f'v_lshlrev_b32 {v(vn)}, 12, {v(vn)}\n s_lshl_b32 s62, s22, 4\n s_add_u32 s62, s62, {VN_OFF}')
    b.emit(VERB)
    if E('D2', 0): a.I(f's_sleep {E("D2", 0)}')
    stamp(a, 9)
    for x in loads: a.I(x)
    if not E('D3', 0): p3c_3(b)
    b.emit(VERB)
    SKL = [P2+4+i for i in range(6)] + [P2+28, P2+29] + [GW+4+i for i in range(4)] + [NG+i for i in range(4)]; UX = XA + 24; DK = XA + 16
    b.I(f'v_and_b32 {v(t0)}, 0x3ff, {v(vst)}\n v_mul_u32_u24 {v(t1)}, 264, {v(vgr)}\n v_add_u32 {v(t1)}, {v(t1)}, {v(t0)}')
    for ot in range(4): b.I(f'ds_read_b64 {v(UX+2*ot,2)}, {v(t1)} offset:{LX+256*ot} ;@X\n ds_read_b64 {v(DK+2*ot,2)}, {v(t0)} offset:{LDK+256*ot} ;@X')
    for i in range(8):
        b.I(f'v_lshlrev_b32 {v(SKL[2*i])}, 16, {v(UX+i)}\n v_lshlrev_b32 {v(SKL[2*i+1])}, 16, {v(DK+i)}\n v_mul_f32 {v(SKL[2*i])}, {v(SKL[2*i])}, {v(SKL[2*i+1])}')
        b.I(f'v_and_b32 {v(UX+i)}, 0xffff0000, {v(UX+i)}\n v_and_b32 {v(DK+i)}, 0xffff0000, {v(DK+i)}\n v_mul_f32 {v(SKL[2*i+1])}, {v(UX+i)}, {v(DK+i)}')
    if GPOS == 2: gate(b, POOL + 104, POOL + 112, T)
    else:
        b.I(f'ds_read_b32 {v(G2)}, {v(vgr)} offset:{LG} ;@G')
        b.I(f'v_sub_f32 {v(G2+1)}, 1.0, {v(G2)}\n v_mul_f32 {v(G2+1)}, {f32(2.0**-19 * BC * BC)}, {v(G2+1)}')
        for i in range(16): b.I(f'v_mul_f32 {v(SKL[i])}, {v(G2)}, {v(SKL[i])}')
    b.emit(VERB)
    hi()
    tag_check(a, loads, R, TG, TM, 57)
    AL = POOL + 104; NQ = GW
    aloads = [f'buffer_load_dwordx4 {v(AL+4*k,4)}, {v(AA_)}, s[44:47], s{52+k} offen sc1' for k in range(4)] + [f'buffer_load_dwordx4 {v(NQ,4)}, {v(vn)}, s[44:47], s62 offen sc1']
    if E('APOS', 0) < 0:
        for x in aloads[:4]: a.I(x)
    unpack(a, LI1, R, vun, 1, 512)
    a.I('s_waitcnt lgkmcnt(0)\n s_barrier'); stamp(a, 10)
    X = POOL + 88
    b = Block(a, 'phase3')
    for g in range(2):
        for i in range(4): b.I(f'ds_read_b128 {v(R+16*g+4*i,4)}, {v(vr)} offset:{LI1+4096*g+256*i}')
    if not E('APOS', 0):
        for x in aloads: b.I(x)
    if E('APOS', 0) < 0: b.I(aloads[4])
    if GPOS == 2:
        b.I(f'ds_read_b32 {v(G2)}, {v(vgr)} offset:{LG}')
        b.I(f'v_sub_f32 {v(G2+1)}, 1.0, {v(G2)}\n v_mul_f32 {v(G2+1)}, {f32(2.0**-19 * BC * BC)}, {v(G2+1)}')
        for i in range(16): b.I(f'v_mul_f32 {v(SKL[i])}, {v(G2)}, {v(SKL[i])}')
    for g in range(2):
        for i in range(4):
            for t in range(i+1, 4): b.I(f'v_swap_b32 {v(R+16*g+4*i+t)}, {v(R+16*g+4*t+i)}')
        for t in range(4):
            for p in range(2):
                d = ACC+8*t+4*p
                mfma(b, d, R+16*g+4*t, P1+8*g+4*p, d if g == 1 else '0')
    vos = vr; vor = vgr; OS = E('OS', 1040)
    b.I(f'v_and_b32 {v(t0)}, 7, {v(n)}\n v_mul_u32_u24 {v(vos)}, {OS}, {v(t0)}\n v_and_b32 {v(t0)}, 0x3ff, {v(vst)}\n v_add_u32 {v(vos)}, {v(vos)}, {v(t0)}')
    b.I(f's_mul_i32 s26, s3, {2*OS}\n v_add_u32 {v(vor)}, s26, {v(vl16)}\n s_lshl_b32 s24, s3, 19\n s_add_u32 s24, s24, s9\n s_add_u32 s25, s24, {256*1024}')
    A2 = R
    for t in range(4):
        re, im = ACC+8*t, ACC+8*t+4
        for i in range(4): cm1(b, re+i, im+i, PTC+4*t+i, PTS+4*t+i, T+8*(t&1)+2*i, T+8*(t&1)+2*i+1, +1)
        F = X + 4*t
        cvt(b, F, re, re+1); cvt(b, F+2, im, im+1); cvt(b, F+1, re+2, re+3); cvt(b, F+3, im+2, im+3)
        for ot in range(4):
            rot = (t*ot) % 4
            mfma(b, A2+4*ot, F, P2+10*t+2*rot, '0' if t == 0 else A2+4*ot)
    if E('APOS', 0) > 1: emit_split(b, E('APOS', 0) / 100, lambda: [a.I(x) for x in aloads])
    b.emit(VERB)
    stamp(a, 11)
    if E('APOS', 0) == 1:
        for x in aloads: a.I(x)
    if E('ONLYB', 0) or E('NOA', 0): a.I('s_waitcnt vmcnt(0)')
    else: tag_check(a, aloads, AL, TG, TM, 57, NQ, E('ABACKOFF', 8))
    a.I('s_or_b32 s56, s22, s3\n s_cmp_lg_u32 s56, 0\n s_cbranch_scc1 L_b_end')
    a.I(f's_mov_b64 exec, 0xffffffff\n v_mov_b32 {v(t0)}, s57\n v_lshlrev_b32 {v(t1)}, 2, v0\n s_mov_b32 s56, {EP_OFF}')
    a.I(f'buffer_store_dword {v(t0)}, {v(t1)}, s[44:47], s56 offen sc1\n s_mov_b64 exec, -1')
    a.label('L_b_end', keep=True)
    OUTM = E('OUTM', 1)
    b = Block(a, 'final')
    unpack(a, LI0, AL, vun, 1, 512)
    AA = R + 16
    for ot in range(4): b.I(f'ds_read_b64_tr_b16 {v(AA+2*ot,2)}, {v(vta)} offset:{LI0+512*ot}')
    b.I(f'v_lshlrev_b32 {v(NQ+1)}, 16, {v(NQ)}\n v_and_b32 {v(NQ)}, 0xffff0000, {v(NQ)}\n v_mul_f32 {v(NQ+1)}, {v(NQ+1)}, {v(NC)}\n v_fma_f32 {v(NQ)}, -{v(NQ)}, {v(NS)}, {v(NQ+1)}')
    b.I(f'v_add_f32_dpp {v(NQ)}, {v(NQ)}, {v(NQ)} row_ror:8 row_mask:0xf bank_mask:0xf')
    b.I(f'v_mov_b32 {v(NQ+1)}, {v(NQ)}\n v_permlane16_swap_b32 {v(NQ)}, {v(NQ+1)}\n v_add_f32 {v(NQ)}, {v(NQ)}, {v(NQ+1)}')
    b.I(f'v_mov_b32 {v(NQ+1)}, {v(NQ)}\n v_permlane32_swap_b32 {v(NQ)}, {v(NQ+1)}\n v_add_f32 {v(NQ)}, {v(NQ)}, {v(NQ+1)}\n v_mul_f32 {v(NQ)}, {v(NQ)}, {v(G2+1)}')
    for i in range(16): b.I(f'v_fma_f32 {v(A2+i)}, {v(G2+1)}, {v(A2+i)}, {v(SKL[i])}\n v_{"sub" if i & 1 else "add"}_f32 {v(A2+i)}, {v(A2+i)}, {v(NQ)}')
    AF = ACC
    for ot in range(4):
        for p in range(2):
            b.I(f'v_lshlrev_b32 {v(AF+4*ot+2*p)}, 16, {v(AA+2*ot+p)}\n v_and_b32 {v(AF+4*ot+2*p+1)}, 0xffff0000, {v(AA+2*ot+p)}')
        for p in range(2):
            x = AF+4*ot+2*p; bb = A2+4*ot+2*p
            b.I(f'v_fmac_f32 {v(bb)}, {v(x)}, {v(G2)}\n v_fmac_f32 {v(bb+1)}, {v(x+1)}, {v(G2)}')
            cvt(b, X+2*ot+p, bb, bb+1)
        if OUTM == 0:
            b.I(f'buffer_store_dwordx2 {v(X+2*ot,2)}, {v(vst)}, s[12:15], s9 offen offset:{256*ot}')
        else: b.I(f'ds_write_b64 {v(vos)}, {v(X+2*ot,2)} offset:{LX+256*ot}')
    b.emit(VERB)
    if OUTM:
        fl = {1: 'sc1', 2: 'nt', 3: '', 4: 'sc0 sc1'}[OUTM]
        a.I('s_waitcnt lgkmcnt(0)\n s_barrier')
        a.I(f'ds_read_b128 {v(R,4)}, {v(vor)} offset:{LX}\n ds_read_b128 {v(R+4,4)}, {v(vor)} offset:{LX+OS}')
        a.I(f'buffer_store_dwordx4 {v(R,4)}, {v(vl16)}, s[12:15], s24 offen {fl}\n buffer_store_dwordx4 {v(R+4,4)}, {v(vl16)}, s[12:15], s25 offen {fl}')
    endpgm(a, 44, 13, 0)

RS = 544
TB_CH = 53 * RS
KF_OFF = 2 * TB_CH + 64
KF_CH = 2368 + 64
K8_OFF = KF_OFF + 2 * KF_CH
K8_CH = 512
LU = K8_OFF + 2 * K8_CH
U_CH = 4608
LDS_BYTES = LU + 2 * U_CH
LK = 0
KC = 2240
LRED = 4 * KC
LAO = LRED + 16384
def cmul(a, d, x, y, t):
    if E('PKCHAIN', 1):
        a.I(f'v_pk_mul_f32 {v(t,2)}, {v(x,2)}, {v(y,2)} op_sel_hi:[0,1]')
        a.I(f'v_pk_fma_f32 {v(d,2)}, {v(x,2)}, {v(y,2)}, {v(t,2)} op_sel:[1,1,0] op_sel_hi:[1,0,1] neg_lo:[1,0,0]')
    else:
        a.I(f'v_mul_f32 {v(t)}, {v(x)}, {v(y)}\n v_mul_f32 {v(t+1)}, {v(x)}, {v(y+1)}')
        a.I(f'v_fma_f32 {v(d)}, -{v(x+1)}, {v(y+1)}, {v(t)}\n v_fma_f32 {v(d+1)}, {v(x+1)}, {v(y)}, {v(t+1)}')

class RoleA:
  def pre(self, a):
    V = self.V = VAlloc(1, 128); W = self.W = VAlloc(128, 256)
    a.label('L_a_pre', keep=True)
    if E('ONLYB', 0): a.I('s_endpgm')
    a.I(f's_setprio {E("APRIO", 2)}')
    task_of(a, 22, 23)
    n, q = self.n, self.q = lanes(a, V)
    t0 = self.t0 = V.get(); t1 = self.t1 = V.get()
    vp = W.get(); a.I(f'v_lshlrev_b32 {v(vp)}, 1, v0')
    vch = self.vch = V.get(); a.I(f'v_lshrrev_b32 {v(vch)}, 7, v0')
    vd = W.get(); a.I(f'v_lshlrev_b32 {v(vd)}, 1, {v(vch)}')
    vut = W.get()
    a.I(f'v_and_b32 {v(t1)}, 0xc0, v0\n v_lshl_add_u32 {v(t1)}, {v(n)}, 2, {v(t1)}\n v_lshl_add_u32 {v(vut)}, {v(q)}, 13, {v(t1)}')
    a.I('s_lshl_b32 s24, s22, 9\n s_lshl_b32 s25, s22, 2\n s_lshr_b32 s26, s23, 2\n s_lshl_b32 s26, s26, 3\n s_and_b32 s27, s2, 7\n s_add_u32 s26, s26, s27\n s_and_b32 s27, s23, 3')
    a.I(f's_lshl_b32 s28, s26, 15\n s_lshl_b32 s29, s27, 8\n s_add_u32 s28, s28, s29\n s_add_u32 s29, s28, 4096')
    a.I('s_mov_b32 s34, 131072\n s_mov_b32 s35, 0x00020000\n s_mov_b32 s38, 131072\n s_mov_b32 s39, 0x00020000\n s_mov_b32 s42, 1024\n s_mov_b32 s43, 0x00020000\n s_mov_b32 s46, 2097152\n s_mov_b32 s47, 0x00020000')
    a.I('s_waitcnt lgkmcnt(0)'); stamp(a, 1)
    self.PR = LA, AI, CR, CI, LD, DS = tuple(V.get() for _ in range(6))
    if E('TF', 0):
        a.I('s_mov_b32 s44, s4\n s_mov_b32 s45, s5')
        UTL = self.UTL = W.get(8)
        for e in range(8):
            if not E('NOTILE', 0): a.I(f'buffer_load_dword {v(UTL+e)}, {v(vut)}, s[44:47], s{28 if e < 4 else 29} offen offset:{(e%4)*1024}')
        srd(a, 48, 20, WS_BYTES)
        a.I(f's_add_u32 s20, s20, {EP_OFF}\n s_addc_u32 s21, s21, 0\n s_load_dword s4, s[20:21], 0')
    a.I(f's_mov_b32 s40, s14\n s_mov_b32 s41, s15\n buffer_load_short_d16_hi {v(LD)}, {v(vd)}, s[40:43], s25 offen')
    for k, r in enumerate((LA, AI, CR, CI)):
        d = 32 + 4*(k & 1)
        a.I(f's_mov_b32 s{d}, s{6+2*k}\n s_mov_b32 s{d+1}, s{7+2*k}\n buffer_load_short_d16_hi {v(r)}, {v(vp)}, s[{d}:{d+3}], s24 offen')
    if not E('TF', 0):
        a.I('s_mov_b32 s44, s4\n s_mov_b32 s45, s5')
        UTL = self.UTL = W.get(8)
        for e in range(8):
            if not E('NOTILE', 0): a.I(f'buffer_load_dword {v(UTL+e)}, {v(vut)}, s[44:47], s{28 if e < 4 else 29} offen offset:{(e%4)*1024}')
        srd(a, 48, 20, WS_BYTES)
        a.I(f's_add_u32 s20, s20, {EP_OFF}\n s_addc_u32 s21, s21, 0\n s_load_dword s4, s[20:21], 0')
    stamp(a, 12, False)
    self.st = (list(a.vm), list(a.lg))
  def body(self, a):
    V, W, n, q, t0, t1, vch, UTL = self.V, self.W, self.n, self.q, self.t0, self.t1, self.vch, self.UTL
    LA, AI, CR, CI, LD, DS = self.PR
    TOK, CH, HR = 4, 6, 7
    b = Block(a, 'a_shadow')
    vt16 = V.get(); b.I(f'v_lshlrev_b32 {v(vt16)}, 4, v0')
    vuts = W.get()
    UTC = E('UTC', 0)
    vul = vt16
    if not UTC:
        b.I(f'v_mul_u32_u24 {v(vuts)}, {BS//4}, {v(t1)}\n v_lshl_add_u32 {v(vuts)}, {v(q)}, 4, {v(vuts)}')
        b.I(f's_mul_i32 s27, s27, {64*BS}\n s_lshl_b32 s26, s26, 7\n s_add_u32 s26, s26, s27\n s_add_u32 s26, s26, {UT_OFF}\n s_add_u32 s27, s26, 4096\n s_add_u32 s28, s26, 8192')
    else:
        vul = V.get()
        b.I(f'v_lshlrev_b32 {v(vuts)}, 5, {v(t1)}\n v_lshl_add_u32 {v(vuts)}, {v(q)}, 4, {v(vuts)}\n s_mul_i32 s26, s22, {BS}\n s_add_u32 s26, s26, {UT_OFF}')
        b.I(f'v_bfe_u32 {v(vul)}, v0, 3, 3\n v_mul_u32_u24 {v(vul)}, {32*BS}, {v(vul)}\n v_and_b32 {v(t0)}, 0x70, {v(vt16)}\n v_add_u32 {v(vul)}, {v(vul)}, {v(t0)}')
    if E('PRE', 0) & 8:
        b.emit(VERB)
        a.I(f's_mov_b64 exec, 0xffff\n buffer_load_dword v253, {v(vuts)}, s[48:51], s26 offen\n s_mov_b64 exec, -1')
    b.I('s_mov_b32 s8, 0x05040100\n s_mov_b32 s9, 0x07060302')
    b.I(f's_and_b32 s{CH}, s3, 1\n s_lshr_b32 s{HR}, s3, 1\n s_mul_i32 s10, s{HR}, {TB_CH}\n s_lshl_b32 s11, s{CH}, 8\n s_add_u32 m0, s10, s11')
    if not UTC: b.I(f's_mul_i32 s52, s22, {BS}\n s_add_u32 s52, s52, {UT_OFF}\n s_add_u32 s53, s52, 4096')
    else: b.I(f's_lshr_b32 s52, s22, 6\n s_lshl_b32 s53, s3, 2\n s_add_u32 s52, s52, s53\n s_mul_i32 s52, s52, {BS}\n s_and_b32 s53, s22, 63\n s_lshl_b32 s53, s53, 7\n s_add_u32 s52, s52, s53\n s_add_u32 s52, s52, {UT_OFF}\n s_add_u32 s53, s52, {16*BS}')
    U0 = V.get(12, 4); EG = V.get(9, 1); TM = V.get(3, 1)
    J0, sh, JM, cst, kfb, yy, y1, y2, y3, y4, y5, y6 = (W.get() for _ in range(12))
    zero = V.get(); vks = V.get(); veg = V.get(); vem = V.get()
    b.I(f'v_mul_u32_u24 {v(kfb)}, {KF_CH}, {v(vch)}\n v_mov_b32 {v(zero)}, 0\n ds_write_b32 {v(kfb)}, {v(zero)} offset:{KF_OFF-8}')
    b.I(f'v_and_b32 {v(y6)}, 31, v0\n v_lshlrev_b32 {v(y6)}, 2, {v(y6)}\n v_lshl_add_u32 {v(y6)}, {v(vch)}, 9, {v(y6)}\n ds_write_b32 {v(y6)}, {v(zero)} offset:{K8_OFF}')
    b.I(f'v_mul_u32_u24 {v(y1)}, {U_CH - 512}, {v(vch)}\n v_lshl_add_u32 {v(y1)}, v0, 2, {v(y1)}\n v_add_u32 {v(y1)}, {LU}, {v(y1)}\n ds_write_b32 {v(y1)}, {v(zero)}')
    b.I(f'v_mov_b32 {v(y2)}, 0x3f80\n ds_write_addtid_b32 {v(y2)} offset:{21*RS}')
    vra = V.get(); vrb = V.get(); KW = V.get(4, 1); kw1 = V.get(); kw2 = V.get(); va = V.get(); vb = V.get(3, 1); vkz = V.get(); vuw = V.get(); vk8 = V.get(2, 1); vf = V.get(2, 1); BND = V.get(8, 4)
    b.I(f's_mul_i32 s10, s{CH}, {TB_CH}\n s_mul_i32 s11, s{HR}, {16*RS}\n s_add_u32 s11, s11, {21*RS}')
    b.I(f'v_mul_u32_u24 {v(vra)}, {RS}, {v(n)}\n v_lshl_add_u32 {v(vra)}, {v(q)}, 4, {v(vra)}\n v_add_u32 {v(vra)}, s10, {v(vra)}\n v_add_u32 {v(vrb)}, s11, {v(vra)}')
    def mid():
        J0, sh, JM, cst, kfb, yy, y3, y4, y5, y6 = range(232, 242)
        b.I(f's_mul_i32 s12, s{CH}, {KF_CH}\n s_mul_i32 s13, s{HR}, 288\n s_add_u32 s12, s12, s13\n s_add_u32 s12, s12, {KF_OFF}')
        b.I(f'v_lshlrev_b32 {v(kw1)}, 4, {v(n)}\n v_lshrrev_b32 {v(y3)}, 1, {v(n)}\n v_lshl_add_u32 {v(kw1)}, {v(y3)}, 2, {v(kw1)}\n v_add_u32 {v(kw1)}, s12, {v(kw1)}')
        b.I(f'v_lshlrev_b32 {v(t0)}, 3, {v(q)}\n s_mov_b32 s14, 0x90480100\n s_mov_b32 s15, 0x08040202\n s_mov_b32 s16, 0x90020101')
        b.I(f'v_bfe_u32 {v(KW)}, s14, {v(t0)}, 8\n v_lshl_add_u32 {v(KW)}, {v(KW)}, 3, {v(kw1)}')
        b.I(f'v_bfe_u32 {v(y3)}, s15, {v(t0)}, 8\n v_add_u32 {v(KW+1)}, {v(KW)}, {v(y3)}')
        b.I(f'v_bfe_u32 {v(KW+2)}, s16, {v(t0)}, 8\n v_lshl_add_u32 {v(KW+2)}, {v(KW+2)}, 2, {v(KW)}\n v_add_u32 {v(KW+3)}, {v(KW+2)}, {v(y3)}')
        b.I(f's_lshl_b32 s19, s{CH}, 9\n s_add_u32 s19, s19, {K8_OFF}\n s_lshl_b32 s13, s{HR}, 5\n s_add_u32 s13, s13, s19\n s_add_u32 s13, s13, 126')
        b.I(f'v_add_u32 {v(y5)}, 2304, {v(kw1)}\n v_lshlrev_b32 {v(kw1)}, 1, {v(n)}\n v_add_u32 {v(kw1)}, s13, {v(kw1)}')
        b.I(f'v_mov_b32 {v(y4)}, {LU + 512}\n v_cmp_eq_u32 vcc, 0, {v(q)}\n v_cndmask_b32 {v(kw2)}, {v(y4)}, {v(kw1)}, vcc')
        b.I(f'v_add_u32 {v(y4)}, 256, {v(kw1)}\n v_cmp_eq_u32 vcc, 1, {v(q)}\n v_cndmask_b32 {v(kw1)}, {v(kw2)}, {v(y4)}, vcc')
        b.I(f'v_and_b32 {v(y4)}, 0xbf, v0\n v_cmp_eq_u32 vcc, 0, {v(y4)}\n v_cndmask_b32 {v(kw1)}, {v(kw1)}, {v(y5)}, vcc')
        b.I(f'v_and_b32 {v(yy)}, 127, v0\n v_lshlrev_b32 {v(J0)}, 3, {v(yy)}\n v_sub_u32 {v(J0)}, 1016, {v(J0)}')
        b.I(f'v_mul_u32_u24 {v(vks)}, {2*KC}, {v(vch)}\n v_lshl_add_u32 {v(vks)}, {v(yy)}, 4, {v(vks)}')
        b.I(f'v_or_b32 {v(sh)}, 1, {v(J0)}\n v_ffbh_u32 {v(sh)}, {v(sh)}\n v_sub_u32 {v(sh)}, 24, {v(sh)}\n v_max_i32 {v(sh)}, 0, {v(sh)}')
        b.I(f'v_add_u32 {v(JM)}, 150, {v(sh)}\n v_lshlrev_b32 {v(JM)}, 23, {v(JM)}')
        b.I(f'v_mul_u32_u24 {v(kfb)}, {KF_CH}, {v(vch)}\n v_add_u32 {v(kfb)}, {KF_OFF}, {v(kfb)}')
        b.I(f'v_lshrrev_b32 {v(yy)}, {v(sh)}, {v(J0)}\n v_add_u32 {v(sh)}, 1, {v(sh)}')
        b.I(f'v_add_u32 {v(JM)}, {v(JM)}, {v(yy)}\n v_lshlrev_b32 {v(cst)}, {v(sh)}, {v(JM)}')
        b.I(f'v_lshrrev_b32 {v(yy)}, 4, {v(J0)}\n v_lshl_add_u32 {v(yy)}, {v(yy)}, 2, {v(kfb)}\n v_lshl_add_u32 {v(EG+1)}, {v(J0)}, 1, {v(yy)}\n v_sub_u32 {v(cst)}, {v(EG+1)}, {v(cst)}')
        b.I(f'v_add_u32 {v(yy)}, 16, {v(EG+1)}\n v_bfe_u32 {v(y5)}, {v(J0)}, 3, 1\n v_lshlrev_b32 {v(y5)}, 2, {v(y5)}')
        for e in range(1, 8):
            b.I(f'v_add_f32 {v(EG+1+e)}, {f32(float(e))}, {v(JM)}')
            b.I(f'v_lshl_add_u32 {v(EG+1+e)}, {v(EG+1+e)}, {v(sh)}, {v(cst)}')
            if e >= 6: b.I(f'v_cmp_eq_u32 vcc, {v(EG+1+e)}, {v(yy)}\n v_cndmask_b32 {v(EG)}, 0, {v(y5)}, vcc\n v_add_u32 {v(EG+1+e)}, {v(EG+1+e)}, {v(EG)}')
        b.I(f'v_sub_u32 {v(y5)}, 6, {v(y5)}\n v_cmp_ge_u32 vcc, 256, {v(J0)}\n v_cndmask_b32 {v(yy)}, 0, {v(y5)}, vcc\n v_sub_u32 {v(EG)}, {v(EG+1)}, {v(yy)}')
        b.I(f'v_add_u32 {v(veg)}, 2304, {v(kfb)}')
        b.I(f'v_bfe_u32 {v(y6)}, v0, 6, 1\n v_lshl_add_u32 {v(y6)}, {v(n)}, 1, {v(y6)}\n v_and_b32 {v(yy)}, 16, v0\n v_cmp_ne_u32 vcc, 0, {v(yy)}\n v_cndmask_b32 {v(y6)}, {v(y6)}, 0, vcc')
        b.I(f'v_mov_b32 {v(vem)}, 0x10000\n v_cmp_le_u32 vcc, 26, {v(y6)}\n v_cndmask_b32 {v(vem)}, 0, {v(vem)}, vcc\n v_cmp_le_u32 vcc, 27, {v(y6)}\n v_cndmask_b32 {v(y6)}, 0, 1, vcc\n v_or_b32 {v(vem)}, {v(vem)}, {v(y6)}')
        b.I(f's_mul_i32 s18, s3, {KC}\n v_and_b32 {v(y3)}, 16, v0\n v_mul_u32_u24 {v(y3)}, 132, {v(y3)}\n v_lshl_add_u32 {v(vkz)}, {v(n)}, 2, {v(y3)}\n v_add_u32 {v(vkz)}, s18, {v(vkz)}\n v_lshrrev_b32 {v(vuw)}, 3, v0\n v_lshlrev_b32 {v(vuw)}, 6, {v(vuw)}\n v_and_b32 {v(y3)}, 48, {v(vt16)}\n v_add_u32 {v(vuw)}, {v(vuw)}, {v(y3)}\n v_bfe_u32 {v(y3)}, v0, 2, 1\n v_mul_u32_u24 {v(y3)}, {U_CH}, {v(y3)}\n v_add_u32 {v(vuw)}, {v(vuw)}, {v(y3)}\n v_add_u32 {v(vuw)}, {LU + 512}, {v(vuw)}')
    if not E('MID', 0): mid()
    np_ = V.get()
    def late():
        y3 = 246
        b.I(f'v_lshlrev_b32 {v(t0)}, 3, {v(q)}\n s_lshl_b32 s13, s{HR}, 1\n v_xor_b32 {v(np_)}, s13, {v(n)}')
        b.I(f's_lshl_b32 s13, s{HR}, 8\n s_mul_i32 s12, s{CH}, {U_CH}\n s_sub_u32 s12, s12, s13\n s_add_u32 s12, s12, {LU + 512 - 32 - 192}')
        b.I(f'v_lshlrev_b32 {v(va)}, 5, {v(np_)}\n v_lshl_add_u32 {v(va)}, {v(q)}, 4, {v(va)}\n v_add_u32 {v(va)}, s12, {v(va)}')
        b.I(f's_mul_i32 s17, s{CH}, {2*KC}\n s_sub_u32 s17, s17, s13\n s_add_u32 s17, s17, {LK - 192 - 512}')
        b.I(f'v_sub_u32 {v(t1)}, {v(t0)}, {v(n)}\n v_add_u32 {v(t1)}, 1039, {v(t1)}')
        b.I(f'v_and_b32 {v(y3)}, 1, {v(t1)}\n v_mul_u32_u24 {v(y3)}, {KC}, {v(y3)}\n v_lshrrev_b32 {v(t1)}, 1, {v(t1)}')
        b.I(f'v_lshl_add_u32 {v(vb)}, {v(t1)}, 2, {v(y3)}\n v_add_u32 {v(vb)}, s17, {v(vb)}\n v_add_u32 {v(vb+1)}, -1024, {v(vb)}')
        b.I(f'v_add_u32 {v(vb+2)}, {192 + 512 - 2048}, {v(vb)}\n v_mov_b32 {v(y3)}, {LU}\n s_cmp_eq_u32 s{HR}, 0\n s_cselect_b64 s[30:31], -1, 0\n v_cndmask_b32 {v(vb+2)}, {v(y3)}, {v(vb+2)}, s[30:31]')
    def late2(b):
        y4 = t1
        b.I(f'v_lshlrev_b32 {v(y4)}, 5, {v(n)}\n v_lshl_add_u32 {v(y4)}, {v(q)}, 4, {v(y4)}')
        b.I(f's_mul_i32 s29, s{HR}, 768\n s_add_u32 s29, s29, s12\n s_add_u32 s29, s29, {192 - 16}\n v_add_u32 {v(vf)}, s29, {v(y4)}\n s_sub_u32 s29, s12, s13\n s_add_u32 s29, s29, {192 - 16 + 1536}\n v_add_u32 {v(vf+1)}, s29, {v(y4)}')
        b.I(f'v_lshlrev_b32 {v(y4)}, 2, {v(q)}\n v_sub_u32 {v(y4)}, {v(np_)}, {v(y4)}\n v_lshlrev_b32 {v(y4)}, 2, {v(y4)}\n s_lshl_b32 s13, s{HR}, 6')
        b.I(f's_sub_u32 s29, s19, s13\n s_add_u32 s29, s29, {128 - 12}\n v_add_u32 {v(vk8)}, s29, {v(y4)}\n s_add_u32 s29, s19, s13\n s_sub_u32 s29, s29, {64 + 12}\n v_add_u32 {v(vk8+1)}, s29, {v(y4)}')
        for k, (w_, s0) in enumerate(((7, 5), (9, 4))):
            b.I(f'v_mov_b32 {v(y4)}, {((1 << w_) - 1) << s0}\n v_lshlrev_b32 {v(y4)}, {v(n)}, {v(y4)}\n v_lshrrev_b32 {v(y4)}, {v(t0)}, {v(y4)}')
            for i in range(4):
                d = BND + 4*k + i
                b.I(f'v_bfe_u32 {v(d)}, {v(y4)}, {2*i}, 2\n v_mul_u32_u24 {v(d)}, 0x8001, {v(d)}\n v_and_b32 {v(d)}, 0x10001, {v(d)}\n v_mul_u32_u24 {v(d)}, 0x3f80, {v(d)}')
    if not E('LATE', 1): late()
    b.emit(VERB)
    if E('PRE', 0) & 4:
        a.I(f'v_lshlrev_b32 {v(y1)}, 7, {v(n)}\n s_mul_i32 s62, s22, {BS}\n s_lshl_b32 s63, s3, 11\n s_add_u32 s62, s62, s63\n s_add_u32 s62, s62, {AW_OFF}\n s_mov_b64 exec, 0xffff')
        a.I(f'buffer_load_dword v254, {v(y1)}, s[48:51], s62 offen\n s_mov_b64 exec, -1')
    stamp(a, 2)
    def utpub():
        mktok(a, TOK, 5)
        TU = U0 + 8
        tagregs(b, TU, y1, TOK, 5, f'v_lshlrev_b32 {v(y1)}, 2, {v(q)}', False)
        for i in range(4):
            b.I(f'v_perm_b32 {v(U0+i)}, {v(UTL+2*i+1)}, {v(UTL+2*i)}, s8\n v_bfi_b32 {v(U0+i)}, s5, {v(TU+i)}, {v(U0+i)}')
            b.I(f'v_perm_b32 {v(U0+4+i)}, {v(UTL+2*i+1)}, {v(UTL+2*i)}, s9\n v_bfi_b32 {v(U0+4+i)}, s5, {v(TU+i)}, {v(U0+4+i)}')
        for k in range(2): b.I(f'buffer_store_dwordx4 {v(U0+4*k,4)}, {v(vuts)}, s[48:51], s26 offen offset:{64*k} sc1 ;!3000')
    TG = V.get(4, 1)
    dt = W.get(); ar_ = W.get(); rev = W.get()
    b = Block(a, 'a_chain')
    if E('UTPOS', 0) < 0:
        utpub(); b.emit(VERB); stamp(a, 4)
    b.I(f'v_mul_f32 {v(dt)}, {f32(LOG2E)}, {v(LD)}\n v_mul_f32 {v(ar_)}, {f32(LOG2E)}, {v(LA)}\n v_exp_f32 {v(dt)}, {v(dt)}\n v_exp_f32 {v(ar_)}, {v(ar_)}')
    cvt(b, t0, dt, ar_)
    b.I(f'v_lshlrev_b32 {v(dt)}, 16, {v(t0)}\n v_and_b32 {v(ar_)}, 0xffff0000, {v(t0)}')
    b.I(f'v_mul_f32 {v(ar_)}, {v(ar_)}, {v(dt)}\n v_mul_f32 {v(ar_)}, {f32(-LOG2E)}, {v(ar_)}')
    b.I(f'v_mul_f32 {v(rev)}, {v(AI)}, {v(dt)}\n v_mul_f32 {v(rev)}, 0.15915494, {v(rev)}')
    Z = {}
    mag = W.get(4); ang = W.get(4)
    for k, p in enumerate((8, 1, 128, 256)):
        Z[p] = W.get(2)
        b.I(f'v_mul_f32 {v(mag+k)}, {f32(float(p))}, {v(ar_)}\n v_mul_f32 {v(ang+k)}, {f32(float(p))}, {v(rev)}')
        b.I(f'v_fract_f32 {v(ang+k)}, {v(ang+k)}\n v_exp_f32 {v(mag+k)}, {v(mag+k)}')
        b.I(f'v_cos_f32 {v(Z[p])}, {v(ang+k)}\n v_sin_f32 {v(Z[p]+1)}, {v(ang+k)}')
    Ee = W.get(16)
    b.I(f'v_mul_f32 {v(dt)}, {f32(2.0 * BC * BC)}, {v(dt)}\n v_mul_f32 {v(Ee)}, {v(CR)}, {v(dt)}\n v_mul_f32 {v(Ee+1)}, {v(CI)}, {v(dt)}')
    for k, p in enumerate((8, 1, 128, 256)):
        b.I(f'v_mul_f32 {v(Z[p])}, {v(mag+k)}, {v(Z[p])}\n v_mul_f32 {v(Z[p]+1)}, {v(mag+k)}, {v(Z[p]+1)}')
    TT = W.get(8); PK = W.get(8); O = W.get(4); H = W.get(4)
    cnt = [0]
    def put(row, x, neg):
        r = PK + cnt[0] % 8; cnt[0] += 1
        cvt(b, r, x, x+1, False, neg)
        b.I(f'ds_write_addtid_b32 {v(r)} offset:{row*RS} ;@T{row}')
    offs_ops = []; cur = Z[8]
    offs_ops.append(lambda: (put(21+1, Z[8], False), put(21+16, Z[128], False)))
    offs_ops.append(lambda: (cmul(b, H, Z[8], Z[128], TT+2), put(21+17, H, False)))
    for i in range(2, 16):
        nxt = O + 2*(i % 2)
        def f(i=i, cur=cur, nxt=nxt):
            cmul(b, nxt, cur, Z[8], TT); cmul(b, H + 2*(i % 2), nxt, Z[128], TT+2)
            put(21+i, nxt, False); put(21+16+i, H + 2*(i % 2), False)
        offs_ops.append(f); cur = nxt
    base_ops = [lambda: put(0, Ee, True)]
    for e in range(1, 8): base_ops.append(lambda e=e: (cmul(b, Ee+2*e, Ee+2*e-2, Z[1], TT+4), put(e, Ee+2*e, True)))
    for k, e in enumerate((0, 2, 4, 6)): base_ops.append(lambda k=k, e=e: (cmul(b, Ee+2*e, Ee+2*e, Z[256], TT+4), put(8+k, Ee+2*e, True)))
    for i in range(2):
        for k, e in enumerate((0, 4)): base_ops.append(lambda i=i, k=k, e=e: (cmul(b, Ee+2*e, Ee+2*e, Z[256], TT+4), put(12+2*i+k, Ee+2*e, True)))
    for i in range(5): base_ops.append(lambda i=i: (cmul(b, Ee, Ee, Z[256], TT+4), put(16+i, Ee, True)))
    uloads = [f'buffer_load_dwordx4 {v(U0+4*k,4)}, {v(vul)}, s[48:51], s{52+k} offen sc1' for k in range(2)]
    it = 0
    while offs_ops or base_ops:
        if E('UPOS', 1) == 3 and it == E('UIT', 12):
            b.emit(VERB)
            for x in uloads: a.I(x)
        if it == E('UTPOS', 0):
            b.emit(VERB); stamp(a, 4); utpub()
        it += 1
        if offs_ops: offs_ops.pop(0)()
        if base_ops: base_ops.pop(0)()
    ACCK = V.get(8, 4); PK = V.get(4)
    b.emit(VERB)
    if E('UPOS', 1) == 2:
        for x in uloads: a.I(x)
    if E('KPRIO', -1) >= 0: a.I(f's_setprio {E("KPRIO", -1)}')
    a.I('s_waitcnt lgkmcnt(0)\n s_barrier'); stamp(a, 5)
    S = [128, 192]; FR = 128
    if E('UPOS', 1) == 0:
        for x in uloads: a.I(x)
    b = Block(a, 'kmfma')
    for k in range(8):
        b.I(f'ds_read_b128 {v(FR+12*k,4)}, {v(vrb)} offset:{64*k} ;@T')
        b.I(f'ds_read_b128 {v(FR+12*k+4,4)}, {v(vra)} offset:{64*k} ;@T')
        b.I(f'ds_read_b128 {v(FR+12*k+8,4)}, {v(vra)} offset:{64*k+16*RS} ;@T')
    for k in range(8):
        mfma(b, ACCK, FR+12*k+4, FR+12*k, '0' if k == 0 else ACCK); mfma(b, ACCK+4, FR+12*k+8, FR+12*k, '0' if k == 0 else ACCK+4)
    if E('MID', 0): mid()
    if E('LATE', 1) == 2: late(); tagregs(b, TG, 245, TOK, 5)
    cvt(b, PK, ACCK, ACCK+1); cvt(b, PK+1, ACCK+2, ACCK+3); cvt(b, PK+2, ACCK+4, ACCK+5); cvt(b, PK+3, ACCK+6, ACCK+7)
    b.I(f'ds_write_b16 {v(KW)}, {v(PK)} ;@K0 ;!300\n ds_write_b16_d16_hi {v(KW+1)}, {v(PK)} ;@K1 ;!300\n ds_write_b16 {v(KW+2)}, {v(PK+1)} ;@K2 ;!300\n ds_write_b16_d16_hi {v(KW+3)}, {v(PK+1)} ;@K3 ;!300')
    b.I(f'ds_write_b16 {v(kw1)}, {v(PK+2)} ;@K4 ;!300\n ds_write_b16_d16_hi {v(kw2)}, {v(PK+2)} offset:64 ;@K5 ;!300')
    b.I(f'ds_write_b16 {v(kw2)}, {v(PK+3)} offset:128 ;@K6 ;!300\n ds_write_b16_d16_hi {v(kw2)}, {v(PK+3)} offset:192 ;@K7 ;!300')
    b.emit(VERB)
    if E('UPOS', 1) == 4:
        for x in uloads: a.I(x)
    a.I('s_waitcnt lgkmcnt(0)\n s_barrier'); stamp(a, 6)
    for e in range(8, -1, -1): a.I(f'ds_read_u16 {v(EG+e)}, {v(EG+e)}')
    a.I(f'ds_read_u16 {v(veg)}, {v(veg)}')
    if E('UPOS', 1) == 1 and not E('NOUT', 0):
        for x in uloads: a.I(x)
    EO = FR
    for bb in range(4):
        a.I(f'v_lshl_or_b32 {v(EO+bb)}, {v(EG+1+6-2*bb)}, 16, {v(EG+1+7-2*bb)}')
        a.I(f'v_lshl_or_b32 {v(EO+4+bb)}, {v(EG+1+5-2*bb)}, 16, {v(EG+1+6-2*bb)}')
    a.I(f'ds_write_b128 {v(vks)}, {v(EO,4)} offset:{LK+64}\n ds_write_b128 {v(vks)}, {v(EO+4,4)} offset:{LK+KC+64}')
    a.I(f'v_mul_u32_u24 {v(veg)}, {v(veg)}, {v(vem)}\n ds_write_b32 {v(vkz)}, {v(veg)} offset:{LK}')
    if E('LATE', 1) == 1: late()
    if E('LATE', 1) < 2:
        tagregs(b, TG, 245, TOK, 5); b.emit(VERB)
    if E('UPOS', 1) == 5:
        for x in uloads: a.I(x)
    stamp(a, 7)
    tag_check(a, uloads, U0, TG, TM, TOK)
    a.I(f'ds_write_b128 {v(vuw)}, {v(U0,4)}\n ds_write_b128 {v(vuw)}, {v(U0+4,4)} offset:2048')
    a.I(f's_setprio {E("CPRIO", 2)}')
    a.I('s_waitcnt lgkmcnt(0)\n s_barrier'); stamp(a, 8)
    V.put(EG, 9); V.put(ACCK, 8); V.put(KW, 4); V.put(PK, 4); V.put(U0, 12)
    ACC = V.get(32, 4)
    b = Block(a, 'conv')
    S = [128, 176]; X = 224
    def loads(rl):
        L = []
        for k in range(8):
            if k < 4:
                o = 16*(3-rl) + (128 if k % 2 == 0 else 0)
                r = S[rl%2] + 32 + 4*k
                L += [f'ds_read2_b32 {v(r,2)}, {v(vb+k//2)} offset0:{o} offset1:{o+1}', f'ds_read2_b32 {v(r+2,2)}, {v(vb+k//2)} offset0:{o+2} offset1:{o+3}']
            L.append(f'ds_read_b128 {v(S[rl%2]+4*k,4)}, {v(va)} offset:{64*(3-rl)+512*k}')
        return L
    def mf(d, A, B, c): return f'v_mfma_f32_16x16x32_bf16 {v(d,4)}, {v(A,4)}, {v(B,4)}, {c if isinstance(c, str) else v(c,4)}'
    SB = V.get(8, 4); SD = V.get(16, 4)
    for x in loads(0): a.I(x)
    a.I(f'ds_read2_b32 {v(X,2)}, {v(vb+2)} offset0:0 offset1:1\n ds_read2_b32 {v(X+2,2)}, {v(vb+2)} offset0:2 offset1:3')
    L2 = E('L2', 1)
    bb = Block(a); late2(bb); fill = bb.l
    if not L2:
        pass
    extra = {0: [], 1: [], 2: []}
    for k in range(2):
        extra[1] += [f'ds_read_b128 {v(X+4+8*k,4)}, {v(vf+k)} offset:16', f'ds_read_b128 {v(X+8+8*k,4)}, {v(vf+k)}']
    def k8(r, k, T):
        o = 16*(T-4)
        return [f'ds_read2_b32 {v(r,2)}, {v(vk8+k)} offset0:{o+3} offset1:{o+2}', f'ds_read2_b32 {v(r+2,2)}, {v(vk8+k)} offset0:{o+1} offset1:{o}']
    far = [(0, 4), (0, 5), (0, 6), (0, 7), (1, 6), (1, 7)]
    for j, (k, T) in enumerate(far): extra[2] += k8(X+4*j, k, T)
    for k in range(2):
        for i in range(4): extra[2].append(f'v_cvt_pk_bf16_f32 {v(SB+4*k+i)}, {v(SD+8*k+i)}, {v(SD+8*k+4+i)}')
    for _ in range(24): a.I(fill.pop(0))
    for rl in range(4):
        pairs = sorted([(i, g) for i in range(8) for g in range(4) if i + g <= 7], key=lambda p: (max(p), p[0]+p[1]))
        if rl == 3: pairs = sorted(pairs, key=lambda p: (p[0]+p[1]) // 2)
        M = []; seen = set()
        for (i, g) in pairs:
            d = ACC + 4*(i+g)
            first = (rl == 0 and (i+g) not in seen); seen.add(i+g)
            M.append(mf(d, S[rl%2]+4*i, S[rl%2]+32+4*g, '0' if first else d))
        if rl == 0: M += [mf(ACC+4*(i+4), S[0]+4*i, X, ACC+4*(i+4)) for i in range(4)]
        if rl == 1: M += [mf(SD+8*k+4*h, X+4+8*k+4*h, BND+4*h, '0') for k in range(2) for h in range(2)]
        if rl == 3:
            tailM = [mf(ACC+4*T, X+4*j, SB+4*k, ACC+4*T) for j, (k, T) in enumerate(far)] + M; break
        nxt = (extra[rl] + loads(rl+1)) if rl == 1 else (loads(rl+1) + extra[rl])
        for k, x in enumerate(M):
            a.I(x)
            if k >= (4 if rl == 0 else 0):
                for _ in range(2 if (rl == 2 and k % 2) else 1):
                    if nxt: a.I(nxt.pop(0))
            if fill and rl < 2:
                a.I(fill.pop(0))
        for x in nxt: a.I(x)
    assert not fill
    vps = V.get()
    b.I(f's_mul_i32 s56, s3, 3072\n v_bfe_u32 {v(vps)}, v0, 1, 5\n v_mul_u32_u24 {v(vps)}, 48, {v(vps)}\n v_and_b32 {v(t0)}, 1, v0\n v_lshl_add_u32 {v(vps)}, {v(t0)}, 4, {v(vps)}\n v_add_u32 {v(vps)}, s56, {v(vps)}\n s_lshl_b32 s56, s3, 11')
    vrw = V.get(); vrr = V.get(); vao = V.get(); vl16 = V.get()
    b.I(f'v_lshlrev_b32 {v(vrw)}, 3, v0\n v_xor_b32 {v(vrr)}, 1024, {v(vrw)}')
    b.I(f'v_lshlrev_b32 {v(vao)}, 6, {v(q)}\n v_add_u32 {v(vao)}, {v(vao)}, {v(n)}\n v_mul_u32_u24 {v(vao)}, 48, {v(vao)}\n s_mul_i32 s10, s{HR}, {32*48}\n s_lshl_b32 s11, s{CH}, 4\n s_add_u32 s10, s10, s11\n v_add_u32 {v(vao)}, s10, {v(vao)}')
    b.I(f'v_and_b32 {v(vl16)}, 1023, {v(vt16)}\n s_mul_i32 s62, s22, {BS}\n s_add_u32 s62, s62, s56\n s_add_u32 s62, s62, {AW_OFF}')
    R = S[0] + 16
    fl = b.l; b.l = []
    last = {}
    for k, x in enumerate(tailM): last[int(x.split('v[')[1].split(':')[0])] = k
    pend = []
    for k, x in enumerate(tailM):
        a.I(x)
        for _ in range(2):
            if fl: a.I(fl.pop(0))
        for i in range(8):
            if last[ACC+4*i] + 4 == k and not fl: a.I(f'ds_write_b64 {v(vrw)}, {v(ACC+4*i+2,2)} offset:{LRED+2048*i}'); pend.append(i)
    for i in range(8):
        if i not in pend: a.I(f'ds_write_b64 {v(vrw)}, {v(ACC+4*i+2,2)} offset:{LRED+2048*i}')
    stamp(a, 9)
    a.I(f's_setprio {E("EPRIO", 3)}')
    a.I('s_waitcnt lgkmcnt(0)\n s_barrier')
    for i in range(8): a.I(f'ds_read_b64 {v(R+2*i,2)}, {v(vrr)} offset:{LRED+2048*i}')
    for i in range(16): a.I(f'v_add_f32 {v(R+i)}, {v(R+i)}, {v(ACC+4*(i//2)+(i&1))}')
    Oo = X
    for jj in range(2):
        for i in range(4): cvt(a, Oo+4*jj+i, R+4*i+jj, R+4*i+2+jj)
        a.I(f'ds_write_b128 {v(vao)}, {v(Oo+4*jj,4)} offset:{LAO+768*jj}')
    a.I('s_waitcnt lgkmcnt(0)\n s_barrier')
    if not E('NOA', 0): publish(a, LAO, X + 8, vps, TG, vl16, 48, 62, 5)
    endpgm(a, 48, 10, 1)

if __name__ == '__main__':
    out = sys.argv[1]
    a = Asm()
    a.raw(f'.globl {NAME}\n.p2align 8\n.type {NAME},@function\n{NAME}:')
    if PROF:
        for i in range(NST): a.I(f's_mov_b32 s{64+2*i}, 0')
        a.I('s_mov_b32 s60, 0')
    stamp(a, 0)
    a.I('s_load_dwordx16 s[4:19], s[0:1], 0\n s_load_dwordx2 s[20:21], s[0:1], 104\n s_load_dwordx8 s[48:55], s[0:1], 64')
    if PREFETCH:
        a.I(f's_cmp_ge_u32 s2, {8*PREFETCH}\n s_cbranch_scc1 L_nopf')
        a.I('s_getpc_b64 s[62:63]')
        a.label('L_pc', keep=True)
        a.I(f'v_lshlrev_b32 v1, 7, v0\n v_cmp_gt_u32 vcc, L_code_end-L_pc, v1\n s_and_saveexec_b64 s[58:59], vcc\n s_cbranch_execz L_pf2')
        a.I(f'global_load_dword v255, v1, s[62:63]')
        a.label('L_pf2', keep=True)
        a.I('s_mov_b64 exec, -1')
        a.label('L_nopf', keep=True); a.vm = []
    lo, hi = ('L_a_pre', 'L_b_pre') if AFIRST else ('L_b_pre', 'L_a_pre')
    a.I(f's_cmp_ge_u32 s2, 512\n s_cbranch_scc1 L_exit')
    if E('SEP', 0):
        a.I('s_bfe_u32 s4, s2, 0x10003\n s_bfe_u32 s5, s2, 0x10008\n s_and_b32 s2, s2, 0xf7\n s_lshl_b32 s4, s4, 8\n s_lshl_b32 s5, s5, 3\n s_or_b32 s2, s2, s4\n s_or_b32 s2, s2, s5')
    if E('SCRAMBLE', 0): a.I('s_lshr_b32 s58, s2, 3\n s_mul_i32 s58, s58, 37\n s_and_b32 s58, s58, 7\n s_xor_b32 s2, s2, s58\n s_bfe_u32 s58, s2, 0x10004\n s_lshl_b32 s58, s58, 8\n s_xor_b32 s2, s2, s58')
    a.I('s_cmp_lt_u32 s2, 256')
    A = RoleA()
    if E('BCODE', 2) == 2:
        a.I('s_cbranch_scc1 L_a_pre' if AFIRST else 's_cbranch_scc0 L_a_pre')
        def sp():
            a.reset(); a.lg = [('smem', {('s', i) for i in list(range(4, 22)) + list(range(48, 56))})]
            A.pre(a); A.body(a)
            a.label('L_exit'); a.I('s_endpgm')
        role_b(a, sp)
        nb = 0
    elif E('BCODE', 2):
        a.I('s_cbranch_scc1 L_a_pre' if AFIRST else 's_cbranch_scc0 L_a_pre')
        role_b(a)
        nb = a.ninst
        a.label('L_exit'); a.I('s_endpgm')
        a.reset(); a.lg = [('smem', {('s', i) for i in list(range(4, 22)) + list(range(48, 56))})]
        A.pre(a); A.body(a)
    else:
        a.I('s_cbranch_scc0 L_b_pre' if AFIRST else 's_cbranch_scc1 L_b_pre')
        A.pre(a)
        A.body(a)
        nb = a.ninst
        a.label('L_exit'); a.I('s_endpgm')
        role_b(a)
    a.raw('L_code_end:')
    nv = (a.maxv + 1 + 3) // 4 * 4
    print('vgpr', a.maxv + 1, 'sgpr', a.maxs + 1, 'ninst', nb, a.ninst - nb, 'lds', LDS_BYTES, file=sys.stderr)
    launch = f'; @launch kernel={NAME} grid=(512,1,1) block=(256,1,1) lds={LDS_BYTES}' if os.environ.get('LIST') else f'; @launch grid=(512,1,1) block=(256,1,1) lds={LDS_BYTES}'
    hdr = f'''; gated_mix( S4D causal conv , GFNet 2-D spectral filter ) -- one persistent launch, written by gen/gen35.py
{launch}
.amdgcn_target "amdgcn-amd-amdhsa--gfx950"
.text
'''
    kd = f'''.section .rodata,"a"
.p2align 6
.amdhsa_kernel {NAME}
  .amdhsa_next_free_vgpr {nv}
  .amdhsa_next_free_sgpr {a.maxs + 1}
  .amdhsa_accum_offset {nv}
  .amdhsa_group_segment_fixed_size 0
  .amdhsa_kernarg_size 112
  .amdhsa_user_sgpr_count 2
  .amdhsa_user_sgpr_kernarg_segment_ptr 1
  .amdhsa_system_sgpr_workgroup_id_x 1
.end_amdhsa_kernel
'''
    open(out, 'w').write(hdr + a.text() + kd)
```
